```python
import torch

def _softmax(x, axis=-1):
    return torch.softmax(x, dim=axis)
def _gelu(x):
    return torch.nn.functional.gelu(x, approximate="tanh")
def _silu(x):
    return torch.nn.functional.silu(x)
def _sigmoid(x):
    return torch.sigmoid(x)
def _layernorm(x, axis=-1, eps=1e-5):
    m = x.mean(dim=axis, keepdim=True)
    v = x.var(dim=axis, keepdim=True, unbiased=False)
    return (x - m) / torch.sqrt(v + eps)
def _scatter_add(tgt, idx, src, axis=0):
    return tgt.clone().index_add_(axis, idx, src)
def _segment_sum(src, seg, n):
    out = torch.zeros((n,) + src.shape[1:], dtype=src.dtype)
    return out.index_add_(0, seg, src)
def _pad(x, pw):
    flat = tuple(v for pair in reversed(pw) for v in pair)
    return torch.nn.functional.pad(x, flat)

kernel_name = 'standalone__dense_activation_silu__sampling'

def setup_inputs():

    _w = (lambda a: (lambda t: t.to(torch.bfloat16) if t.is_floating_point() else t)(torch.as_tensor(a)))
    B, S, D, F = 16, 32, 576, 4608
    return {
        "x": _w((lambda *s: torch.randn(*s, dtype=torch.bfloat16) * 0.1)(B, S, D)),
        "w1": _w((lambda *s: torch.randn(*s, dtype=torch.bfloat16) * 3.2)(D, F) * (D ** -0.5)),
        "w2": _w((lambda *s: torch.randn(*s, dtype=torch.bfloat16) * 3.2)(F, D) * (F ** -0.5)),
    }

def reference(x, w1, w2):
    h = torch.einsum("bsd,df->bsf", x, w1)
    h = _silu(h)
    out = torch.einsum("bsf,fd->bsd", h, w2)
    return out
```

```python
class Asm:
    def __init__(self):
        self.lines = []
    def __call__(self, s=""):
        for ln in s.split("\n"):
            self.lines.append(ln)
    def label(self, name):
        self.lines.append(name + ":")
    def text(self):
        return "\n".join(self.lines) + "\n"

def vr(base, n=1):
    return f"v{base}" if n == 1 else f"v[{base}:{base+n-1}]"
def sr(base, n=1):
    return f"s{base}" if n == 1 else f"s[{base}:{base+n-1}]"

HEADER = """; Kernarg layout for this problem (48 bytes, ptrs only, base s[0:1]):
"""

def kd(name, vgpr=256, sgpr=102, accum=None):
    if accum is None:
        accum = ((min(vgpr,256) + 3) // 4) * 4
    return f""".section .rodata,"a"
.p2align 6
.amdhsa_kernel {name}
  .amdhsa_next_free_vgpr {vgpr}
  .amdhsa_next_free_sgpr {sgpr}
  .amdhsa_accum_offset {accum}
  .amdhsa_group_segment_fixed_size 0
  .amdhsa_kernarg_size 48
  .amdhsa_user_sgpr_count 2
  .amdhsa_user_sgpr_kernarg_segment_ptr 1
  .amdhsa_system_sgpr_workgroup_id_x 1
  .amdhsa_float_denorm_mode_32 3
.end_amdhsa_kernel
.text
"""
```

```python
import sys
from common import *

X_BYTES = 512*576*2
W_BYTES = 576*4608*2
OUT_BYTES = 512*576*2
WS_BYTES = 268435456
H_OFF = 0
PART_OFF = 8*1024*1024
PART_XG = 8*4*4*9*1024
RING = 0
STAGE = 18432
LB = 4*STAGE
LDS_BYTES = 149504

S_X, S_W1, S_W2, S_OUT, S_DBG, S_WS = 4, 6, 8, 10, 12, 14
SRD_B, SRD_W, SRD_O = 16, 20, 24
S_WV, S_XG, S_J, S_MT = 28, 29, 30, 31
S_P, S_WOFF, S_DSLOT, S_RSLOT, S_T0, S_T1, S_T2, S_WLDS = 32, 33, 34, 35, 36, 37, 38, 39
V_L = 0
V_W = 1
V_XB = 6
V_B0, V_B1 = 8, 9
V_A, V_AC = 10, 11
V_T = 12
B0, B1 = 16, 20
A0, A1 = 24, 60
ACC = 96
V_E = 132

def srd(a, base, ptr, nbytes):
    a(f"s_mov_b32 s{base}, s{ptr}")
    a(f"s_mov_b32 s{base+1}, s{ptr+1}")
    a(f"s_mov_b32 s{base+2}, {nbytes}")
    a(f"s_mov_b32 s{base+3}, 0x20000")

def prologue_ids(a, nwg):
    a(f"s_cmp_ge_u32 s2, {nwg}")
    a("s_cbranch_scc1 L_END")
    a("s_load_dwordx8 s[4:11], s[0:1], 0")
    a("s_load_dwordx4 s[12:15], s[0:1], 32")
    a("v_lshrrev_b32 v1, 6, v0")
    a("v_and_b32 v0, 63, v0")
    a(f"v_readfirstlane_b32 s{S_WV}, v1")
    a(f"s_and_b32 s{S_XG}, s2, 7")
    a(f"s_lshr_b32 s{S_J}, s2, 3")
    a(f"s_and_b32 s{S_J}, s{S_J}, 3")
    a(f"s_lshr_b32 s{S_MT}, s2, 5")

def w_addr_setup(a, phase):
    stride = 9216 if phase == 1 else 1152
    if phase == 1:
        a(f"s_lshr_b32 s{S_T0}, s{S_WV}, 1")
        a(f"s_lshl_b32 s{S_T0}, s{S_T0}, 5")
        a(f"s_and_b32 s{S_T1}, s{S_WV}, 1")
        a(f"s_lshl_b32 s{S_T1}, s{S_T1}, 2")
        a(f"s_add_u32 s{S_T0}, s{S_T0}, s{S_T1}")
        a(f"s_and_b32 s{S_T1}, s{S_J}, 1")
        a(f"s_lshl_b32 s{S_T1}, s{S_T1}, 1")
    else:
        a(f"s_lshl_b32 s{S_T0}, s{S_WV}, 4")
    a(f"s_mov_b32 s{S_T2}, {stride}")
    t0, t1, t2 = V_T, V_T+1, V_T+2
    for i in range(5):
        a(f"v_add_u32 v{t0}, {64*i}, v{V_L}")
        a(f"v_mul_u32_u24 v{t1}, 3641, v{t0}")
        a(f"v_lshrrev_b32 v{t1}, 16, v{t1}")
        a(f"v_mul_u32_u24 v{t2}, 18, v{t1}")
        a(f"v_sub_u32 v{t0}, v{t0}, v{t2}")
        if phase == 1:
            a(f"v_add_u32 v{t0}, s{S_T1}, v{t0}")
            a(f"v_subrev_u32 v{t2}, 18, v{t0}")
            a(f"v_min_u32 v{t0}, v{t0}, v{t2}")
            a(f"v_lshrrev_b32 v{t2}, 2, v{t1}")
            a(f"v_and_b32 v{t1}, 3, v{t1}")
            a(f"v_lshl_add_u32 v{t1}, v{t2}, 3, v{t1}")
        a(f"v_add_u32 v{t1}, s{S_T0}, v{t1}")
        a(f"v_lshlrev_b32 v{t0}, 4, v{t0}")
        a(f"v_mad_u32_u24 v{V_W+i}, v{t1}, s{S_T2}, v{t0}")

def issue_stage(a, interleave=None):
    groups = []
    for i in range(5):
        g = []
        if i == 0:
            g.append(f"s_add_u32 m0, s{S_DSLOT}, s{S_WLDS}")
        else:
            g.append(f"s_add_u32 m0, m0, 1024")
        if i == 4:
            g.append("s_mov_b32 exec_hi, 0")
        else:
            g.append("s_nop 0")
        g.append(f"buffer_load_dwordx4 v{V_W+i}, s[{SRD_W}:{SRD_W+3}], s{S_WOFF} offen lds")
        if i == 4:
            g.append("s_mov_b32 exec_hi, -1")
        groups.append(g)
    return groups

def advance_stage(a, step):
    a(f"s_add_u32 s{S_WOFF}, s{S_WOFF}, {step}")
    a(f"s_add_u32 s{S_DSLOT}, s{S_DSLOT}, {STAGE}")
    a(f"s_cmp_eq_u32 s{S_DSLOT}, {4*STAGE}")
    a(f"s_cselect_b32 s{S_DSLOT}, 0, s{S_DSLOT}")

def reads_step(Aset, Bset, vb, s0):
    ins = [f"ds_read_b128 v[{Bset}:{Bset+3}], v{vb}"]
    for u in range(9):
        ins.append(f"ds_read_b64_tr_b16 v[{Aset+4*u}:{Aset+4*u+1}], v{V_AC} offset:{s0*9216+32*u}")
        ins.append(f"ds_read_b64_tr_b16 v[{Aset+4*u+2}:{Aset+4*u+3}], v{V_AC} offset:{s0*9216+4608+32*u}")
    return ins

def mfma(u, Aset, Bset):
    return f"v_mfma_f32_16x16x32_bf16 v[{ACC+4*u}:{ACC+4*u+3}], v[{Aset+4*u}:{Aset+4*u+3}], v[{Bset}:{Bset+3}], v[{ACC+4*u}:{ACC+4*u+3}]"

def gemm_loop(a, name, step):
    a(f"s_mov_b32 s{S_P}, 0")
    a.label(f"L_{name}_loop")
    a("s_waitcnt lgkmcnt(0)")
    r = reads_step(A1, B1, V_B1, 1)
    a(r[0])
    for u in range(9):
        a(r[1+2*u]); a(r[2+2*u]); a(mfma(u, A0, B0))
    a(f"s_add_u32 s{S_RSLOT}, s{S_RSLOT}, {STAGE}")
    a(f"s_cmp_eq_u32 s{S_RSLOT}, {4*STAGE}")
    a(f"s_cselect_b32 s{S_RSLOT}, 0, s{S_RSLOT}")
    a(f"v_add_u32 v{V_B0}, 2048, v{V_B0}")
    a(f"v_add_u32 v{V_B1}, 2048, v{V_B1}")
    a(f"v_add_u32 v{V_AC}, s{S_RSLOT}, v{V_A}")
    a("s_waitcnt vmcnt(5)")
    a("s_barrier")
    a("s_waitcnt lgkmcnt(0)")
    r = reads_step(A0, B0, V_B0, 0)
    groups = issue_stage(a)
    a(r[0])
    for u in range(9):
        a(r[1+2*u]); a(r[2+2*u]); a(mfma(u, A1, B1))
        if u in (0, 2, 4, 6, 8):
            for ins in groups[u//2]:
                a(ins)
    advance_stage(a, step)
    a(f"s_cmp_ge_u32 s{S_P}, 5")
    a(f"s_cselect_b32 s{S_WOFF}, 0x70000000, s{S_WOFF}")
    a(f"s_add_u32 s{S_P}, s{S_P}, 1")
    a(f"s_cmp_lt_u32 s{S_P}, 9")
    a(f"s_cbranch_scc1 L_{name}_loop")

def read_addr_setup(a):
    t0, t1 = V_T, V_T+1
    a(f"v_lshrrev_b32 v{t0}, 2, v{V_L}")
    a(f"v_mul_u32_u24 v{t0}, 288, v{t0}")
    a(f"v_and_b32 v{t1}, 3, v{V_L}")
    a(f"v_lshl_add_u32 v{V_A}, v{t1}, 3, v{t0}")
    a(f"v_mov_b32 v{V_AC}, v{V_A}")

def zero_acc(a):
    for i in range(36):
        a(f"v_mov_b32 v{ACC+i}, 0")

def start_pipeline(a, step, nb):
    for st in range(3):
        for g in issue_stage(a):
            for ins in g: a(ins)
        advance_stage(a, step)
    zero_acc(a)
    a("s_waitcnt vmcnt(10)")
    a("s_barrier")
    for ins in reads_step(A0, B0, V_B0, 0):
        a(ins)

def kernel1(a):
    name = "k1_kernel"
    a(f".globl {name}\n.p2align 8\n.type {name},@function\n{name}:")
    prologue_ids_k(a, 256, "K1")
    srd(a, SRD_W, S_W1, W_BYTES) if False else None
    a("s_waitcnt lgkmcnt(0)")
    srd(a, SRD_B, S_X, X_BYTES)
    srd(a, SRD_W, S_W1, W_BYTES)
    srd(a, SRD_O, S_WS, WS_BYTES)
    t0, t1, t2 = V_T, V_T+1, V_T+2
    a(f"v_lshrrev_b32 v{t0}, 3, v{V_L}")
    a(f"v_lshrrev_b32 v{t1}, 4, v{V_L}")
    a(f"v_and_b32 v{t2}, 7, v{V_L}")
    a(f"v_xor_b32 v{t1}, v{t1}, v{t2}")
    a(f"v_lshlrev_b32 v{t1}, 4, v{t1}")
    a(f"v_mul_u32_u24 v{t0}, 1152, v{t0}")
    a(f"v_add_u32 v{V_XB}, v{t0}, v{t1}")
    a(f"v_xor_b32 v{t1}, 64, v{t1}")
    a(f"v_add_u32 v{t0}, {8*1152}, v{t0}")
    a(f"v_add_u32 v{V_XB+1}, v{t0}, v{t1}")
    a(f"s_lshl_b32 s{S_T0}, s{S_MT}, 2")
    a(f"s_add_u32 s{S_T0}, s{S_T0}, s{S_WV}")
    a(f"s_mul_i32 s{S_T0}, s{S_T0}, {16*1152}")
    a(f"s_mul_i32 s{S_T1}, s{S_WV}, {STAGE}")
    a(f"s_add_u32 s{S_T1}, s{S_T1}, {LB}")
    a(f"s_mov_b32 m0, s{S_T1}")
    for P in range(9):
        for hf in range(2):
            if not (P == 0 and hf == 0):
                d = 1024 if hf == 1 else (1024 - 128)
                a(f"s_add_u32 m0, m0, {d}")
            a("s_nop 0")
            a(f"buffer_load_dwordx4 v{V_XB+hf}, s[{SRD_B}:{SRD_B+3}], s{S_T0} offen offset:{P*128} lds")
    a(f"v_and_b32 v{t0}, 15, v{V_L}")
    a(f"v_lshrrev_b32 v{t1}, 1, v{t0}")
    a(f"v_lshrrev_b32 v{t2}, 4, v{V_L}")
    a(f"v_xor_b32 v{t1}, v{t1}, v{t2}")
    a(f"v_lshlrev_b32 v{t1}, 4, v{t1}")
    a(f"v_lshlrev_b32 v{t0}, 7, v{t0}")
    a(f"v_add_u32 v{t0}, s{S_T1}, v{t0}")
    a(f"v_add_u32 v{V_B0}, v{t0}, v{t1}")
    a(f"v_xor_b32 v{t1}, 64, v{t1}")
    a(f"v_add_u32 v{V_B1}, v{t0}, v{t1}")
    w_addr_setup(a, 1)
    read_addr_setup(a)
    a(f"s_mul_i32 s{S_WOFF}, s{S_XG}, 1152")
    a(f"s_mul_i32 s{S_T0}, s{S_J}, 288")
    a(f"s_add_u32 s{S_WOFF}, s{S_WOFF}, s{S_T0}")
    a(f"s_mov_b32 s{S_DSLOT}, 0")
    a(f"s_mov_b32 s{S_RSLOT}, 0")
    a(f"s_mul_i32 s{S_WLDS}, s{S_WV}, 4608")
    start_pipeline(a, 64*9216, 18)
    gemm_loop(a, "k1", 64*9216)
    a("s_waitcnt lgkmcnt(0)")
    a("s_nop 7")
    a(f"s_mov_b32 s{S_T2}, 0xbfb8aa3b")
    for u in range(9):
        x = ACC + 4*u
        e = V_E + 4*(u & 1)
        for r in range(4): a(f"v_mul_f32 v{e+r}, s{S_T2}, v{x+r}")
        for r in range(4): a(f"v_exp_f32 v{e+r}, v{e+r}")
        for r in range(4): a(f"v_add_f32 v{e+r}, 1.0, v{e+r}")
        for r in range(4): a(f"v_rcp_f32 v{e+r}, v{e+r}")
        for r in range(4): a(f"v_mul_f32 v{x+r}, v{x+r}, v{e+r}")
        a(f"v_cvt_pk_bf16_f32 v{A0+2*u}, v{x}, v{x+1}")
        a(f"v_cvt_pk_bf16_f32 v{A0+2*u+1}, v{x+2}, v{x+3}")
    a(f"s_lshl_b32 s{S_T0}, s{S_XG}, 3")
    a(f"s_add_u32 s{S_T0}, s{S_T0}, s{S_MT}")
    a(f"s_lshl_b32 s{S_T0}, s{S_T0}, 2")
    a(f"s_add_u32 s{S_T0}, s{S_T0}, s{S_WV}")
    a(f"s_mul_i32 s{S_T0}, s{S_T0}, {STAGE}")
    a(f"s_mul_i32 s{S_T1}, s{S_J}, 9")
    a(f"s_add_u32 s{S_T1}, s{S_T1}, 1")
    a(f"s_lshr_b32 s{S_T1}, s{S_T1}, 1")
    a(f"s_lshl_b32 s{S_T1}, s{S_T1}, 10")
    a(f"s_add_u32 s{S_T1}, s{S_T1}, s{S_T0}")
    a(f"s_lshr_b32 s{S_T2}, s{S_J}, 1")
    a(f"s_mul_i32 s{S_T2}, s{S_T2}, {9*1024}")
    a(f"s_add_u32 s{S_T2}, s{S_T2}, {4*1024}")
    a(f"s_add_u32 s{S_T2}, s{S_T2}, s{S_T0}")
    a(f"s_and_b32 s{S_T0}, s{S_J}, 1")
    a(f"s_lshl_b32 s{S_T0}, s{S_T0}, 3")
    a(f"s_add_u32 s{S_T2}, s{S_T2}, s{S_T0}")
    a(f"v_lshlrev_b32 v{V_T}, 4, v{V_L}")
    for p in range(4):
        a(f"buffer_store_dwordx4 v[{A0+4*p}:{A0+4*p+3}], v{V_T}, s[{SRD_O}:{SRD_O+3}], s{S_T1} offen offset:{p*1024}")
    a(f"buffer_store_dwordx2 v[{A0+16}:{A0+17}], v{V_T}, s[{SRD_O}:{SRD_O+3}], s{S_T2} offen")
    a.label("L_END_K1")
    a("s_endpgm")
    a(kd(name, vgpr=140, sgpr=48))

def prologue_ids_k(a, nwg, tag):
    a(f"s_cmp_ge_u32 s2, {nwg}")
    a(f"s_cbranch_scc1 L_END_{tag}")
    a("s_load_dwordx8 s[4:11], s[0:1], 0")
    a("s_load_dwordx4 s[12:15], s[0:1], 32")
    a("v_lshrrev_b32 v1, 6, v0")
    a("v_and_b32 v0, 63, v0")
    a(f"v_readfirstlane_b32 s{S_WV}, v1")
    a(f"s_and_b32 s{S_XG}, s2, 7")
    a(f"s_lshr_b32 s{S_J}, s2, 3")
    a(f"s_and_b32 s{S_J}, s{S_J}, 3")
    a(f"s_lshr_b32 s{S_MT}, s2, 5")
    a("s_nop 3")

def kernel2(a):
    name = "k2_kernel"
    a(f".globl {name}\n.p2align 8\n.type {name},@function\n{name}:")
    prologue_ids_k(a, 256, "K2")
    a("s_waitcnt lgkmcnt(0)")
    srd(a, SRD_B, S_WS, WS_BYTES)
    srd(a, SRD_W, S_W2, W_BYTES)
    srd(a, SRD_O, S_WS, WS_BYTES)
    a(f"v_lshlrev_b32 v{V_XB}, 4, v{V_L}")
    a(f"s_lshl_b32 s{S_T0}, s{S_XG}, 3")
    a(f"s_add_u32 s{S_T0}, s{S_T0}, s{S_MT}")
    a(f"s_lshl_b32 s{S_T0}, s{S_T0}, 2")
    a(f"s_add_u32 s{S_T0}, s{S_T0}, s{S_WV}")
    a(f"s_mul_i32 s{S_T0}, s{S_T0}, {STAGE}")
    a(f"s_mul_i32 s{S_T1}, s{S_WV}, {STAGE}")
    a(f"s_add_u32 s{S_T1}, s{S_T1}, {LB}")
    a(f"s_mov_b32 m0, s{S_T1}")
    for s in range(18):
        if s and s % 4 == 0:
            a(f"s_add_u32 m0, m0, 4096")
            a(f"s_add_u32 s{S_T0}, s{S_T0}, 4096")
        elif s == 0:
            a("s_nop 0")
        a(f"buffer_load_dwordx4 v{V_XB}, s[{SRD_B}:{SRD_B+3}], s{S_T0} offen offset:{(s%4)*1024} lds")
    a(f"v_add_u32 v{V_B0}, s{S_T1}, v{V_XB}")
    a(f"v_add_u32 v{V_B1}, 1024, v{V_B0}")
    w_addr_setup(a, 2)
    read_addr_setup(a)
    a(f"s_mul_i32 s{S_WOFF}, s{S_XG}, {576*1152}")
    a(f"s_mul_i32 s{S_T0}, s{S_J}, 288")
    a(f"s_add_u32 s{S_WOFF}, s{S_WOFF}, s{S_T0}")
    a(f"s_mov_b32 s{S_DSLOT}, 0")
    a(f"s_mov_b32 s{S_RSLOT}, 0")
    a(f"s_mul_i32 s{S_WLDS}, s{S_WV}, 4608")
    start_pipeline(a, 64*1152, 18)
    gemm_loop(a, "k2", 64*1152)
    a("s_nop 7")
    a(f"s_lshl_b32 s{S_T0}, s{S_XG}, 3")
    a(f"s_add_u32 s{S_T0}, s{S_T0}, s{S_MT}")
    a(f"s_lshl_b32 s{S_T0}, s{S_T0}, 2")
    a(f"s_add_u32 s{S_T0}, s{S_T0}, s{S_J}")
    a(f"s_lshl_b32 s{S_T0}, s{S_T0}, 2")
    a(f"s_add_u32 s{S_T0}, s{S_T0}, s{S_WV}")
    a(f"s_mul_i32 s{S_T0}, s{S_T0}, 9216")
    a(f"s_add_u32 s{S_T0}, s{S_T0}, {PART_OFF}")
    a(f"v_lshlrev_b32 v{V_T}, 4, v{V_L}")
    for u in range(9):
        if u == 4 or u == 8:
            a(f"s_add_u32 s{S_T0}, s{S_T0}, 4096")
        a(f"buffer_store_dwordx4 v[{ACC+4*u}:{ACC+4*u+3}], v{V_T}, s[{SRD_O}:{SRD_O+3}], s{S_T0} offen offset:{(u%4)*1024}")
    a.label("L_END_K2")
    a("s_endpgm")
    a(kd(name, vgpr=140, sgpr=48))

def kernel3(a):
    name = "k3_kernel"
    a(f".globl {name}\n.p2align 8\n.type {name},@function\n{name}:")
    a(f"s_cmp_ge_u32 s2, 288")
    a(f"s_cbranch_scc1 L_END_K3")
    a("s_load_dwordx2 s[10:11], s[0:1], 24")
    a("s_load_dwordx2 s[14:15], s[0:1], 40")
    a("v_lshrrev_b32 v1, 6, v0")
    a("v_and_b32 v0, 63, v0")
    a(f"v_readfirstlane_b32 s{S_WV}, v1")
    a("s_nop 3")
    a(f"s_lshl_b32 s3, s2, 2")
    a(f"s_add_u32 s3, s3, s{S_WV}")
    a("s_waitcnt lgkmcnt(0)")
    srd(a, SRD_B, S_WS, WS_BYTES)
    srd(a, SRD_O, S_OUT, OUT_BYTES)
    a(f"s_lshl_b32 s{S_T0}, s3, 10")
    a(f"s_add_u32 s{S_T0}, s{S_T0}, {PART_OFF}")
    a(f"v_lshlrev_b32 v1, 4, v0")
    for xg in range(8):
        a(f"buffer_load_dwordx4 v[{4+4*xg}:{7+4*xg}], v1, s[{SRD_B}:{SRD_B+3}], s{S_T0} offen")
        if xg < 7: a(f"s_add_u32 s{S_T0}, s{S_T0}, {PART_XG}")
    a(f"s_mul_i32 s{S_T1}, s3, 7282")
    a(f"s_lshr_b32 s{S_T1}, s{S_T1}, 16")
    a(f"s_mul_i32 s{S_T2}, s{S_T1}, 9")
    a(f"s_sub_u32 s{S_T2}, s3, s{S_T2}")
    a(f"s_and_b32 s40, s{S_T1}, 3")
    a(f"s_lshr_b32 s41, s{S_T1}, 2")
    a(f"s_and_b32 s41, s41, 3")
    a(f"s_lshr_b32 s42, s{S_T1}, 4")
    a(f"s_lshl_b32 s42, s42, 2")
    a(f"s_add_u32 s42, s42, s40")
    a(f"s_mul_i32 s42, s42, {16*1152}")
    a(f"s_mul_i32 s41, s41, 288")
    a(f"s_add_u32 s42, s42, s41")
    a(f"s_lshl_b32 s{S_T2}, s{S_T2}, 5")
    a(f"s_add_u32 s42, s42, s{S_T2}")
    a(f"v_and_b32 v2, 15, v0")
    a(f"v_mul_u32_u24 v2, 1152, v2")
    a(f"v_lshrrev_b32 v3, 4, v0")
    a(f"v_lshl_add_u32 v2, v3, 3, v2")
    for xg in range(1, 8):
        a(f"s_waitcnt vmcnt({7-xg})")
        for r in range(4):
            a(f"v_add_f32 v{4+r}, v{4+r}, v{4+4*xg+r}")
    a("v_cvt_pk_bf16_f32 v4, v4, v5")
    a("v_cvt_pk_bf16_f32 v5, v6, v7")
    a(f"buffer_store_dwordx2 v[4:5], v2, s[{SRD_O}:{SRD_O+3}], s42 offen")
    a.label("L_END_K3")
    a("s_endpgm")
    a(kd(name, vgpr=40, sgpr=48))

def main():
    extra = sys.argv[2] if len(sys.argv) > 2 else ""
    a = Asm()
    a(HEADER.rstrip())
    if 'pre' in extra:
        a("; @launch kernel=k0_kernel grid=(256,1,1) block=(256,1,1) lds=0")
    a(f"; @launch kernel=k1_kernel grid=(256,1,1) block=(256,1,1) lds={LDS_BYTES}")
    a(f"; @launch kernel=k2_kernel grid=(256,1,1) block=(256,1,1) lds={LDS_BYTES}")
    a(f"; @launch kernel=k3_kernel grid=(288,1,1) block=(256,1,1) lds=0")
    if 'post' in extra:
        a("; @launch kernel=k0_kernel grid=(256,1,1) block=(256,1,1) lds=0")
    a('.amdgcn_target "amdgcn-amd-amdhsa--gfx950"')
    a(".text")
    kernel1(a); kernel2(a); kernel3(a)
    if 'pre' in extra or 'post' in extra:
        a(".globl k0_kernel\n.p2align 8\n.type k0_kernel,@function\nk0_kernel:\ns_endpgm")
        a(kd("k0_kernel", vgpr=8, sgpr=16))
    open(sys.argv[1], "w").write(a.text())

main()
```

```python
import sys
from common import *

X_BYTES = 512*576*2
W_BYTES = 576*4608*2
OUT_BYTES = 512*576*2
WS_BYTES = 268435456
H_OFF = 0
FLAG_OFF = 6*1024*1024
PART_OFF = 8*1024*1024
PART_XG = 128*4608
STAGE = 18432
LB = 4*STAGE
LDS_BYTES = 149504
TS_OFF = 128 << 20
SPIN = 1 << 17

opt = set()

S_X, S_W1, S_W2, S_OUT, S_DBG, S_WS = 4, 6, 8, 10, 12, 14
SRD_X, SRD_W1, SRD_WS, SRD_W2, SRD_DBG = 16, 20, 24, 40, 44
S_WV, S_XG, S_J, S_MT, S_CW = 28, 29, 30, 31, 32
S_N, S_WOFF, S_DSLOT, S_RSLOT = 33, 34, 35, 36
S_T0, S_T1, S_T2, S_T3 = 37, 38, 39, 48
S_WLDS, S_P, S_XROW, S_XLDS, S_HB, S_GRP, S_FAST, S_XDST = 49, 50, 51, 52, 53, 54, 55, 56
S_WCOL = 57
S_TS = 60

def stamp(a, i):
    if 'ts' in opt: a(f"s_memrealtime s[{S_TS+2*i}:{S_TS+2*i+1}]")

def dump_stamps(a, kidx, n, tag, wave):
    if 'ts' not in opt: return
    a("s_waitcnt lgkmcnt(0) vmcnt(0)")
    a(f"s_cmp_eq_u32 s{S_WV}, {wave}")
    a(f"s_cbranch_scc0 L_NOTS{tag}")
    a(f"s_lshl_b32 s76, s2, 6")
    a(f"s_add_u32 s76, s76, {TS_OFF + kidx*512*64}")
    a(f"s_mov_b32 s80, s14\ns_mov_b32 s81, s15\ns_mov_b32 s82, {WS_BYTES}\ns_mov_b32 s83, 0x20000")
    a("v_mov_b32 v2, 0")
    for i in range(n):
        a(f"v_mov_b32 v4, s{S_TS+2*i}\nv_mov_b32 v5, s{S_TS+2*i+1}")
        a(f"buffer_store_dwordx2 v[4:5], v2, s[80:83], s76 offen offset:{8*i}")
        a("s_nop 1")
    a.label(f"L_NOTS{tag}")

def srd(a, base, ptr, nbytes):
    a(f"s_mov_b32 s{base}, s{ptr}")
    a(f"s_mov_b32 s{base+1}, s{ptr+1}")
    a(f"s_mov_b32 s{base+2}, {nbytes}")
    a(f"s_mov_b32 s{base+3}, 0x20000")

L_W1, L_W2, L_X, L_H, L_T = 1, 6, 11, 13, 14

def loader_addr_setup(a):
    t0, t1, t2, t3 = L_T, L_T+1, L_T+2, L_T+3
    a(f"s_lshr_b32 s{S_T0}, s{S_CW}, 1")
    a(f"s_lshl_b32 s{S_T0}, s{S_T0}, 5")
    a(f"s_and_b32 s{S_T1}, s{S_CW}, 1")
    a(f"s_lshl_b32 s{S_T1}, s{S_T1}, 2")
    a(f"s_add_u32 s{S_T0}, s{S_T0}, s{S_T1}")
    a(f"s_and_b32 s{S_T1}, s{S_J}, 1")
    a(f"s_lshl_b32 s{S_T1}, s{S_T1}, 1")
    a(f"s_lshl_b32 s{S_T3}, s{S_CW}, 4")
    a(f"s_movk_i32 s{S_T2}, 9216")
    a(f"s_movk_i32 s{S_P}, 1152")
    for i in range(5):
        a(f"v_add_u32 v{t0}, {64*i}, v0")
        a(f"v_mul_u32_u24 v{t1}, 3641, v{t0}")
        a(f"v_lshrrev_b32 v{t1}, 16, v{t1}")
        a(f"v_mul_u32_u24 v{t2}, 18, v{t1}")
        a(f"v_sub_u32 v{t0}, v{t0}, v{t2}")
        a(f"v_add_u32 v{t2}, s{S_T3}, v{t1}")
        a(f"v_lshlrev_b32 v{t3}, 4, v{t0}")
        a(f"v_mad_u32_u24 v{L_W2+i}, v{t2}, s{S_P}, v{t3}")
        a(f"v_add_u32 v{t0}, s{S_T1}, v{t0}")
        a(f"v_subrev_u32 v{t2}, 18, v{t0}")
        a(f"v_min_u32 v{t0}, v{t0}, v{t2}")
        a(f"v_lshrrev_b32 v{t2}, 2, v{t1}")
        a(f"v_and_b32 v{t1}, 3, v{t1}")
        a(f"v_lshl_add_u32 v{t1}, v{t2}, 3, v{t1}")
        a(f"v_add_u32 v{t1}, s{S_T0}, v{t1}")
        a(f"v_lshlrev_b32 v{t0}, 4, v{t0}")
        a(f"v_mad_u32_u24 v{L_W1+i}, v{t1}, s{S_T2}, v{t0}")
    a(f"v_lshrrev_b32 v{t0}, 3, v0")
    a(f"v_lshrrev_b32 v{t1}, 4, v0")
    a(f"v_and_b32 v{t2}, 7, v0")
    a(f"v_xor_b32 v{t1}, v{t1}, v{t2}")
    a(f"v_lshlrev_b32 v{t1}, 4, v{t1}")
    a(f"v_mul_u32_u24 v{t0}, 1152, v{t0}")
    a(f"v_add_u32 v{L_X}, v{t0}, v{t1}")
    a(f"v_xor_b32 v{t1}, 64, v{t1}")
    a(f"v_add_u32 v{t0}, {8*1152}, v{t0}")
    a(f"v_add_u32 v{L_X+1}, v{t0}, v{t1}")
    a(f"v_lshlrev_b32 v{L_H}, 4, v0")

def issue_w(a, vbase, srdreg):
    for i in range(5):
        if i == 0: a(f"s_add_u32 m0, s{S_DSLOT}, s{S_WLDS}")
        else:      a(f"s_add_u32 m0, m0, 1024")
        a("s_mov_b32 exec_hi, 0" if i == 4 else "s_nop 0")
        a(f"buffer_load_dwordx4 v{vbase+i}, s[{srdreg}:{srdreg+3}], s{S_WOFF} offen lds")
    a("s_mov_b32 exec_hi, -1")
    a(f"s_add_u32 s{S_DSLOT}, s{S_DSLOT}, {STAGE}")
    a(f"s_cmp_eq_u32 s{S_DSLOT}, {4*STAGE}")
    a(f"s_cselect_b32 s{S_DSLOT}, 0, s{S_DSLOT}")

def issue_stage1(a):
    a(f"s_lshl_b32 s{S_T0}, s{S_P}, 7")
    a(f"s_add_u32 s{S_T0}, s{S_T0}, s{S_XROW}")
    a(f"s_mov_b32 m0, s{S_XDST}")
    a(f"s_mul_i32 s{S_WOFF}, s{S_P}, {64*9216}")
    a(f"buffer_load_dwordx4 v{L_X}, s[{SRD_X}:{SRD_X+3}], s{S_T0} offen lds")
    a(f"s_add_u32 m0, m0, 1024")
    a(f"s_add_u32 s{S_WOFF}, s{S_WOFF}, s{S_WCOL}")
    a(f"buffer_load_dwordx4 v{L_X+1}, s[{SRD_X}:{SRD_X+3}], s{S_T0} offen lds")
    a(f"s_add_u32 s{S_XDST}, s{S_XDST}, 2048")
    issue_w(a, L_W1, SRD_W1)
    a(f"s_add_u32 s{S_P}, s{S_P}, 1")
    a(f"s_cmp_eq_u32 s{S_P}, 9")
    a(f"s_cselect_b32 s{S_P}, 0, s{S_P}")

def issue_stage2(a):
    issue_w(a, L_W2, SRD_W2)
    a(f"s_add_u32 s{S_WOFF}, s{S_WOFF}, {64*1152}")

def poll_group(a, tag, vtmp):
    a(f"s_mov_b32 s{S_T3}, 0")
    a.label(f"L_PG{tag}")
    a(f"s_add_u32 s{S_T3}, s{S_T3}, 1")
    a(f"s_cmp_gt_u32 s{S_T3}, {SPIN}")
    a(f"s_cbranch_scc1 L_PGX{tag}")
    a(f"buffer_load_dword v{vtmp}, off, s[{SRD_DBG}:{SRD_DBG+3}], s{S_GRP} sc1")
    a("s_waitcnt vmcnt(0)")
    a(f"v_readfirstlane_b32 s{S_T0}, v{vtmp}")
    a("s_nop 3")
    a(f"s_add_u32 s{S_T1}, s{S_T0}, 0x7f7f7f7f")
    a(f"s_and_b32 s{S_T1}, s{S_T1}, 0x80808080")
    a(f"s_cmp_eq_u32 s{S_T1}, 0x80808080")
    a(f"s_cbranch_scc0 L_PG{tag}")
    a.label(f"L_PGX{tag}")

def loader(a):
    a.label("L_LOADER")
    loader_addr_setup(a)
    a("s_waitcnt lgkmcnt(0)")
    srd(a, SRD_X, S_X, X_BYTES)
    srd(a, SRD_W1, S_W1, W_BYTES)
    srd(a, SRD_W2, S_W2, W_BYTES)
    srd(a, SRD_WS, S_WS, WS_BYTES)
    srd(a, SRD_DBG, S_DBG, 256)
    a(f"s_lshl_b32 s{S_T0}, s{S_MT}, 2")
    a(f"s_add_u32 s{S_T0}, s{S_T0}, s{S_CW}")
    a(f"s_mul_i32 s{S_XROW}, s{S_T0}, {16*1152}")
    a(f"s_mul_i32 s{S_XLDS}, s{S_CW}, {STAGE}")
    a(f"s_add_u32 s{S_XLDS}, s{S_XLDS}, {LB}")
    a(f"s_mov_b32 s{S_XDST}, s{S_XLDS}")
    a(f"s_mul_i32 s{S_WCOL}, s{S_XG}, 1152")
    a(f"s_mul_i32 s{S_T0}, s{S_J}, 288")
    a(f"s_add_u32 s{S_WCOL}, s{S_WCOL}, s{S_T0}")
    a(f"s_mul_i32 s{S_WLDS}, s{S_CW}, 4608")
    a(f"s_mov_b32 s{S_DSLOT}, 0")
    if 'norot' in opt: a(f"s_mov_b32 s{S_P}, 0")
    else:              a(f"s_mov_b32 s{S_P}, s{S_MT}")
    stamp(a, 1)
    for st in range(3):
        issue_stage1(a)
    stamp(a, 2)
    a("s_waitcnt vmcnt(14)")
    a("s_barrier")
    stamp(a, 3)
    a(f"s_mov_b32 s{S_N}, 0")
    a.label("L_LD1")
    a("s_waitcnt vmcnt(7)")
    a("s_barrier")
    issue_stage1(a)
    a(f"s_add_u32 s{S_N}, s{S_N}, 1")
    a(f"s_cmp_lt_u32 s{S_N}, 6")
    a("s_cbranch_scc1 L_LD1")
    a(f"s_mul_i32 s{S_WOFF}, s{S_XG}, {576*1152}")
    a(f"s_mul_i32 s{S_T0}, s{S_J}, 288")
    a(f"s_add_u32 s{S_WOFF}, s{S_WOFF}, s{S_T0}")
    a.label("L_LD2")
    a("s_waitcnt vmcnt(5)")
    a("s_barrier")
    issue_stage2(a)
    a(f"s_add_u32 s{S_N}, s{S_N}, 1")
    a(f"s_cmp_lt_u32 s{S_N}, 9")
    a("s_cbranch_scc1 L_LD2")
    stamp(a, 4)
    poll_group(a, "L", L_T)
    a(f"s_lshl_b32 s{S_T2}, s{S_GRP}, 5")
    a(f"s_add_u32 s{S_T2}, s{S_T2}, {FLAG_OFF}")
    a(f"v_and_b32 v{L_T+1}, 15, v0")
    a(f"v_lshlrev_b32 v{L_T+1}, 2, v{L_T+1}")
    a(f"s_mov_b32 s{S_T3}, 0")
    a.label("L_PF")
    a(f"s_add_u32 s{S_T3}, s{S_T3}, 1")
    a(f"s_cmp_gt_u32 s{S_T3}, {SPIN}")
    a(f"s_cbranch_scc1 L_PFX")
    a(f"buffer_load_dword v{L_T}, v{L_T+1}, s[{SRD_WS}:{SRD_WS+3}], s{S_T2} offen sc1")
    a("s_waitcnt vmcnt(0)")
    a(f"v_cmp_ne_u32 vcc, 1, v{L_T}")
    a("s_cbranch_vccnz L_PF")
    a.label("L_PFX")
    stamp(a, 5)
    a(f"s_mov_b32 m0, s{S_XLDS}")
    a(f"s_mov_b32 s{S_T0}, s{S_HB}")
    for s in range(18):
        if s and s % 4 == 0:
            a(f"s_add_u32 m0, m0, 4096")
            a(f"s_add_u32 s{S_T0}, s{S_T0}, 4096")
        a(f"buffer_load_dwordx4 v{L_H}, s[{SRD_WS}:{SRD_WS+3}], s{S_T0} offen offset:{(s%4)*1024} sc1 lds")
    a("s_waitcnt vmcnt(0)")
    a("s_barrier")
    stamp(a, 6)
    a.label("L_LD3")
    a("s_waitcnt vmcnt(5)")
    a("s_barrier")
    a(f"s_cmp_ge_u32 s{S_N}, 15")
    a(f"s_cselect_b32 s{S_WOFF}, 0x70000000, s{S_WOFF}")
    issue_stage2(a)
    a(f"s_add_u32 s{S_N}, s{S_N}, 1")
    a(f"s_cmp_lt_u32 s{S_N}, 18")
    a("s_cbranch_scc1 L_LD3")
    stamp(a, 7)
    dump_stamps(a, 1, 8, "LD", 4)
    a("s_endpgm")

C_BF, C_BS = 2, 4
C_A, C_A8, C_AC, C_A8C = 6, 7, 8, 9
C_T = 10
A0, B0, A1, B1 = 16, 36, 44, 64
ACC = 72
C_E = 108

def reads_step(Aset, Bset, s0):
    ins = [f"ds_read_b128 v[{Bset}:{Bset+3}], v{C_BF+s0}"]
    def A(t):
        vaddr = C_AC if t < 4 else C_A8C
        off = s0*9216 + (32*t if t < 4 else 0)
        return [f"ds_read_b64_tr_b16 v[{Aset+4*t}:{Aset+4*t+1}], v{vaddr} offset:{off}",
                f"ds_read_b64_tr_b16 v[{Aset+4*t+2}:{Aset+4*t+3}], v{vaddr} offset:{off+4608}"]
    ins += A(0)
    ins.append(f"ds_read_b128 v[{Bset+4}:{Bset+7}], v{C_BS+s0}")
    for t in range(1, 5): ins += A(t)
    return ins

def mfmas(Aset, Bset):
    def m(acc, t, b):
        return f"v_mfma_f32_16x16x32_bf16 v[{ACC+4*acc}:{ACC+4*acc+3}], v[{Aset+4*t}:{Aset+4*t+3}], v[{Bset+4*b}:{Bset+4*b+3}], v[{ACC+4*acc}:{ACC+4*acc+3}]"
    out = []
    for t in range(4):
        out.append(m(t, t, 0)); out.append(m(4+t, t, 1))
    out.append(m(8, 4, 0))
    return out

def block(a, r, m):
    for u in range(9):
        a(m[u])
        if u < 6:
            a(r[2*u]); a(r[2*u+1])

def compute_loop(a, name):
    a(f"s_mov_b32 s{S_N}, 0")
    a.label(f"L_{name}")
    a("s_waitcnt lgkmcnt(0)")
    block(a, reads_step(A1, B1, 1), mfmas(A0, B0))
    a(f"s_add_u32 s{S_RSLOT}, s{S_RSLOT}, {STAGE}")
    a(f"s_cmp_eq_u32 s{S_RSLOT}, {4*STAGE}")
    a(f"s_cselect_b32 s{S_RSLOT}, 0, s{S_RSLOT}")
    for r in (C_BF, C_BF+1, C_BS, C_BS+1):
        a(f"v_add_u32 v{r}, 2048, v{r}")
    a(f"v_add_u32 v{C_AC}, s{S_RSLOT}, v{C_A}")
    a(f"v_add_u32 v{C_A8C}, s{S_RSLOT}, v{C_A8}")
    a("s_barrier")
    a("s_waitcnt lgkmcnt(0)")
    block(a, reads_step(A0, B0, 0), mfmas(A1, B1))
    a(f"s_add_u32 s{S_N}, s{S_N}, 1")
    a(f"s_cmp_lt_u32 s{S_N}, 9")
    a(f"s_cbranch_scc1 L_{name}")

def zero_acc(a):
    for i in range(36): a(f"v_mov_b32 v{ACC+i}, 0")

def compute(a):
    t0, t1, t2 = C_T, C_T+1, C_T+2
    a(f"v_lshrrev_b32 v{t0}, 2, v0")
    a(f"v_mul_u32_u24 v{t0}, 288, v{t0}")
    a(f"v_and_b32 v{t1}, 3, v0")
    a(f"v_lshl_add_u32 v{t0}, v{t1}, 3, v{t0}")
    a(f"v_add_u32 v{C_A8}, 256, v{t0}")
    a(f"s_and_b32 s{S_T0}, s{S_CW}, 1")
    a(f"s_lshl_b32 s{S_T0}, s{S_T0}, 7")
    a(f"v_add_u32 v{C_A}, s{S_T0}, v{t0}")
    a(f"v_mov_b32 v{C_AC}, v{C_A}")
    a(f"v_mov_b32 v{C_A8C}, v{C_A8}")
    a(f"s_mul_i32 s{S_T1}, s{S_CW}, {STAGE}")
    a(f"s_add_u32 s{S_T1}, s{S_T1}, {LB}")
    a(f"s_xor_b32 s{S_T2}, s{S_CW}, 1")
    a(f"s_mul_i32 s{S_T2}, s{S_T2}, {STAGE}")
    a(f"s_add_u32 s{S_T2}, s{S_T2}, {LB}")
    a(f"v_and_b32 v{t0}, 15, v0")
    a(f"v_lshrrev_b32 v{t1}, 1, v{t0}")
    a(f"v_lshrrev_b32 v{t2}, 4, v0")
    a(f"v_xor_b32 v{t1}, v{t1}, v{t2}")
    a(f"v_lshlrev_b32 v{t1}, 4, v{t1}")
    a(f"v_lshl_add_u32 v{t2}, v{t0}, 7, v{t1}")
    a(f"v_xor_b32 v{t1}, 64, v{t1}")
    a(f"v_lshl_add_u32 v{t1}, v{t0}, 7, v{t1}")
    a(f"v_add_u32 v{C_BF}, s{S_T1}, v{t2}")
    a(f"v_add_u32 v{C_BF+1}, s{S_T1}, v{t1}")
    a(f"v_add_u32 v{C_BS}, s{S_T2}, v{t2}")
    a(f"v_add_u32 v{C_BS+1}, s{S_T2}, v{t1}")
    zero_acc(a)
    a(f"s_mov_b32 s{S_RSLOT}, 0")
    a("s_waitcnt lgkmcnt(0)")
    srd(a, SRD_WS, S_WS, WS_BYTES)
    srd(a, SRD_DBG, S_DBG, 256)
    a(f"s_cmp_eq_u32 s{S_CW}, 0")
    a("s_cbranch_scc0 L_NOPUB")
    a(f"s_lshl_b32 s{S_T0}, s{S_GRP}, 5")
    a(f"s_add_u32 s{S_T0}, s{S_T0}, {FLAG_OFF}")
    a(f"s_lshl_b32 s{S_T1}, s{S_J}, 4")
    a(f"s_add_u32 s{S_T0}, s{S_T0}, s{S_T1}")
    for i in range(4): a(f"v_mov_b32 v{C_E+i}, 0")
    a(f"s_getreg_b32 s{S_T2}, hwreg(HW_REG_XCC_ID, 0, 4)")
    a(f"s_add_u32 s{S_T2}, s{S_T2}, 1")
    a(f"s_add_u32 s{S_T1}, s{S_GRP}, s{S_J}")
    a("s_mov_b64 exec, 1")
    a(f"buffer_store_dwordx4 v[{C_E}:{C_E+3}], off, s[{SRD_WS}:{SRD_WS+3}], s{S_T0} sc1")
    a(f"v_mov_b32 v{t0}, s{S_T2}")
    a("s_waitcnt vmcnt(0)")
    a(f"buffer_store_byte v{t0}, off, s[{SRD_DBG}:{SRD_DBG+3}], s{S_T1} sc1")
    a("s_mov_b64 exec, -1")
    a.label("L_NOPUB")
    a("s_barrier")
    stamp(a, 1)
    for ins in reads_step(A0, B0, 0): a(ins)
    compute_loop(a, "C1")
    stamp(a, 2)
    a(f"buffer_load_dword v{t0}, off, s[{SRD_DBG}:{SRD_DBG+3}], s{S_GRP} sc1")
    a("s_waitcnt lgkmcnt(0)")
    a(f"s_mov_b32 s{S_T2}, 0xbfb8aa3b")
    for u in range(9):
        x = ACC + 4*u
        e = C_E + 4*(u & 1)
        for r in range(4): a(f"v_mul_f32 v{e+r}, s{S_T2}, v{x+r}")
        for r in range(4): a(f"v_exp_f32 v{e+r}, v{e+r}")
        for r in range(4): a(f"v_add_f32 v{e+r}, 1.0, v{e+r}")
        for r in range(4): a(f"v_rcp_f32 v{e+r}, v{e+r}")
        for r in range(4): a(f"v_mul_f32 v{x+r}, v{x+r}, v{e+r}")
        a(f"v_cvt_pk_bf16_f32 v{A0+2*u}, v{x}, v{x+1}")
        a(f"v_cvt_pk_bf16_f32 v{A0+2*u+1}, v{x+2}, v{x+3}")
    a("s_waitcnt vmcnt(0)")
    a(f"v_readfirstlane_b32 s{S_T0}, v{t0}")
    a("s_nop 3")
    a(f"s_add_u32 s{S_T1}, s{S_T0}, 0x7f7f7f7f")
    a(f"s_and_b32 s{S_T1}, s{S_T1}, 0x80808080")
    a(f"s_cmp_eq_u32 s{S_T1}, 0x80808080")
    a("s_cbranch_scc1 L_GOK")
    poll_group(a, "C", t0)
    a.label("L_GOK")
    a(f"s_and_b32 s{S_T1}, s{S_T0}, 0xff")
    a(f"s_mul_i32 s{S_T1}, s{S_T1}, 0x01010101")
    a(f"s_cmp_eq_u32 s{S_T1}, s{S_T0}")
    a(f"s_cselect_b32 s{S_FAST}, 1, 0")
    if 'slow' in opt: a(f"s_mov_b32 s{S_FAST}, 0")
    a(f"s_lshl_b32 s{S_T0}, s{S_GRP}, 0")
    a(f"s_add_u32 s{S_T1}, s{S_T0}, s{S_CW}")
    a(f"s_mul_i32 s{S_T1}, s{S_T1}, {STAGE}")
    a(f"s_xor_b32 s{S_T2}, s{S_CW}, 1")
    a(f"s_add_u32 s{S_T2}, s{S_T0}, s{S_T2}")
    a(f"s_mul_i32 s{S_T2}, s{S_T2}, {STAGE}")
    a(f"s_lshr_b32 s{S_T3}, s{S_J}, 1")
    a(f"s_mul_i32 s{S_T3}, s{S_T3}, {9*1024}")
    a(f"s_add_u32 s{S_T3}, s{S_T3}, {4*1024}")
    a(f"s_add_u32 s{S_T3}, s{S_T3}, s{S_T1}")
    a(f"s_and_b32 s{S_T0}, s{S_J}, 1")
    a(f"s_lshl_b32 s{S_T0}, s{S_T0}, 3")
    a(f"s_add_u32 s{S_T3}, s{S_T3}, s{S_T0}")
    a(f"s_mul_i32 s{S_T0}, s{S_J}, 9")
    a(f"s_add_u32 s{S_T0}, s{S_T0}, 1")
    a(f"s_lshr_b32 s{S_T0}, s{S_T0}, 1")
    a(f"s_and_b32 s{S_P}, s{S_CW}, 1")
    a(f"s_lshl_b32 s{S_P}, s{S_P}, 1")
    a(f"s_add_u32 s{S_T0}, s{S_T0}, s{S_P}")
    a(f"s_lshl_b32 s{S_T0}, s{S_T0}, 10")
    a(f"s_add_u32 s{S_T1}, s{S_T1}, s{S_T0}")
    a(f"s_add_u32 s{S_T2}, s{S_T2}, s{S_T0}")
    a(f"v_lshlrev_b32 v{t1}, 4, v0")
    a(f"s_lshl_b32 s{S_T0}, s{S_GRP}, 5")
    a(f"s_add_u32 s{S_T0}, s{S_T0}, {FLAG_OFF}")
    a(f"s_lshl_b32 s{S_P}, s{S_J}, 2")
    a(f"s_add_u32 s{S_P}, s{S_P}, s{S_CW}")
    a(f"s_lshl_b32 s{S_P}, s{S_P}, 2")
    a(f"s_add_u32 s{S_T0}, s{S_T0}, s{S_P}")
    a(f"v_mov_b32 v{t2}, 1")
    a(f"s_cmp_eq_u32 s{S_FAST}, 1")
    a("s_cbranch_scc0 L_HSLOW")
    for sc, lab in (("", None), (" sc1", "L_HSLOW")):
        if lab: a.label(lab)
        W = f"s[{SRD_WS}:{SRD_WS+3}]"
        a(f"buffer_store_dwordx4 v[{A0}:{A0+3}], v{t1}, {W}, s{S_T1} offen{sc}")
        a(f"buffer_store_dwordx4 v[{A0+4}:{A0+7}], v{t1}, {W}, s{S_T1} offen offset:1024{sc}")
        a(f"buffer_store_dwordx4 v[{A0+8}:{A0+11}], v{t1}, {W}, s{S_T2} offen{sc}")
        a(f"buffer_store_dwordx4 v[{A0+12}:{A0+15}], v{t1}, {W}, s{S_T2} offen offset:1024{sc}")
        a(f"buffer_store_dwordx2 v[{A0+16}:{A0+17}], v{t1}, {W}, s{S_T3} offen{sc}")
        a("s_waitcnt vmcnt(0)")
        a("s_mov_b64 exec, 1")
        a(f"buffer_store_dword v{t2}, off, {W}, s{S_T0}{sc}")
        a("s_mov_b64 exec, -1")
        if not lab: a("s_branch L_HDONE")
    a.label("L_HDONE")
    stamp(a, 3)
    a(f"s_mul_i32 s{S_T1}, s{S_CW}, {STAGE}")
    a(f"s_add_u32 s{S_T1}, s{S_T1}, {LB}")
    a(f"s_xor_b32 s{S_T2}, s{S_CW}, 1")
    a(f"s_mul_i32 s{S_T2}, s{S_T2}, {STAGE}")
    a(f"s_add_u32 s{S_T2}, s{S_T2}, {LB}")
    a(f"v_add_u32 v{C_BF}, s{S_T1}, v{t1}")
    a(f"v_add_u32 v{C_BF+1}, 1024, v{C_BF}")
    a(f"v_add_u32 v{C_BS}, s{S_T2}, v{t1}")
    a(f"v_add_u32 v{C_BS+1}, 1024, v{C_BS}")
    zero_acc(a)
    a("s_barrier")
    stamp(a, 4)
    for ins in reads_step(A0, B0, 0): a(ins)
    compute_loop(a, "C2")
    stamp(a, 5)
    a("s_waitcnt lgkmcnt(0)")
    a("s_nop 4")
    for u in range(9):
        x = ACC + 4*u
        a(f"v_cvt_pk_bf16_f32 v{A0+2*u}, v{x}, v{x+1}")
        a(f"v_cvt_pk_bf16_f32 v{A0+2*u+1}, v{x+2}, v{x+3}")
    a(f"s_lshl_b32 s{S_T0}, s{S_MT}, 2")
    a(f"s_add_u32 s{S_T0}, s{S_T0}, s{S_J}")
    a(f"s_lshl_b32 s{S_T0}, s{S_T0}, 2")
    a(f"s_add_u32 s{S_T0}, s{S_T0}, s{S_CW}")
    a(f"s_mul_i32 s{S_T0}, s{S_T0}, 4608")
    a(f"s_mul_i32 s{S_T1}, s{S_XG}, {PART_XG}")
    a(f"s_add_u32 s{S_T0}, s{S_T0}, s{S_T1}")
    a(f"s_add_u32 s{S_T0}, s{S_T0}, {PART_OFF}")
    a(f"v_lshlrev_b32 v{t2}, 3, v0")
    psc = "" if 'pplain' in opt else " sc1"
    W = f"s[{SRD_WS}:{SRD_WS+3}]"
    for q in range(4):
        a(f"buffer_store_dwordx4 v[{A0+4*q}:{A0+4*q+3}], v{t1}, {W}, s{S_T0} offen offset:{1024*q}{psc}")
    a(f"s_add_u32 s{S_T0}, s{S_T0}, 4096")
    a(f"buffer_store_dwordx2 v[{A0+16}:{A0+17}], v{t2}, {W}, s{S_T0} offen{psc}")
    stamp(a, 6)
    if 'ts' in opt:
        a("s_waitcnt vmcnt(0)")
    stamp(a, 7)
    dump_stamps(a, 0, 8, "C", 0)

def kernel_main(a):
    name = "mlp_kernel"
    a(f".globl {name}\n.p2align 8\n.type {name},@function\n{name}:")
    a(f"s_cmp_ge_u32 s2, 256")
    a(f"s_cbranch_scc1 L_END")
    stamp(a, 0)
    a("s_load_dwordx8 s[4:11], s[0:1], 0")
    a("s_load_dwordx4 s[12:15], s[0:1], 32")
    a("v_lshrrev_b32 v1, 6, v0")
    a("v_and_b32 v0, 63, v0")
    a(f"v_readfirstlane_b32 s{S_WV}, v1")
    if 'xmap' in opt:
        a(f"s_and_b32 s{S_J}, s2, 3")
        a(f"s_lshr_b32 s{S_XG}, s2, 2")
        a(f"s_and_b32 s{S_XG}, s{S_XG}, 7")
    else:
        a(f"s_and_b32 s{S_XG}, s2, 7")
        a(f"s_lshr_b32 s{S_J}, s2, 3")
        a(f"s_and_b32 s{S_J}, s{S_J}, 3")
    a(f"s_lshr_b32 s{S_MT}, s2, 5")
    a(f"s_lshl_b32 s{S_GRP}, s{S_XG}, 3")
    a(f"s_add_u32 s{S_GRP}, s{S_GRP}, s{S_MT}")
    a(f"s_lshl_b32 s{S_GRP}, s{S_GRP}, 2")
    a(f"s_and_b32 s{S_CW}, s{S_WV}, 3")
    a(f"s_add_u32 s{S_HB}, s{S_GRP}, s{S_CW}")
    a(f"s_mul_i32 s{S_HB}, s{S_HB}, {STAGE}")
    a(f"s_cmp_ge_u32 s{S_WV}, 4")
    a("s_cbranch_scc1 L_LOADER")
    compute(a)
    a.label("L_END")
    a("s_endpgm")
    loader(a)
    a(kd(name, vgpr=116, sgpr=90))

def kernel3(a):
    name = "red_kernel"
    a(f".globl {name}\n.p2align 8\n.type {name},@function\n{name}:")
    a(f"s_cmp_ge_u32 s2, 160")
    a(f"s_cbranch_scc1 L_END_K3")
    stamp(a, 0)
    a("s_load_dwordx2 s[10:11], s[0:1], 24")
    a("s_load_dwordx2 s[14:15], s[0:1], 40")
    a("v_lshrrev_b32 v1, 6, v0")
    a("v_and_b32 v0, 63, v0")
    a(f"v_readfirstlane_b32 s{S_WV}, v1")
    a("s_nop 3")
    a(f"s_lshl_b32 s3, s2, 2")
    a(f"s_add_u32 s3, s3, s{S_WV}")
    a(f"s_mul_i32 s{S_T1}, s3, 13108")
    a(f"s_lshr_b32 s{S_T1}, s{S_T1}, 16")
    a(f"s_mul_i32 s{S_T2}, s{S_T1}, 5")
    a(f"s_sub_u32 s{S_T2}, s3, s{S_T2}")
    a(f"s_mul_i32 s{S_T0}, s{S_T1}, 4608")
    a(f"s_lshl_b32 s{S_T3}, s{S_T2}, 10")
    a(f"s_add_u32 s{S_T0}, s{S_T0}, s{S_T3}")
    a(f"s_add_u32 s{S_T0}, s{S_T0}, {PART_OFF}")
    a(f"s_and_b32 s{S_CW}, s{S_T1}, 3")
    a(f"s_lshr_b32 s{S_J}, s{S_T1}, 2")
    a(f"s_and_b32 s{S_J}, s{S_J}, 3")
    a(f"s_lshr_b32 s{S_MT}, s{S_T1}, 4")
    a(f"s_lshr_b32 s{S_P}, s{S_T2}, 1")
    a(f"s_and_b32 s{S_P}, s{S_P}, 1")
    a(f"s_xor_b32 s{S_P}, s{S_P}, s{S_CW}")
    a(f"s_lshl_b32 s{S_MT}, s{S_MT}, 2")
    a(f"s_add_u32 s{S_MT}, s{S_MT}, s{S_P}")
    a(f"s_mul_i32 s{S_MT}, s{S_MT}, {16*1152}")
    a(f"s_mul_i32 s{S_J}, s{S_J}, 288")
    a(f"s_add_u32 s{S_MT}, s{S_MT}, s{S_J}")
    a(f"v_and_b32 v2, 15, v0")
    a(f"v_mul_u32_u24 v2, 1152, v2")
    a(f"v_lshrrev_b32 v3, 4, v0")
    a(f"v_lshl_add_u32 v2, v3, 3, v2")
    a("s_waitcnt lgkmcnt(0)")
    srd(a, SRD_WS, S_WS, WS_BYTES)
    srd(a, SRD_X, S_OUT, OUT_BYTES)
    a(f"s_cmp_eq_u32 s{S_T2}, 4")
    a("s_cbranch_scc1 L_K3_SINGLE")
    a(f"v_lshlrev_b32 v1, 4, v0")
    for xg in range(8):
        a(f"buffer_load_dwordx4 v[{4+4*xg}:{7+4*xg}], v1, s[{SRD_WS}:{SRD_WS+3}], s{S_T0} offen")
        if xg < 7: a(f"s_add_u32 s{S_T0}, s{S_T0}, {PART_XG}")
    a(f"s_and_b32 s{S_CW}, s{S_CW}, 1")
    a(f"s_lshl_b32 s{S_CW}, s{S_CW}, 7")
    a(f"s_and_b32 s{S_T2}, s{S_T2}, 1")
    a(f"s_lshl_b32 s{S_T2}, s{S_T2}, 6")
    a(f"s_add_u32 s{S_MT}, s{S_MT}, s{S_CW}")
    a(f"s_add_u32 s{S_MT}, s{S_MT}, s{S_T2}")
    def reduce(n):
        for xg in range(8):
            a(f"s_waitcnt vmcnt({7-xg})")
            for d in range(n):
                src = 4 + 4*xg + d
                if xg == 0:
                    a(f"v_lshlrev_b32 v{40+2*d}, 16, v{src}")
                    a(f"v_and_b32 v{41+2*d}, 0xffff0000, v{src}")
                else:
                    a(f"v_lshlrev_b32 v{50+2*d}, 16, v{src}")
                    a(f"v_and_b32 v{51+2*d}, 0xffff0000, v{src}")
            if xg:
                for d in range(2*n):
                    a(f"v_add_f32 v{40+d}, v{40+d}, v{50+d}")
        for d in range(n):
            a(f"v_cvt_pk_bf16_f32 v{4+d}, v{40+2*d}, v{41+2*d}")
    reduce(4)
    a(f"buffer_store_dwordx2 v[4:5], v2, s[{SRD_X}:{SRD_X+3}], s{S_MT} offen")
    a(f"buffer_store_dwordx2 v[6:7], v2, s[{SRD_X}:{SRD_X+3}], s{S_MT} offen offset:32")
    a("s_branch L_K3_FIN")
    a.label("L_K3_SINGLE")
    a(f"v_lshlrev_b32 v1, 3, v0")
    for xg in range(8):
        a(f"buffer_load_dwordx2 v[{4+4*xg}:{5+4*xg}], v1, s[{SRD_WS}:{SRD_WS+3}], s{S_T0} offen")
        if xg < 7: a(f"s_add_u32 s{S_T0}, s{S_T0}, {PART_XG}")
    a(f"s_add_u32 s{S_MT}, s{S_MT}, 256")
    reduce(2)
    a(f"buffer_store_dwordx2 v[4:5], v2, s[{SRD_X}:{SRD_X+3}], s{S_MT} offen")
    a.label("L_K3_FIN")
    stamp(a, 1)
    if 'ts' in opt:
        a("s_waitcnt vmcnt(0)")
    stamp(a, 2)
    dump_stamps(a, 2, 3, "K3", 0)
    a.label("L_END_K3")
    a("s_endpgm")
    a(kd(name, vgpr=64, sgpr=90))

def main():
    for o in sys.argv[2:]: opt.add(o)
    a = Asm()
    a(HEADER.rstrip())
    a(f"; @launch kernel=mlp_kernel grid=(256,1,1) block=(512,1,1) lds={LDS_BYTES}")
    a(f"; @launch kernel=red_kernel grid=(160,1,1) block=(256,1,1) lds=0")
    a('.amdgcn_target "amdgcn-amd-amdhsa--gfx950"')
    a(".text")
    kernel_main(a); kernel3(a)
    open(sys.argv[1], "w").write(a.text())

main()
```

```python
import sys
from common import *

X_BYTES = 512*576*2
W_BYTES = 576*4608*2
OUT_BYTES = 512*576*2
WS_BYTES = 268435456
PAGE = 2*1024*1024
H_OFF = 4096
GRP_BYTES = 4*18432
FLAG_OFF = 4*PAGE + 4096
PART_OFF = 5*PAGE + 4096
PART_XG = 128*4608
WST = 18432
SLOT = WST
NSLOT = 4
LB = NSLOT*SLOT
LDS_BYTES = LB + 4*WST + 2048
TS_OFF = 128 << 20
SPIN = 1 << 17

opt = set()
NT_ON = [False]
def NT(): return " nt" if (NT_ON[0] and 'nont' not in opt) or 'allnt' in opt else ""

S_X, S_W1, S_W2, S_OUT, S_DBG, S_WS = 4, 6, 8, 10, 12, 14
SRD_X, SRD_W1, SRD_WS, SRD_W2, SRD_DBG = 16, 20, 24, 40, 44
S_WV, S_XG, S_J, S_MT, S_CW = 28, 29, 30, 31, 32
S_N, S_WOFF, S_DSLOT, S_RSLOT = 33, 34, 35, 36
S_T0, S_T1, S_T2, S_T3 = 37, 38, 39, 48
S_WLDS, S_P, S_XROW, S_BLDS, S_HB, S_GRP, S_FAST, S_HSLOT = 49, 50, 51, 52, 53, 54, 55, 56
S_WCOL, S_HOFF = 57, 58
S_P2, S_PH, S_W2B = 92, 93, 94
S_BDST = 56
S_TS = 60
S_K = 84

LD_DONE = [False]
def stamp(a, i):
    if 'ldiag' in opt and LD_DONE[0]: return
    if 'ts' in opt and not ('diag' in opt and DIAG_C[0]): a(f"s_memrealtime s[{S_TS+2*i}:{S_TS+2*i+1}]")
DIAG_C = [False]

def dump_stamps(a, kidx, n, tag, wave):
    if 'ts' not in opt: return
    a("s_waitcnt lgkmcnt(0) vmcnt(0)")
    a(f"s_cmp_eq_u32 s{S_WV}, {wave}")
    a(f"s_cbranch_scc0 L_NOTS{tag}")
    a(f"s_lshl_b32 s80, s2, 7")
    a(f"s_add_u32 s80, s80, {TS_OFF + kidx*512*128}")
    a(f"s_mov_b32 s88, s14\ns_mov_b32 s89, s15\ns_mov_b32 s90, {WS_BYTES}\ns_mov_b32 s91, 0x20000")
    a("v_mov_b32 v2, 0")
    for i in range(n):
        a(f"v_mov_b32 v4, s{S_TS+2*i}\nv_mov_b32 v5, s{S_TS+2*i+1}")
        a(f"buffer_store_dwordx2 v[4:5], v2, s[88:91], s80 offen offset:{8*i}")
        a("s_nop 1")
    a.label(f"L_NOTS{tag}")

def srd(a, base, ptr, nbytes):
    a(f"s_mov_b32 s{base}, s{ptr}")
    a(f"s_mov_b32 s{base+1}, s{ptr+1}")
    a(f"s_mov_b32 s{base+2}, {nbytes}")
    a(f"s_mov_b32 s{base+3}, 0x20000")

def slot_advance(a, reg):
    a(f"s_add_u32 s{reg}, s{reg}, {SLOT}")
    a(f"s_cmp_eq_u32 s{reg}, {NSLOT*SLOT}")
    a(f"s_cselect_b32 s{reg}, 0, s{reg}")

L_W1, L_W2, L_X, L_H, L_T = 1, 6, 11, 13, 14

def loader_addr_setup(a):
    t0, t1, t2, t3 = L_T, L_T+1, L_T+2, L_T+3
    a(f"v_lshrrev_b32 v{t0}, 3, v0")
    a(f"v_lshrrev_b32 v{t1}, 4, v0")
    a(f"v_and_b32 v{t2}, 7, v0")
    a(f"v_xor_b32 v{t1}, v{t1}, v{t2}")
    a(f"v_lshlrev_b32 v{t1}, 4, v{t1}")
    a(f"v_mul_u32_u24 v{t0}, 1152, v{t0}")
    a(f"v_add_u32 v{L_X}, v{t0}, v{t1}")
    a(f"v_xor_b32 v{t1}, 64, v{t1}")
    a(f"v_add_u32 v{t0}, {8*1152}, v{t0}")
    a(f"v_add_u32 v{L_X+1}, v{t0}, v{t1}")
    a(f"v_lshlrev_b32 v{L_H}, 4, v0")
    a(f"v_lshrrev_b32 v{t0}, 1, v0")
    a(f"v_and_b32 v{t0}, 1, v{t0}")
    a(f"v_lshlrev_b32 v{t0}, 9, v{t0}")
    a(f"v_lshrrev_b32 v{t1}, 2, v0")
    a(f"v_lshl_add_u32 v{t0}, v{t1}, 3, v{t0}")
    a(f"v_and_b32 v{t1}, 1, v0")
    a(f"v_lshl_add_u32 v{L_HS}, v{t1}, 2, v{t0}")
    a(f"s_lshr_b32 s{S_T0}, s{S_CW}, 1")
    a(f"s_lshl_b32 s{S_T0}, s{S_T0}, 5")
    a(f"s_and_b32 s{S_T1}, s{S_CW}, 1")
    a(f"s_lshl_b32 s{S_T1}, s{S_T1}, 2")
    a(f"s_add_u32 s{S_T0}, s{S_T0}, s{S_T1}")
    a(f"s_and_b32 s{S_T1}, s{S_J}, 1")
    a(f"s_lshl_b32 s{S_T1}, s{S_T1}, 1")
    a(f"s_movk_i32 s{S_T2}, 9216")
    for i in range(5):
        a(f"v_add_u32 v{t0}, {64*i}, v0")
        a(f"v_mul_u32_u24 v{t1}, 3641, v{t0}")
        a(f"v_lshrrev_b32 v{L_W2+i}, 16, v{t1}")
        a(f"v_mul_u32_u24 v{t2}, 18, v{L_W2+i}")
        a(f"v_sub_u32 v{20+i}, v{t0}, v{t2}")
        a(f"v_add_u32 v{t0}, s{S_T1}, v{20+i}")
        a(f"v_subrev_u32 v{t2}, 18, v{t0}")
        a(f"v_min_u32 v{t0}, v{t0}, v{t2}")
        a(f"v_lshrrev_b32 v{t2}, 2, v{L_W2+i}")
        a(f"v_and_b32 v{t1}, 3, v{L_W2+i}")
        a(f"v_lshl_add_u32 v{t1}, v{t2}, 3, v{t1}")
        a(f"v_add_u32 v{t1}, s{S_T0}, v{t1}")
        a(f"v_lshlrev_b32 v{t0}, 4, v{t0}")
        a(f"v_mad_u32_u24 v{L_W1+i}, v{t1}, s{S_T2}, v{t0}")

def loader_addr_w2(a):
    t0 = L_T
    a(f"s_lshl_b32 s{S_T3}, s{S_CW}, 4")
    a(f"s_movk_i32 s{S_T2}, 1152")
    for i in range(5):
        a(f"v_add_u32 v{t0}, s{S_T3}, v{L_W2+i}")
        a(f"v_lshlrev_b32 v{20+i}, 4, v{20+i}")
        a(f"v_mad_u32_u24 v{L_W2+i}, v{t0}, s{S_T2}, v{20+i}")

def issue_w(a, vbase, srdreg):
    for i in range(5):
        if i == 0: a(f"s_add_u32 m0, s{S_DSLOT}, s{S_WLDS}")
        else:      a(f"s_add_u32 m0, m0, 1024")
        a("s_mov_b32 exec_hi, 0" if i == 4 else "s_nop 0")
        a(f"buffer_load_dwordx4 v{vbase+i}, s[{srdreg}:{srdreg+3}], s{S_WOFF} offen{NT()} lds")
    a("s_mov_b32 exec_hi, -1")
    slot_advance(a, S_DSLOT)

S_PF = 96
def spf_w2_setup(a):
    a(f"s_lshl_b32 s{S_T0}, s{S_MT}, 2")
    a(f"s_add_u32 s{S_T0}, s{S_T0}, s{S_J}")
    a(f"s_mul_i32 s{S_T0}, s{S_T0}, 162")
    a(f"s_mul_i32 s{S_T1}, s{S_CW}, 40")
    a(f"s_add_u32 s{S_T0}, s{S_T0}, s{S_T1}")
    a(f"s_lshl_b32 s{S_T0}, s{S_T0}, 7")
    a(f"s_mul_i32 s{S_T1}, s{S_XG}, {576*1152}")
    a(f"s_add_u32 s{S_T0}, s{S_T0}, s{S_T1}")
    a(f"s_add_u32 s{S_PF}, s{S_W2}, s{S_T0}")
    a(f"s_addc_u32 s{S_PF+1}, s{S_W2+1}, 0")
def spf_w2(a):
    for i in range(6):
        a(f"s_load_dword s95, s[{S_PF}:{S_PF+1}], {128*i}")
    a(f"s_add_u32 s{S_PF}, s{S_PF}, 768")
    a(f"s_addc_u32 s{S_PF+1}, s{S_PF+1}, 0")

def issue_stage1(a, pf=False):
    if pf and 'sw2' in opt: spf_w2(a)
    a(f"s_lshl_b32 s{S_T0}, s{S_P}, 7")
    a(f"s_add_u32 s{S_T0}, s{S_T0}, s{S_XROW}")
    a(f"s_mov_b32 m0, s{S_BDST}")
    a(f"s_mul_i32 s{S_WOFF}, s{S_P}, {64*9216}")
    a(f"buffer_load_dwordx4 v{L_X}, s[{SRD_X}:{SRD_X+3}], s{S_T0} offen{NT()} lds")
    a(f"s_add_u32 m0, m0, 1024")
    a(f"s_add_u32 s{S_WOFF}, s{S_WOFF}, s{S_WCOL}")
    a(f"buffer_load_dwordx4 v{L_X+1}, s[{SRD_X}:{SRD_X+3}], s{S_T0} offen{NT()} lds")
    a(f"s_add_u32 s{S_BDST}, s{S_BDST}, 2048")
    issue_w(a, L_W1, SRD_W1)
    a(f"s_add_u32 s{S_P}, s{S_P}, 1")
    a(f"s_cmp_eq_u32 s{S_P}, 9")
    a(f"s_cselect_b32 s{S_P}, 0, s{S_P}")

def wrap9(a, reg):
    a(f"s_add_u32 s{reg}, s{reg}, 1")
    a(f"s_cmp_eq_u32 s{reg}, 9")
    a(f"s_cselect_b32 s{reg}, 0, s{reg}")

def issue_w2(a):
    a(f"s_mul_i32 s{S_WOFF}, s{S_P2}, {64*1152}")
    a(f"s_add_u32 s{S_WOFF}, s{S_WOFF}, s{S_W2B}")
    issue_w(a, L_W2, SRD_W2)
    wrap9(a, S_P2)

L_HS = 25
def issue_h(a, n):
    W = f"s[{SRD_WS}:{SRD_WS+3}]"
    for s0 in range(2):
        ks = 2*n + s0
        a(f"s_add_u32 m0, s{S_BLDS}, {ks*1024}")
        a(f"s_add_u32 s{S_HOFF}, s{S_HB}, {ks*1024}")
        if ks not in (4, 13):
            a(f"buffer_load_dwordx4 v{L_H}, {W}, s{S_HOFF} offen sc1 lds")
        else:
            for q in range(4):
                if q: a("s_add_u32 m0, m0, 128\ns_nop 0")
                a(f"buffer_load_dword v{L_HS}, {W}, s{S_HOFF} offen offset:{128*q} sc1 lds")
def h_count(n): return 5 if n in (2, 6) else 2

def poll_pub(a, tag, vtmp, preloaded=False):
    if preloaded:
        a("s_waitcnt vmcnt(0)")
        a(f"v_cmp_ne_u32 vcc, 1, v{vtmp}")
        a(f"s_cbranch_vccz L_PGX{tag}")
    a(f"s_mov_b32 s{S_T3}, 0")
    a.label(f"L_PG{tag}")
    a(f"s_add_u32 s{S_T3}, s{S_T3}, 1")
    a(f"s_cmp_gt_u32 s{S_T3}, {SPIN}")
    a(f"s_cbranch_scc1 L_PGX{tag}")
    a(f"buffer_load_dword v{vtmp}, off, s[{SRD_DBG}:{SRD_DBG+3}], 0 sc1")
    a("s_waitcnt vmcnt(0)")
    a(f"v_cmp_ne_u32 vcc, 1, v{vtmp}")
    a(f"s_cbranch_vccnz L_PG{tag}")
    a.label(f"L_PGX{tag}")

def loader(a):
    a.label("L_LOADER")
    loader_addr_setup(a)
    a(f"s_lshl_b32 s{S_T0}, s{S_MT}, 2")
    a(f"s_add_u32 s{S_T0}, s{S_T0}, s{S_CW}")
    a(f"s_mul_i32 s{S_XROW}, s{S_T0}, {16*1152}")
    a(f"s_mul_i32 s{S_BLDS}, s{S_CW}, {WST}")
    a(f"s_add_u32 s{S_BLDS}, s{S_BLDS}, {LB}")
    a(f"s_mov_b32 s{S_BDST}, s{S_BLDS}")
    a(f"s_mul_i32 s{S_WCOL}, s{S_XG}, 1152")
    a(f"s_mul_i32 s{S_T0}, s{S_J}, 288")
    a(f"s_add_u32 s{S_WCOL}, s{S_WCOL}, s{S_T0}")
    a(f"s_mul_i32 s{S_WLDS}, s{S_CW}, 4608")
    a(f"s_mov_b32 s{S_DSLOT}, 0")
    if 'norot' in opt: a(f"s_mov_b32 s{S_P}, 0")
    else:
        a(f"s_lshl_b32 s{S_P}, s{S_J}, 1")
        a(f"s_add_u32 s{S_P}, s{S_P}, s{S_MT}")
        a(f"s_sub_u32 s{S_T0}, s{S_P}, 9")
        a(f"s_cmp_ge_u32 s{S_P}, 9")
        a(f"s_cselect_b32 s{S_P}, s{S_T0}, s{S_P}")
    a(f"s_mov_b32 s{S_P2}, 0")
    a("s_waitcnt lgkmcnt(0)")
    srd(a, SRD_X, S_X, X_BYTES)
    srd(a, SRD_W1, S_W1, W_BYTES)
    if 'spf2' in opt:
        a(f"s_getpc_b64 s[{S_K}:{S_K+1}]")
        a(f"s_mul_i32 s{S_T0}, s{S_CW}, 1792")
        a(f"s_add_u32 s{S_K}, s{S_K}, s{S_T0}")
        a(f"s_addc_u32 s{S_K+1}, s{S_K+1}, 0")
        for i in range(14):
            a(f"s_load_dword s95, s[{S_K}:{S_K+1}], {128*i+ (0)}")
    stamp(a, 1)
    NT_ON[0] = True
    issue_stage1(a)
    if 'ldiag' in opt: stamp(a, 2)
    issue_stage1(a)
    NT_ON[0] = 'nt2' in opt
    if 'ldiag' in opt: stamp(a, 3)
    srd(a, SRD_W2, S_W2, W_BYTES)
    srd(a, SRD_WS, S_WS, WS_BYTES)
    srd(a, SRD_DBG, S_DBG, 256)
    loader_addr_w2(a)
    if 'ldiag' not in opt: stamp(a, 2)
    a("s_waitcnt vmcnt(7)")
    if 'ldiag' in opt: stamp(a, 4)
    a("s_barrier")
    if 'ldiag' not in opt: stamp(a, 3)
    issue_stage1(a, True)
    NT_ON[0] = False
    if 'ldiag' in opt:
        stamp(a, 5)
        a("s_waitcnt vmcnt(7)")
        stamp(a, 6)
        a("s_barrier")
        issue_stage1(a)
        stamp(a, 7)
        a("s_waitcnt vmcnt(7)")
        stamp(a, 8)
        a("s_barrier")
        issue_stage1(a)
        stamp(a, 9)
    a(f"s_mov_b32 s{S_N}, {2 if 'ldiag' in opt else 0}")
    a.label("L_LD1")
    if 'ldiag' in opt: LD_DONE[0] = True
    a("s_waitcnt vmcnt(7)")
    a("s_barrier")
    issue_stage1(a, True)
    a(f"s_add_u32 s{S_N}, s{S_N}, 1")
    a(f"s_cmp_lt_u32 s{S_N}, 6")
    a("s_cbranch_scc1 L_LD1")
    a(f"s_mul_i32 s{S_W2B}, s{S_XG}, {576*1152}")
    a(f"s_mul_i32 s{S_T0}, s{S_J}, 288")
    a(f"s_add_u32 s{S_W2B}, s{S_W2B}, s{S_T0}")
    w2t = 'now2t' not in opt and 'sw2' not in opt
    if w2t:
        a(f"s_lshl_b32 s{S_T0}, s{S_MT}, 2")
        a(f"s_add_u32 s{S_T0}, s{S_T0}, s{S_J}")
        a(f"s_mul_i32 s{S_T0}, s{S_T0}, 162")
        a(f"s_mul_i32 s{S_T1}, s{S_CW}, 41")
        a(f"s_add_u32 s{S_T0}, s{S_T0}, s{S_T1}")
        a(f"s_lshl_b32 s{S_T0}, s{S_T0}, 7")
        a(f"s_mul_i32 s{S_T1}, s{S_XG}, {576*1152}")
        a(f"s_add_u32 s{S_T0}, s{S_T0}, s{S_T1}")
        a(f"v_min_u32 v{L_T}, 40, v0")
        a(f"v_lshlrev_b32 v{L_T}, 7, v{L_T}")
        a(f"buffer_load_dword v{L_T+2}, v{L_T}, s[{SRD_W2}:{SRD_W2+3}], s{S_T0} offen" + ("" if 'nont' in opt else " nt"))
    a("s_waitcnt vmcnt(%d)" % (8 if w2t else 7))
    a("s_barrier")
    nA, nB, nC = 0, 0, 3
    for o in opt:
        if o.startswith('sch'): nA, nB, nC = int(o[3]), int(o[4]), int(o[5])
    assert nA + nB + nC <= 4
    wnext = [9]
    def W_now():
        issue_w2(a); wnext[0] += 1
    for _ in range(nA): W_now()
    a("s_waitcnt vmcnt(%d)" % ((1 if w2t else 0) + 5*nA))
    a("s_barrier")
    a("s_barrier")
    stamp(a, 4)
    for _ in range(nB): W_now()
    poll_pub(a, "L", L_T)
    a(f"s_lshl_b32 s{S_T2}, s{S_GRP}, 5")
    a(f"s_add_u32 s{S_T2}, s{S_T2}, {FLAG_OFF}")
    a(f"v_and_b32 v{L_T+1}, 15, v0")
    a(f"v_lshlrev_b32 v{L_T+1}, 2, v{L_T+1}")
    a("s_barrier")
    stamp(a, 5)
    for _ in range(nC): W_now()
    a(f"s_mov_b32 s{S_T3}, 0")
    a.label("L_PF")
    a(f"s_add_u32 s{S_T3}, s{S_T3}, 1")
    a(f"s_cmp_gt_u32 s{S_T3}, {SPIN}")
    a(f"s_cbranch_scc1 L_PFX")
    a(f"buffer_load_dword v{L_T}, v{L_T+1}, s[{SRD_WS}:{SRD_WS+3}], s{S_T2} offen sc1")
    a("s_waitcnt vmcnt(0)")
    a(f"v_cmp_ne_u32 vcc, 1, v{L_T}")
    a("s_cbranch_vccnz L_PF")
    a.label("L_PFX")
    stamp(a, 6)
    q = []
    def iss(name, cnt, fn):
        fn(); q.append((name, cnt))
    def wait(*names):
        idx = [i for i, (nm, c) in enumerate(q) if nm in names]
        last = max(idx) if idx else -1
        a("s_waitcnt vmcnt(%d)" % sum(c for nm, c in q[last+1:]))
    H = lambda n: iss(f"h{n}", h_count(n), lambda: issue_h(a, n))
    def Wn(n):
        assert wnext[0] == n, (wnext, n)
        iss(f"W{n}", 5, lambda: issue_w2(a)); wnext[0] += 1
    H(0); H(1); H(2)
    wait("h0")
    a("s_barrier")
    stamp(a, 7)
    assert wnext[0] >= 10
    hn = 3
    for s in range(10, 18):
        nw = wnext[0]
        if nw <= 17 and (nw <= 12 or nw <= s + 1):
            Wn(nw)
        if hn <= 8:
            H(hn); hn += 1
        if hn <= 8 and 'h2' in opt:
            H(hn); hn += 1
        wait(f"h{s-9}", f"W{s}")
        have = [nm for nm, c in q]
        assert (f"h{s-9}" in have) and (f"W{s}" in have or s < wnext[0]), (s, have)
        a("s_barrier")
    stamp(a, 8)
    LD_DONE[0] = False
    dump_stamps(a, 1, 10, "LD", 4)
    a("s_endpgm")

C_BF, C_BS = 2, 4
C_A, C_A8, C_AC, C_A8C = 6, 7, 8, 9
C_T = 10
C_BP = 108
A0, B0, A1, B1 = 16, 36, 44, 64
ACC = 72
C_E = 112

def reads_step(Aset, Bset, s0):
    ins = [f"ds_read_b128 v[{Bset}:{Bset+3}], v{C_BF+s0}"]
    def A(t):
        vaddr = C_AC if t < 4 else C_A8C
        off = s0*9216 + (32*t if t < 4 else 0)
        return [f"ds_read_b64_tr_b16 v[{Aset+4*t}:{Aset+4*t+1}], v{vaddr} offset:{off}",
                f"ds_read_b64_tr_b16 v[{Aset+4*t+2}:{Aset+4*t+3}], v{vaddr} offset:{off+4608}"]
    ins += A(0)
    ins.append(f"ds_read_b128 v[{Bset+4}:{Bset+7}], v{C_BS+s0}")
    for t in range(1, 5): ins += A(t)
    return ins

def mfmas(Aset, Bset):
    def m(acc, t, b):
        return f"v_mfma_f32_16x16x32_bf16 v[{ACC+4*acc}:{ACC+4*acc+3}], v[{Aset+4*t}:{Aset+4*t+3}], v[{Bset+4*b}:{Bset+4*b+3}], v[{ACC+4*acc}:{ACC+4*acc+3}]"
    out = []
    for t in range(4):
        out.append(m(t, t, 0)); out.append(m(4+t, t, 1))
    out.append(m(8, 4, 0))
    return out

def block(a, r, m):
    for u in range(9):
        a(m[u])
        if r and u < 6:
            a(r[2*u]); a(r[2*u+1])

def set_stage_addrs(a, first=False):
    a(f"v_add_u32 v{C_AC}, s{S_RSLOT}, v{C_A}")
    a(f"v_add_u32 v{C_A8C}, s{S_RSLOT}, v{C_A8}")
    for i, r in enumerate((C_BF, C_BF+1, C_BS, C_BS+1)):
        if first: a(f"v_mov_b32 v{r}, v{C_BP+i}")
        else:     a(f"v_add_u32 v{r}, 2048, v{r}")

def compute_loop_diag(a, name, k0):
    for n in range(9):
        a("s_waitcnt lgkmcnt(0)")
        if n: a(f"s_mov_b32 s{S_TS+k0+n-1}, s96")
        block(a, reads_step(A1, B1, 1), mfmas(A0, B0))
        slot_advance(a, S_RSLOT)
        set_stage_addrs(a)
        if n == 8: break
        a("s_barrier")
        a("s_memtime s[96:97]")
        a("s_waitcnt lgkmcnt(0)")
        block(a, reads_step(A0, B0, 0), mfmas(A1, B1))
    a("s_waitcnt lgkmcnt(0)")
    block(a, None, mfmas(A1, B1))
    a("s_memtime s[96:97]")
    a("s_waitcnt lgkmcnt(0)")
    a(f"s_mov_b32 s{S_TS+k0+8}, s96")

def compute_loop(a, name):
    if 'diag' in opt:
        return compute_loop_diag(a, name, 0 if name == "C1" else 10)
    a(f"s_mov_b32 s{S_N}, 0")
    a.label(f"L_{name}")
    a("s_waitcnt lgkmcnt(0)")
    block(a, reads_step(A1, B1, 1), mfmas(A0, B0))
    slot_advance(a, S_RSLOT)
    set_stage_addrs(a)
    a(f"s_cmp_eq_u32 s{S_N}, 8")
    a(f"s_cbranch_scc1 L_{name}_LAST")
    a("s_barrier")
    a("s_waitcnt lgkmcnt(0)")
    block(a, reads_step(A0, B0, 0), mfmas(A1, B1))
    a(f"s_add_u32 s{S_N}, s{S_N}, 1")
    a(f"s_branch L_{name}")
    a.label(f"L_{name}_LAST")
    a("s_waitcnt lgkmcnt(0)")
    block(a, None, mfmas(A1, B1))

def zero_acc(a):
    for i in range(0, 36, 2): a(f"v_pk_mov_b32 v[{ACC+i}:{ACC+i+1}], 0, 0")

def touches(a):
    t0, t1, t2 = C_T, C_T+1, C_T+2
    if 'nocode' not in opt:
        a(f"s_getpc_b64 s[{S_K}:{S_K+1}]")
        a.label("L_PC")
        a(f"s_sub_u32 s{S_K}, s{S_K}, (L_PC - mlp_kernel)")
        a(f"s_subb_u32 s{S_K+1}, s{S_K+1}, 0")
        a(f"v_lshlrev_b32 v{t0}, 7, v0")
        a(f"s_lshl_b32 s{S_T0}, s{S_CW}, 13")
        a(f"v_add_u32 v{t0}, s{S_T0}, v{t0}")
        a(f"v_cmp_gt_u32 vcc, (L_CODE_END - mlp_kernel), v{t0}")
        a(f"s_and_saveexec_b64 s[{S_T0}:{S_T0+1}], vcc") if False else None
        a(f"v_min_u32 v{t0}, (L_CODE_END - mlp_kernel - 4), v{t0}")
        a(f"global_load_dword v{C_E}, v{t0}, s[{S_K}:{S_K+1}]")

def touches_x(a):
    t0, t1, t2 = C_T, C_T+1, C_T+2
    a(f"s_mul_i32 s{S_T0}, s{S_CW}, 36")
    a(f"v_min_u32 v{t0}, 35, v0")
    a(f"v_add_u32 v{t0}, s{S_T0}, v{t0}")
    a(f"v_lshrrev_b32 v{t1}, 4, v{t0}")
    a(f"v_and_b32 v{t0}, 15, v{t0}")
    a(f"v_mul_u32_u24 v{t0}, 1152, v{t0}")
    a(f"v_lshl_add_u32 v{t0}, v{t1}, 7, v{t0}")
    a(f"s_lshl_b32 s{S_T0}, s{S_MT}, 2")
    a(f"s_add_u32 s{S_T0}, s{S_T0}, s{S_J}")
    a(f"s_mul_i32 s{S_T0}, s{S_T0}, {16*1152}")
    a(f"buffer_load_dword v{C_E+1}, v{t0}, s[{SRD_X}:{SRD_X+3}], s{S_T0} offen")
    if 'half' in opt:
        a(f"buffer_load_dword v{C_E+5}, v{t0}, s[{SRD_X}:{SRD_X+3}], s{S_T0} offen offset:64")

def touches_w2(a):
    t0, t1 = C_T, C_T+1
    a(f"s_lshl_b32 s{S_T0}, s{S_MT}, 2")
    a(f"s_add_u32 s{S_T0}, s{S_T0}, s{S_J}")
    a(f"s_mul_i32 s{S_T0}, s{S_T0}, 162")
    a(f"s_mul_i32 s{S_T1}, s{S_CW}, 41")
    a(f"s_add_u32 s{S_T0}, s{S_T0}, s{S_T1}")
    a(f"s_lshl_b32 s{S_T0}, s{S_T0}, 7")
    a(f"s_mul_i32 s{S_T1}, s{S_XG}, {576*1152}")
    a(f"s_add_u32 s{S_T0}, s{S_T0}, s{S_T1}")
    a(f"v_min_u32 v{t0}, 40, v0")
    a(f"v_lshlrev_b32 v{t0}, 7, v{t0}")
    a(f"buffer_load_dword v{C_E+2}, v{t0}, s[{SRD_W2}:{SRD_W2+3}], s{S_T0} offen")
    if 'half' in opt:
        a(f"buffer_load_dword v{C_E+4}, v{t0}, s[{SRD_W2}:{SRD_W2+3}], s{S_T0} offen offset:64")

def touches_ws(a):
    t0, t1 = C_T, C_T+1
    a(f"v_and_b32 v{t0}, 7, v0")
    a(f"v_lshlrev_b32 v{t0}, 21, v{t0}")
    a(f"buffer_load_dword v{C_E+3}, v{t0}, s[{SRD_WS}:{SRD_WS+3}], 0 offen")

def compute(a):
    DIAG_C[0] = True
    t0, t1, t2 = C_T, C_T+1, C_T+2
    if 'codepf' in opt: touches(a)
    a(f"v_lshrrev_b32 v{t0}, 2, v0")
    a(f"v_mul_u32_u24 v{t0}, 288, v{t0}")
    a(f"v_and_b32 v{t1}, 3, v0")
    a(f"v_lshl_add_u32 v{t0}, v{t1}, 3, v{t0}")
    a(f"v_add_u32 v{C_A8}, 256, v{t0}")
    a(f"s_and_b32 s{S_T0}, s{S_CW}, 1")
    a(f"s_lshl_b32 s{S_T0}, s{S_T0}, 7")
    a(f"v_add_u32 v{C_A}, s{S_T0}, v{t0}")
    a(f"s_mul_i32 s{S_T1}, s{S_CW}, {WST}")
    a(f"s_add_u32 s{S_T1}, s{S_T1}, {LB}")
    a(f"s_xor_b32 s{S_T2}, s{S_CW}, 1")
    a(f"s_mul_i32 s{S_T2}, s{S_T2}, {WST}")
    a(f"s_add_u32 s{S_T2}, s{S_T2}, {LB}")
    a(f"v_and_b32 v{t0}, 15, v0")
    a(f"v_lshrrev_b32 v{t1}, 1, v{t0}")
    a(f"v_lshrrev_b32 v{t2}, 4, v0")
    a(f"v_xor_b32 v{t1}, v{t1}, v{t2}")
    a(f"v_lshlrev_b32 v{t1}, 4, v{t1}")
    a(f"v_lshl_add_u32 v{t2}, v{t0}, 7, v{t1}")
    a(f"v_xor_b32 v{t1}, 64, v{t1}")
    a(f"v_lshl_add_u32 v{t1}, v{t0}, 7, v{t1}")
    a(f"v_add_u32 v{C_BP}, s{S_T1}, v{t2}")
    a(f"v_add_u32 v{C_BP+1}, s{S_T1}, v{t1}")
    a(f"v_add_u32 v{C_BP+2}, s{S_T2}, v{t2}")
    a(f"v_add_u32 v{C_BP+3}, s{S_T2}, v{t1}")
    a(f"s_mov_b32 s{S_RSLOT}, 0")
    set_stage_addrs(a, True)
    zero_acc(a)
    a("s_waitcnt lgkmcnt(0)")
    srd(a, SRD_X, S_X, X_BYTES)
    srd(a, SRD_W2, S_W2, W_BYTES)
    srd(a, SRD_WS, S_WS, WS_BYTES)
    srd(a, SRD_DBG, S_DBG, 256)
    if 'xpf' in opt: touches_x(a)
    if 'wspf' in opt: touches_ws(a)
    if 'w2early' in opt: touches_w2(a)
    a(f"s_cmp_eq_u32 s2, 0")
    a("s_cbranch_scc0 L_NOCLR")
    a(f"s_lshl_b32 s{S_T0}, s{S_CW}, 11")
    a(f"s_add_u32 s{S_T0}, s{S_T0}, {FLAG_OFF}")
    a(f"v_pk_mov_b32 v[{A1}:{A1+1}], 0, 0\nv_pk_mov_b32 v[{A1+2}:{A1+3}], 0, 0")
    a(f"v_lshlrev_b32 v{t1}, 4, v0")
    a(f"buffer_store_dwordx4 v[{A1}:{A1+3}], v{t1}, s[{SRD_WS}:{SRD_WS+3}], s{S_T0} offen sc1")
    a(f"buffer_store_dwordx4 v[{A1}:{A1+3}], v{t1}, s[{SRD_WS}:{SRD_WS+3}], s{S_T0} offen offset:1024 sc1")
    a("s_waitcnt vmcnt(0)")
    a.label("L_NOCLR")
    a("s_barrier")
    stamp(a, 1)
    for ins in reads_step(A0, B0, 0): a(ins)
    a(f"s_lshl_b32 s{S_T1}, s2, 2")
    a(f"s_or_b32 s{S_T1}, s{S_T1}, s{S_CW}")
    a(f"s_cmp_eq_u32 s{S_T1}, 0")
    a("s_cbranch_scc0 L_NOPUB")
    a(f"v_mov_b32 v{t0}, 1")
    a("s_mov_b64 exec, 1")
    a(f"buffer_store_dword v{t0}, off, s[{SRD_DBG}:{SRD_DBG+3}], 0 sc1")
    a("s_mov_b64 exec, -1")
    a.label("L_NOPUB")
    compute_loop(a, "C1")
    a("s_barrier")
    stamp(a, 2)
    a("s_waitcnt vmcnt(0)")
    a(f"buffer_load_dword v{t0}, off, s[{SRD_DBG}:{SRD_DBG+3}], 0 sc1")
    a(f"s_mov_b32 s{S_K}, 0xbfb8aa3b")
    a(f"s_mov_b32 s{S_K+1}, 0xbfb8aa3b")
    a(f"s_xor_b32 s{S_T2}, s{S_CW}, 1")
    a(f"s_sub_i32 s{S_T2}, s{S_T2}, s{S_CW}")
    a(f"s_mul_i32 s{S_T2}, s{S_T2}, {WST}")
    a(f"s_lshr_b32 s{S_T3}, s{S_J}, 1")
    a(f"s_mul_i32 s{S_T3}, s{S_T3}, {9*1024}")
    a(f"s_add_u32 s{S_T3}, s{S_T3}, {4*1024}")
    a(f"s_add_u32 s{S_T3}, s{S_T3}, s{S_HB}")
    a(f"s_and_b32 s{S_P}, s{S_J}, 1")
    a(f"s_lshl_b32 s{S_P}, s{S_P}, 9")
    a(f"s_add_u32 s{S_XROW}, s{S_T3}, s{S_P}")
    a(f"s_mul_i32 s{S_T3}, s{S_J}, 9")
    a(f"s_add_u32 s{S_T3}, s{S_T3}, 1")
    a(f"s_lshr_b32 s{S_T3}, s{S_T3}, 1")
    a(f"s_and_b32 s{S_P}, s{S_CW}, 1")
    a(f"s_lshl_b32 s{S_P}, s{S_P}, 1")
    a(f"s_add_u32 s{S_T3}, s{S_T3}, s{S_P}")
    a(f"s_lshl_b32 s{S_T3}, s{S_T3}, 10")
    a(f"s_add_u32 s{S_WCOL}, s{S_T3}, s{S_HB}")
    a(f"s_add_u32 s{S_WLDS}, s{S_WCOL}, s{S_T2}")
    a(f"s_lshl_b32 s{S_BLDS}, s{S_GRP}, 5")
    a(f"s_add_u32 s{S_BLDS}, s{S_BLDS}, {FLAG_OFF}")
    a(f"s_lshl_b32 s{S_P}, s{S_J}, 2")
    a(f"s_add_u32 s{S_P}, s{S_P}, s{S_CW}")
    a(f"s_lshl_b32 s{S_P}, s{S_P}, 2")
    a(f"s_add_u32 s{S_BLDS}, s{S_BLDS}, s{S_P}")
    a(f"v_lshlrev_b32 v{t1}, 4, v0")
    a(f"v_mov_b32 v{t2}, 1")
    W = f"s[{SRD_WS}:{SRD_WS+3}]"
    hsc = "" if 'hplain' in opt else " sc1"
    for u in range(9):
        x = ACC + 4*u
        e = C_E + 4*(u & 1)
        for r in (0, 2): a(f"v_pk_mul_f32 v[{e+r}:{e+r+1}], v[{x+r}:{x+r+1}], s[{S_K}:{S_K+1}]")
        for r in range(4): a(f"v_exp_f32 v{e+r}, v{e+r}")
        for r in (0, 2): a(f"v_pk_add_f32 v[{e+r}:{e+r+1}], v[{e+r}:{e+r+1}], 1.0 op_sel_hi:[1,0]")
        for r in range(4): a(f"v_rcp_f32 v{e+r}, v{e+r}")
        for r in (0, 2): a(f"v_pk_mul_f32 v[{x+r}:{x+r+1}], v[{x+r}:{x+r+1}], v[{e+r}:{e+r+1}]")
        a(f"v_cvt_pk_bf16_f32 v{A0+2*u}, v{x}, v{x+1}")
        a(f"v_cvt_pk_bf16_f32 v{A0+2*u+1}, v{x+2}, v{x+3}")
        if u in (1, 3, 5, 7):
            q = u >> 1
            sreg = S_WCOL if q < 2 else S_WLDS
            a(f"buffer_store_dwordx4 v[{A0+4*q}:{A0+4*q+3}], v{t1}, {W}, s{sreg} offen offset:{1024*(q&1)}{hsc}")
    if 'nosingle' not in opt:
        a(f"v_lshlrev_b32 v{C_T+3}, 3, v0")
        a(f"buffer_store_dwordx2 v[{A0+16}:{A0+17}], v{C_T+3}, {W}, s{S_XROW} offen{hsc}")
    stamp(a, 8)
    poll_pub(a, "C", t0, preloaded=True)
    a("s_mov_b64 exec, 1")
    a(f"buffer_store_dword v{t2}, off, {W}, s{S_BLDS}{hsc}")
    a("s_mov_b64 exec, -1")
    a("s_barrier")
    stamp(a, 3)
    a(f"s_mul_i32 s{S_T1}, s{S_CW}, {WST}")
    a(f"s_add_u32 s{S_T1}, s{S_T1}, {LB}")
    a(f"s_xor_b32 s{S_T2}, s{S_CW}, 1")
    a(f"s_mul_i32 s{S_T2}, s{S_T2}, {WST}")
    a(f"s_add_u32 s{S_T2}, s{S_T2}, {LB}")
    a(f"v_add_u32 v{C_BP}, s{S_T1}, v{t1}")
    a(f"v_add_u32 v{C_BP+1}, 1024, v{C_BP}")
    a(f"v_add_u32 v{C_BP+2}, s{S_T2}, v{t1}")
    a(f"v_add_u32 v{C_BP+3}, 1024, v{C_BP+2}")
    set_stage_addrs(a, True)
    zero_acc(a)
    a("s_barrier")
    stamp(a, 4)
    for ins in reads_step(A0, B0, 0): a(ins)
    compute_loop(a, "C2")
    stamp(a, 5)
    a(f"s_lshl_b32 s{S_T0}, s{S_MT}, 2")
    a(f"s_add_u32 s{S_T0}, s{S_T0}, s{S_J}")
    a(f"s_lshl_b32 s{S_T0}, s{S_T0}, 2")
    a(f"s_add_u32 s{S_T0}, s{S_T0}, s{S_CW}")
    a(f"s_mul_i32 s{S_T0}, s{S_T0}, 4608")
    a(f"s_mul_i32 s{S_T1}, s{S_XG}, {PART_XG}")
    a(f"s_add_u32 s{S_T0}, s{S_T0}, s{S_T1}")
    a(f"s_add_u32 s{S_T0}, s{S_T0}, {PART_OFF}")
    a(f"v_lshlrev_b32 v{t2}, 3, v0")
    psc = "" if 'pplain' in opt else " sc1"
    W = f"s[{SRD_WS}:{SRD_WS+3}]"
    for q in range(4):
        for u in (2*q, 2*q+1):
            x = ACC + 4*u
            a(f"v_cvt_pk_bf16_f32 v{A0+2*u}, v{x}, v{x+1}")
            a(f"v_cvt_pk_bf16_f32 v{A0+2*u+1}, v{x+2}, v{x+3}")
        a(f"buffer_store_dwordx4 v[{A0+4*q}:{A0+4*q+3}], v{t1}, {W}, s{S_T0} offen offset:{1024*q}{psc}")
    x = ACC + 32
    a("s_nop 1")
    a(f"v_cvt_pk_bf16_f32 v{A0+16}, v{x}, v{x+1}")
    a(f"v_cvt_pk_bf16_f32 v{A0+17}, v{x+2}, v{x+3}")
    a(f"s_add_u32 s{S_T0}, s{S_T0}, 4096")
    a(f"buffer_store_dwordx2 v[{A0+16}:{A0+17}], v{t2}, {W}, s{S_T0} offen{psc}")
    stamp(a, 6)
    if 'ts' in opt:
        a("s_waitcnt vmcnt(0)")
    stamp(a, 7)
    if 'clk' in opt:
        a("s_memtime s[96:97]")
        a("s_waitcnt lgkmcnt(0)")
        a("s_sub_u32 s78, s96, s98")
        a("s_mov_b32 s79, 0")
    dump_stamps(a, 0, 10 if ('diag' in opt or 'clk' in opt) else 9, "C", 0)
    DIAG_C[0] = False

def kernel_main(a):
    name = "mlp_kernel"
    a(f".globl {name}\n.p2align 8\n.type {name},@function\n{name}:")
    a(f"s_cmp_ge_u32 s2, 256")
    a(f"s_cbranch_scc1 L_END")
    stamp(a, 0)
    if 'clk' in opt: a("s_memtime s[98:99]")
    a("s_load_dwordx8 s[4:11], s[0:1], 0")
    a("s_load_dwordx4 s[12:15], s[0:1], 32")
    a("v_lshrrev_b32 v1, 6, v0")
    a("v_and_b32 v0, 63, v0")
    a(f"v_readfirstlane_b32 s{S_WV}, v1")
    if 'spf' in opt:
        a(f"s_getpc_b64 s[{S_K}:{S_K+1}]")
        a.label("L_PC0")
        a(f"s_lshl_b32 s{S_T0}, s{S_WV}, 10")
        a(f"s_add_u32 s{S_T0}, s{S_T0}, 256")
        a(f"s_add_u32 s{S_K}, s{S_K}, s{S_T0}")
        a(f"s_addc_u32 s{S_K+1}, s{S_K+1}, 0")
        for i in range(8):
            a(f"s_load_dword s{S_T3}, s[{S_K}:{S_K+1}], {128*i}")
    if 'xmap' in opt:
        a(f"s_and_b32 s{S_J}, s2, 3")
        a(f"s_lshr_b32 s{S_XG}, s2, 2")
        a(f"s_and_b32 s{S_XG}, s{S_XG}, 7")
    else:
        a(f"s_and_b32 s{S_XG}, s2, 7")
        a(f"s_lshr_b32 s{S_J}, s2, 3")
        a(f"s_and_b32 s{S_J}, s{S_J}, 3")
    a(f"s_lshr_b32 s{S_MT}, s2, 5")
    a(f"s_lshl_b32 s{S_GRP}, s{S_XG}, 3")
    a(f"s_add_u32 s{S_GRP}, s{S_GRP}, s{S_MT}")
    a(f"s_lshr_b32 s{S_HB}, s{S_GRP}, 4")
    a(f"s_lshl_b32 s{S_HB}, s{S_HB}, 21")
    a(f"s_and_b32 s{S_T0}, s{S_GRP}, 15")
    a(f"s_mul_i32 s{S_T0}, s{S_T0}, {GRP_BYTES}")
    a(f"s_add_u32 s{S_HB}, s{S_HB}, s{S_T0}")
    a(f"s_lshl_b32 s{S_GRP}, s{S_GRP}, 2")
    a(f"s_and_b32 s{S_CW}, s{S_WV}, 3")
    a(f"s_mul_i32 s{S_T0}, s{S_CW}, {WST}")
    a(f"s_add_u32 s{S_HB}, s{S_HB}, s{S_T0}")
    a(f"s_add_u32 s{S_HB}, s{S_HB}, {H_OFF}")
    a(f"s_cmp_lt_u32 s{S_WV}, 4")
    a("s_cbranch_scc1 L_COMPUTE")
    loader(a)
    a.label("L_COMPUTE")
    compute(a)
    a.label("L_END")
    a("s_endpgm")
    a.label("L_CODE_END")
    if 'spf' in opt or 'spf2' in opt: a(".fill 512, 4, 0xbf800000")
    a(kd(name, vgpr=120, sgpr=102))

def kernel3(a):
    name = "red_kernel"
    a(f".globl {name}\n.p2align 8\n.type {name},@function\n{name}:")
    a(f"s_cmp_ge_u32 s2, 160")
    a(f"s_cbranch_scc1 L_END_K3")
    stamp(a, 0)
    a("s_load_dwordx2 s[10:11], s[0:1], 24")
    a("s_load_dwordx2 s[14:15], s[0:1], 40")
    a("v_lshrrev_b32 v1, 6, v0")
    a("v_and_b32 v0, 63, v0")
    a(f"v_readfirstlane_b32 s{S_WV}, v1")
    a("s_nop 3")
    a(f"s_lshl_b32 s3, s2, 2")
    a(f"s_add_u32 s3, s3, s{S_WV}")
    a(f"s_mul_i32 s{S_T1}, s3, 13108")
    a(f"s_lshr_b32 s{S_T1}, s{S_T1}, 16")
    a(f"s_mul_i32 s{S_T2}, s{S_T1}, 5")
    a(f"s_sub_u32 s{S_T2}, s3, s{S_T2}")
    a(f"s_mul_i32 s{S_T0}, s{S_T1}, 4608")
    a(f"s_lshl_b32 s{S_T3}, s{S_T2}, 10")
    a(f"s_add_u32 s{S_T0}, s{S_T0}, s{S_T3}")
    a(f"s_add_u32 s{S_T0}, s{S_T0}, {PART_OFF}")
    a(f"s_and_b32 s{S_CW}, s{S_T1}, 3")
    a(f"s_lshr_b32 s{S_J}, s{S_T1}, 2")
    a(f"s_and_b32 s{S_J}, s{S_J}, 3")
    a(f"s_lshr_b32 s{S_MT}, s{S_T1}, 4")
    a(f"s_lshr_b32 s{S_P}, s{S_T2}, 1")
    a(f"s_and_b32 s{S_P}, s{S_P}, 1")
    a(f"s_xor_b32 s{S_P}, s{S_P}, s{S_CW}")
    a(f"s_lshl_b32 s{S_MT}, s{S_MT}, 2")
    a(f"s_add_u32 s{S_MT}, s{S_MT}, s{S_P}")
    a(f"s_mul_i32 s{S_MT}, s{S_MT}, {16*1152}")
    a(f"s_mul_i32 s{S_J}, s{S_J}, 288")
    a(f"s_add_u32 s{S_MT}, s{S_MT}, s{S_J}")
    a(f"v_and_b32 v2, 15, v0")
    a(f"v_mul_u32_u24 v2, 1152, v2")
    a(f"v_lshrrev_b32 v3, 4, v0")
    a(f"v_lshl_add_u32 v2, v3, 3, v2")
    a("s_waitcnt lgkmcnt(0)")
    srd(a, SRD_WS, S_WS, WS_BYTES)
    srd(a, SRD_X, S_OUT, OUT_BYTES)
    a(f"s_cmp_eq_u32 s{S_T2}, 4")
    a("s_cbranch_scc1 L_K3_SINGLE")
    a(f"v_lshlrev_b32 v1, 4, v0")
    for xg in range(8):
        a(f"buffer_load_dwordx4 v[{4+4*xg}:{7+4*xg}], v1, s[{SRD_WS}:{SRD_WS+3}], s{S_T0} offen")
        if xg < 7: a(f"s_add_u32 s{S_T0}, s{S_T0}, {PART_XG}")
    a(f"s_and_b32 s{S_CW}, s{S_CW}, 1")
    a(f"s_lshl_b32 s{S_CW}, s{S_CW}, 7")
    a(f"s_and_b32 s{S_T2}, s{S_T2}, 1")
    a(f"s_lshl_b32 s{S_T2}, s{S_T2}, 6")
    a(f"s_add_u32 s{S_MT}, s{S_MT}, s{S_CW}")
    a(f"s_add_u32 s{S_MT}, s{S_MT}, s{S_T2}")
    def reduce(n):
        for xg in range(8):
            a(f"s_waitcnt vmcnt({7-xg})")
            for d in range(n):
                src = 4 + 4*xg + d
                if xg == 0:
                    a(f"v_lshlrev_b32 v{40+2*d}, 16, v{src}")
                    a(f"v_and_b32 v{41+2*d}, 0xffff0000, v{src}")
                else:
                    a(f"v_lshlrev_b32 v{50+2*d}, 16, v{src}")
                    a(f"v_and_b32 v{51+2*d}, 0xffff0000, v{src}")
            if xg:
                for d in range(2*n):
                    a(f"v_add_f32 v{40+d}, v{40+d}, v{50+d}")
        for d in range(n):
            a(f"v_cvt_pk_bf16_f32 v{4+d}, v{40+2*d}, v{41+2*d}")
    reduce(4)
    a(f"buffer_store_dwordx2 v[4:5], v2, s[{SRD_X}:{SRD_X+3}], s{S_MT} offen")
    a(f"buffer_store_dwordx2 v[6:7], v2, s[{SRD_X}:{SRD_X+3}], s{S_MT} offen offset:32")
    a("s_branch L_K3_FIN")
    a.label("L_K3_SINGLE")
    a(f"v_lshlrev_b32 v1, 3, v0")
    for xg in range(8):
        a(f"buffer_load_dwordx2 v[{4+4*xg}:{5+4*xg}], v1, s[{SRD_WS}:{SRD_WS+3}], s{S_T0} offen")
        if xg < 7: a(f"s_add_u32 s{S_T0}, s{S_T0}, {PART_XG}")
    a(f"s_add_u32 s{S_MT}, s{S_MT}, 256")
    reduce(2)
    a(f"buffer_store_dwordx2 v[4:5], v2, s[{SRD_X}:{SRD_X+3}], s{S_MT} offen")
    a.label("L_K3_FIN")
    stamp(a, 1)
    if 'ts' in opt:
        a("s_waitcnt vmcnt(0)")
    stamp(a, 2)
    dump_stamps(a, 2, 3, "K3", 0)
    a.label("L_END_K3")
    a("s_endpgm")
    a(kd(name, vgpr=64, sgpr=96))

def main():
    for o in sys.argv[2:]: opt.add(o)
    a = Asm()
    a(HEADER.rstrip())
    a(f"; @launch kernel=mlp_kernel grid=(256,1,1) block=(512,1,1) lds={LDS_BYTES}")
    a(f"; @launch kernel=red_kernel grid=(160,1,1) block=(256,1,1) lds=0")
    a('.amdgcn_target "amdgcn-amd-amdhsa--gfx950"')
    a(".text")
    kernel_main(a); kernel3(a)
    open(sys.argv[1], "w").write(a.text())

main()
```

```python
import sys
from common import *

X_BYTES = 512*576*2
W_BYTES = 576*4608*2
OUT_BYTES = 512*576*2
WS_BYTES = 268435456
PAGE = 2*1024*1024
H_OFF = 4096
GRP_BYTES = 4*18432
FLAG_OFF = 4*PAGE + 4096
PART_OFF = 5*PAGE + 4096
PART_XG = 128*4608
WST = 18432
SLOT = WST
NSLOT = 4
LB = NSLOT*SLOT
LDS_BYTES = LB + 4*WST + 2048
TS_OFF = 128 << 20
SPIN = 1 << 17

opt = set()
NT_ON = [False]
def NT(): return " nt" if (NT_ON[0] and 'nont' not in opt) or 'allnt' in opt else ""

S_X, S_W1, S_W2, S_OUT, S_DBG, S_WS = 4, 6, 8, 10, 12, 14
SRD_X, SRD_W1, SRD_WS, SRD_W2, SRD_DBG = 16, 20, 24, 40, 44
S_WV, S_XG, S_J, S_MT, S_CW = 28, 29, 30, 31, 32
S_N, S_WOFF, S_DSLOT, S_RSLOT = 33, 34, 35, 36
S_T0, S_T1, S_T2, S_T3 = 37, 38, 39, 48
S_WLDS, S_P, S_XROW, S_BLDS, S_HB, S_GRP, S_FAST, S_HSLOT = 49, 50, 51, 52, 53, 54, 55, 56
S_WCOL, S_HOFF = 57, 58
S_P2, S_PH, S_W2B = 92, 93, 94
S_BDST = 56
S_TS = 60
S_K = 84

LD_DONE = [False]
def stamp(a, i):
    if 'ldiag' in opt and LD_DONE[0]: return
    if 'ts' in opt and not ('diag' in opt and DIAG_C[0]): a(f"s_memrealtime s[{S_TS+2*i}:{S_TS+2*i+1}]")
DIAG_C = [False]

def dump_stamps(a, kidx, n, tag, wave):
    if 'ts' not in opt: return
    a("s_waitcnt lgkmcnt(0) vmcnt(0)")
    a(f"s_cmp_eq_u32 s{S_WV}, {wave}")
    a(f"s_cbranch_scc0 L_NOTS{tag}")
    a(f"s_lshl_b32 s80, s2, 7")
    a(f"s_add_u32 s80, s80, {TS_OFF + kidx*512*128}")
    a(f"s_mov_b32 s88, s14\ns_mov_b32 s89, s15\ns_mov_b32 s90, {WS_BYTES}\ns_mov_b32 s91, 0x20000")
    a("v_mov_b32 v2, 0")
    for i in range(n):
        a(f"v_mov_b32 v4, s{S_TS+2*i}\nv_mov_b32 v5, s{S_TS+2*i+1}")
        a(f"buffer_store_dwordx2 v[4:5], v2, s[88:91], s80 offen offset:{8*i}")
        a("s_nop 1")
    a.label(f"L_NOTS{tag}")

def srd(a, base, ptr, nbytes):
    a(f"s_mov_b32 s{base}, s{ptr}")
    a(f"s_mov_b32 s{base+1}, s{ptr+1}")
    a(f"s_mov_b32 s{base+2}, {nbytes}")
    a(f"s_mov_b32 s{base+3}, 0x20000")

def slot_advance(a, reg):
    a(f"s_add_u32 s{reg}, s{reg}, {SLOT}")
    a(f"s_cmp_eq_u32 s{reg}, {NSLOT*SLOT}")
    a(f"s_cselect_b32 s{reg}, 0, s{reg}")

L_W1, L_W2, L_X, L_H, L_T = 1, 6, 11, 13, 14

def loader_addr_setup(a):
    t0, t1, t2, t3 = L_T, L_T+1, L_T+2, L_T+3
    a(f"v_lshrrev_b32 v{t0}, 3, v0")
    a(f"v_lshrrev_b32 v{t1}, 4, v0")
    a(f"v_and_b32 v{t2}, 7, v0")
    a(f"v_xor_b32 v{t1}, v{t1}, v{t2}")
    a(f"v_lshlrev_b32 v{t1}, 4, v{t1}")
    a(f"v_mul_u32_u24 v{t0}, 1152, v{t0}")
    a(f"v_add_u32 v{L_X}, v{t0}, v{t1}")
    a(f"v_xor_b32 v{t1}, 64, v{t1}")
    a(f"v_add_u32 v{t0}, {8*1152}, v{t0}")
    a(f"v_add_u32 v{L_X+1}, v{t0}, v{t1}")
    a(f"v_lshlrev_b32 v{L_H}, 4, v0")
    a(f"v_lshrrev_b32 v{t0}, 1, v0")
    a(f"v_and_b32 v{t0}, 1, v{t0}")
    a(f"v_lshlrev_b32 v{t0}, 9, v{t0}")
    a(f"v_lshrrev_b32 v{t1}, 2, v0")
    a(f"v_lshl_add_u32 v{t0}, v{t1}, 3, v{t0}")
    a(f"v_and_b32 v{t1}, 1, v0")
    a(f"v_lshl_add_u32 v{L_HS}, v{t1}, 2, v{t0}")
    a(f"s_lshr_b32 s{S_T0}, s{S_CW}, 1")
    a(f"s_lshl_b32 s{S_T0}, s{S_T0}, 5")
    a(f"s_and_b32 s{S_T1}, s{S_CW}, 1")
    a(f"s_lshl_b32 s{S_T1}, s{S_T1}, 2")
    a(f"s_add_u32 s{S_T0}, s{S_T0}, s{S_T1}")
    a(f"s_and_b32 s{S_T1}, s{S_J}, 1")
    a(f"s_lshl_b32 s{S_T1}, s{S_T1}, 1")
    a(f"s_movk_i32 s{S_T2}, 9216")
    for i in range(5):
        a(f"v_add_u32 v{t0}, {64*i}, v0")
        a(f"v_mul_u32_u24 v{t1}, 3641, v{t0}")
        a(f"v_lshrrev_b32 v{L_W2+i}, 16, v{t1}")
        a(f"v_mul_u32_u24 v{t2}, 18, v{L_W2+i}")
        a(f"v_sub_u32 v{20+i}, v{t0}, v{t2}")
        a(f"v_add_u32 v{t0}, s{S_T1}, v{20+i}")
        a(f"v_subrev_u32 v{t2}, 18, v{t0}")
        a(f"v_min_u32 v{t0}, v{t0}, v{t2}")
        a(f"v_lshrrev_b32 v{t2}, 2, v{L_W2+i}")
        a(f"v_and_b32 v{t1}, 3, v{L_W2+i}")
        a(f"v_lshl_add_u32 v{t1}, v{t2}, 3, v{t1}")
        a(f"v_add_u32 v{t1}, s{S_T0}, v{t1}")
        a(f"v_lshlrev_b32 v{t0}, 4, v{t0}")
        a(f"v_mad_u32_u24 v{L_W1+i}, v{t1}, s{S_T2}, v{t0}")

def loader_addr_w2(a):
    t0 = L_T
    a(f"s_lshl_b32 s{S_T3}, s{S_CW}, 4")
    a(f"s_movk_i32 s{S_T2}, 1152")
    for i in range(5):
        a(f"v_add_u32 v{t0}, s{S_T3}, v{L_W2+i}")
        a(f"v_lshlrev_b32 v{20+i}, 4, v{20+i}")
        a(f"v_mad_u32_u24 v{L_W2+i}, v{t0}, s{S_T2}, v{20+i}")

def issue_w(a, vbase, srdreg):
    for i in range(5):
        if i == 0: a(f"s_add_u32 m0, s{S_DSLOT}, s{S_WLDS}")
        else:      a(f"s_add_u32 m0, m0, 1024")
        a("s_mov_b32 exec_hi, 0" if i == 4 else "s_nop 0")
        a(f"buffer_load_dwordx4 v{vbase+i}, s[{srdreg}:{srdreg+3}], s{S_WOFF} offen{NT()} lds")
    a("s_mov_b32 exec_hi, -1")
    slot_advance(a, S_DSLOT)

S_PF = 96
def spf_w2_setup(a):
    a(f"s_lshl_b32 s{S_T0}, s{S_MT}, 2")
    a(f"s_add_u32 s{S_T0}, s{S_T0}, s{S_J}")
    a(f"s_mul_i32 s{S_T0}, s{S_T0}, 162")
    a(f"s_mul_i32 s{S_T1}, s{S_CW}, 40")
    a(f"s_add_u32 s{S_T0}, s{S_T0}, s{S_T1}")
    a(f"s_lshl_b32 s{S_T0}, s{S_T0}, 7")
    a(f"s_mul_i32 s{S_T1}, s{S_XG}, {576*1152}")
    a(f"s_add_u32 s{S_T0}, s{S_T0}, s{S_T1}")
    a(f"s_add_u32 s{S_PF}, s{S_W2}, s{S_T0}")
    a(f"s_addc_u32 s{S_PF+1}, s{S_W2+1}, 0")
def spf_w2(a):
    for i in range(6):
        a(f"s_load_dword s95, s[{S_PF}:{S_PF+1}], {128*i}")
    a(f"s_add_u32 s{S_PF}, s{S_PF}, 768")
    a(f"s_addc_u32 s{S_PF+1}, s{S_PF+1}, 0")

def issue_stage1(a, pf=False):
    if pf and 'sw2' in opt: spf_w2(a)
    a(f"s_lshl_b32 s{S_T0}, s{S_P}, 7")
    a(f"s_add_u32 s{S_T0}, s{S_T0}, s{S_XROW}")
    a(f"s_mov_b32 m0, s{S_BDST}")
    a(f"s_mul_i32 s{S_WOFF}, s{S_P}, {64*9216}")
    a(f"buffer_load_dwordx4 v{L_X}, s[{SRD_X}:{SRD_X+3}], s{S_T0} offen{NT()} lds")
    a(f"s_add_u32 m0, m0, 1024")
    a(f"s_add_u32 s{S_WOFF}, s{S_WOFF}, s{S_WCOL}")
    a(f"buffer_load_dwordx4 v{L_X+1}, s[{SRD_X}:{SRD_X+3}], s{S_T0} offen{NT()} lds")
    a(f"s_add_u32 s{S_BDST}, s{S_BDST}, 2048")
    issue_w(a, L_W1, SRD_W1)
    a(f"s_add_u32 s{S_P}, s{S_P}, 1")
    a(f"s_cmp_eq_u32 s{S_P}, 9")
    a(f"s_cselect_b32 s{S_P}, 0, s{S_P}")

def wrap9(a, reg):
    a(f"s_add_u32 s{reg}, s{reg}, 1")
    a(f"s_cmp_eq_u32 s{reg}, 9")
    a(f"s_cselect_b32 s{reg}, 0, s{reg}")

def issue_w2(a):
    a(f"s_mul_i32 s{S_WOFF}, s{S_P2}, {64*1152}")
    a(f"s_add_u32 s{S_WOFF}, s{S_WOFF}, s{S_W2B}")
    issue_w(a, L_W2, SRD_W2)
    wrap9(a, S_P2)

L_HS = 25
def issue_h(a, n):
    W = f"s[{SRD_WS}:{SRD_WS+3}]"
    for s0 in range(2):
        ks = 2*n + s0
        a(f"s_add_u32 m0, s{S_BLDS}, {ks*1024}")
        a(f"s_add_u32 s{S_HOFF}, s{S_HB}, {ks*1024}")
        if ks not in (4, 13):
            a(f"buffer_load_dwordx4 v{L_H}, {W}, s{S_HOFF} offen sc1 lds")
        else:
            for q in range(4):
                if q: a("s_add_u32 m0, m0, 128\ns_nop 0")
                a(f"buffer_load_dword v{L_HS}, {W}, s{S_HOFF} offen offset:{128*q} sc1 lds")
def h_count(n): return 5 if n in (2, 6) else 2

def poll_pub(a, tag, vtmp, preloaded=False):
    if preloaded:
        a("s_waitcnt vmcnt(0)")
        a(f"v_cmp_ne_u32 vcc, 1, v{vtmp}")
        a(f"s_cbranch_vccz L_PGX{tag}")
    a(f"s_mov_b32 s{S_T3}, 0")
    a.label(f"L_PG{tag}")
    a(f"s_add_u32 s{S_T3}, s{S_T3}, 1")
    a(f"s_cmp_gt_u32 s{S_T3}, {SPIN}")
    a(f"s_cbranch_scc1 L_PGX{tag}")
    a(f"buffer_load_dword v{vtmp}, off, s[{SRD_DBG}:{SRD_DBG+3}], 0 sc1")
    a("s_waitcnt vmcnt(0)")
    a(f"v_cmp_ne_u32 vcc, 1, v{vtmp}")
    a(f"s_cbranch_vccnz L_PG{tag}")
    a.label(f"L_PGX{tag}")

def loader(a):
    a.label("L_LOADER")
    loader_addr_setup(a)
    a(f"s_lshl_b32 s{S_T0}, s{S_MT}, 2")
    a(f"s_add_u32 s{S_T0}, s{S_T0}, s{S_CW}")
    a(f"s_mul_i32 s{S_XROW}, s{S_T0}, {16*1152}")
    a(f"s_mul_i32 s{S_BLDS}, s{S_CW}, {WST}")
    a(f"s_add_u32 s{S_BLDS}, s{S_BLDS}, {LB}")
    a(f"s_mov_b32 s{S_BDST}, s{S_BLDS}")
    a(f"s_mul_i32 s{S_WCOL}, s{S_XG}, 1152")
    a(f"s_mul_i32 s{S_T0}, s{S_J}, 288")
    a(f"s_add_u32 s{S_WCOL}, s{S_WCOL}, s{S_T0}")
    a(f"s_mul_i32 s{S_WLDS}, s{S_CW}, 4608")
    a(f"s_mov_b32 s{S_DSLOT}, 0")
    if 'norot' in opt: a(f"s_mov_b32 s{S_P}, 0")
    else:
        a(f"s_lshl_b32 s{S_P}, s{S_J}, 1")
        a(f"s_add_u32 s{S_P}, s{S_P}, s{S_MT}")
        a(f"s_sub_u32 s{S_T0}, s{S_P}, 9")
        a(f"s_cmp_ge_u32 s{S_P}, 9")
        a(f"s_cselect_b32 s{S_P}, s{S_T0}, s{S_P}")
    a(f"s_mov_b32 s{S_P2}, 0")
    a("s_waitcnt lgkmcnt(0)")
    srd(a, SRD_X, S_X, X_BYTES)
    srd(a, SRD_W1, S_W1, W_BYTES)
    if 'spf2' in opt:
        a(f"s_getpc_b64 s[{S_K}:{S_K+1}]")
        a(f"s_mul_i32 s{S_T0}, s{S_CW}, 1792")
        a(f"s_add_u32 s{S_K}, s{S_K}, s{S_T0}")
        a(f"s_addc_u32 s{S_K+1}, s{S_K+1}, 0")
        for i in range(14):
            a(f"s_load_dword s95, s[{S_K}:{S_K+1}], {128*i+ (0)}")
    if 'pspin' in opt:
        a("s_memtime s[96:97]\ns_waitcnt lgkmcnt(0)\ns_mov_b32 s95, s96")
        a.label("L_PSPIN")
        a("s_memtime s[96:97]\ns_waitcnt lgkmcnt(0)\ns_sub_u32 s96, s96, s95\ns_cmp_lt_u32 s96, 8000\ns_cbranch_scc1 L_PSPIN")
    if 'prspin' in opt:
        a("s_memrealtime s[96:97]\ns_waitcnt lgkmcnt(0)\ns_mov_b32 s95, s96")
        a.label("L_PSPIN")
        a("s_memrealtime s[96:97]\ns_waitcnt lgkmcnt(0)\ns_sub_u32 s96, s96, s95\ns_cmp_lt_u32 s96, 400\ns_cbranch_scc1 L_PSPIN")
    for nm, sreg, nb in (('pw1', SRD_W1, 16384), ('px', SRD_X, 2048), ('pws', None, 16384), ('pw2', None, 16384)):
        if nm in opt:
            if nm == 'pws': srd(a, SRD_WS, S_WS, WS_BYTES); sreg = SRD_WS
            if nm == 'pw2': srd(a, SRD_W2, S_W2, W_BYTES); sreg = SRD_W2
            a(f"s_cmp_eq_u32 s{S_WV}, 4")
            a("s_cbranch_scc0 L_PLD")
            a(f"s_mul_i32 s95, s2, {nb}")
            if nm == 'pws': a(f"s_add_u32 s95, s95, {64<<20}")
            for i in range(16):
                a(f"buffer_load_dword v30, off, s[{sreg}:{sreg+3}], s95")
                a("s_waitcnt vmcnt(0)")
                a(f"s_add_u32 s95, s95, {nb//16}")
            a.label("L_PLD")
    stamp(a, 1)
    NT_ON[0] = True
    issue_stage1(a)
    if 'ldiag' in opt: stamp(a, 2)
    issue_stage1(a)
    NT_ON[0] = 'nt2' in opt
    if 'ldiag' in opt: stamp(a, 3)
    srd(a, SRD_W2, S_W2, W_BYTES)
    srd(a, SRD_WS, S_WS, WS_BYTES)
    srd(a, SRD_DBG, S_DBG, 256)
    loader_addr_w2(a)
    if 'ldiag' not in opt: stamp(a, 2)
    a("s_waitcnt vmcnt(7)")
    if 'ldiag' in opt: stamp(a, 4)
    a("s_barrier")
    if 'ldiag' not in opt: stamp(a, 3)
    issue_stage1(a, True)
    NT_ON[0] = False
    if 'ldiag' in opt:
        stamp(a, 5)
        a("s_waitcnt vmcnt(7)")
        stamp(a, 6)
        a("s_barrier")
        issue_stage1(a)
        stamp(a, 7)
        a("s_waitcnt vmcnt(7)")
        stamp(a, 8)
        a("s_barrier")
        issue_stage1(a)
        stamp(a, 9)
    a(f"s_mov_b32 s{S_N}, {2 if 'ldiag' in opt else 0}")
    a.label("L_LD1")
    if 'ldiag' in opt: LD_DONE[0] = True
    a("s_waitcnt vmcnt(7)")
    a("s_barrier")
    issue_stage1(a, True)
    a(f"s_add_u32 s{S_N}, s{S_N}, 1")
    a(f"s_cmp_lt_u32 s{S_N}, 6")
    a("s_cbranch_scc1 L_LD1")
    a(f"s_mul_i32 s{S_W2B}, s{S_XG}, {576*1152}")
    a(f"s_mul_i32 s{S_T0}, s{S_J}, 288")
    a(f"s_add_u32 s{S_W2B}, s{S_W2B}, s{S_T0}")
    w2t = 'now2t' not in opt and 'sw2' not in opt
    if w2t:
        a(f"s_lshl_b32 s{S_T0}, s{S_MT}, 2")
        a(f"s_add_u32 s{S_T0}, s{S_T0}, s{S_J}")
        a(f"s_mul_i32 s{S_T0}, s{S_T0}, 162")
        a(f"s_mul_i32 s{S_T1}, s{S_CW}, 41")
        a(f"s_add_u32 s{S_T0}, s{S_T0}, s{S_T1}")
        a(f"s_lshl_b32 s{S_T0}, s{S_T0}, 7")
        a(f"s_mul_i32 s{S_T1}, s{S_XG}, {576*1152}")
        a(f"s_add_u32 s{S_T0}, s{S_T0}, s{S_T1}")
        a(f"v_min_u32 v{L_T}, 40, v0")
        a(f"v_lshlrev_b32 v{L_T}, 7, v{L_T}")
        a(f"buffer_load_dword v{L_T+2}, v{L_T}, s[{SRD_W2}:{SRD_W2+3}], s{S_T0} offen" + ("" if 'nont' in opt else " nt"))
    a("s_waitcnt vmcnt(%d)" % (8 if w2t else 7))
    a("s_barrier")
    nA, nB, nC = 0, 0, 3
    for o in opt:
        if o.startswith('sch'): nA, nB, nC = int(o[3]), int(o[4]), int(o[5])
    assert nA + nB + nC <= 4
    wnext = [9]
    def W_now():
        issue_w2(a); wnext[0] += 1
    for _ in range(nA): W_now()
    a("s_waitcnt vmcnt(%d)" % ((1 if w2t else 0) + 5*nA))
    a("s_barrier")
    a("s_barrier")
    stamp(a, 4)
    for _ in range(nB): W_now()
    poll_pub(a, "L", L_T)
    a(f"s_lshl_b32 s{S_T2}, s{S_GRP}, 5")
    a(f"s_add_u32 s{S_T2}, s{S_T2}, {FLAG_OFF}")
    a(f"v_and_b32 v{L_T+1}, 15, v0")
    a(f"v_lshlrev_b32 v{L_T+1}, 2, v{L_T+1}")
    a("s_barrier")
    stamp(a, 5)
    for _ in range(nC): W_now()
    a(f"s_mov_b32 s{S_T3}, 0")
    a.label("L_PF")
    a(f"s_add_u32 s{S_T3}, s{S_T3}, 1")
    a(f"s_cmp_gt_u32 s{S_T3}, {SPIN}")
    a(f"s_cbranch_scc1 L_PFX")
    a(f"buffer_load_dword v{L_T}, v{L_T+1}, s[{SRD_WS}:{SRD_WS+3}], s{S_T2} offen sc1")
    a("s_waitcnt vmcnt(0)")
    a(f"v_cmp_ne_u32 vcc, 1, v{L_T}")
    a("s_cbranch_vccnz L_PF")
    a.label("L_PFX")
    stamp(a, 6)
    q = []
    def iss(name, cnt, fn):
        fn(); q.append((name, cnt))
    def wait(*names):
        idx = [i for i, (nm, c) in enumerate(q) if nm in names]
        last = max(idx) if idx else -1
        a("s_waitcnt vmcnt(%d)" % sum(c for nm, c in q[last+1:]))
    H = lambda n: iss(f"h{n}", h_count(n), lambda: issue_h(a, n))
    def Wn(n):
        assert wnext[0] == n, (wnext, n)
        iss(f"W{n}", 5, lambda: issue_w2(a)); wnext[0] += 1
    H(0); H(1); H(2)
    wait("h0")
    a("s_barrier")
    stamp(a, 7)
    assert wnext[0] >= 10
    hn = 3
    for s in range(10, 18):
        nw = wnext[0]
        if nw <= 17 and (nw <= 12 or nw <= s + 1):
            Wn(nw)
        if hn <= 8:
            H(hn); hn += 1
        if hn <= 8 and 'h2' in opt:
            H(hn); hn += 1
        wait(f"h{s-9}", f"W{s}")
        have = [nm for nm, c in q]
        assert (f"h{s-9}" in have) and (f"W{s}" in have or s < wnext[0]), (s, have)
        a("s_barrier")
    stamp(a, 8)
    LD_DONE[0] = False
    dump_stamps(a, 1, 10, "LD", 4)
    a("s_endpgm")

C_BF, C_BS = 2, 4
C_A, C_A8, C_AC, C_A8C = 6, 7, 8, 9
C_T = 10
C_BP = 108
A0, B0, A1, B1 = 16, 36, 44, 64
ACC = 72
C_E = 112

def reads_step(Aset, Bset, s0):
    ins = [f"ds_read_b128 v[{Bset}:{Bset+3}], v{C_BF+s0}"]
    def A(t):
        vaddr = C_AC if t < 4 else C_A8C
        off = s0*9216 + (32*t if t < 4 else 0)
        return [f"ds_read_b64_tr_b16 v[{Aset+4*t}:{Aset+4*t+1}], v{vaddr} offset:{off}",
                f"ds_read_b64_tr_b16 v[{Aset+4*t+2}:{Aset+4*t+3}], v{vaddr} offset:{off+4608}"]
    ins += A(0)
    ins.append(f"ds_read_b128 v[{Bset+4}:{Bset+7}], v{C_BS+s0}")
    for t in range(1, 5): ins += A(t)
    return ins

def mfmas(Aset, Bset):
    def m(acc, t, b):
        return f"v_mfma_f32_16x16x32_bf16 v[{ACC+4*acc}:{ACC+4*acc+3}], v[{Aset+4*t}:{Aset+4*t+3}], v[{Bset+4*b}:{Bset+4*b+3}], v[{ACC+4*acc}:{ACC+4*acc+3}]"
    out = []
    for t in range(4):
        out.append(m(t, t, 0)); out.append(m(4+t, t, 1))
    out.append(m(8, 4, 0))
    return out

def block(a, r, m):
    for u in range(9):
        a(m[u])
        if r and u < 6:
            a(r[2*u]); a(r[2*u+1])

def set_stage_addrs(a, first=False):
    a(f"v_add_u32 v{C_AC}, s{S_RSLOT}, v{C_A}")
    a(f"v_add_u32 v{C_A8C}, s{S_RSLOT}, v{C_A8}")
    for i, r in enumerate((C_BF, C_BF+1, C_BS, C_BS+1)):
        if first: a(f"v_mov_b32 v{r}, v{C_BP+i}")
        else:     a(f"v_add_u32 v{r}, 2048, v{r}")

def compute_loop_diag(a, name, k0):
    for n in range(9):
        a("s_waitcnt lgkmcnt(0)")
        if n: a(f"s_mov_b32 s{S_TS+k0+n-1}, s96")
        block(a, reads_step(A1, B1, 1), mfmas(A0, B0))
        slot_advance(a, S_RSLOT)
        set_stage_addrs(a)
        if n == 8: break
        a("s_barrier")
        a("s_memtime s[96:97]")
        a("s_waitcnt lgkmcnt(0)")
        block(a, reads_step(A0, B0, 0), mfmas(A1, B1))
    a("s_waitcnt lgkmcnt(0)")
    block(a, None, mfmas(A1, B1))
    a("s_memtime s[96:97]")
    a("s_waitcnt lgkmcnt(0)")
    a(f"s_mov_b32 s{S_TS+k0+8}, s96")

def compute_loop(a, name):
    if 'diag' in opt:
        return compute_loop_diag(a, name, 0 if name == "C1" else 10)
    a(f"s_mov_b32 s{S_N}, 0")
    a.label(f"L_{name}")
    a("s_waitcnt lgkmcnt(0)")
    block(a, reads_step(A1, B1, 1), mfmas(A0, B0))
    slot_advance(a, S_RSLOT)
    set_stage_addrs(a)
    a(f"s_cmp_eq_u32 s{S_N}, 8")
    a(f"s_cbranch_scc1 L_{name}_LAST")
    a("s_barrier")
    a("s_waitcnt lgkmcnt(0)")
    block(a, reads_step(A0, B0, 0), mfmas(A1, B1))
    a(f"s_add_u32 s{S_N}, s{S_N}, 1")
    a(f"s_branch L_{name}")
    a.label(f"L_{name}_LAST")
    a("s_waitcnt lgkmcnt(0)")
    block(a, None, mfmas(A1, B1))

def zero_acc(a):
    for i in range(0, 36, 2): a(f"v_pk_mov_b32 v[{ACC+i}:{ACC+i+1}], 0, 0")

def touches(a):
    t0, t1, t2 = C_T, C_T+1, C_T+2
    if 'nocode' not in opt:
        a(f"s_getpc_b64 s[{S_K}:{S_K+1}]")
        a.label("L_PC")
        a(f"s_sub_u32 s{S_K}, s{S_K}, (L_PC - mlp_kernel)")
        a(f"s_subb_u32 s{S_K+1}, s{S_K+1}, 0")
        a(f"v_lshlrev_b32 v{t0}, 7, v0")
        a(f"s_lshl_b32 s{S_T0}, s{S_CW}, 13")
        a(f"v_add_u32 v{t0}, s{S_T0}, v{t0}")
        a(f"v_cmp_gt_u32 vcc, (L_CODE_END - mlp_kernel), v{t0}")
        a(f"s_and_saveexec_b64 s[{S_T0}:{S_T0+1}], vcc") if False else None
        a(f"v_min_u32 v{t0}, (L_CODE_END - mlp_kernel - 4), v{t0}")
        a(f"global_load_dword v{C_E}, v{t0}, s[{S_K}:{S_K+1}]")

def touches_x(a):
    t0, t1, t2 = C_T, C_T+1, C_T+2
    a(f"s_mul_i32 s{S_T0}, s{S_CW}, 36")
    a(f"v_min_u32 v{t0}, 35, v0")
    a(f"v_add_u32 v{t0}, s{S_T0}, v{t0}")
    a(f"v_lshrrev_b32 v{t1}, 4, v{t0}")
    a(f"v_and_b32 v{t0}, 15, v{t0}")
    a(f"v_mul_u32_u24 v{t0}, 1152, v{t0}")
    a(f"v_lshl_add_u32 v{t0}, v{t1}, 7, v{t0}")
    a(f"s_lshl_b32 s{S_T0}, s{S_MT}, 2")
    a(f"s_add_u32 s{S_T0}, s{S_T0}, s{S_J}")
    a(f"s_mul_i32 s{S_T0}, s{S_T0}, {16*1152}")
    a(f"buffer_load_dword v{C_E+1}, v{t0}, s[{SRD_X}:{SRD_X+3}], s{S_T0} offen")
    if 'half' in opt:
        a(f"buffer_load_dword v{C_E+5}, v{t0}, s[{SRD_X}:{SRD_X+3}], s{S_T0} offen offset:64")

def touches_w2(a):
    t0, t1 = C_T, C_T+1
    a(f"s_lshl_b32 s{S_T0}, s{S_MT}, 2")
    a(f"s_add_u32 s{S_T0}, s{S_T0}, s{S_J}")
    a(f"s_mul_i32 s{S_T0}, s{S_T0}, 162")
    a(f"s_mul_i32 s{S_T1}, s{S_CW}, 41")
    a(f"s_add_u32 s{S_T0}, s{S_T0}, s{S_T1}")
    a(f"s_lshl_b32 s{S_T0}, s{S_T0}, 7")
    a(f"s_mul_i32 s{S_T1}, s{S_XG}, {576*1152}")
    a(f"s_add_u32 s{S_T0}, s{S_T0}, s{S_T1}")
    a(f"v_min_u32 v{t0}, 40, v0")
    a(f"v_lshlrev_b32 v{t0}, 7, v{t0}")
    a(f"buffer_load_dword v{C_E+2}, v{t0}, s[{SRD_W2}:{SRD_W2+3}], s{S_T0} offen")
    if 'half' in opt:
        a(f"buffer_load_dword v{C_E+4}, v{t0}, s[{SRD_W2}:{SRD_W2+3}], s{S_T0} offen offset:64")

def touches_ws(a):
    t0, t1 = C_T, C_T+1
    a(f"v_and_b32 v{t0}, 7, v0")
    a(f"v_lshlrev_b32 v{t0}, 21, v{t0}")
    a(f"buffer_load_dword v{C_E+3}, v{t0}, s[{SRD_WS}:{SRD_WS+3}], 0 offen")

def compute(a):
    DIAG_C[0] = True
    t0, t1, t2 = C_T, C_T+1, C_T+2
    if 'codepf' in opt: touches(a)
    a(f"v_lshrrev_b32 v{t0}, 2, v0")
    a(f"v_mul_u32_u24 v{t0}, 288, v{t0}")
    a(f"v_and_b32 v{t1}, 3, v0")
    a(f"v_lshl_add_u32 v{t0}, v{t1}, 3, v{t0}")
    a(f"v_add_u32 v{C_A8}, 256, v{t0}")
    a(f"s_and_b32 s{S_T0}, s{S_CW}, 1")
    a(f"s_lshl_b32 s{S_T0}, s{S_T0}, 7")
    a(f"v_add_u32 v{C_A}, s{S_T0}, v{t0}")
    a(f"s_mul_i32 s{S_T1}, s{S_CW}, {WST}")
    a(f"s_add_u32 s{S_T1}, s{S_T1}, {LB}")
    a(f"s_xor_b32 s{S_T2}, s{S_CW}, 1")
    a(f"s_mul_i32 s{S_T2}, s{S_T2}, {WST}")
    a(f"s_add_u32 s{S_T2}, s{S_T2}, {LB}")
    a(f"v_and_b32 v{t0}, 15, v0")
    a(f"v_lshrrev_b32 v{t1}, 1, v{t0}")
    a(f"v_lshrrev_b32 v{t2}, 4, v0")
    a(f"v_xor_b32 v{t1}, v{t1}, v{t2}")
    a(f"v_lshlrev_b32 v{t1}, 4, v{t1}")
    a(f"v_lshl_add_u32 v{t2}, v{t0}, 7, v{t1}")
    a(f"v_xor_b32 v{t1}, 64, v{t1}")
    a(f"v_lshl_add_u32 v{t1}, v{t0}, 7, v{t1}")
    a(f"v_add_u32 v{C_BP}, s{S_T1}, v{t2}")
    a(f"v_add_u32 v{C_BP+1}, s{S_T1}, v{t1}")
    a(f"v_add_u32 v{C_BP+2}, s{S_T2}, v{t2}")
    a(f"v_add_u32 v{C_BP+3}, s{S_T2}, v{t1}")
    a(f"s_mov_b32 s{S_RSLOT}, 0")
    set_stage_addrs(a, True)
    zero_acc(a)
    a("s_waitcnt lgkmcnt(0)")
    srd(a, SRD_X, S_X, X_BYTES)
    srd(a, SRD_W2, S_W2, W_BYTES)
    srd(a, SRD_WS, S_WS, WS_BYTES)
    srd(a, SRD_DBG, S_DBG, 256)
    if 'xpf' in opt: touches_x(a)
    if 'wspf' in opt: touches_ws(a)
    if 'w2early' in opt: touches_w2(a)
    a(f"s_cmp_eq_u32 s2, 0")
    a("s_cbranch_scc0 L_NOCLR")
    a(f"s_lshl_b32 s{S_T0}, s{S_CW}, 11")
    a(f"s_add_u32 s{S_T0}, s{S_T0}, {FLAG_OFF}")
    a(f"v_pk_mov_b32 v[{A1}:{A1+1}], 0, 0\nv_pk_mov_b32 v[{A1+2}:{A1+3}], 0, 0")
    a(f"v_lshlrev_b32 v{t1}, 4, v0")
    a(f"buffer_store_dwordx4 v[{A1}:{A1+3}], v{t1}, s[{SRD_WS}:{SRD_WS+3}], s{S_T0} offen sc1")
    a(f"buffer_store_dwordx4 v[{A1}:{A1+3}], v{t1}, s[{SRD_WS}:{SRD_WS+3}], s{S_T0} offen offset:1024 sc1")
    a("s_waitcnt vmcnt(0)")
    a.label("L_NOCLR")
    a("s_barrier")
    stamp(a, 1)
    for ins in reads_step(A0, B0, 0): a(ins)
    a(f"s_lshl_b32 s{S_T1}, s2, 2")
    a(f"s_or_b32 s{S_T1}, s{S_T1}, s{S_CW}")
    a(f"s_cmp_eq_u32 s{S_T1}, 0")
    a("s_cbranch_scc0 L_NOPUB")
    a(f"v_mov_b32 v{t0}, 1")
    a("s_mov_b64 exec, 1")
    a(f"buffer_store_dword v{t0}, off, s[{SRD_DBG}:{SRD_DBG+3}], 0 sc1")
    a("s_mov_b64 exec, -1")
    a.label("L_NOPUB")
    compute_loop(a, "C1")
    a("s_barrier")
    stamp(a, 2)
    a("s_waitcnt vmcnt(0)")
    a(f"buffer_load_dword v{t0}, off, s[{SRD_DBG}:{SRD_DBG+3}], 0 sc1")
    a(f"s_mov_b32 s{S_K}, 0xbfb8aa3b")
    a(f"s_mov_b32 s{S_K+1}, 0xbfb8aa3b")
    a(f"s_xor_b32 s{S_T2}, s{S_CW}, 1")
    a(f"s_sub_i32 s{S_T2}, s{S_T2}, s{S_CW}")
    a(f"s_mul_i32 s{S_T2}, s{S_T2}, {WST}")
    a(f"s_lshr_b32 s{S_T3}, s{S_J}, 1")
    a(f"s_mul_i32 s{S_T3}, s{S_T3}, {9*1024}")
    a(f"s_add_u32 s{S_T3}, s{S_T3}, {4*1024}")
    a(f"s_add_u32 s{S_T3}, s{S_T3}, s{S_HB}")
    a(f"s_and_b32 s{S_P}, s{S_J}, 1")
    a(f"s_lshl_b32 s{S_P}, s{S_P}, 9")
    a(f"s_add_u32 s{S_XROW}, s{S_T3}, s{S_P}")
    a(f"s_mul_i32 s{S_T3}, s{S_J}, 9")
    a(f"s_add_u32 s{S_T3}, s{S_T3}, 1")
    a(f"s_lshr_b32 s{S_T3}, s{S_T3}, 1")
    a(f"s_and_b32 s{S_P}, s{S_CW}, 1")
    a(f"s_lshl_b32 s{S_P}, s{S_P}, 1")
    a(f"s_add_u32 s{S_T3}, s{S_T3}, s{S_P}")
    a(f"s_lshl_b32 s{S_T3}, s{S_T3}, 10")
    a(f"s_add_u32 s{S_WCOL}, s{S_T3}, s{S_HB}")
    a(f"s_add_u32 s{S_WLDS}, s{S_WCOL}, s{S_T2}")
    a(f"s_lshl_b32 s{S_BLDS}, s{S_GRP}, 5")
    a(f"s_add_u32 s{S_BLDS}, s{S_BLDS}, {FLAG_OFF}")
    a(f"s_lshl_b32 s{S_P}, s{S_J}, 2")
    a(f"s_add_u32 s{S_P}, s{S_P}, s{S_CW}")
    a(f"s_lshl_b32 s{S_P}, s{S_P}, 2")
    a(f"s_add_u32 s{S_BLDS}, s{S_BLDS}, s{S_P}")
    a(f"v_lshlrev_b32 v{t1}, 4, v0")
    a(f"v_mov_b32 v{t2}, 1")
    W = f"s[{SRD_WS}:{SRD_WS+3}]"
    hsc = "" if 'hplain' in opt else " sc1"
    for u in range(9):
        x = ACC + 4*u
        e = C_E + 4*(u & 1)
        for r in (0, 2): a(f"v_pk_mul_f32 v[{e+r}:{e+r+1}], v[{x+r}:{x+r+1}], s[{S_K}:{S_K+1}]")
        for r in range(4): a(f"v_exp_f32 v{e+r}, v{e+r}")
        for r in (0, 2): a(f"v_pk_add_f32 v[{e+r}:{e+r+1}], v[{e+r}:{e+r+1}], 1.0 op_sel_hi:[1,0]")
        for r in range(4): a(f"v_rcp_f32 v{e+r}, v{e+r}")
        for r in (0, 2): a(f"v_pk_mul_f32 v[{x+r}:{x+r+1}], v[{x+r}:{x+r+1}], v[{e+r}:{e+r+1}]")
        a(f"v_cvt_pk_bf16_f32 v{A0+2*u}, v{x}, v{x+1}")
        a(f"v_cvt_pk_bf16_f32 v{A0+2*u+1}, v{x+2}, v{x+3}")
        if u in (1, 3, 5, 7):
            q = u >> 1
            sreg = S_WCOL if q < 2 else S_WLDS
            a(f"buffer_store_dwordx4 v[{A0+4*q}:{A0+4*q+3}], v{t1}, {W}, s{sreg} offen offset:{1024*(q&1)}{hsc}")
    if 'nosingle' not in opt:
        a(f"v_lshlrev_b32 v{C_T+3}, 3, v0")
        a(f"buffer_store_dwordx2 v[{A0+16}:{A0+17}], v{C_T+3}, {W}, s{S_XROW} offen{hsc}")
    stamp(a, 8)
    poll_pub(a, "C", t0, preloaded=True)
    a("s_mov_b64 exec, 1")
    a(f"buffer_store_dword v{t2}, off, {W}, s{S_BLDS}{hsc}")
    a("s_mov_b64 exec, -1")
    a("s_barrier")
    stamp(a, 3)
    a(f"s_mul_i32 s{S_T1}, s{S_CW}, {WST}")
    a(f"s_add_u32 s{S_T1}, s{S_T1}, {LB}")
    a(f"s_xor_b32 s{S_T2}, s{S_CW}, 1")
    a(f"s_mul_i32 s{S_T2}, s{S_T2}, {WST}")
    a(f"s_add_u32 s{S_T2}, s{S_T2}, {LB}")
    a(f"v_add_u32 v{C_BP}, s{S_T1}, v{t1}")
    a(f"v_add_u32 v{C_BP+1}, 1024, v{C_BP}")
    a(f"v_add_u32 v{C_BP+2}, s{S_T2}, v{t1}")
    a(f"v_add_u32 v{C_BP+3}, 1024, v{C_BP+2}")
    set_stage_addrs(a, True)
    zero_acc(a)
    a("s_barrier")
    stamp(a, 4)
    for ins in reads_step(A0, B0, 0): a(ins)
    compute_loop(a, "C2")
    stamp(a, 5)
    a(f"s_lshl_b32 s{S_T0}, s{S_MT}, 2")
    a(f"s_add_u32 s{S_T0}, s{S_T0}, s{S_J}")
    a(f"s_lshl_b32 s{S_T0}, s{S_T0}, 2")
    a(f"s_add_u32 s{S_T0}, s{S_T0}, s{S_CW}")
    a(f"s_mul_i32 s{S_T0}, s{S_T0}, 4608")
    a(f"s_mul_i32 s{S_T1}, s{S_XG}, {PART_XG}")
    a(f"s_add_u32 s{S_T0}, s{S_T0}, s{S_T1}")
    a(f"s_add_u32 s{S_T0}, s{S_T0}, {PART_OFF}")
    a(f"v_lshlrev_b32 v{t2}, 3, v0")
    psc = "" if 'pplain' in opt else " sc1"
    W = f"s[{SRD_WS}:{SRD_WS+3}]"
    for q in range(4):
        for u in (2*q, 2*q+1):
            x = ACC + 4*u
            a(f"v_cvt_pk_bf16_f32 v{A0+2*u}, v{x}, v{x+1}")
            a(f"v_cvt_pk_bf16_f32 v{A0+2*u+1}, v{x+2}, v{x+3}")
        a(f"buffer_store_dwordx4 v[{A0+4*q}:{A0+4*q+3}], v{t1}, {W}, s{S_T0} offen offset:{1024*q}{psc}")
    x = ACC + 32
    a("s_nop 1")
    a(f"v_cvt_pk_bf16_f32 v{A0+16}, v{x}, v{x+1}")
    a(f"v_cvt_pk_bf16_f32 v{A0+17}, v{x+2}, v{x+3}")
    a(f"s_add_u32 s{S_T0}, s{S_T0}, 4096")
    a(f"buffer_store_dwordx2 v[{A0+16}:{A0+17}], v{t2}, {W}, s{S_T0} offen{psc}")
    stamp(a, 6)
    if 'ts' in opt:
        a("s_waitcnt vmcnt(0)")
    stamp(a, 7)
    if 'clk' in opt:
        a("s_memtime s[96:97]")
        a("s_waitcnt lgkmcnt(0)")
        a("s_sub_u32 s78, s96, s98")
        a("s_mov_b32 s79, 0")
    dump_stamps(a, 0, 10 if ('diag' in opt or 'clk' in opt) else 9, "C", 0)
    DIAG_C[0] = False

def kernel_main(a):
    name = "mlp_kernel"
    a(f".globl {name}\n.p2align 8\n.type {name},@function\n{name}:")
    a(f"s_cmp_ge_u32 s2, 256")
    a(f"s_cbranch_scc1 L_END")
    stamp(a, 0)
    if 'clk' in opt: a("s_memtime s[98:99]")
    a("s_load_dwordx8 s[4:11], s[0:1], 0")
    a("s_load_dwordx4 s[12:15], s[0:1], 32")
    a("v_lshrrev_b32 v1, 6, v0")
    a("v_and_b32 v0, 63, v0")
    a(f"v_readfirstlane_b32 s{S_WV}, v1")
    if 'spf' in opt:
        a(f"s_getpc_b64 s[{S_K}:{S_K+1}]")
        a.label("L_PC0")
        a(f"s_lshl_b32 s{S_T0}, s{S_WV}, 10")
        a(f"s_add_u32 s{S_T0}, s{S_T0}, 256")
        a(f"s_add_u32 s{S_K}, s{S_K}, s{S_T0}")
        a(f"s_addc_u32 s{S_K+1}, s{S_K+1}, 0")
        for i in range(8):
            a(f"s_load_dword s{S_T3}, s[{S_K}:{S_K+1}], {128*i}")
    if 'xmap' in opt:
        a(f"s_and_b32 s{S_J}, s2, 3")
        a(f"s_lshr_b32 s{S_XG}, s2, 2")
        a(f"s_and_b32 s{S_XG}, s{S_XG}, 7")
    else:
        a(f"s_and_b32 s{S_XG}, s2, 7")
        a(f"s_lshr_b32 s{S_J}, s2, 3")
        a(f"s_and_b32 s{S_J}, s{S_J}, 3")
    a(f"s_lshr_b32 s{S_MT}, s2, 5")
    a(f"s_lshl_b32 s{S_GRP}, s{S_XG}, 3")
    a(f"s_add_u32 s{S_GRP}, s{S_GRP}, s{S_MT}")
    a(f"s_lshr_b32 s{S_HB}, s{S_GRP}, 4")
    a(f"s_lshl_b32 s{S_HB}, s{S_HB}, 21")
    a(f"s_and_b32 s{S_T0}, s{S_GRP}, 15")
    a(f"s_mul_i32 s{S_T0}, s{S_T0}, {GRP_BYTES}")
    a(f"s_add_u32 s{S_HB}, s{S_HB}, s{S_T0}")
    a(f"s_lshl_b32 s{S_GRP}, s{S_GRP}, 2")
    a(f"s_and_b32 s{S_CW}, s{S_WV}, 3")
    a(f"s_mul_i32 s{S_T0}, s{S_CW}, {WST}")
    a(f"s_add_u32 s{S_HB}, s{S_HB}, s{S_T0}")
    a(f"s_add_u32 s{S_HB}, s{S_HB}, {H_OFF}")
    a(f"s_cmp_lt_u32 s{S_WV}, 4")
    a("s_cbranch_scc1 L_COMPUTE")
    loader(a)
    a.label("L_COMPUTE")
    compute(a)
    a.label("L_END")
    a("s_endpgm")
    a.label("L_CODE_END")
    if 'spf' in opt or 'spf2' in opt: a(".fill 512, 4, 0xbf800000")
    a(kd(name, vgpr=120, sgpr=102))

def kernel3(a):
    name = "red_kernel"
    a(f".globl {name}\n.p2align 8\n.type {name},@function\n{name}:")
    a(f"s_cmp_ge_u32 s2, 160")
    a(f"s_cbranch_scc1 L_END_K3")
    stamp(a, 0)
    a("s_load_dwordx2 s[10:11], s[0:1], 24")
    a("s_load_dwordx2 s[14:15], s[0:1], 40")
    a("v_lshrrev_b32 v1, 6, v0")
    a("v_and_b32 v0, 63, v0")
    a(f"v_readfirstlane_b32 s{S_WV}, v1")
    a("s_nop 3")
    a(f"s_lshl_b32 s3, s2, 2")
    a(f"s_add_u32 s3, s3, s{S_WV}")
    a(f"s_mul_i32 s{S_T1}, s3, 13108")
    a(f"s_lshr_b32 s{S_T1}, s{S_T1}, 16")
    a(f"s_mul_i32 s{S_T2}, s{S_T1}, 5")
    a(f"s_sub_u32 s{S_T2}, s3, s{S_T2}")
    a(f"s_mul_i32 s{S_T0}, s{S_T1}, 4608")
    a(f"s_lshl_b32 s{S_T3}, s{S_T2}, 10")
    a(f"s_add_u32 s{S_T0}, s{S_T0}, s{S_T3}")
    a(f"s_add_u32 s{S_T0}, s{S_T0}, {PART_OFF}")
    a(f"s_and_b32 s{S_CW}, s{S_T1}, 3")
    a(f"s_lshr_b32 s{S_J}, s{S_T1}, 2")
    a(f"s_and_b32 s{S_J}, s{S_J}, 3")
    a(f"s_lshr_b32 s{S_MT}, s{S_T1}, 4")
    a(f"s_lshr_b32 s{S_P}, s{S_T2}, 1")
    a(f"s_and_b32 s{S_P}, s{S_P}, 1")
    a(f"s_xor_b32 s{S_P}, s{S_P}, s{S_CW}")
    a(f"s_lshl_b32 s{S_MT}, s{S_MT}, 2")
    a(f"s_add_u32 s{S_MT}, s{S_MT}, s{S_P}")
    a(f"s_mul_i32 s{S_MT}, s{S_MT}, {16*1152}")
    a(f"s_mul_i32 s{S_J}, s{S_J}, 288")
    a(f"s_add_u32 s{S_MT}, s{S_MT}, s{S_J}")
    a(f"v_and_b32 v2, 15, v0")
    a(f"v_mul_u32_u24 v2, 1152, v2")
    a(f"v_lshrrev_b32 v3, 4, v0")
    a(f"v_lshl_add_u32 v2, v3, 3, v2")
    a("s_waitcnt lgkmcnt(0)")
    srd(a, SRD_WS, S_WS, WS_BYTES)
    srd(a, SRD_X, S_OUT, OUT_BYTES)
    a(f"s_cmp_eq_u32 s{S_T2}, 4")
    a("s_cbranch_scc1 L_K3_SINGLE")
    a(f"v_lshlrev_b32 v1, 4, v0")
    for xg in range(8):
        a(f"buffer_load_dwordx4 v[{4+4*xg}:{7+4*xg}], v1, s[{SRD_WS}:{SRD_WS+3}], s{S_T0} offen")
        if xg < 7: a(f"s_add_u32 s{S_T0}, s{S_T0}, {PART_XG}")
    a(f"s_and_b32 s{S_CW}, s{S_CW}, 1")
    a(f"s_lshl_b32 s{S_CW}, s{S_CW}, 7")
    a(f"s_and_b32 s{S_T2}, s{S_T2}, 1")
    a(f"s_lshl_b32 s{S_T2}, s{S_T2}, 6")
    a(f"s_add_u32 s{S_MT}, s{S_MT}, s{S_CW}")
    a(f"s_add_u32 s{S_MT}, s{S_MT}, s{S_T2}")
    def reduce(n):
        for xg in range(8):
            a(f"s_waitcnt vmcnt({7-xg})")
            for d in range(n):
                src = 4 + 4*xg + d
                if xg == 0:
                    a(f"v_lshlrev_b32 v{40+2*d}, 16, v{src}")
                    a(f"v_and_b32 v{41+2*d}, 0xffff0000, v{src}")
                else:
                    a(f"v_lshlrev_b32 v{50+2*d}, 16, v{src}")
                    a(f"v_and_b32 v{51+2*d}, 0xffff0000, v{src}")
            if xg:
                for d in range(2*n):
                    a(f"v_add_f32 v{40+d}, v{40+d}, v{50+d}")
        for d in range(n):
            a(f"v_cvt_pk_bf16_f32 v{4+d}, v{40+2*d}, v{41+2*d}")
    reduce(4)
    a(f"buffer_store_dwordx2 v[4:5], v2, s[{SRD_X}:{SRD_X+3}], s{S_MT} offen")
    a(f"buffer_store_dwordx2 v[6:7], v2, s[{SRD_X}:{SRD_X+3}], s{S_MT} offen offset:32")
    a("s_branch L_K3_FIN")
    a.label("L_K3_SINGLE")
    a(f"v_lshlrev_b32 v1, 3, v0")
    for xg in range(8):
        a(f"buffer_load_dwordx2 v[{4+4*xg}:{5+4*xg}], v1, s[{SRD_WS}:{SRD_WS+3}], s{S_T0} offen")
        if xg < 7: a(f"s_add_u32 s{S_T0}, s{S_T0}, {PART_XG}")
    a(f"s_add_u32 s{S_MT}, s{S_MT}, 256")
    reduce(2)
    a(f"buffer_store_dwordx2 v[4:5], v2, s[{SRD_X}:{SRD_X+3}], s{S_MT} offen")
    a.label("L_K3_FIN")
    stamp(a, 1)
    if 'ts' in opt:
        a("s_waitcnt vmcnt(0)")
    stamp(a, 2)
    dump_stamps(a, 2, 3, "K3", 0)
    a.label("L_END_K3")
    a("s_endpgm")
    a(kd(name, vgpr=64, sgpr=96))

def main():
    for o in sys.argv[2:]: opt.add(o)
    a = Asm()
    a(HEADER.rstrip())
    a(f"; @launch kernel=mlp_kernel grid=(256,1,1) block=(512,1,1) lds={LDS_BYTES}")
    a(f"; @launch kernel=red_kernel grid=(160,1,1) block=(256,1,1) lds=0")
    a('.amdgcn_target "amdgcn-amd-amdhsa--gfx950"')
    a(".text")
    kernel_main(a); kernel3(a)
    open(sys.argv[1], "w").write(a.text())

main()
```

```python
import sys
from common import *

X_BYTES = 512*576*2
W_BYTES = 576*4608*2
OUT_BYTES = 512*576*2
WS_BYTES = 268435456
PAGE = 2*1024*1024
H_OFF = 4096
GRP_BYTES = 4*18432
FLAG_OFF = 4*PAGE + 4096
PART_OFF = 5*PAGE + 4096
PART_XG = 128*4608
WST = 18432
SLOT = WST
NSLOT = 4
LB = NSLOT*SLOT
LDS_BYTES = LB + 4*WST + 2048
TS_OFF = 128 << 20
SPIN = 1 << 17

opt = set()
NT_ON = [False]
def NT(): return " nt" if (NT_ON[0] and 'nont' not in opt) or 'allnt' in opt else ""

S_X, S_W1, S_W2, S_OUT, S_DBG, S_WS = 4, 6, 8, 10, 12, 14
SRD_X, SRD_W1, SRD_WS, SRD_W2, SRD_DBG = 16, 20, 24, 40, 44
S_WV, S_XG, S_J, S_MT, S_CW = 28, 29, 30, 31, 32
S_N, S_WOFF, S_DSLOT, S_RSLOT = 33, 34, 35, 36
S_T0, S_T1, S_T2, S_T3 = 37, 38, 39, 48
S_WLDS, S_P, S_XROW, S_BLDS, S_HB, S_GRP, S_FAST, S_HSLOT = 49, 50, 51, 52, 53, 54, 55, 56
S_WCOL, S_HOFF = 57, 58
S_P2, S_PH, S_W2B = 92, 93, 94
S_BDST = 56
S_TS = 60
S_K = 84

LD_DONE = [False]
def amp_on(): return any(o.startswith('amp') for o in opt)
def amp_spin(a, tag, final_idx):
    for o in opt:
        if o.startswith('amp') and o[3] == tag:
            ia, ib = int(o[4]), int(o[5])
            a("s_waitcnt lgkmcnt(0)")
            a(f"s_sub_u32 s95, s{S_TS+2*ib}, s{S_TS+2*ia}")
            a("s_mul_i32 s95, s95, 3")
            a("s_memrealtime s[96:97]\ns_waitcnt lgkmcnt(0)\ns_mov_b32 s94, s96")
            a.label(f"L_AMP{tag}")
            a(f"s_memrealtime s[96:97]\ns_waitcnt lgkmcnt(0)\ns_sub_u32 s96, s96, s94\ns_cmp_lt_u32 s96, s95\ns_cbranch_scc1 L_AMP{tag}")
def stamp(a, i):
    if amp_on():
        a(f"s_memrealtime s[{S_TS+2*i}:{S_TS+2*i+1}]"); return
    if 'ldiag' in opt and LD_DONE[0]: return
    if 'ts' in opt and not ('diag' in opt and DIAG_C[0]): a(f"s_memrealtime s[{S_TS+2*i}:{S_TS+2*i+1}]")
DIAG_C = [False]

def dump_stamps(a, kidx, n, tag, wave):
    if 'ts' not in opt: return
    a("s_waitcnt lgkmcnt(0) vmcnt(0)")
    a(f"s_cmp_eq_u32 s{S_WV}, {wave}")
    a(f"s_cbranch_scc0 L_NOTS{tag}")
    a(f"s_lshl_b32 s80, s2, 7")
    a(f"s_add_u32 s80, s80, {TS_OFF + kidx*512*128}")
    a(f"s_mov_b32 s88, s14\ns_mov_b32 s89, s15\ns_mov_b32 s90, {WS_BYTES}\ns_mov_b32 s91, 0x20000")
    a("v_mov_b32 v2, 0")
    for i in range(n):
        a(f"v_mov_b32 v4, s{S_TS+2*i}\nv_mov_b32 v5, s{S_TS+2*i+1}")
        a(f"buffer_store_dwordx2 v[4:5], v2, s[88:91], s80 offen offset:{8*i}")
        a("s_nop 1")
    a.label(f"L_NOTS{tag}")

def srd(a, base, ptr, nbytes):
    a(f"s_mov_b32 s{base}, s{ptr}")
    a(f"s_mov_b32 s{base+1}, s{ptr+1}")
    a(f"s_mov_b32 s{base+2}, {nbytes}")
    a(f"s_mov_b32 s{base+3}, 0x20000")

def slot_advance(a, reg):
    a(f"s_add_u32 s{reg}, s{reg}, {SLOT}")
    a(f"s_cmp_eq_u32 s{reg}, {NSLOT*SLOT}")
    a(f"s_cselect_b32 s{reg}, 0, s{reg}")

L_W1, L_W2, L_X, L_H, L_T = 1, 6, 11, 13, 14

def loader_addr_setup(a):
    t0, t1, t2, t3 = L_T, L_T+1, L_T+2, L_T+3
    a(f"v_lshrrev_b32 v{t0}, 3, v0")
    a(f"v_lshrrev_b32 v{t1}, 4, v0")
    a(f"v_and_b32 v{t2}, 7, v0")
    a(f"v_xor_b32 v{t1}, v{t1}, v{t2}")
    a(f"v_lshlrev_b32 v{t1}, 4, v{t1}")
    a(f"v_mul_u32_u24 v{t0}, 1152, v{t0}")
    a(f"v_add_u32 v{L_X}, v{t0}, v{t1}")
    a(f"v_xor_b32 v{t1}, 64, v{t1}")
    a(f"v_add_u32 v{t0}, {8*1152}, v{t0}")
    a(f"v_add_u32 v{L_X+1}, v{t0}, v{t1}")
    a(f"v_lshlrev_b32 v{L_H}, 4, v0")
    a(f"v_lshrrev_b32 v{t0}, 1, v0")
    a(f"v_and_b32 v{t0}, 1, v{t0}")
    a(f"v_lshlrev_b32 v{t0}, 9, v{t0}")
    a(f"v_lshrrev_b32 v{t1}, 2, v0")
    a(f"v_lshl_add_u32 v{t0}, v{t1}, 3, v{t0}")
    a(f"v_and_b32 v{t1}, 1, v0")
    a(f"v_lshl_add_u32 v{L_HS}, v{t1}, 2, v{t0}")
    a(f"s_lshr_b32 s{S_T0}, s{S_CW}, 1")
    a(f"s_lshl_b32 s{S_T0}, s{S_T0}, 5")
    a(f"s_and_b32 s{S_T1}, s{S_CW}, 1")
    a(f"s_lshl_b32 s{S_T1}, s{S_T1}, 2")
    a(f"s_add_u32 s{S_T0}, s{S_T0}, s{S_T1}")
    a(f"s_and_b32 s{S_T1}, s{S_J}, 1")
    a(f"s_lshl_b32 s{S_T1}, s{S_T1}, 1")
    a(f"s_movk_i32 s{S_T2}, 9216")
    for i in range(5):
        a(f"v_add_u32 v{t0}, {64*i}, v0")
        a(f"v_mul_u32_u24 v{t1}, 3641, v{t0}")
        a(f"v_lshrrev_b32 v{L_W2+i}, 16, v{t1}")
        a(f"v_mul_u32_u24 v{t2}, 18, v{L_W2+i}")
        a(f"v_sub_u32 v{20+i}, v{t0}, v{t2}")
        a(f"v_add_u32 v{t0}, s{S_T1}, v{20+i}")
        a(f"v_subrev_u32 v{t2}, 18, v{t0}")
        a(f"v_min_u32 v{t0}, v{t0}, v{t2}")
        a(f"v_lshrrev_b32 v{t2}, 2, v{L_W2+i}")
        a(f"v_and_b32 v{t1}, 3, v{L_W2+i}")
        a(f"v_lshl_add_u32 v{t1}, v{t2}, 3, v{t1}")
        a(f"v_add_u32 v{t1}, s{S_T0}, v{t1}")
        a(f"v_lshlrev_b32 v{t0}, 4, v{t0}")
        a(f"v_mad_u32_u24 v{L_W1+i}, v{t1}, s{S_T2}, v{t0}")

def loader_addr_w2(a):
    t0 = L_T
    a(f"s_lshl_b32 s{S_T3}, s{S_CW}, 4")
    a(f"s_movk_i32 s{S_T2}, 1152")
    for i in range(5):
        a(f"v_add_u32 v{t0}, s{S_T3}, v{L_W2+i}")
        a(f"v_lshlrev_b32 v{20+i}, 4, v{20+i}")
        a(f"v_mad_u32_u24 v{L_W2+i}, v{t0}, s{S_T2}, v{20+i}")

def issue_w(a, vbase, srdreg):
    for i in range(5):
        if i == 0: a(f"s_add_u32 m0, s{S_DSLOT}, s{S_WLDS}")
        else:      a(f"s_add_u32 m0, m0, 1024")
        a("s_mov_b32 exec_hi, 0" if i == 4 else "s_nop 0")
        a(f"buffer_load_dwordx4 v{vbase+i}, s[{srdreg}:{srdreg+3}], s{S_WOFF} offen{NT()} lds")
    a("s_mov_b32 exec_hi, -1")
    slot_advance(a, S_DSLOT)

S_PF = 96
def spf_w2_setup(a):
    a(f"s_lshl_b32 s{S_T0}, s{S_MT}, 2")
    a(f"s_add_u32 s{S_T0}, s{S_T0}, s{S_J}")
    a(f"s_mul_i32 s{S_T0}, s{S_T0}, 162")
    a(f"s_mul_i32 s{S_T1}, s{S_CW}, 40")
    a(f"s_add_u32 s{S_T0}, s{S_T0}, s{S_T1}")
    a(f"s_lshl_b32 s{S_T0}, s{S_T0}, 7")
    a(f"s_mul_i32 s{S_T1}, s{S_XG}, {576*1152}")
    a(f"s_add_u32 s{S_T0}, s{S_T0}, s{S_T1}")
    a(f"s_add_u32 s{S_PF}, s{S_W2}, s{S_T0}")
    a(f"s_addc_u32 s{S_PF+1}, s{S_W2+1}, 0")
def spf_w2(a):
    for i in range(6):
        a(f"s_load_dword s95, s[{S_PF}:{S_PF+1}], {128*i}")
    a(f"s_add_u32 s{S_PF}, s{S_PF}, 768")
    a(f"s_addc_u32 s{S_PF+1}, s{S_PF+1}, 0")

def issue_stage1(a, pf=False):
    if pf and 'sw2' in opt: spf_w2(a)
    a(f"s_lshl_b32 s{S_T0}, s{S_P}, 7")
    a(f"s_add_u32 s{S_T0}, s{S_T0}, s{S_XROW}")
    a(f"s_mov_b32 m0, s{S_BDST}")
    a(f"s_mul_i32 s{S_WOFF}, s{S_P}, {64*9216}")
    a(f"buffer_load_dwordx4 v{L_X}, s[{SRD_X}:{SRD_X+3}], s{S_T0} offen{NT()} lds")
    a(f"s_add_u32 m0, m0, 1024")
    a(f"s_add_u32 s{S_WOFF}, s{S_WOFF}, s{S_WCOL}")
    a(f"buffer_load_dwordx4 v{L_X+1}, s[{SRD_X}:{SRD_X+3}], s{S_T0} offen{NT()} lds")
    a(f"s_add_u32 s{S_BDST}, s{S_BDST}, 2048")
    issue_w(a, L_W1, SRD_W1)
    a(f"s_add_u32 s{S_P}, s{S_P}, 1")
    a(f"s_cmp_eq_u32 s{S_P}, 9")
    a(f"s_cselect_b32 s{S_P}, 0, s{S_P}")

def wrap9(a, reg):
    a(f"s_add_u32 s{reg}, s{reg}, 1")
    a(f"s_cmp_eq_u32 s{reg}, 9")
    a(f"s_cselect_b32 s{reg}, 0, s{reg}")

def issue_w2(a):
    a(f"s_mul_i32 s{S_WOFF}, s{S_P2}, {64*1152}")
    a(f"s_add_u32 s{S_WOFF}, s{S_WOFF}, s{S_W2B}")
    issue_w(a, L_W2, SRD_W2)
    wrap9(a, S_P2)

L_HS = 25
def issue_h(a, n):
    W = f"s[{SRD_WS}:{SRD_WS+3}]"
    for s0 in range(2):
        ks = 2*n + s0
        a(f"s_add_u32 m0, s{S_BLDS}, {ks*1024}")
        a(f"s_add_u32 s{S_HOFF}, s{S_HB}, {ks*1024}")
        if ks not in (4, 13):
            a(f"buffer_load_dwordx4 v{L_H}, {W}, s{S_HOFF} offen sc1 lds")
        else:
            for q in range(4):
                if q: a("s_add_u32 m0, m0, 128\ns_nop 0")
                a(f"buffer_load_dword v{L_HS}, {W}, s{S_HOFF} offen offset:{128*q} sc1 lds")
def h_count(n): return 5 if n in (2, 6) else 2

def poll_pub(a, tag, vtmp, preloaded=False):
    if preloaded:
        a("s_waitcnt vmcnt(0)")
        a(f"v_cmp_ne_u32 vcc, 1, v{vtmp}")
        a(f"s_cbranch_vccz L_PGX{tag}")
    a(f"s_mov_b32 s{S_T3}, 0")
    a.label(f"L_PG{tag}")
    a(f"s_add_u32 s{S_T3}, s{S_T3}, 1")
    a(f"s_cmp_gt_u32 s{S_T3}, {SPIN}")
    a(f"s_cbranch_scc1 L_PGX{tag}")
    a(f"buffer_load_dword v{vtmp}, off, s[{SRD_DBG}:{SRD_DBG+3}], 0 sc1")
    a("s_waitcnt vmcnt(0)")
    a(f"v_cmp_ne_u32 vcc, 1, v{vtmp}")
    a(f"s_cbranch_vccnz L_PG{tag}")
    a.label(f"L_PGX{tag}")

def loader(a):
    a.label("L_LOADER")
    loader_addr_setup(a)
    a(f"s_lshl_b32 s{S_T0}, s{S_MT}, 2")
    a(f"s_add_u32 s{S_T0}, s{S_T0}, s{S_CW}")
    a(f"s_mul_i32 s{S_XROW}, s{S_T0}, {16*1152}")
    a(f"s_mul_i32 s{S_BLDS}, s{S_CW}, {WST}")
    a(f"s_add_u32 s{S_BLDS}, s{S_BLDS}, {LB}")
    a(f"s_mov_b32 s{S_BDST}, s{S_BLDS}")
    a(f"s_mul_i32 s{S_WCOL}, s{S_XG}, 1152")
    a(f"s_mul_i32 s{S_T0}, s{S_J}, 288")
    a(f"s_add_u32 s{S_WCOL}, s{S_WCOL}, s{S_T0}")
    a(f"s_mul_i32 s{S_WLDS}, s{S_CW}, 4608")
    a(f"s_mov_b32 s{S_DSLOT}, 0")
    if 'norot' in opt: a(f"s_mov_b32 s{S_P}, 0")
    else:
        a(f"s_lshl_b32 s{S_P}, s{S_J}, 1")
        a(f"s_add_u32 s{S_P}, s{S_P}, s{S_MT}")
        a(f"s_sub_u32 s{S_T0}, s{S_P}, 9")
        a(f"s_cmp_ge_u32 s{S_P}, 9")
        a(f"s_cselect_b32 s{S_P}, s{S_T0}, s{S_P}")
    a(f"s_mov_b32 s{S_P2}, 0")
    a("s_waitcnt lgkmcnt(0)")
    srd(a, SRD_X, S_X, X_BYTES)
    srd(a, SRD_W1, S_W1, W_BYTES)
    if 'spf2' in opt:
        a(f"s_getpc_b64 s[{S_K}:{S_K+1}]")
        a(f"s_mul_i32 s{S_T0}, s{S_CW}, 1792")
        a(f"s_add_u32 s{S_K}, s{S_K}, s{S_T0}")
        a(f"s_addc_u32 s{S_K+1}, s{S_K+1}, 0")
        for i in range(14):
            a(f"s_load_dword s95, s[{S_K}:{S_K+1}], {128*i+ (0)}")
    if 'pspin' in opt:
        a("s_memtime s[96:97]\ns_waitcnt lgkmcnt(0)\ns_mov_b32 s95, s96")
        a.label("L_PSPIN")
        a("s_memtime s[96:97]\ns_waitcnt lgkmcnt(0)\ns_sub_u32 s96, s96, s95\ns_cmp_lt_u32 s96, 8000\ns_cbranch_scc1 L_PSPIN")
    if 'prspin' in opt:
        a("s_memrealtime s[96:97]\ns_waitcnt lgkmcnt(0)\ns_mov_b32 s95, s96")
        a.label("L_PSPIN")
        a("s_memrealtime s[96:97]\ns_waitcnt lgkmcnt(0)\ns_sub_u32 s96, s96, s95\ns_cmp_lt_u32 s96, 400\ns_cbranch_scc1 L_PSPIN")
    for nm, sreg, nb in (('pw1', SRD_W1, 16384), ('px', SRD_X, 2048), ('pws', None, 16384), ('pw2', None, 16384)):
        if nm in opt:
            if nm == 'pws': srd(a, SRD_WS, S_WS, WS_BYTES); sreg = SRD_WS
            if nm == 'pw2': srd(a, SRD_W2, S_W2, W_BYTES); sreg = SRD_W2
            a(f"s_cmp_eq_u32 s{S_WV}, 4")
            a("s_cbranch_scc0 L_PLD")
            a(f"s_mul_i32 s95, s2, {nb}")
            if nm == 'pws': a(f"s_add_u32 s95, s95, {64<<20}")
            for i in range(16):
                a(f"buffer_load_dword v30, off, s[{sreg}:{sreg+3}], s95")
                a("s_waitcnt vmcnt(0)")
                a(f"s_add_u32 s95, s95, {nb//16}")
            a.label("L_PLD")
    stamp(a, 1)
    NT_ON[0] = True
    issue_stage1(a)
    if 'ldiag' in opt: stamp(a, 2)
    issue_stage1(a)
    NT_ON[0] = 'nt2' in opt
    if 'ldiag' in opt: stamp(a, 3)
    srd(a, SRD_W2, S_W2, W_BYTES)
    srd(a, SRD_WS, S_WS, WS_BYTES)
    srd(a, SRD_DBG, S_DBG, 256)
    loader_addr_w2(a)
    if 'ldiag' not in opt: stamp(a, 2)
    a("s_waitcnt vmcnt(7)")
    if 'ldiag' in opt: stamp(a, 4)
    a("s_barrier")
    if 'ldiag' not in opt: stamp(a, 3)
    issue_stage1(a, True)
    NT_ON[0] = False
    if 'ldiag' in opt:
        stamp(a, 5)
        a("s_waitcnt vmcnt(7)")
        stamp(a, 6)
        a("s_barrier")
        issue_stage1(a)
        stamp(a, 7)
        a("s_waitcnt vmcnt(7)")
        stamp(a, 8)
        a("s_barrier")
        issue_stage1(a)
        stamp(a, 9)
    a(f"s_mov_b32 s{S_N}, {2 if 'ldiag' in opt else 0}")
    a.label("L_LD1")
    if 'ldiag' in opt: LD_DONE[0] = True
    a("s_waitcnt vmcnt(7)")
    a("s_barrier")
    issue_stage1(a, True)
    a(f"s_add_u32 s{S_N}, s{S_N}, 1")
    a(f"s_cmp_lt_u32 s{S_N}, 6")
    a("s_cbranch_scc1 L_LD1")
    a(f"s_mul_i32 s{S_W2B}, s{S_XG}, {576*1152}")
    a(f"s_mul_i32 s{S_T0}, s{S_J}, 288")
    a(f"s_add_u32 s{S_W2B}, s{S_W2B}, s{S_T0}")
    w2t = 'now2t' not in opt and 'sw2' not in opt
    if w2t:
        a(f"s_lshl_b32 s{S_T0}, s{S_MT}, 2")
        a(f"s_add_u32 s{S_T0}, s{S_T0}, s{S_J}")
        a(f"s_mul_i32 s{S_T0}, s{S_T0}, 162")
        a(f"s_mul_i32 s{S_T1}, s{S_CW}, 41")
        a(f"s_add_u32 s{S_T0}, s{S_T0}, s{S_T1}")
        a(f"s_lshl_b32 s{S_T0}, s{S_T0}, 7")
        a(f"s_mul_i32 s{S_T1}, s{S_XG}, {576*1152}")
        a(f"s_add_u32 s{S_T0}, s{S_T0}, s{S_T1}")
        a(f"v_min_u32 v{L_T}, 40, v0")
        a(f"v_lshlrev_b32 v{L_T}, 7, v{L_T}")
        a(f"buffer_load_dword v{L_T+2}, v{L_T}, s[{SRD_W2}:{SRD_W2+3}], s{S_T0} offen" + ("" if 'nont' in opt else " nt"))
    a("s_waitcnt vmcnt(%d)" % (8 if w2t else 7))
    a("s_barrier")
    nA, nB, nC = 0, 0, 3
    for o in opt:
        if o.startswith('sch'): nA, nB, nC = int(o[3]), int(o[4]), int(o[5])
    assert nA + nB + nC <= 4
    wnext = [9]
    def W_now():
        issue_w2(a); wnext[0] += 1
    for _ in range(nA): W_now()
    a("s_waitcnt vmcnt(%d)" % ((1 if w2t else 0) + 5*nA))
    a("s_barrier")
    a("s_barrier")
    stamp(a, 4)
    for _ in range(nB): W_now()
    poll_pub(a, "L", L_T)
    a(f"s_lshl_b32 s{S_T2}, s{S_GRP}, 5")
    a(f"s_add_u32 s{S_T2}, s{S_T2}, {FLAG_OFF}")
    a(f"v_and_b32 v{L_T+1}, 15, v0")
    a(f"v_lshlrev_b32 v{L_T+1}, 2, v{L_T+1}")
    a("s_barrier")
    stamp(a, 5)
    for _ in range(nC): W_now()
    a(f"s_mov_b32 s{S_T3}, 0")
    a.label("L_PF")
    a(f"s_add_u32 s{S_T3}, s{S_T3}, 1")
    a(f"s_cmp_gt_u32 s{S_T3}, {SPIN}")
    a(f"s_cbranch_scc1 L_PFX")
    a(f"buffer_load_dword v{L_T}, v{L_T+1}, s[{SRD_WS}:{SRD_WS+3}], s{S_T2} offen sc1")
    a("s_waitcnt vmcnt(0)")
    a(f"v_cmp_ne_u32 vcc, 1, v{L_T}")
    a("s_cbranch_vccnz L_PF")
    a.label("L_PFX")
    stamp(a, 6)
    q = []
    def iss(name, cnt, fn):
        fn(); q.append((name, cnt))
    def wait(*names):
        idx = [i for i, (nm, c) in enumerate(q) if nm in names]
        last = max(idx) if idx else -1
        a("s_waitcnt vmcnt(%d)" % sum(c for nm, c in q[last+1:]))
    H = lambda n: iss(f"h{n}", h_count(n), lambda: issue_h(a, n))
    def Wn(n):
        assert wnext[0] == n, (wnext, n)
        iss(f"W{n}", 5, lambda: issue_w2(a)); wnext[0] += 1
    H(0); H(1); H(2)
    wait("h0")
    a("s_barrier")
    stamp(a, 7)
    assert wnext[0] >= 10
    hn = 3
    for s in range(10, 18):
        nw = wnext[0]
        if nw <= 17 and (nw <= 12 or nw <= s + 1):
            Wn(nw)
        if hn <= 8:
            H(hn); hn += 1
        if hn <= 8 and 'h2' in opt:
            H(hn); hn += 1
        wait(f"h{s-9}", f"W{s}")
        have = [nm for nm, c in q]
        assert (f"h{s-9}" in have) and (f"W{s}" in have or s < wnext[0]), (s, have)
        a("s_barrier")
    stamp(a, 8)
    LD_DONE[0] = False
    dump_stamps(a, 1, 10, "LD", 4)
    a("s_endpgm")

C_BF, C_BS = 2, 4
C_A, C_A8, C_AC, C_A8C = 6, 7, 8, 9
C_T = 10
C_BP = 108
A0, B0, A1, B1 = 16, 36, 44, 64
ACC = 72
C_E = 112

def reads_step(Aset, Bset, s0):
    ins = [f"ds_read_b128 v[{Bset}:{Bset+3}], v{C_BF+s0}"]
    def A(t):
        vaddr = C_AC if t < 4 else C_A8C
        off = s0*9216 + (32*t if t < 4 else 0)
        return [f"ds_read_b64_tr_b16 v[{Aset+4*t}:{Aset+4*t+1}], v{vaddr} offset:{off}",
                f"ds_read_b64_tr_b16 v[{Aset+4*t+2}:{Aset+4*t+3}], v{vaddr} offset:{off+4608}"]
    ins += A(0)
    ins.append(f"ds_read_b128 v[{Bset+4}:{Bset+7}], v{C_BS+s0}")
    for t in range(1, 5): ins += A(t)
    return ins

def mfmas(Aset, Bset):
    def m(acc, t, b):
        return f"v_mfma_f32_16x16x32_bf16 v[{ACC+4*acc}:{ACC+4*acc+3}], v[{Aset+4*t}:{Aset+4*t+3}], v[{Bset+4*b}:{Bset+4*b+3}], v[{ACC+4*acc}:{ACC+4*acc+3}]"
    out = []
    for t in range(4):
        out.append(m(t, t, 0)); out.append(m(4+t, t, 1))
    out.append(m(8, 4, 0))
    return out

def block(a, r, m):
    for u in range(9):
        a(m[u])
        if r and u < 6:
            a(r[2*u]); a(r[2*u+1])

def set_stage_addrs(a, first=False):
    a(f"v_add_u32 v{C_AC}, s{S_RSLOT}, v{C_A}")
    a(f"v_add_u32 v{C_A8C}, s{S_RSLOT}, v{C_A8}")
    for i, r in enumerate((C_BF, C_BF+1, C_BS, C_BS+1)):
        if first: a(f"v_mov_b32 v{r}, v{C_BP+i}")
        else:     a(f"v_add_u32 v{r}, 2048, v{r}")

def compute_loop_diag(a, name, k0):
    for n in range(9):
        a("s_waitcnt lgkmcnt(0)")
        if n: a(f"s_mov_b32 s{S_TS+k0+n-1}, s96")
        block(a, reads_step(A1, B1, 1), mfmas(A0, B0))
        slot_advance(a, S_RSLOT)
        set_stage_addrs(a)
        if n == 8: break
        a("s_barrier")
        a("s_memtime s[96:97]")
        a("s_waitcnt lgkmcnt(0)")
        block(a, reads_step(A0, B0, 0), mfmas(A1, B1))
    a("s_waitcnt lgkmcnt(0)")
    block(a, None, mfmas(A1, B1))
    a("s_memtime s[96:97]")
    a("s_waitcnt lgkmcnt(0)")
    a(f"s_mov_b32 s{S_TS+k0+8}, s96")

def compute_loop(a, name):
    if 'diag' in opt:
        return compute_loop_diag(a, name, 0 if name == "C1" else 10)
    a(f"s_mov_b32 s{S_N}, 0")
    a.label(f"L_{name}")
    a("s_waitcnt lgkmcnt(0)")
    block(a, reads_step(A1, B1, 1), mfmas(A0, B0))
    slot_advance(a, S_RSLOT)
    set_stage_addrs(a)
    a(f"s_cmp_eq_u32 s{S_N}, 8")
    a(f"s_cbranch_scc1 L_{name}_LAST")
    a("s_barrier")
    a("s_waitcnt lgkmcnt(0)")
    block(a, reads_step(A0, B0, 0), mfmas(A1, B1))
    a(f"s_add_u32 s{S_N}, s{S_N}, 1")
    a(f"s_branch L_{name}")
    a.label(f"L_{name}_LAST")
    a("s_waitcnt lgkmcnt(0)")
    block(a, None, mfmas(A1, B1))

def zero_acc(a):
    for i in range(0, 36, 2): a(f"v_pk_mov_b32 v[{ACC+i}:{ACC+i+1}], 0, 0")

def touches(a):
    t0, t1, t2 = C_T, C_T+1, C_T+2
    if 'nocode' not in opt:
        a(f"s_getpc_b64 s[{S_K}:{S_K+1}]")
        a.label("L_PC")
        a(f"s_sub_u32 s{S_K}, s{S_K}, (L_PC - mlp_kernel)")
        a(f"s_subb_u32 s{S_K+1}, s{S_K+1}, 0")
        a(f"v_lshlrev_b32 v{t0}, 7, v0")
        a(f"s_lshl_b32 s{S_T0}, s{S_CW}, 13")
        a(f"v_add_u32 v{t0}, s{S_T0}, v{t0}")
        a(f"v_cmp_gt_u32 vcc, (L_CODE_END - mlp_kernel), v{t0}")
        a(f"s_and_saveexec_b64 s[{S_T0}:{S_T0+1}], vcc") if False else None
        a(f"v_min_u32 v{t0}, (L_CODE_END - mlp_kernel - 4), v{t0}")
        a(f"global_load_dword v{C_E}, v{t0}, s[{S_K}:{S_K+1}]")

def touches_x(a):
    t0, t1, t2 = C_T, C_T+1, C_T+2
    a(f"s_mul_i32 s{S_T0}, s{S_CW}, 36")
    a(f"v_min_u32 v{t0}, 35, v0")
    a(f"v_add_u32 v{t0}, s{S_T0}, v{t0}")
    a(f"v_lshrrev_b32 v{t1}, 4, v{t0}")
    a(f"v_and_b32 v{t0}, 15, v{t0}")
    a(f"v_mul_u32_u24 v{t0}, 1152, v{t0}")
    a(f"v_lshl_add_u32 v{t0}, v{t1}, 7, v{t0}")
    a(f"s_lshl_b32 s{S_T0}, s{S_MT}, 2")
    a(f"s_add_u32 s{S_T0}, s{S_T0}, s{S_J}")
    a(f"s_mul_i32 s{S_T0}, s{S_T0}, {16*1152}")
    a(f"buffer_load_dword v{C_E+1}, v{t0}, s[{SRD_X}:{SRD_X+3}], s{S_T0} offen")
    if 'half' in opt:
        a(f"buffer_load_dword v{C_E+5}, v{t0}, s[{SRD_X}:{SRD_X+3}], s{S_T0} offen offset:64")

def touches_w2(a):
    t0, t1 = C_T, C_T+1
    a(f"s_lshl_b32 s{S_T0}, s{S_MT}, 2")
    a(f"s_add_u32 s{S_T0}, s{S_T0}, s{S_J}")
    a(f"s_mul_i32 s{S_T0}, s{S_T0}, 162")
    a(f"s_mul_i32 s{S_T1}, s{S_CW}, 41")
    a(f"s_add_u32 s{S_T0}, s{S_T0}, s{S_T1}")
    a(f"s_lshl_b32 s{S_T0}, s{S_T0}, 7")
    a(f"s_mul_i32 s{S_T1}, s{S_XG}, {576*1152}")
    a(f"s_add_u32 s{S_T0}, s{S_T0}, s{S_T1}")
    a(f"v_min_u32 v{t0}, 40, v0")
    a(f"v_lshlrev_b32 v{t0}, 7, v{t0}")
    a(f"buffer_load_dword v{C_E+2}, v{t0}, s[{SRD_W2}:{SRD_W2+3}], s{S_T0} offen")
    if 'half' in opt:
        a(f"buffer_load_dword v{C_E+4}, v{t0}, s[{SRD_W2}:{SRD_W2+3}], s{S_T0} offen offset:64")

def touches_ws(a):
    t0, t1 = C_T, C_T+1
    a(f"v_and_b32 v{t0}, 7, v0")
    a(f"v_lshlrev_b32 v{t0}, 21, v{t0}")
    a(f"buffer_load_dword v{C_E+3}, v{t0}, s[{SRD_WS}:{SRD_WS+3}], 0 offen")

def compute(a):
    DIAG_C[0] = True
    t0, t1, t2 = C_T, C_T+1, C_T+2
    if 'codepf' in opt: touches(a)
    a(f"v_lshrrev_b32 v{t0}, 2, v0")
    a(f"v_mul_u32_u24 v{t0}, 288, v{t0}")
    a(f"v_and_b32 v{t1}, 3, v0")
    a(f"v_lshl_add_u32 v{t0}, v{t1}, 3, v{t0}")
    a(f"v_add_u32 v{C_A8}, 256, v{t0}")
    a(f"s_and_b32 s{S_T0}, s{S_CW}, 1")
    a(f"s_lshl_b32 s{S_T0}, s{S_T0}, 7")
    a(f"v_add_u32 v{C_A}, s{S_T0}, v{t0}")
    a(f"s_mul_i32 s{S_T1}, s{S_CW}, {WST}")
    a(f"s_add_u32 s{S_T1}, s{S_T1}, {LB}")
    a(f"s_xor_b32 s{S_T2}, s{S_CW}, 1")
    a(f"s_mul_i32 s{S_T2}, s{S_T2}, {WST}")
    a(f"s_add_u32 s{S_T2}, s{S_T2}, {LB}")
    a(f"v_and_b32 v{t0}, 15, v0")
    a(f"v_lshrrev_b32 v{t1}, 1, v{t0}")
    a(f"v_lshrrev_b32 v{t2}, 4, v0")
    a(f"v_xor_b32 v{t1}, v{t1}, v{t2}")
    a(f"v_lshlrev_b32 v{t1}, 4, v{t1}")
    a(f"v_lshl_add_u32 v{t2}, v{t0}, 7, v{t1}")
    a(f"v_xor_b32 v{t1}, 64, v{t1}")
    a(f"v_lshl_add_u32 v{t1}, v{t0}, 7, v{t1}")
    a(f"v_add_u32 v{C_BP}, s{S_T1}, v{t2}")
    a(f"v_add_u32 v{C_BP+1}, s{S_T1}, v{t1}")
    a(f"v_add_u32 v{C_BP+2}, s{S_T2}, v{t2}")
    a(f"v_add_u32 v{C_BP+3}, s{S_T2}, v{t1}")
    a(f"s_mov_b32 s{S_RSLOT}, 0")
    set_stage_addrs(a, True)
    zero_acc(a)
    a("s_waitcnt lgkmcnt(0)")
    srd(a, SRD_X, S_X, X_BYTES)
    srd(a, SRD_W2, S_W2, W_BYTES)
    srd(a, SRD_WS, S_WS, WS_BYTES)
    srd(a, SRD_DBG, S_DBG, 256)
    if 'xpf' in opt: touches_x(a)
    if 'wspf' in opt: touches_ws(a)
    if 'w2early' in opt: touches_w2(a)
    a(f"s_cmp_eq_u32 s2, 0")
    a("s_cbranch_scc0 L_NOCLR")
    a(f"s_lshl_b32 s{S_T0}, s{S_CW}, 11")
    a(f"s_add_u32 s{S_T0}, s{S_T0}, {FLAG_OFF}")
    a(f"v_pk_mov_b32 v[{A1}:{A1+1}], 0, 0\nv_pk_mov_b32 v[{A1+2}:{A1+3}], 0, 0")
    a(f"v_lshlrev_b32 v{t1}, 4, v0")
    a(f"buffer_store_dwordx4 v[{A1}:{A1+3}], v{t1}, s[{SRD_WS}:{SRD_WS+3}], s{S_T0} offen sc1")
    a(f"buffer_store_dwordx4 v[{A1}:{A1+3}], v{t1}, s[{SRD_WS}:{SRD_WS+3}], s{S_T0} offen offset:1024 sc1")
    a("s_waitcnt vmcnt(0)")
    a.label("L_NOCLR")
    a("s_barrier")
    stamp(a, 1)
    for ins in reads_step(A0, B0, 0): a(ins)
    a(f"s_lshl_b32 s{S_T1}, s2, 2")
    a(f"s_or_b32 s{S_T1}, s{S_T1}, s{S_CW}")
    a(f"s_cmp_eq_u32 s{S_T1}, 0")
    a("s_cbranch_scc0 L_NOPUB")
    a(f"v_mov_b32 v{t0}, 1")
    a("s_mov_b64 exec, 1")
    a(f"buffer_store_dword v{t0}, off, s[{SRD_DBG}:{SRD_DBG+3}], 0 sc1")
    a("s_mov_b64 exec, -1")
    a.label("L_NOPUB")
    compute_loop(a, "C1")
    a("s_barrier")
    stamp(a, 2)
    a("s_waitcnt vmcnt(0)")
    a(f"buffer_load_dword v{t0}, off, s[{SRD_DBG}:{SRD_DBG+3}], 0 sc1")
    a(f"s_mov_b32 s{S_K}, 0xbfb8aa3b")
    a(f"s_mov_b32 s{S_K+1}, 0xbfb8aa3b")
    a(f"s_xor_b32 s{S_T2}, s{S_CW}, 1")
    a(f"s_sub_i32 s{S_T2}, s{S_T2}, s{S_CW}")
    a(f"s_mul_i32 s{S_T2}, s{S_T2}, {WST}")
    a(f"s_lshr_b32 s{S_T3}, s{S_J}, 1")
    a(f"s_mul_i32 s{S_T3}, s{S_T3}, {9*1024}")
    a(f"s_add_u32 s{S_T3}, s{S_T3}, {4*1024}")
    a(f"s_add_u32 s{S_T3}, s{S_T3}, s{S_HB}")
    a(f"s_and_b32 s{S_P}, s{S_J}, 1")
    a(f"s_lshl_b32 s{S_P}, s{S_P}, 9")
    a(f"s_add_u32 s{S_XROW}, s{S_T3}, s{S_P}")
    a(f"s_mul_i32 s{S_T3}, s{S_J}, 9")
    a(f"s_add_u32 s{S_T3}, s{S_T3}, 1")
    a(f"s_lshr_b32 s{S_T3}, s{S_T3}, 1")
    a(f"s_and_b32 s{S_P}, s{S_CW}, 1")
    a(f"s_lshl_b32 s{S_P}, s{S_P}, 1")
    a(f"s_add_u32 s{S_T3}, s{S_T3}, s{S_P}")
    a(f"s_lshl_b32 s{S_T3}, s{S_T3}, 10")
    a(f"s_add_u32 s{S_WCOL}, s{S_T3}, s{S_HB}")
    a(f"s_add_u32 s{S_WLDS}, s{S_WCOL}, s{S_T2}")
    a(f"s_lshl_b32 s{S_BLDS}, s{S_GRP}, 5")
    a(f"s_add_u32 s{S_BLDS}, s{S_BLDS}, {FLAG_OFF}")
    a(f"s_lshl_b32 s{S_P}, s{S_J}, 2")
    a(f"s_add_u32 s{S_P}, s{S_P}, s{S_CW}")
    a(f"s_lshl_b32 s{S_P}, s{S_P}, 2")
    a(f"s_add_u32 s{S_BLDS}, s{S_BLDS}, s{S_P}")
    a(f"v_lshlrev_b32 v{t1}, 4, v0")
    a(f"v_mov_b32 v{t2}, 1")
    W = f"s[{SRD_WS}:{SRD_WS+3}]"
    hsc = "" if 'hplain' in opt else " sc1"
    for u in range(9):
        x = ACC + 4*u
        e = C_E + 4*(u & 1)
        for r in (0, 2): a(f"v_pk_mul_f32 v[{e+r}:{e+r+1}], v[{x+r}:{x+r+1}], s[{S_K}:{S_K+1}]")
        for r in range(4): a(f"v_exp_f32 v{e+r}, v{e+r}")
        for r in (0, 2): a(f"v_pk_add_f32 v[{e+r}:{e+r+1}], v[{e+r}:{e+r+1}], 1.0 op_sel_hi:[1,0]")
        for r in range(4): a(f"v_rcp_f32 v{e+r}, v{e+r}")
        for r in (0, 2): a(f"v_pk_mul_f32 v[{x+r}:{x+r+1}], v[{x+r}:{x+r+1}], v[{e+r}:{e+r+1}]")
        a(f"v_cvt_pk_bf16_f32 v{A0+2*u}, v{x}, v{x+1}")
        a(f"v_cvt_pk_bf16_f32 v{A0+2*u+1}, v{x+2}, v{x+3}")
        if u in (1, 3, 5, 7):
            q = u >> 1
            sreg = S_WCOL if q < 2 else S_WLDS
            a(f"buffer_store_dwordx4 v[{A0+4*q}:{A0+4*q+3}], v{t1}, {W}, s{sreg} offen offset:{1024*(q&1)}{hsc}")
    if 'nosingle' not in opt:
        a(f"v_lshlrev_b32 v{C_T+3}, 3, v0")
        a(f"buffer_store_dwordx2 v[{A0+16}:{A0+17}], v{C_T+3}, {W}, s{S_XROW} offen{hsc}")
    stamp(a, 8)
    poll_pub(a, "C", t0, preloaded=True)
    a("s_mov_b64 exec, 1")
    a(f"buffer_store_dword v{t2}, off, {W}, s{S_BLDS}{hsc}")
    a("s_mov_b64 exec, -1")
    a("s_barrier")
    stamp(a, 3)
    a(f"s_mul_i32 s{S_T1}, s{S_CW}, {WST}")
    a(f"s_add_u32 s{S_T1}, s{S_T1}, {LB}")
    a(f"s_xor_b32 s{S_T2}, s{S_CW}, 1")
    a(f"s_mul_i32 s{S_T2}, s{S_T2}, {WST}")
    a(f"s_add_u32 s{S_T2}, s{S_T2}, {LB}")
    a(f"v_add_u32 v{C_BP}, s{S_T1}, v{t1}")
    a(f"v_add_u32 v{C_BP+1}, 1024, v{C_BP}")
    a(f"v_add_u32 v{C_BP+2}, s{S_T2}, v{t1}")
    a(f"v_add_u32 v{C_BP+3}, 1024, v{C_BP+2}")
    set_stage_addrs(a, True)
    zero_acc(a)
    a("s_barrier")
    stamp(a, 4)
    for ins in reads_step(A0, B0, 0): a(ins)
    compute_loop(a, "C2")
    stamp(a, 5)
    a(f"s_lshl_b32 s{S_T0}, s{S_MT}, 2")
    a(f"s_add_u32 s{S_T0}, s{S_T0}, s{S_J}")
    a(f"s_lshl_b32 s{S_T0}, s{S_T0}, 2")
    a(f"s_add_u32 s{S_T0}, s{S_T0}, s{S_CW}")
    a(f"s_mul_i32 s{S_T0}, s{S_T0}, 4608")
    a(f"s_mul_i32 s{S_T1}, s{S_XG}, {PART_XG}")
    a(f"s_add_u32 s{S_T0}, s{S_T0}, s{S_T1}")
    a(f"s_add_u32 s{S_T0}, s{S_T0}, {PART_OFF}")
    a(f"v_lshlrev_b32 v{t2}, 3, v0")
    psc = "" if 'pplain' in opt else " sc1"
    W = f"s[{SRD_WS}:{SRD_WS+3}]"
    for q in range(4):
        for u in (2*q, 2*q+1):
            x = ACC + 4*u
            a(f"v_cvt_pk_bf16_f32 v{A0+2*u}, v{x}, v{x+1}")
            a(f"v_cvt_pk_bf16_f32 v{A0+2*u+1}, v{x+2}, v{x+3}")
        a(f"buffer_store_dwordx4 v[{A0+4*q}:{A0+4*q+3}], v{t1}, {W}, s{S_T0} offen offset:{1024*q}{psc}")
    x = ACC + 32
    a("s_nop 1")
    a(f"v_cvt_pk_bf16_f32 v{A0+16}, v{x}, v{x+1}")
    a(f"v_cvt_pk_bf16_f32 v{A0+17}, v{x+2}, v{x+3}")
    a(f"s_add_u32 s{S_T0}, s{S_T0}, 4096")
    a(f"buffer_store_dwordx2 v[{A0+16}:{A0+17}], v{t2}, {W}, s{S_T0} offen{psc}")
    stamp(a, 6)
    if 'ts' in opt or amp_on():
        a("s_waitcnt vmcnt(0)")
    stamp(a, 7)
    amp_spin(a, 'C', 7)
    if 'clk' in opt:
        a("s_memtime s[96:97]")
        a("s_waitcnt lgkmcnt(0)")
        a("s_sub_u32 s78, s96, s98")
        a("s_mov_b32 s79, 0")
    dump_stamps(a, 0, 10 if ('diag' in opt or 'clk' in opt) else 9, "C", 0)
    DIAG_C[0] = False

def kernel_main(a):
    name = "mlp_kernel"
    a(f".globl {name}\n.p2align 8\n.type {name},@function\n{name}:")
    a(f"s_cmp_ge_u32 s2, 256")
    a(f"s_cbranch_scc1 L_END")
    stamp(a, 0)
    if 'clk' in opt: a("s_memtime s[98:99]")
    a("s_load_dwordx8 s[4:11], s[0:1], 0")
    a("s_load_dwordx4 s[12:15], s[0:1], 32")
    a("v_lshrrev_b32 v1, 6, v0")
    a("v_and_b32 v0, 63, v0")
    a(f"v_readfirstlane_b32 s{S_WV}, v1")
    if 'spf' in opt:
        a(f"s_getpc_b64 s[{S_K}:{S_K+1}]")
        a.label("L_PC0")
        a(f"s_lshl_b32 s{S_T0}, s{S_WV}, 10")
        a(f"s_add_u32 s{S_T0}, s{S_T0}, 256")
        a(f"s_add_u32 s{S_K}, s{S_K}, s{S_T0}")
        a(f"s_addc_u32 s{S_K+1}, s{S_K+1}, 0")
        for i in range(8):
            a(f"s_load_dword s{S_T3}, s[{S_K}:{S_K+1}], {128*i}")
    if 'xmap' in opt:
        a(f"s_and_b32 s{S_J}, s2, 3")
        a(f"s_lshr_b32 s{S_XG}, s2, 2")
        a(f"s_and_b32 s{S_XG}, s{S_XG}, 7")
    else:
        a(f"s_and_b32 s{S_XG}, s2, 7")
        a(f"s_lshr_b32 s{S_J}, s2, 3")
        a(f"s_and_b32 s{S_J}, s{S_J}, 3")
    a(f"s_lshr_b32 s{S_MT}, s2, 5")
    a(f"s_lshl_b32 s{S_GRP}, s{S_XG}, 3")
    a(f"s_add_u32 s{S_GRP}, s{S_GRP}, s{S_MT}")
    a(f"s_lshr_b32 s{S_HB}, s{S_GRP}, 4")
    a(f"s_lshl_b32 s{S_HB}, s{S_HB}, 21")
    a(f"s_and_b32 s{S_T0}, s{S_GRP}, 15")
    a(f"s_mul_i32 s{S_T0}, s{S_T0}, {GRP_BYTES}")
    a(f"s_add_u32 s{S_HB}, s{S_HB}, s{S_T0}")
    a(f"s_lshl_b32 s{S_GRP}, s{S_GRP}, 2")
    a(f"s_and_b32 s{S_CW}, s{S_WV}, 3")
    a(f"s_mul_i32 s{S_T0}, s{S_CW}, {WST}")
    a(f"s_add_u32 s{S_HB}, s{S_HB}, s{S_T0}")
    a(f"s_add_u32 s{S_HB}, s{S_HB}, {H_OFF}")
    a(f"s_cmp_lt_u32 s{S_WV}, 4")
    a("s_cbranch_scc1 L_COMPUTE")
    loader(a)
    a.label("L_COMPUTE")
    compute(a)
    a.label("L_END")
    a("s_endpgm")
    a.label("L_CODE_END")
    if 'spf' in opt or 'spf2' in opt: a(".fill 512, 4, 0xbf800000")
    a(kd(name, vgpr=120, sgpr=102))

def kernel3(a):
    name = "red_kernel"
    a(f".globl {name}\n.p2align 8\n.type {name},@function\n{name}:")
    a(f"s_cmp_ge_u32 s2, 160")
    a(f"s_cbranch_scc1 L_END_K3")
    stamp(a, 0)
    a("s_load_dwordx2 s[10:11], s[0:1], 24")
    a("s_load_dwordx2 s[14:15], s[0:1], 40")
    a("v_lshrrev_b32 v1, 6, v0")
    a("v_and_b32 v0, 63, v0")
    a(f"v_readfirstlane_b32 s{S_WV}, v1")
    a("s_nop 3")
    a(f"s_lshl_b32 s3, s2, 2")
    a(f"s_add_u32 s3, s3, s{S_WV}")
    a(f"s_mul_i32 s{S_T1}, s3, 13108")
    a(f"s_lshr_b32 s{S_T1}, s{S_T1}, 16")
    a(f"s_mul_i32 s{S_T2}, s{S_T1}, 5")
    a(f"s_sub_u32 s{S_T2}, s3, s{S_T2}")
    a(f"s_mul_i32 s{S_T0}, s{S_T1}, 4608")
    a(f"s_lshl_b32 s{S_T3}, s{S_T2}, 10")
    a(f"s_add_u32 s{S_T0}, s{S_T0}, s{S_T3}")
    a(f"s_add_u32 s{S_T0}, s{S_T0}, {PART_OFF}")
    a(f"s_and_b32 s{S_CW}, s{S_T1}, 3")
    a(f"s_lshr_b32 s{S_J}, s{S_T1}, 2")
    a(f"s_and_b32 s{S_J}, s{S_J}, 3")
    a(f"s_lshr_b32 s{S_MT}, s{S_T1}, 4")
    a(f"s_lshr_b32 s{S_P}, s{S_T2}, 1")
    a(f"s_and_b32 s{S_P}, s{S_P}, 1")
    a(f"s_xor_b32 s{S_P}, s{S_P}, s{S_CW}")
    a(f"s_lshl_b32 s{S_MT}, s{S_MT}, 2")
    a(f"s_add_u32 s{S_MT}, s{S_MT}, s{S_P}")
    a(f"s_mul_i32 s{S_MT}, s{S_MT}, {16*1152}")
    a(f"s_mul_i32 s{S_J}, s{S_J}, 288")
    a(f"s_add_u32 s{S_MT}, s{S_MT}, s{S_J}")
    a(f"v_and_b32 v2, 15, v0")
    a(f"v_mul_u32_u24 v2, 1152, v2")
    a(f"v_lshrrev_b32 v3, 4, v0")
    a(f"v_lshl_add_u32 v2, v3, 3, v2")
    a("s_waitcnt lgkmcnt(0)")
    srd(a, SRD_WS, S_WS, WS_BYTES)
    srd(a, SRD_X, S_OUT, OUT_BYTES)
    a(f"s_cmp_eq_u32 s{S_T2}, 4")
    a("s_cbranch_scc1 L_K3_SINGLE")
    a(f"v_lshlrev_b32 v1, 4, v0")
    for xg in range(8):
        a(f"buffer_load_dwordx4 v[{4+4*xg}:{7+4*xg}], v1, s[{SRD_WS}:{SRD_WS+3}], s{S_T0} offen")
        if xg < 7: a(f"s_add_u32 s{S_T0}, s{S_T0}, {PART_XG}")
    a(f"s_and_b32 s{S_CW}, s{S_CW}, 1")
    a(f"s_lshl_b32 s{S_CW}, s{S_CW}, 7")
    a(f"s_and_b32 s{S_T2}, s{S_T2}, 1")
    a(f"s_lshl_b32 s{S_T2}, s{S_T2}, 6")
    a(f"s_add_u32 s{S_MT}, s{S_MT}, s{S_CW}")
    a(f"s_add_u32 s{S_MT}, s{S_MT}, s{S_T2}")
    def reduce(n):
        for xg in range(8):
            a(f"s_waitcnt vmcnt({7-xg})")
            for d in range(n):
                src = 4 + 4*xg + d
                if xg == 0:
                    a(f"v_lshlrev_b32 v{40+2*d}, 16, v{src}")
                    a(f"v_and_b32 v{41+2*d}, 0xffff0000, v{src}")
                else:
                    a(f"v_lshlrev_b32 v{50+2*d}, 16, v{src}")
                    a(f"v_and_b32 v{51+2*d}, 0xffff0000, v{src}")
            if xg:
                for d in range(2*n):
                    a(f"v_add_f32 v{40+d}, v{40+d}, v{50+d}")
        for d in range(n):
            a(f"v_cvt_pk_bf16_f32 v{4+d}, v{40+2*d}, v{41+2*d}")
    reduce(4)
    a(f"buffer_store_dwordx2 v[4:5], v2, s[{SRD_X}:{SRD_X+3}], s{S_MT} offen")
    a(f"buffer_store_dwordx2 v[6:7], v2, s[{SRD_X}:{SRD_X+3}], s{S_MT} offen offset:32")
    a("s_branch L_K3_FIN")
    a.label("L_K3_SINGLE")
    a(f"v_lshlrev_b32 v1, 3, v0")
    for xg in range(8):
        a(f"buffer_load_dwordx2 v[{4+4*xg}:{5+4*xg}], v1, s[{SRD_WS}:{SRD_WS+3}], s{S_T0} offen")
        if xg < 7: a(f"s_add_u32 s{S_T0}, s{S_T0}, {PART_XG}")
    a(f"s_add_u32 s{S_MT}, s{S_MT}, 256")
    reduce(2)
    a(f"buffer_store_dwordx2 v[4:5], v2, s[{SRD_X}:{SRD_X+3}], s{S_MT} offen")
    a.label("L_K3_FIN")
    stamp(a, 1)
    if 'ts' in opt or amp_on():
        a("s_waitcnt vmcnt(0)")
    stamp(a, 2)
    amp_spin(a, 'K', 2)
    dump_stamps(a, 2, 3, "K3", 0)
    a.label("L_END_K3")
    a("s_endpgm")
    a(kd(name, vgpr=64, sgpr=102))

def main():
    for o in sys.argv[2:]: opt.add(o)
    a = Asm()
    a(HEADER.rstrip())
    a(f"; @launch kernel=mlp_kernel grid=(256,1,1) block=(512,1,1) lds={LDS_BYTES}")
    a(f"; @launch kernel=red_kernel grid=(160,1,1) block=(256,1,1) lds=0")
    a('.amdgcn_target "amdgcn-amd-amdhsa--gfx950"')
    a(".text")
    kernel_main(a); kernel3(a)
    open(sys.argv[1], "w").write(a.text())

main()
```

```python
import sys
from common import *

X_BYTES = 512*576*2
W_BYTES = 576*4608*2
OUT_BYTES = 512*576*2
WS_BYTES = 268435456
PAGE = 2*1024*1024
H_OFF = 4096
GRP_BYTES = 4*18432
FLAG_OFF = 4*PAGE + 4096
PART_OFF = 5*PAGE + 4096
PART_XG = 128*4608
WST = 18432
SLOT = WST
NSLOT = 4
LB = NSLOT*SLOT
LDS_BYTES = LB + 4*WST + 2048
TS_OFF = 128 << 20
SPIN = 1 << 17

opt = set()
NT_ON = [False]
def NT(): return " nt" if (NT_ON[0] and 'nont' not in opt) or 'allnt' in opt else ""

S_X, S_W1, S_W2, S_OUT, S_DBG, S_WS = 4, 6, 8, 10, 12, 14
SRD_X, SRD_W1, SRD_WS, SRD_W2, SRD_DBG = 16, 20, 24, 40, 44
S_WV, S_XG, S_J, S_MT, S_CW = 28, 29, 30, 31, 32
S_N, S_WOFF, S_DSLOT, S_RSLOT = 33, 34, 35, 36
S_T0, S_T1, S_T2, S_T3 = 37, 38, 39, 48
S_WLDS, S_P, S_XROW, S_BLDS, S_HB, S_GRP, S_FAST, S_HSLOT = 49, 50, 51, 52, 53, 54, 55, 56
S_WCOL, S_HOFF = 57, 58
S_P2, S_PH, S_W2B = 92, 93, 94
S_BDST = 56
S_TS = 60
S_K = 84

LD_DONE = [False]
def amp_on(): return any(o.startswith('amp') for o in opt)
def amp_spin(a, tag, final_idx):
    for o in opt:
        if o.startswith('amp') and o[3] == tag:
            ia, ib = int(o[4]), int(o[5])
            a("s_waitcnt lgkmcnt(0)")
            a(f"s_sub_u32 s95, s{S_TS+2*ib}, s{S_TS+2*ia}")
            a("s_mul_i32 s95, s95, 3")
            a("s_memrealtime s[96:97]\ns_waitcnt lgkmcnt(0)\ns_mov_b32 s94, s96")
            a.label(f"L_AMP{tag}")
            a(f"s_memrealtime s[96:97]\ns_waitcnt lgkmcnt(0)\ns_sub_u32 s96, s96, s94\ns_cmp_lt_u32 s96, s95\ns_cbranch_scc1 L_AMP{tag}")
def stamp(a, i):
    if amp_on():
        a(f"s_memrealtime s[{S_TS+2*i}:{S_TS+2*i+1}]"); return
    if 'ldiag' in opt and LD_DONE[0]: return
    if 'ts' in opt and not ('diag' in opt and DIAG_C[0]): a(f"s_memrealtime s[{S_TS+2*i}:{S_TS+2*i+1}]")
DIAG_C = [False]

def dump_stamps(a, kidx, n, tag, wave):
    if 'ts' not in opt: return
    a("s_waitcnt lgkmcnt(0) vmcnt(0)")
    a(f"s_cmp_eq_u32 s{S_WV}, {wave}")
    a(f"s_cbranch_scc0 L_NOTS{tag}")
    a(f"s_lshl_b32 s80, s2, 7")
    a(f"s_add_u32 s80, s80, {TS_OFF + kidx*512*128}")
    a(f"s_mov_b32 s88, s14\ns_mov_b32 s89, s15\ns_mov_b32 s90, {WS_BYTES}\ns_mov_b32 s91, 0x20000")
    a("v_mov_b32 v2, 0")
    for i in range(n):
        a(f"v_mov_b32 v4, s{S_TS+2*i}\nv_mov_b32 v5, s{S_TS+2*i+1}")
        a(f"buffer_store_dwordx2 v[4:5], v2, s[88:91], s80 offen offset:{8*i}")
        a("s_nop 1")
    a.label(f"L_NOTS{tag}")

def srd(a, base, ptr, nbytes):
    a(f"s_mov_b32 s{base}, s{ptr}")
    a(f"s_mov_b32 s{base+1}, s{ptr+1}")
    a(f"s_mov_b32 s{base+2}, {nbytes}")
    a(f"s_mov_b32 s{base+3}, 0x20000")

def slot_advance(a, reg):
    a(f"s_add_u32 s{reg}, s{reg}, {SLOT}")
    a(f"s_cmp_eq_u32 s{reg}, {NSLOT*SLOT}")
    a(f"s_cselect_b32 s{reg}, 0, s{reg}")

L_W1, L_W2, L_X, L_H, L_T = 1, 6, 11, 13, 14

def loader_addr_setup(a):
    t0, t1, t2, t3 = L_T, L_T+1, L_T+2, L_T+3
    a(f"v_lshrrev_b32 v{t0}, 3, v0")
    a(f"v_lshrrev_b32 v{t1}, 4, v0")
    a(f"v_and_b32 v{t2}, 7, v0")
    a(f"v_xor_b32 v{t1}, v{t1}, v{t2}")
    a(f"v_lshlrev_b32 v{t1}, 4, v{t1}")
    a(f"v_mul_u32_u24 v{t0}, 1152, v{t0}")
    a(f"v_add_u32 v{L_X}, v{t0}, v{t1}")
    a(f"v_xor_b32 v{t1}, 64, v{t1}")
    a(f"v_add_u32 v{t0}, {8*1152}, v{t0}")
    a(f"v_add_u32 v{L_X+1}, v{t0}, v{t1}")
    a(f"v_lshlrev_b32 v{L_H}, 4, v0")
    a(f"v_lshrrev_b32 v{t0}, 1, v0")
    a(f"v_and_b32 v{t0}, 1, v{t0}")
    a(f"v_lshlrev_b32 v{t0}, 9, v{t0}")
    a(f"v_lshrrev_b32 v{t1}, 2, v0")
    a(f"v_lshl_add_u32 v{t0}, v{t1}, 3, v{t0}")
    a(f"v_and_b32 v{t1}, 1, v0")
    a(f"v_lshl_add_u32 v{L_HS}, v{t1}, 2, v{t0}")
    a(f"s_lshr_b32 s{S_T0}, s{S_CW}, 1")
    a(f"s_lshl_b32 s{S_T0}, s{S_T0}, 5")
    a(f"s_and_b32 s{S_T1}, s{S_CW}, 1")
    a(f"s_lshl_b32 s{S_T1}, s{S_T1}, 2")
    a(f"s_add_u32 s{S_T0}, s{S_T0}, s{S_T1}")
    a(f"s_and_b32 s{S_T1}, s{S_J}, 1")
    a(f"s_lshl_b32 s{S_T1}, s{S_T1}, 1")
    a(f"s_movk_i32 s{S_T2}, 9216")
    for i in range(5):
        a(f"v_add_u32 v{t0}, {64*i}, v0")
        a(f"v_mul_u32_u24 v{t1}, 3641, v{t0}")
        a(f"v_lshrrev_b32 v{L_W2+i}, 16, v{t1}")
        a(f"v_mul_u32_u24 v{t2}, 18, v{L_W2+i}")
        a(f"v_sub_u32 v{20+i}, v{t0}, v{t2}")
        a(f"v_add_u32 v{t0}, s{S_T1}, v{20+i}")
        a(f"v_subrev_u32 v{t2}, 18, v{t0}")
        a(f"v_min_u32 v{t0}, v{t0}, v{t2}")
        a(f"v_lshrrev_b32 v{t2}, 2, v{L_W2+i}")
        a(f"v_and_b32 v{t1}, 3, v{L_W2+i}")
        a(f"v_lshl_add_u32 v{t1}, v{t2}, 3, v{t1}")
        a(f"v_add_u32 v{t1}, s{S_T0}, v{t1}")
        a(f"v_lshlrev_b32 v{t0}, 4, v{t0}")
        a(f"v_mad_u32_u24 v{L_W1+i}, v{t1}, s{S_T2}, v{t0}")

def loader_addr_w2(a):
    t0 = L_T
    a(f"s_lshl_b32 s{S_T3}, s{S_CW}, 4")
    a(f"s_movk_i32 s{S_T2}, 1152")
    for i in range(5):
        a(f"v_add_u32 v{t0}, s{S_T3}, v{L_W2+i}")
        a(f"v_lshlrev_b32 v{20+i}, 4, v{20+i}")
        a(f"v_mad_u32_u24 v{L_W2+i}, v{t0}, s{S_T2}, v{20+i}")

def issue_w(a, vbase, srdreg):
    for i in range(5):
        if i == 0: a(f"s_add_u32 m0, s{S_DSLOT}, s{S_WLDS}")
        else:      a(f"s_add_u32 m0, m0, 1024")
        a("s_mov_b32 exec_hi, 0" if i == 4 else "s_nop 0")
        a(f"buffer_load_dwordx4 v{vbase+i}, s[{srdreg}:{srdreg+3}], s{S_WOFF} offen{NT()} lds")
    a("s_mov_b32 exec_hi, -1")
    slot_advance(a, S_DSLOT)

S_PF = 96
def spf_w2_setup(a):
    a(f"s_lshl_b32 s{S_T0}, s{S_MT}, 2")
    a(f"s_add_u32 s{S_T0}, s{S_T0}, s{S_J}")
    a(f"s_mul_i32 s{S_T0}, s{S_T0}, 162")
    a(f"s_mul_i32 s{S_T1}, s{S_CW}, 40")
    a(f"s_add_u32 s{S_T0}, s{S_T0}, s{S_T1}")
    a(f"s_lshl_b32 s{S_T0}, s{S_T0}, 7")
    a(f"s_mul_i32 s{S_T1}, s{S_XG}, {576*1152}")
    a(f"s_add_u32 s{S_T0}, s{S_T0}, s{S_T1}")
    a(f"s_add_u32 s{S_PF}, s{S_W2}, s{S_T0}")
    a(f"s_addc_u32 s{S_PF+1}, s{S_W2+1}, 0")
def spf_w2(a):
    for i in range(6):
        a(f"s_load_dword s95, s[{S_PF}:{S_PF+1}], {128*i}")
    a(f"s_add_u32 s{S_PF}, s{S_PF}, 768")
    a(f"s_addc_u32 s{S_PF+1}, s{S_PF+1}, 0")

def issue_stage1(a, pf=False):
    if pf and 'sw2' in opt: spf_w2(a)
    a(f"s_lshl_b32 s{S_T0}, s{S_P}, 7")
    a(f"s_add_u32 s{S_T0}, s{S_T0}, s{S_XROW}")
    a(f"s_mov_b32 m0, s{S_BDST}")
    a(f"s_mul_i32 s{S_WOFF}, s{S_P}, {64*9216}")
    a(f"buffer_load_dwordx4 v{L_X}, s[{SRD_X}:{SRD_X+3}], s{S_T0} offen{NT()} lds")
    a(f"s_add_u32 m0, m0, 1024")
    a(f"s_add_u32 s{S_WOFF}, s{S_WOFF}, s{S_WCOL}")
    a(f"buffer_load_dwordx4 v{L_X+1}, s[{SRD_X}:{SRD_X+3}], s{S_T0} offen{NT()} lds")
    a(f"s_add_u32 s{S_BDST}, s{S_BDST}, 2048")
    issue_w(a, L_W1, SRD_W1)
    a(f"s_add_u32 s{S_P}, s{S_P}, 1")
    a(f"s_cmp_eq_u32 s{S_P}, 9")
    a(f"s_cselect_b32 s{S_P}, 0, s{S_P}")

def wrap9(a, reg):
    a(f"s_add_u32 s{reg}, s{reg}, 1")
    a(f"s_cmp_eq_u32 s{reg}, 9")
    a(f"s_cselect_b32 s{reg}, 0, s{reg}")

def issue_w2(a):
    a(f"s_mul_i32 s{S_WOFF}, s{S_P2}, {64*1152}")
    a(f"s_add_u32 s{S_WOFF}, s{S_WOFF}, s{S_W2B}")
    issue_w(a, L_W2, SRD_W2)
    wrap9(a, S_P2)

L_HS = 25
def issue_h(a, n):
    W = f"s[{SRD_WS}:{SRD_WS+3}]"
    for s0 in range(2):
        ks = 2*n + s0
        a(f"s_add_u32 m0, s{S_BLDS}, {ks*1024}")
        a(f"s_add_u32 s{S_HOFF}, s{S_HB}, {ks*1024}")
        if ks not in (4, 13):
            a(f"buffer_load_dwordx4 v{L_H}, {W}, s{S_HOFF} offen sc1 lds")
        else:
            for q in range(4):
                if q: a("s_add_u32 m0, m0, 128\ns_nop 0")
                a(f"buffer_load_dword v{L_HS}, {W}, s{S_HOFF} offen offset:{128*q} sc1 lds")
def h_count(n): return 5 if n in (2, 6) else 2

def poll_pub(a, tag, vtmp, preloaded=False):
    if preloaded:
        a("s_waitcnt vmcnt(0)")
        a(f"v_cmp_ne_u32 vcc, 1, v{vtmp}")
        a(f"s_cbranch_vccz L_PGX{tag}")
    a(f"s_mov_b32 s{S_T3}, 0")
    a.label(f"L_PG{tag}")
    a(f"s_add_u32 s{S_T3}, s{S_T3}, 1")
    a(f"s_cmp_gt_u32 s{S_T3}, {SPIN}")
    a(f"s_cbranch_scc1 L_PGX{tag}")
    a(f"buffer_load_dword v{vtmp}, off, s[{SRD_DBG}:{SRD_DBG+3}], 0 sc1")
    a("s_waitcnt vmcnt(0)")
    a(f"v_cmp_ne_u32 vcc, 1, v{vtmp}")
    a(f"s_cbranch_vccnz L_PG{tag}")
    a.label(f"L_PGX{tag}")

def loader(a):
    a.label("L_LOADER")
    loader_addr_setup(a)
    a(f"s_lshl_b32 s{S_T0}, s{S_MT}, 2")
    a(f"s_add_u32 s{S_T0}, s{S_T0}, s{S_CW}")
    a(f"s_mul_i32 s{S_XROW}, s{S_T0}, {16*1152}")
    a(f"s_mul_i32 s{S_BLDS}, s{S_CW}, {WST}")
    a(f"s_add_u32 s{S_BLDS}, s{S_BLDS}, {LB}")
    a(f"s_mov_b32 s{S_BDST}, s{S_BLDS}")
    a(f"s_mul_i32 s{S_WCOL}, s{S_XG}, 1152")
    a(f"s_mul_i32 s{S_T0}, s{S_J}, 288")
    a(f"s_add_u32 s{S_WCOL}, s{S_WCOL}, s{S_T0}")
    a(f"s_mul_i32 s{S_WLDS}, s{S_CW}, 4608")
    a(f"s_mov_b32 s{S_DSLOT}, 0")
    if 'norot' in opt: a(f"s_mov_b32 s{S_P}, 0")
    else:
        a(f"s_lshl_b32 s{S_P}, s{S_J}, 1")
        a(f"s_add_u32 s{S_P}, s{S_P}, s{S_MT}")
        a(f"s_sub_u32 s{S_T0}, s{S_P}, 9")
        a(f"s_cmp_ge_u32 s{S_P}, 9")
        a(f"s_cselect_b32 s{S_P}, s{S_T0}, s{S_P}")
    a(f"s_mov_b32 s{S_P2}, 0")
    a("s_waitcnt lgkmcnt(0)")
    srd(a, SRD_X, S_X, X_BYTES)
    srd(a, SRD_W1, S_W1, W_BYTES)
    if 'spf2' in opt:
        a(f"s_getpc_b64 s[{S_K}:{S_K+1}]")
        a(f"s_mul_i32 s{S_T0}, s{S_CW}, 1792")
        a(f"s_add_u32 s{S_K}, s{S_K}, s{S_T0}")
        a(f"s_addc_u32 s{S_K+1}, s{S_K+1}, 0")
        for i in range(14):
            a(f"s_load_dword s95, s[{S_K}:{S_K+1}], {128*i+ (0)}")
    if 'pspin' in opt:
        a("s_memtime s[96:97]\ns_waitcnt lgkmcnt(0)\ns_mov_b32 s95, s96")
        a.label("L_PSPIN")
        a("s_memtime s[96:97]\ns_waitcnt lgkmcnt(0)\ns_sub_u32 s96, s96, s95\ns_cmp_lt_u32 s96, 8000\ns_cbranch_scc1 L_PSPIN")
    if 'prspin' in opt:
        a("s_memrealtime s[96:97]\ns_waitcnt lgkmcnt(0)\ns_mov_b32 s95, s96")
        a.label("L_PSPIN")
        a("s_memrealtime s[96:97]\ns_waitcnt lgkmcnt(0)\ns_sub_u32 s96, s96, s95\ns_cmp_lt_u32 s96, 400\ns_cbranch_scc1 L_PSPIN")
    for nm, sreg, nb in (('pw1', SRD_W1, 16384), ('px', SRD_X, 2048), ('pws', None, 16384), ('pw2', None, 16384)):
        if nm in opt:
            if nm == 'pws': srd(a, SRD_WS, S_WS, WS_BYTES); sreg = SRD_WS
            if nm == 'pw2': srd(a, SRD_W2, S_W2, W_BYTES); sreg = SRD_W2
            a(f"s_cmp_eq_u32 s{S_WV}, 4")
            a("s_cbranch_scc0 L_PLD")
            a(f"s_mul_i32 s95, s2, {nb}")
            if nm == 'pws': a(f"s_add_u32 s95, s95, {64<<20}")
            for i in range(16):
                a(f"buffer_load_dword v30, off, s[{sreg}:{sreg+3}], s95")
                a("s_waitcnt vmcnt(0)")
                a(f"s_add_u32 s95, s95, {nb//16}")
            a.label("L_PLD")
    stamp(a, 1)
    NT_ON[0] = True
    issue_stage1(a)
    if 'ldiag' in opt: stamp(a, 2)
    issue_stage1(a)
    NT_ON[0] = 'nt2' in opt
    if 'ldiag' in opt: stamp(a, 3)
    srd(a, SRD_W2, S_W2, W_BYTES)
    srd(a, SRD_WS, S_WS, WS_BYTES)
    srd(a, SRD_DBG, S_DBG, 256)
    loader_addr_w2(a)
    if 'ldiag' not in opt: stamp(a, 2)
    a("s_waitcnt vmcnt(7)")
    if 'ldiag' in opt: stamp(a, 4)
    a("s_barrier")
    if 'ldiag' not in opt: stamp(a, 3)
    issue_stage1(a, True)
    NT_ON[0] = False
    if 'ldiag' in opt:
        stamp(a, 5)
        a("s_waitcnt vmcnt(7)")
        stamp(a, 6)
        a("s_barrier")
        issue_stage1(a)
        stamp(a, 7)
        a("s_waitcnt vmcnt(7)")
        stamp(a, 8)
        a("s_barrier")
        issue_stage1(a)
        stamp(a, 9)
    a(f"s_mov_b32 s{S_N}, {2 if 'ldiag' in opt else 0}")
    a.label("L_LD1")
    if 'ldiag' in opt: LD_DONE[0] = True
    a("s_waitcnt vmcnt(7)")
    a("s_barrier")
    issue_stage1(a, True)
    a(f"s_add_u32 s{S_N}, s{S_N}, 1")
    a(f"s_cmp_lt_u32 s{S_N}, 6")
    a("s_cbranch_scc1 L_LD1")
    a(f"s_mul_i32 s{S_W2B}, s{S_XG}, {576*1152}")
    a(f"s_mul_i32 s{S_T0}, s{S_J}, 288")
    a(f"s_add_u32 s{S_W2B}, s{S_W2B}, s{S_T0}")
    w2t = 'now2t' not in opt and 'sw2' not in opt
    if w2t:
        a(f"s_lshl_b32 s{S_T0}, s{S_MT}, 2")
        a(f"s_add_u32 s{S_T0}, s{S_T0}, s{S_J}")
        a(f"s_mul_i32 s{S_T0}, s{S_T0}, 162")
        a(f"s_mul_i32 s{S_T1}, s{S_CW}, 41")
        a(f"s_add_u32 s{S_T0}, s{S_T0}, s{S_T1}")
        a(f"s_lshl_b32 s{S_T0}, s{S_T0}, 7")
        a(f"s_mul_i32 s{S_T1}, s{S_XG}, {576*1152}")
        a(f"s_add_u32 s{S_T0}, s{S_T0}, s{S_T1}")
        a(f"v_min_u32 v{L_T}, 40, v0")
        a(f"v_lshlrev_b32 v{L_T}, 7, v{L_T}")
        a(f"buffer_load_dword v{L_T+2}, v{L_T}, s[{SRD_W2}:{SRD_W2+3}], s{S_T0} offen" + ("" if 'nont' in opt else " nt"))
    a("s_waitcnt vmcnt(%d)" % (8 if w2t else 7))
    a("s_barrier")
    nA, nB, nC = 0, 0, 3
    for o in opt:
        if o.startswith('sch'): nA, nB, nC = int(o[3]), int(o[4]), int(o[5])
    assert nA + nB + nC <= 4
    wnext = [9]
    def W_now():
        issue_w2(a); wnext[0] += 1
    for _ in range(nA): W_now()
    a("s_waitcnt vmcnt(%d)" % ((1 if w2t else 0) + 5*nA))
    a("s_barrier")
    a("s_barrier")
    stamp(a, 4)
    for _ in range(nB): W_now()
    poll_pub(a, "L", L_T)
    a(f"s_lshl_b32 s{S_T2}, s{S_GRP}, 5")
    a(f"s_add_u32 s{S_T2}, s{S_T2}, {FLAG_OFF}")
    a(f"v_and_b32 v{L_T+1}, 15, v0")
    a(f"v_lshlrev_b32 v{L_T+1}, 2, v{L_T+1}")
    a("s_barrier")
    stamp(a, 5)
    for _ in range(nC): W_now()
    a(f"s_mov_b32 s{S_T3}, 0")
    a.label("L_PF")
    a(f"s_add_u32 s{S_T3}, s{S_T3}, 1")
    a(f"s_cmp_gt_u32 s{S_T3}, {SPIN}")
    a(f"s_cbranch_scc1 L_PFX")
    a(f"buffer_load_dword v{L_T}, v{L_T+1}, s[{SRD_WS}:{SRD_WS+3}], s{S_T2} offen sc1")
    a("s_waitcnt vmcnt(0)")
    a(f"v_cmp_ne_u32 vcc, 1, v{L_T}")
    a("s_cbranch_vccnz L_PF")
    a.label("L_PFX")
    stamp(a, 6)
    q = []
    def iss(name, cnt, fn):
        fn(); q.append((name, cnt))
    def wait(*names):
        idx = [i for i, (nm, c) in enumerate(q) if nm in names]
        last = max(idx) if idx else -1
        a("s_waitcnt vmcnt(%d)" % sum(c for nm, c in q[last+1:]))
    H = lambda n: iss(f"h{n}", h_count(n), lambda: issue_h(a, n))
    def Wn(n):
        assert wnext[0] == n, (wnext, n)
        iss(f"W{n}", 5, lambda: issue_w2(a)); wnext[0] += 1
    H(0); H(1); H(2)
    wait("h0")
    a("s_barrier")
    stamp(a, 7)
    assert wnext[0] >= 10
    hn = 3
    for s in range(10, 18):
        nw = wnext[0]
        if nw <= 17 and (nw <= 12 or nw <= s + 1):
            Wn(nw)
        if hn <= 8:
            H(hn); hn += 1
        if hn <= 8 and 'h2' in opt:
            H(hn); hn += 1
        wait(f"h{s-9}", f"W{s}")
        have = [nm for nm, c in q]
        assert (f"h{s-9}" in have) and (f"W{s}" in have or s < wnext[0]), (s, have)
        a("s_barrier")
    stamp(a, 8)
    LD_DONE[0] = False
    dump_stamps(a, 1, 10, "LD", 4)
    a("s_endpgm")

C_BF, C_BS = 2, 4
C_A, C_A8, C_AC, C_A8C = 6, 7, 8, 9
C_T = 10
C_BP = 108
A0, B0, A1, B1 = 16, 36, 44, 64
ACC = 72
C_E = 112

def reads_step(Aset, Bset, s0):
    ins = [f"ds_read_b128 v[{Bset}:{Bset+3}], v{C_BF+s0}"]
    def A(t):
        vaddr = C_AC if t < 4 else C_A8C
        off = s0*9216 + (32*t if t < 4 else 0)
        return [f"ds_read_b64_tr_b16 v[{Aset+4*t}:{Aset+4*t+1}], v{vaddr} offset:{off}",
                f"ds_read_b64_tr_b16 v[{Aset+4*t+2}:{Aset+4*t+3}], v{vaddr} offset:{off+4608}"]
    ins += A(0)
    ins.append(f"ds_read_b128 v[{Bset+4}:{Bset+7}], v{C_BS+s0}")
    for t in range(1, 5): ins += A(t)
    return ins

def mfmas(Aset, Bset):
    def m(acc, t, b):
        return f"v_mfma_f32_16x16x32_bf16 v[{ACC+4*acc}:{ACC+4*acc+3}], v[{Aset+4*t}:{Aset+4*t+3}], v[{Bset+4*b}:{Bset+4*b+3}], v[{ACC+4*acc}:{ACC+4*acc+3}]"
    out = []
    for t in range(4):
        out.append(m(t, t, 0)); out.append(m(4+t, t, 1))
    out.append(m(8, 4, 0))
    return out

def block(a, r, m):
    for u in range(9):
        a(m[u])
        if r and u < 6:
            a(r[2*u]); a(r[2*u+1])

def set_stage_addrs(a, first=False):
    a(f"v_add_u32 v{C_AC}, s{S_RSLOT}, v{C_A}")
    a(f"v_add_u32 v{C_A8C}, s{S_RSLOT}, v{C_A8}")
    for i, r in enumerate((C_BF, C_BF+1, C_BS, C_BS+1)):
        if first: a(f"v_mov_b32 v{r}, v{C_BP+i}")
        else:     a(f"v_add_u32 v{r}, 2048, v{r}")

def compute_loop_diag(a, name, k0):
    for n in range(9):
        a("s_waitcnt lgkmcnt(0)")
        if n: a(f"s_mov_b32 s{S_TS+k0+n-1}, s96")
        block(a, reads_step(A1, B1, 1), mfmas(A0, B0))
        slot_advance(a, S_RSLOT)
        set_stage_addrs(a)
        if n == 8: break
        a("s_barrier")
        a("s_memtime s[96:97]")
        a("s_waitcnt lgkmcnt(0)")
        block(a, reads_step(A0, B0, 0), mfmas(A1, B1))
    a("s_waitcnt lgkmcnt(0)")
    block(a, None, mfmas(A1, B1))
    a("s_memtime s[96:97]")
    a("s_waitcnt lgkmcnt(0)")
    a(f"s_mov_b32 s{S_TS+k0+8}, s96")

def compute_loop(a, name):
    if 'diag' in opt:
        return compute_loop_diag(a, name, 0 if name == "C1" else 10)
    a(f"s_mov_b32 s{S_N}, 0")
    a.label(f"L_{name}")
    a("s_waitcnt lgkmcnt(0)")
    block(a, reads_step(A1, B1, 1), mfmas(A0, B0))
    slot_advance(a, S_RSLOT)
    set_stage_addrs(a)
    a(f"s_cmp_eq_u32 s{S_N}, 8")
    a(f"s_cbranch_scc1 L_{name}_LAST")
    a("s_barrier")
    a("s_waitcnt lgkmcnt(0)")
    block(a, reads_step(A0, B0, 0), mfmas(A1, B1))
    a(f"s_add_u32 s{S_N}, s{S_N}, 1")
    a(f"s_branch L_{name}")
    a.label(f"L_{name}_LAST")
    a("s_waitcnt lgkmcnt(0)")
    block(a, None, mfmas(A1, B1))

def zero_acc(a):
    for i in range(0, 36, 2): a(f"v_pk_mov_b32 v[{ACC+i}:{ACC+i+1}], 0, 0")

def touches(a):
    t0, t1, t2 = C_T, C_T+1, C_T+2
    if 'nocode' not in opt:
        a(f"s_getpc_b64 s[{S_K}:{S_K+1}]")
        a.label("L_PC")
        a(f"s_sub_u32 s{S_K}, s{S_K}, (L_PC - mlp_kernel)")
        a(f"s_subb_u32 s{S_K+1}, s{S_K+1}, 0")
        a(f"v_lshlrev_b32 v{t0}, 7, v0")
        a(f"s_lshl_b32 s{S_T0}, s{S_CW}, 13")
        a(f"v_add_u32 v{t0}, s{S_T0}, v{t0}")
        a(f"v_cmp_gt_u32 vcc, (L_CODE_END - mlp_kernel), v{t0}")
        a(f"s_and_saveexec_b64 s[{S_T0}:{S_T0+1}], vcc") if False else None
        a(f"v_min_u32 v{t0}, (L_CODE_END - mlp_kernel - 4), v{t0}")
        a(f"global_load_dword v{C_E}, v{t0}, s[{S_K}:{S_K+1}]")

def touches_x(a):
    t0, t1, t2 = C_T, C_T+1, C_T+2
    a(f"s_mul_i32 s{S_T0}, s{S_CW}, 36")
    a(f"v_min_u32 v{t0}, 35, v0")
    a(f"v_add_u32 v{t0}, s{S_T0}, v{t0}")
    a(f"v_lshrrev_b32 v{t1}, 4, v{t0}")
    a(f"v_and_b32 v{t0}, 15, v{t0}")
    a(f"v_mul_u32_u24 v{t0}, 1152, v{t0}")
    a(f"v_lshl_add_u32 v{t0}, v{t1}, 7, v{t0}")
    a(f"s_lshl_b32 s{S_T0}, s{S_MT}, 2")
    a(f"s_add_u32 s{S_T0}, s{S_T0}, s{S_J}")
    a(f"s_mul_i32 s{S_T0}, s{S_T0}, {16*1152}")
    a(f"buffer_load_dword v{C_E+1}, v{t0}, s[{SRD_X}:{SRD_X+3}], s{S_T0} offen")
    if 'half' in opt:
        a(f"buffer_load_dword v{C_E+5}, v{t0}, s[{SRD_X}:{SRD_X+3}], s{S_T0} offen offset:64")

def touches_w2(a):
    t0, t1 = C_T, C_T+1
    a(f"s_lshl_b32 s{S_T0}, s{S_MT}, 2")
    a(f"s_add_u32 s{S_T0}, s{S_T0}, s{S_J}")
    a(f"s_mul_i32 s{S_T0}, s{S_T0}, 162")
    a(f"s_mul_i32 s{S_T1}, s{S_CW}, 41")
    a(f"s_add_u32 s{S_T0}, s{S_T0}, s{S_T1}")
    a(f"s_lshl_b32 s{S_T0}, s{S_T0}, 7")
    a(f"s_mul_i32 s{S_T1}, s{S_XG}, {576*1152}")
    a(f"s_add_u32 s{S_T0}, s{S_T0}, s{S_T1}")
    a(f"v_min_u32 v{t0}, 40, v0")
    a(f"v_lshlrev_b32 v{t0}, 7, v{t0}")
    a(f"buffer_load_dword v{C_E+2}, v{t0}, s[{SRD_W2}:{SRD_W2+3}], s{S_T0} offen")
    if 'half' in opt:
        a(f"buffer_load_dword v{C_E+4}, v{t0}, s[{SRD_W2}:{SRD_W2+3}], s{S_T0} offen offset:64")

def touches_ws(a):
    t0, t1 = C_T, C_T+1
    a(f"v_and_b32 v{t0}, 7, v0")
    a(f"v_lshlrev_b32 v{t0}, 21, v{t0}")
    a(f"buffer_load_dword v{C_E+3}, v{t0}, s[{SRD_WS}:{SRD_WS+3}], 0 offen")

def compute(a):
    DIAG_C[0] = True
    t0, t1, t2 = C_T, C_T+1, C_T+2
    if 'codepf' in opt: touches(a)
    a(f"v_lshrrev_b32 v{t0}, 2, v0")
    a(f"v_mul_u32_u24 v{t0}, 288, v{t0}")
    a(f"v_and_b32 v{t1}, 3, v0")
    a(f"v_lshl_add_u32 v{t0}, v{t1}, 3, v{t0}")
    a(f"v_add_u32 v{C_A8}, 256, v{t0}")
    a(f"s_and_b32 s{S_T0}, s{S_CW}, 1")
    a(f"s_lshl_b32 s{S_T0}, s{S_T0}, 7")
    a(f"v_add_u32 v{C_A}, s{S_T0}, v{t0}")
    a(f"s_mul_i32 s{S_T1}, s{S_CW}, {WST}")
    a(f"s_add_u32 s{S_T1}, s{S_T1}, {LB}")
    a(f"s_xor_b32 s{S_T2}, s{S_CW}, 1")
    a(f"s_mul_i32 s{S_T2}, s{S_T2}, {WST}")
    a(f"s_add_u32 s{S_T2}, s{S_T2}, {LB}")
    a(f"v_and_b32 v{t0}, 15, v0")
    a(f"v_lshrrev_b32 v{t1}, 1, v{t0}")
    a(f"v_lshrrev_b32 v{t2}, 4, v0")
    a(f"v_xor_b32 v{t1}, v{t1}, v{t2}")
    a(f"v_lshlrev_b32 v{t1}, 4, v{t1}")
    a(f"v_lshl_add_u32 v{t2}, v{t0}, 7, v{t1}")
    a(f"v_xor_b32 v{t1}, 64, v{t1}")
    a(f"v_lshl_add_u32 v{t1}, v{t0}, 7, v{t1}")
    a(f"v_add_u32 v{C_BP}, s{S_T1}, v{t2}")
    a(f"v_add_u32 v{C_BP+1}, s{S_T1}, v{t1}")
    a(f"v_add_u32 v{C_BP+2}, s{S_T2}, v{t2}")
    a(f"v_add_u32 v{C_BP+3}, s{S_T2}, v{t1}")
    a(f"s_mov_b32 s{S_RSLOT}, 0")
    set_stage_addrs(a, True)
    zero_acc(a)
    a("s_waitcnt lgkmcnt(0)")
    srd(a, SRD_X, S_X, X_BYTES)
    srd(a, SRD_W2, S_W2, W_BYTES)
    srd(a, SRD_WS, S_WS, WS_BYTES)
    srd(a, SRD_DBG, S_DBG, 256)
    if 'xpf' in opt: touches_x(a)
    if 'wspf' in opt: touches_ws(a)
    if 'w2early' in opt: touches_w2(a)
    a(f"s_cmp_eq_u32 s2, 0")
    a("s_cbranch_scc0 L_NOCLR")
    a(f"s_lshl_b32 s{S_T0}, s{S_CW}, 11")
    a(f"s_add_u32 s{S_T0}, s{S_T0}, {FLAG_OFF}")
    a(f"v_pk_mov_b32 v[{A1}:{A1+1}], 0, 0\nv_pk_mov_b32 v[{A1+2}:{A1+3}], 0, 0")
    a(f"v_lshlrev_b32 v{t1}, 4, v0")
    a(f"buffer_store_dwordx4 v[{A1}:{A1+3}], v{t1}, s[{SRD_WS}:{SRD_WS+3}], s{S_T0} offen sc1")
    a(f"buffer_store_dwordx4 v[{A1}:{A1+3}], v{t1}, s[{SRD_WS}:{SRD_WS+3}], s{S_T0} offen offset:1024 sc1")
    a("s_waitcnt vmcnt(0)")
    a.label("L_NOCLR")
    a("s_barrier")
    stamp(a, 1)
    for ins in reads_step(A0, B0, 0): a(ins)
    a(f"s_lshl_b32 s{S_T1}, s2, 2")
    a(f"s_or_b32 s{S_T1}, s{S_T1}, s{S_CW}")
    a(f"s_cmp_eq_u32 s{S_T1}, 0")
    a("s_cbranch_scc0 L_NOPUB")
    a(f"v_mov_b32 v{t0}, 1")
    a("s_mov_b64 exec, 1")
    a(f"buffer_store_dword v{t0}, off, s[{SRD_DBG}:{SRD_DBG+3}], 0 sc1")
    a("s_mov_b64 exec, -1")
    a.label("L_NOPUB")
    compute_loop(a, "C1")
    a("s_barrier")
    stamp(a, 2)
    a("s_waitcnt vmcnt(0)")
    a(f"buffer_load_dword v{t0}, off, s[{SRD_DBG}:{SRD_DBG+3}], 0 sc1")
    a(f"s_mov_b32 s{S_K}, 0xbfb8aa3b")
    a(f"s_mov_b32 s{S_K+1}, 0xbfb8aa3b")
    a(f"s_xor_b32 s{S_T2}, s{S_CW}, 1")
    a(f"s_sub_i32 s{S_T2}, s{S_T2}, s{S_CW}")
    a(f"s_mul_i32 s{S_T2}, s{S_T2}, {WST}")
    a(f"s_lshr_b32 s{S_T3}, s{S_J}, 1")
    a(f"s_mul_i32 s{S_T3}, s{S_T3}, {9*1024}")
    a(f"s_add_u32 s{S_T3}, s{S_T3}, {4*1024}")
    a(f"s_add_u32 s{S_T3}, s{S_T3}, s{S_HB}")
    a(f"s_and_b32 s{S_P}, s{S_J}, 1")
    a(f"s_lshl_b32 s{S_P}, s{S_P}, 9")
    a(f"s_add_u32 s{S_XROW}, s{S_T3}, s{S_P}")
    a(f"s_mul_i32 s{S_T3}, s{S_J}, 9")
    a(f"s_add_u32 s{S_T3}, s{S_T3}, 1")
    a(f"s_lshr_b32 s{S_T3}, s{S_T3}, 1")
    a(f"s_and_b32 s{S_P}, s{S_CW}, 1")
    a(f"s_lshl_b32 s{S_P}, s{S_P}, 1")
    a(f"s_add_u32 s{S_T3}, s{S_T3}, s{S_P}")
    a(f"s_lshl_b32 s{S_T3}, s{S_T3}, 10")
    a(f"s_add_u32 s{S_WCOL}, s{S_T3}, s{S_HB}")
    a(f"s_add_u32 s{S_WLDS}, s{S_WCOL}, s{S_T2}")
    a(f"s_lshl_b32 s{S_BLDS}, s{S_GRP}, 5")
    a(f"s_add_u32 s{S_BLDS}, s{S_BLDS}, {FLAG_OFF}")
    a(f"s_lshl_b32 s{S_P}, s{S_J}, 2")
    a(f"s_add_u32 s{S_P}, s{S_P}, s{S_CW}")
    a(f"s_lshl_b32 s{S_P}, s{S_P}, 2")
    a(f"s_add_u32 s{S_BLDS}, s{S_BLDS}, s{S_P}")
    a(f"v_lshlrev_b32 v{t1}, 4, v0")
    a(f"v_mov_b32 v{t2}, 1")
    W = f"s[{SRD_WS}:{SRD_WS+3}]"
    hsc = "" if 'hplain' in opt else " sc1"
    for u in range(9):
        x = ACC + 4*u
        e = C_E + 4*(u & 1)
        for r in (0, 2): a(f"v_pk_mul_f32 v[{e+r}:{e+r+1}], v[{x+r}:{x+r+1}], s[{S_K}:{S_K+1}]")
        for r in range(4): a(f"v_exp_f32 v{e+r}, v{e+r}")
        for r in (0, 2): a(f"v_pk_add_f32 v[{e+r}:{e+r+1}], v[{e+r}:{e+r+1}], 1.0 op_sel_hi:[1,0]")
        for r in range(4): a(f"v_rcp_f32 v{e+r}, v{e+r}")
        for r in (0, 2): a(f"v_pk_mul_f32 v[{x+r}:{x+r+1}], v[{x+r}:{x+r+1}], v[{e+r}:{e+r+1}]")
        a(f"v_cvt_pk_bf16_f32 v{A0+2*u}, v{x}, v{x+1}")
        a(f"v_cvt_pk_bf16_f32 v{A0+2*u+1}, v{x+2}, v{x+3}")
        if u in (1, 3, 5, 7):
            q = u >> 1
            sreg = S_WCOL if q < 2 else S_WLDS
            a(f"buffer_store_dwordx4 v[{A0+4*q}:{A0+4*q+3}], v{t1}, {W}, s{sreg} offen offset:{1024*(q&1)}{hsc}")
    if 'nosingle' not in opt:
        a(f"v_lshlrev_b32 v{C_T+3}, 3, v0")
        a(f"buffer_store_dwordx2 v[{A0+16}:{A0+17}], v{C_T+3}, {W}, s{S_XROW} offen{hsc}")
    stamp(a, 8)
    poll_pub(a, "C", t0, preloaded=True)
    a("s_mov_b64 exec, 1")
    a(f"buffer_store_dword v{t2}, off, {W}, s{S_BLDS}{hsc}")
    a("s_mov_b64 exec, -1")
    a("s_barrier")
    stamp(a, 3)
    a(f"s_mul_i32 s{S_T1}, s{S_CW}, {WST}")
    a(f"s_add_u32 s{S_T1}, s{S_T1}, {LB}")
    a(f"s_xor_b32 s{S_T2}, s{S_CW}, 1")
    a(f"s_mul_i32 s{S_T2}, s{S_T2}, {WST}")
    a(f"s_add_u32 s{S_T2}, s{S_T2}, {LB}")
    a(f"v_add_u32 v{C_BP}, s{S_T1}, v{t1}")
    a(f"v_add_u32 v{C_BP+1}, 1024, v{C_BP}")
    a(f"v_add_u32 v{C_BP+2}, s{S_T2}, v{t1}")
    a(f"v_add_u32 v{C_BP+3}, 1024, v{C_BP+2}")
    set_stage_addrs(a, True)
    zero_acc(a)
    a("s_barrier")
    stamp(a, 4)
    for ins in reads_step(A0, B0, 0): a(ins)
    compute_loop(a, "C2")
    stamp(a, 5)
    a(f"s_lshl_b32 s{S_T0}, s{S_MT}, 2")
    a(f"s_add_u32 s{S_T0}, s{S_T0}, s{S_J}")
    a(f"s_lshl_b32 s{S_T0}, s{S_T0}, 2")
    a(f"s_add_u32 s{S_T0}, s{S_T0}, s{S_CW}")
    a(f"s_mul_i32 s{S_T0}, s{S_T0}, 4608")
    a(f"s_mul_i32 s{S_T1}, s{S_XG}, {PART_XG}")
    a(f"s_add_u32 s{S_T0}, s{S_T0}, s{S_T1}")
    a(f"s_add_u32 s{S_T0}, s{S_T0}, {PART_OFF}")
    a(f"v_lshlrev_b32 v{t2}, 3, v0")
    psc = "" if 'pplain' in opt else " sc1"
    W = f"s[{SRD_WS}:{SRD_WS+3}]"
    for q in range(4):
        for u in (2*q, 2*q+1):
            x = ACC + 4*u
            a(f"v_cvt_pk_bf16_f32 v{A0+2*u}, v{x}, v{x+1}")
            a(f"v_cvt_pk_bf16_f32 v{A0+2*u+1}, v{x+2}, v{x+3}")
        a(f"buffer_store_dwordx4 v[{A0+4*q}:{A0+4*q+3}], v{t1}, {W}, s{S_T0} offen offset:{1024*q}{psc}")
    x = ACC + 32
    a("s_nop 1")
    a(f"v_cvt_pk_bf16_f32 v{A0+16}, v{x}, v{x+1}")
    a(f"v_cvt_pk_bf16_f32 v{A0+17}, v{x+2}, v{x+3}")
    a(f"s_add_u32 s{S_T0}, s{S_T0}, 4096")
    a(f"buffer_store_dwordx2 v[{A0+16}:{A0+17}], v{t2}, {W}, s{S_T0} offen{psc}")
    stamp(a, 6)
    if 'ts' in opt or amp_on():
        a("s_waitcnt vmcnt(0)")
    stamp(a, 7)
    amp_spin(a, 'C', 7)
    if 'clk' in opt:
        a("s_memtime s[96:97]")
        a("s_waitcnt lgkmcnt(0)")
        a("s_sub_u32 s78, s96, s98")
        a("s_mov_b32 s79, 0")
    dump_stamps(a, 0, 10 if ('diag' in opt or 'clk' in opt) else 9, "C", 0)
    DIAG_C[0] = False

def kernel_main(a):
    name = "mlp_kernel"
    a(f".globl {name}\n.p2align 8\n.type {name},@function\n{name}:")
    a(f"s_cmp_ge_u32 s2, 256")
    a(f"s_cbranch_scc1 L_END")
    stamp(a, 0)
    if 'clk' in opt: a("s_memtime s[98:99]")
    a("s_load_dwordx8 s[4:11], s[0:1], 0")
    a("s_load_dwordx4 s[12:15], s[0:1], 32")
    a("v_lshrrev_b32 v1, 6, v0")
    a("v_and_b32 v0, 63, v0")
    a(f"v_readfirstlane_b32 s{S_WV}, v1")
    if 'spf' in opt:
        a(f"s_getpc_b64 s[{S_K}:{S_K+1}]")
        a.label("L_PC0")
        a(f"s_lshl_b32 s{S_T0}, s{S_WV}, 10")
        a(f"s_add_u32 s{S_T0}, s{S_T0}, 256")
        a(f"s_add_u32 s{S_K}, s{S_K}, s{S_T0}")
        a(f"s_addc_u32 s{S_K+1}, s{S_K+1}, 0")
        for i in range(8):
            a(f"s_load_dword s{S_T3}, s[{S_K}:{S_K+1}], {128*i}")
    if 'xmap' in opt:
        a(f"s_and_b32 s{S_J}, s2, 3")
        a(f"s_lshr_b32 s{S_XG}, s2, 2")
        a(f"s_and_b32 s{S_XG}, s{S_XG}, 7")
    else:
        a(f"s_and_b32 s{S_XG}, s2, 7")
        a(f"s_lshr_b32 s{S_J}, s2, 3")
        a(f"s_and_b32 s{S_J}, s{S_J}, 3")
    a(f"s_lshr_b32 s{S_MT}, s2, 5")
    a(f"s_lshl_b32 s{S_GRP}, s{S_XG}, 3")
    a(f"s_add_u32 s{S_GRP}, s{S_GRP}, s{S_MT}")
    a(f"s_lshr_b32 s{S_HB}, s{S_GRP}, 4")
    a(f"s_lshl_b32 s{S_HB}, s{S_HB}, 21")
    a(f"s_and_b32 s{S_T0}, s{S_GRP}, 15")
    a(f"s_mul_i32 s{S_T0}, s{S_T0}, {GRP_BYTES}")
    a(f"s_add_u32 s{S_HB}, s{S_HB}, s{S_T0}")
    a(f"s_lshl_b32 s{S_GRP}, s{S_GRP}, 2")
    a(f"s_and_b32 s{S_CW}, s{S_WV}, 3")
    a(f"s_mul_i32 s{S_T0}, s{S_CW}, {WST}")
    a(f"s_add_u32 s{S_HB}, s{S_HB}, s{S_T0}")
    a(f"s_add_u32 s{S_HB}, s{S_HB}, {H_OFF}")
    a(f"s_cmp_lt_u32 s{S_WV}, 4")
    a("s_cbranch_scc1 L_COMPUTE")
    loader(a)
    a.label("L_COMPUTE")
    compute(a)
    a.label("L_END")
    a("s_endpgm")
    a.label("L_CODE_END")
    if 'spf' in opt or 'spf2' in opt: a(".fill 512, 4, 0xbf800000")
    a(kd(name, vgpr=120, sgpr=102))

def kernel3(a):
    name = "red_kernel"
    a(f".globl {name}\n.p2align 8\n.type {name},@function\n{name}:")
    a(f"s_cmp_ge_u32 s2, 160")
    a(f"s_cbranch_scc1 L_END_K3")
    stamp(a, 0)
    a("s_load_dwordx2 s[10:11], s[0:1], 24")
    a("s_load_dwordx2 s[14:15], s[0:1], 40")
    a("v_lshrrev_b32 v1, 6, v0")
    a("v_and_b32 v0, 63, v0")
    a(f"v_readfirstlane_b32 s{S_WV}, v1")
    a("s_nop 3")
    a(f"s_lshl_b32 s3, s2, 2")
    a(f"s_add_u32 s3, s3, s{S_WV}")
    a(f"s_mul_i32 s{S_T1}, s3, 13108")
    a(f"s_lshr_b32 s{S_T1}, s{S_T1}, 16")
    a(f"s_mul_i32 s{S_T2}, s{S_T1}, 5")
    a(f"s_sub_u32 s{S_T2}, s3, s{S_T2}")
    a(f"s_mul_i32 s{S_T0}, s{S_T1}, 4608")
    a(f"s_lshl_b32 s{S_T3}, s{S_T2}, 10")
    a(f"s_add_u32 s{S_T0}, s{S_T0}, s{S_T3}")
    a(f"s_add_u32 s{S_T0}, s{S_T0}, {PART_OFF}")
    a(f"s_and_b32 s{S_CW}, s{S_T1}, 3")
    a(f"s_lshr_b32 s{S_J}, s{S_T1}, 2")
    a(f"s_and_b32 s{S_J}, s{S_J}, 3")
    a(f"s_lshr_b32 s{S_MT}, s{S_T1}, 4")
    a(f"s_lshr_b32 s{S_P}, s{S_T2}, 1")
    a(f"s_and_b32 s{S_P}, s{S_P}, 1")
    a(f"s_xor_b32 s{S_P}, s{S_P}, s{S_CW}")
    a(f"s_lshl_b32 s{S_MT}, s{S_MT}, 2")
    a(f"s_add_u32 s{S_MT}, s{S_MT}, s{S_P}")
    a(f"s_mul_i32 s{S_MT}, s{S_MT}, {16*1152}")
    a(f"s_mul_i32 s{S_J}, s{S_J}, 288")
    a(f"s_add_u32 s{S_MT}, s{S_MT}, s{S_J}")
    a(f"v_and_b32 v2, 15, v0")
    a(f"v_mul_u32_u24 v2, 1152, v2")
    a(f"v_lshrrev_b32 v3, 4, v0")
    a(f"v_lshl_add_u32 v2, v3, 3, v2")
    a("s_waitcnt lgkmcnt(0)")
    srd(a, SRD_WS, S_WS, WS_BYTES)
    srd(a, SRD_X, S_OUT, OUT_BYTES)
    a(f"s_cmp_eq_u32 s{S_T2}, 4")
    a("s_cbranch_scc1 L_K3_SINGLE")
    a(f"v_lshlrev_b32 v1, 4, v0")
    for xg in range(8):
        a(f"buffer_load_dwordx4 v[{4+4*xg}:{7+4*xg}], v1, s[{SRD_WS}:{SRD_WS+3}], s{S_T0} offen")
        if xg < 7: a(f"s_add_u32 s{S_T0}, s{S_T0}, {PART_XG}")
    a(f"s_and_b32 s{S_CW}, s{S_CW}, 1")
    a(f"s_lshl_b32 s{S_CW}, s{S_CW}, 7")
    a(f"s_and_b32 s{S_T2}, s{S_T2}, 1")
    a(f"s_lshl_b32 s{S_T2}, s{S_T2}, 6")
    a(f"s_add_u32 s{S_MT}, s{S_MT}, s{S_CW}")
    a(f"s_add_u32 s{S_MT}, s{S_MT}, s{S_T2}")
    def reduce(n):
        for xg in range(8):
            a(f"s_waitcnt vmcnt({7-xg})")
            for d in range(n):
                src = 4 + 4*xg + d
                if xg == 0:
                    a(f"v_lshlrev_b32 v{40+2*d}, 16, v{src}")
                    a(f"v_and_b32 v{41+2*d}, 0xffff0000, v{src}")
                else:
                    a(f"v_lshlrev_b32 v{50+2*d}, 16, v{src}")
                    a(f"v_and_b32 v{51+2*d}, 0xffff0000, v{src}")
            if xg:
                for d in range(2*n):
                    a(f"v_add_f32 v{40+d}, v{40+d}, v{50+d}")
        for d in range(n):
            a(f"v_cvt_pk_bf16_f32 v{4+d}, v{40+2*d}, v{41+2*d}")
    reduce(4)
    a(f"buffer_store_dwordx2 v[4:5], v2, s[{SRD_X}:{SRD_X+3}], s{S_MT} offen")
    a(f"buffer_store_dwordx2 v[6:7], v2, s[{SRD_X}:{SRD_X+3}], s{S_MT} offen offset:32")
    a("s_branch L_K3_FIN")
    a.label("L_K3_SINGLE")
    a(f"v_lshlrev_b32 v1, 3, v0")
    for xg in range(8):
        a(f"buffer_load_dwordx2 v[{4+4*xg}:{5+4*xg}], v1, s[{SRD_WS}:{SRD_WS+3}], s{S_T0} offen")
        if xg < 7: a(f"s_add_u32 s{S_T0}, s{S_T0}, {PART_XG}")
    a(f"s_add_u32 s{S_MT}, s{S_MT}, 256")
    reduce(2)
    a(f"buffer_store_dwordx2 v[4:5], v2, s[{SRD_X}:{SRD_X+3}], s{S_MT} offen")
    a.label("L_K3_FIN")
    stamp(a, 1)
    if 'ts' in opt or amp_on():
        a("s_waitcnt vmcnt(0)")
    stamp(a, 2)
    amp_spin(a, 'K', 2)
    dump_stamps(a, 2, 3, "K3", 0)
    a.label("L_END_K3")
    a("s_endpgm")
    a(kd(name, vgpr=64, sgpr=102))

def main():
    for o in sys.argv[2:]: opt.add(o)
    a = Asm()
    a(HEADER.rstrip())
    def empty(kind):
        if kind == 's': a("; @launch kernel=nop_kernel grid=(256,1,1) block=(256,1,1) lds=0")
        if kind == 'b': a(f"; @launch kernel=nop_kernel grid=(256,1,1) block=(512,1,1) lds={LDS_BYTES}")
        if kind == 'v': a(f"; @launch kernel=nopv_kernel grid=(256,1,1) block=(512,1,1) lds={LDS_BYTES}")
        if kind == '1': a(f"; @launch kernel=nop_kernel grid=(1,1,1) block=(64,1,1) lds=0")
    for o in opt:
        if o.startswith('pre'): empty(o[3])
    a(f"; @launch kernel=mlp_kernel grid=(256,1,1) block=(512,1,1) lds={LDS_BYTES}")
    for o in opt:
        if o.startswith('mid'): empty(o[3])
    a(f"; @launch kernel=red_kernel grid=(160,1,1) block=(256,1,1) lds=0")
    for o in opt:
        if o.startswith('post'): empty(o[4])
    a('.amdgcn_target "amdgcn-amd-amdhsa--gfx950"')
    a(".text")
    kernel_main(a); kernel3(a)
    if any(o.startswith(('pre', 'mid', 'post')) for o in opt):
        for nm, vg in (("nop_kernel", 8), ("nopv_kernel", 120)):
            a(f".globl {nm}\n.p2align 8\n.type {nm},@function\n{nm}:\ns_endpgm")
            a(kd(nm, vgpr=vg, sgpr=16))
    open(sys.argv[1], "w").write(a.text())

main()
```

```python
import sys
from common import *

X_BYTES = 512*576*2
W_BYTES = 576*4608*2
OUT_BYTES = 512*576*2
WS_BYTES = 268435456
PAGE = 2*1024*1024
H_OFF = 4096
GRP_BYTES = 4*18432
FLAG_OFF = 4*PAGE + 4096
INBOX_OFF = 5*PAGE + 4096
INBOX_B = 8*8*2304
KNAME = "standalone__dense_activation_silu__sampling_kernel"
WST = 18432
SLOT = WST
NSLOT = 4
LB = NSLOT*SLOT
LDS_BYTES = LB + 4*WST + 2048
TS_OFF = 128 << 20
SPIN = 1 << 17

opt = set()
NT_ON = [False]
def NT(): return " nt" if (NT_ON[0] and 'nont' not in opt) or 'allnt' in opt else ""

S_X, S_W1, S_W2, S_OUT, S_DBG, S_WS = 4, 6, 8, 10, 12, 14
SRD_X, SRD_W1, SRD_WS, SRD_W2, SRD_DBG = 16, 20, 24, 40, 44
S_WV, S_XG, S_J, S_MT, S_CW = 28, 29, 30, 31, 32
S_N, S_WOFF, S_DSLOT, S_RSLOT = 33, 34, 35, 36
S_T0, S_T1, S_T2, S_T3 = 37, 38, 39, 48
S_WLDS, S_P, S_XROW, S_BLDS, S_HB, S_GRP, S_FAST, S_HSLOT = 49, 50, 51, 52, 53, 54, 55, 56
S_WCOL, S_HOFF = 57, 58
S_P2, S_PH, S_W2B = 92, 93, 94
S_INB = 59
S_BDST = 56
S_TS = 60
S_K = 84

LD_DONE = [False]
def amp_on(): return any(o.startswith('amp') for o in opt)
def amp_spin(a, tag, final_idx):
    for o in opt:
        if o.startswith('amp') and o[3] == tag:
            ia, ib = int(o[4]), int(o[5])
            a("s_waitcnt lgkmcnt(0)")
            a(f"s_sub_u32 s95, s{S_TS+2*ib}, s{S_TS+2*ia}")
            a("s_mul_i32 s95, s95, 3")
            a("s_memrealtime s[96:97]\ns_waitcnt lgkmcnt(0)\ns_mov_b32 s94, s96")
            a.label(f"L_AMP{tag}")
            a(f"s_memrealtime s[96:97]\ns_waitcnt lgkmcnt(0)\ns_sub_u32 s96, s96, s94\ns_cmp_lt_u32 s96, s95\ns_cbranch_scc1 L_AMP{tag}")
def stamp(a, i):
    if amp_on():
        a(f"s_memrealtime s[{S_TS+2*i}:{S_TS+2*i+1}]"); return
    if 'ldiag' in opt and LD_DONE[0]: return
    if 'ts' in opt and not ('diag' in opt and DIAG_C[0]): a(f"s_memrealtime s[{S_TS+2*i}:{S_TS+2*i+1}]")
DIAG_C = [False]

def dump_stamps(a, kidx, n, tag, wave):
    if 'ts' not in opt: return
    a("s_waitcnt lgkmcnt(0) vmcnt(0)")
    a(f"s_cmp_eq_u32 s{S_WV}, {wave}")
    a(f"s_cbranch_scc0 L_NOTS{tag}")
    a(f"s_lshl_b32 s80, s2, 7")
    a(f"s_add_u32 s80, s80, {TS_OFF + kidx*512*128}")
    a(f"s_mov_b32 s88, s14\ns_mov_b32 s89, s15\ns_mov_b32 s90, {WS_BYTES}\ns_mov_b32 s91, 0x20000")
    a("v_mov_b32 v2, 0")
    for i in range(n):
        a(f"v_mov_b32 v4, s{S_TS+2*i}\nv_mov_b32 v5, s{S_TS+2*i+1}")
        a(f"buffer_store_dwordx2 v[4:5], v2, s[88:91], s80 offen offset:{8*i}")
        a("s_nop 1")
    a.label(f"L_NOTS{tag}")

def srd(a, base, ptr, nbytes):
    a(f"s_mov_b32 s{base}, s{ptr}")
    a(f"s_mov_b32 s{base+1}, s{ptr+1}")
    a(f"s_mov_b32 s{base+2}, {nbytes}")
    a(f"s_mov_b32 s{base+3}, 0x20000")

def slot_advance(a, reg):
    a(f"s_add_u32 s{reg}, s{reg}, {SLOT}")
    a(f"s_cmp_eq_u32 s{reg}, {NSLOT*SLOT}")
    a(f"s_cselect_b32 s{reg}, 0, s{reg}")

L_W1, L_W2, L_X, L_H, L_T = 1, 6, 11, 13, 14

def loader_addr_setup(a):
    t0, t1, t2, t3 = L_T, L_T+1, L_T+2, L_T+3
    a(f"v_lshrrev_b32 v{t0}, 3, v0")
    a(f"v_lshrrev_b32 v{t1}, 4, v0")
    a(f"v_and_b32 v{t2}, 7, v0")
    a(f"v_xor_b32 v{t1}, v{t1}, v{t2}")
    a(f"v_lshlrev_b32 v{t1}, 4, v{t1}")
    a(f"v_mul_u32_u24 v{t0}, 1152, v{t0}")
    a(f"v_add_u32 v{L_X}, v{t0}, v{t1}")
    a(f"v_xor_b32 v{t1}, 64, v{t1}")
    a(f"v_add_u32 v{t0}, {8*1152}, v{t0}")
    a(f"v_add_u32 v{L_X+1}, v{t0}, v{t1}")
    a(f"v_lshlrev_b32 v{L_H}, 4, v0")
    a(f"v_lshrrev_b32 v{t0}, 1, v0")
    a(f"v_and_b32 v{t0}, 1, v{t0}")
    a(f"v_lshlrev_b32 v{t0}, 9, v{t0}")
    a(f"v_lshrrev_b32 v{t1}, 2, v0")
    a(f"v_lshl_add_u32 v{t0}, v{t1}, 3, v{t0}")
    a(f"v_and_b32 v{t1}, 1, v0")
    a(f"v_lshl_add_u32 v{L_HS}, v{t1}, 2, v{t0}")
    a(f"s_lshr_b32 s{S_T0}, s{S_CW}, 1")
    a(f"s_lshl_b32 s{S_T0}, s{S_T0}, 5")
    a(f"s_and_b32 s{S_T1}, s{S_CW}, 1")
    a(f"s_lshl_b32 s{S_T1}, s{S_T1}, 2")
    a(f"s_add_u32 s{S_T0}, s{S_T0}, s{S_T1}")
    a(f"s_and_b32 s{S_T1}, s{S_J}, 1")
    a(f"s_lshl_b32 s{S_T1}, s{S_T1}, 1")
    a(f"s_movk_i32 s{S_T2}, 9216")
    for i in range(5):
        a(f"v_add_u32 v{t0}, {64*i}, v0")
        a(f"v_mul_u32_u24 v{t1}, 3641, v{t0}")
        a(f"v_lshrrev_b32 v{L_W2+i}, 16, v{t1}")
        a(f"v_mul_u32_u24 v{t2}, 18, v{L_W2+i}")
        a(f"v_sub_u32 v{20+i}, v{t0}, v{t2}")
        a(f"v_add_u32 v{t0}, s{S_T1}, v{20+i}")
        a(f"v_subrev_u32 v{t2}, 18, v{t0}")
        a(f"v_min_u32 v{t0}, v{t0}, v{t2}")
        a(f"v_lshrrev_b32 v{t2}, 2, v{L_W2+i}")
        a(f"v_and_b32 v{t1}, 3, v{L_W2+i}")
        a(f"v_lshl_add_u32 v{t1}, v{t2}, 3, v{t1}")
        a(f"v_add_u32 v{t1}, s{S_T0}, v{t1}")
        a(f"v_lshlrev_b32 v{t0}, 4, v{t0}")
        a(f"v_mad_u32_u24 v{L_W1+i}, v{t1}, s{S_T2}, v{t0}")

def loader_addr_w2(a):
    t0 = L_T
    a(f"s_lshl_b32 s{S_T3}, s{S_CW}, 4")
    a(f"s_movk_i32 s{S_T2}, 1152")
    for i in range(5):
        a(f"v_add_u32 v{t0}, s{S_T3}, v{L_W2+i}")
        a(f"v_lshlrev_b32 v{20+i}, 4, v{20+i}")
        a(f"v_mad_u32_u24 v{L_W2+i}, v{t0}, s{S_T2}, v{20+i}")

def issue_w(a, vbase, srdreg):
    for i in range(5):
        if i == 0: a(f"s_add_u32 m0, s{S_DSLOT}, s{S_WLDS}")
        else:      a(f"s_add_u32 m0, m0, 1024")
        a("s_mov_b32 exec_hi, 0" if i == 4 else "s_nop 0")
        a(f"buffer_load_dwordx4 v{vbase+i}, s[{srdreg}:{srdreg+3}], s{S_WOFF} offen{NT()} lds")
    a("s_mov_b32 exec_hi, -1")
    slot_advance(a, S_DSLOT)

S_PF = 96
def spf_w2_setup(a):
    a(f"s_lshl_b32 s{S_T0}, s{S_MT}, 2")
    a(f"s_add_u32 s{S_T0}, s{S_T0}, s{S_J}")
    a(f"s_mul_i32 s{S_T0}, s{S_T0}, 162")
    a(f"s_mul_i32 s{S_T1}, s{S_CW}, 40")
    a(f"s_add_u32 s{S_T0}, s{S_T0}, s{S_T1}")
    a(f"s_lshl_b32 s{S_T0}, s{S_T0}, 7")
    a(f"s_mul_i32 s{S_T1}, s{S_XG}, {576*1152}")
    a(f"s_add_u32 s{S_T0}, s{S_T0}, s{S_T1}")
    a(f"s_add_u32 s{S_PF}, s{S_W2}, s{S_T0}")
    a(f"s_addc_u32 s{S_PF+1}, s{S_W2+1}, 0")
def spf_w2(a):
    for i in range(6):
        a(f"s_load_dword s95, s[{S_PF}:{S_PF+1}], {128*i}")
    a(f"s_add_u32 s{S_PF}, s{S_PF}, 768")
    a(f"s_addc_u32 s{S_PF+1}, s{S_PF+1}, 0")

def issue_stage1(a, pf=False):
    if pf and 'sw2' in opt: spf_w2(a)
    a(f"s_lshl_b32 s{S_T0}, s{S_P}, 7")
    a(f"s_add_u32 s{S_T0}, s{S_T0}, s{S_XROW}")
    a(f"s_mov_b32 m0, s{S_BDST}")
    a(f"s_mul_i32 s{S_WOFF}, s{S_P}, {64*9216}")
    a(f"buffer_load_dwordx4 v{L_X}, s[{SRD_X}:{SRD_X+3}], s{S_T0} offen{NT()} lds")
    a(f"s_add_u32 m0, m0, 1024")
    a(f"s_add_u32 s{S_WOFF}, s{S_WOFF}, s{S_WCOL}")
    a(f"buffer_load_dwordx4 v{L_X+1}, s[{SRD_X}:{SRD_X+3}], s{S_T0} offen{NT()} lds")
    a(f"s_add_u32 s{S_BDST}, s{S_BDST}, 2048")
    issue_w(a, L_W1, SRD_W1)
    a(f"s_add_u32 s{S_P}, s{S_P}, 1")
    a(f"s_cmp_eq_u32 s{S_P}, 9")
    a(f"s_cselect_b32 s{S_P}, 0, s{S_P}")

def wrap9(a, reg):
    a(f"s_add_u32 s{reg}, s{reg}, 1")
    a(f"s_cmp_eq_u32 s{reg}, 9")
    a(f"s_cselect_b32 s{reg}, 0, s{reg}")

def issue_w2(a):
    a(f"s_mul_i32 s{S_WOFF}, s{S_P2}, {64*1152}")
    a(f"s_add_u32 s{S_WOFF}, s{S_WOFF}, s{S_W2B}")
    issue_w(a, L_W2, SRD_W2)
    wrap9(a, S_P2)

L_HS = 25
def issue_h(a, n):
    W = f"s[{SRD_WS}:{SRD_WS+3}]"
    for s0 in range(2):
        ks = 2*n + s0
        a(f"s_add_u32 m0, s{S_BLDS}, {ks*1024}")
        a(f"s_add_u32 s{S_HOFF}, s{S_HB}, {ks*1024}")
        if ks not in (4, 13):
            a(f"buffer_load_dwordx4 v{L_H}, {W}, s{S_HOFF} offen sc1 lds")
        else:
            for q in range(4):
                if q: a("s_add_u32 m0, m0, 128\ns_nop 0")
                a(f"buffer_load_dword v{L_HS}, {W}, s{S_HOFF} offen offset:{128*q} sc1 lds")
def h_count(n): return 5 if n in (2, 6) else 2

def poll_pub(a, tag, vtmp, preloaded=False):
    if preloaded:
        a("s_waitcnt vmcnt(0)")
        a(f"v_cmp_ne_u32 vcc, 1, v{vtmp}")
        a(f"s_cbranch_vccz L_PGX{tag}")
    a(f"s_mov_b32 s{S_T3}, 0")
    a.label(f"L_PG{tag}")
    a(f"s_add_u32 s{S_T3}, s{S_T3}, 1")
    a(f"s_cmp_gt_u32 s{S_T3}, {SPIN}")
    a(f"s_cbranch_scc1 L_PGX{tag}")
    a(f"buffer_load_dword v{vtmp}, off, s[{SRD_DBG}:{SRD_DBG+3}], 0 sc1")
    a("s_waitcnt vmcnt(0)")
    a(f"v_cmp_ne_u32 vcc, 1, v{vtmp}")
    a(f"s_cbranch_vccnz L_PG{tag}")
    a.label(f"L_PGX{tag}")

R_D, R_ACC, R_T, R_A = 72, 88, 92, 96
def reducer(a, tag, single):
    W = f"s[{SRD_WS}:{SRD_WS+3}]"
    if single:
        a(f"v_min_u32 v{R_A}, 31, v0")
        a(f"v_mov_b32 v{R_T}, v{R_A}")
        a(f"v_lshlrev_b32 v{R_A}, 3, v{R_A}")
        a(f"s_add_u32 s{S_T0}, s{S_INB}, 2048")
        a(f"s_mov_b32 s{S_T2}, 256")
        a(f"v_mov_b32 v{R_T+1}, 0")
    else:
        a(f"v_lshlrev_b32 v{R_A}, 3, v0")
        a(f"v_lshrrev_b32 v{R_T}, 1, v0")
        a(f"s_lshl_b32 s{S_T0}, s{S_CW}, 9")
        a(f"s_add_u32 s{S_T0}, s{S_T0}, s{S_INB}")
        a(f"s_lshl_b32 s{S_T2}, s{S_CW}, 6")
        a(f"v_and_b32 v{R_T+1}, 1, v0")
    a(f"v_and_b32 v{R_T+2}, 7, v{R_T}")
    a(f"v_mul_u32_u24 v{R_T+2}, 1152, v{R_T+2}")
    a(f"v_lshrrev_b32 v{R_T}, 3, v{R_T}")
    a(f"v_lshl_add_u32 v{R_T+2}, v{R_T}, 3, v{R_T+2}")
    a(f"v_lshl_add_u32 v{R_A+1}, v{R_T+1}, 5, v{R_T+2}")
    a(f"s_lshl_b32 s{S_T1}, s{S_MT}, 3")
    a(f"s_add_u32 s{S_T1}, s{S_T1}, s{S_XG}")
    a(f"s_mul_i32 s{S_T1}, s{S_T1}, {8*1152}")
    a(f"s_add_u32 s{S_T2}, s{S_T2}, s{S_T1}")
    a(f"s_mul_i32 s{S_T1}, s{S_J}, 288")
    a(f"s_add_u32 s{S_T2}, s{S_T2}, s{S_T1}")
    srd(a, SRD_X, S_OUT, OUT_BYTES)
    a(f"s_mov_b32 s{S_T3}, 0")
    a.label(f"L_RP{tag}")
    a(f"s_mov_b32 s{S_T1}, s{S_T0}")
    for xg in range(8):
        a(f"buffer_load_dwordx2 v[{R_D+2*xg}:{R_D+2*xg+1}], v{R_A}, {W}, s{S_T1} offen sc1")
        if xg < 7: a(f"s_add_u32 s{S_T1}, s{S_T1}, 2304")
    a(f"s_add_u32 s{S_T3}, s{S_T3}, 1")
    a(f"s_cmp_gt_u32 s{S_T3}, {SPIN}")
    a(f"s_cbranch_scc1 L_RPX{tag}")
    a("s_waitcnt vmcnt(0)")
    a(f"v_max3_u32 v{R_T}, v{R_D}, v{R_D+1}, v{R_D+2}")
    for i in range(3, 15, 2):
        a(f"v_max3_u32 v{R_T}, v{R_T}, v{R_D+i}, v{R_D+i+1}")
    a(f"v_max_u32 v{R_T}, v{R_T}, v{R_D+15}")
    a(f"v_cmp_eq_u32 vcc, -1, v{R_T}")
    a(f"s_cbranch_vccnz L_RP{tag}")
    a.label(f"L_RPX{tag}")
    a("s_waitcnt vmcnt(0)")
    for xg in range(8):
        for d in range(2):
            src = R_D + 2*xg + d
            if xg == 0:
                a(f"v_lshlrev_b32 v{R_ACC+2*d}, 16, v{src}")
                a(f"v_and_b32 v{R_ACC+2*d+1}, 0xffff0000, v{src}")
            else:
                a(f"v_lshlrev_b32 v{R_T+2*d}, 16, v{src}")
                a(f"v_and_b32 v{R_T+2*d+1}, 0xffff0000, v{src}")
        if xg:
            for d in range(4): a(f"v_add_f32 v{R_ACC+d}, v{R_ACC+d}, v{R_T+d}")
    a(f"v_cvt_pk_bf16_f32 v{R_D}, v{R_ACC}, v{R_ACC+1}")
    a(f"v_cvt_pk_bf16_f32 v{R_D+1}, v{R_ACC+2}, v{R_ACC+3}")
    if single: a("s_mov_b32 exec_hi, 0")
    a(f"buffer_store_dwordx2 v[{R_D}:{R_D+1}], v{R_A+1}, s[{SRD_X}:{SRD_X+3}], s{S_T2} offen")
    if single: a("s_mov_b32 exec_hi, -1")

def loader(a):
    a.label("L_LOADER")
    loader_addr_setup(a)
    a(f"s_lshl_b32 s{S_T0}, s{S_MT}, 2")
    a(f"s_add_u32 s{S_T0}, s{S_T0}, s{S_CW}")
    a(f"s_mul_i32 s{S_XROW}, s{S_T0}, {16*1152}")
    a(f"s_mul_i32 s{S_BLDS}, s{S_CW}, {WST}")
    a(f"s_add_u32 s{S_BLDS}, s{S_BLDS}, {LB}")
    a(f"s_mov_b32 s{S_BDST}, s{S_BLDS}")
    a(f"s_mul_i32 s{S_WCOL}, s{S_XG}, 1152")
    a(f"s_mul_i32 s{S_T0}, s{S_J}, 288")
    a(f"s_add_u32 s{S_WCOL}, s{S_WCOL}, s{S_T0}")
    a(f"s_mul_i32 s{S_WLDS}, s{S_CW}, 4608")
    a(f"s_mov_b32 s{S_DSLOT}, 0")
    if 'norot' in opt: a(f"s_mov_b32 s{S_P}, 0")
    else:
        a(f"s_lshl_b32 s{S_P}, s{S_J}, 1")
        a(f"s_add_u32 s{S_P}, s{S_P}, s{S_MT}")
        a(f"s_sub_u32 s{S_T0}, s{S_P}, 9")
        a(f"s_cmp_ge_u32 s{S_P}, 9")
        a(f"s_cselect_b32 s{S_P}, s{S_T0}, s{S_P}")
    a(f"s_mov_b32 s{S_P2}, 0")
    a("s_waitcnt lgkmcnt(0)")
    srd(a, SRD_X, S_X, X_BYTES)
    srd(a, SRD_W1, S_W1, W_BYTES)
    if 'spf2' in opt:
        a(f"s_getpc_b64 s[{S_K}:{S_K+1}]")
        a(f"s_mul_i32 s{S_T0}, s{S_CW}, 1792")
        a(f"s_add_u32 s{S_K}, s{S_K}, s{S_T0}")
        a(f"s_addc_u32 s{S_K+1}, s{S_K+1}, 0")
        for i in range(14):
            a(f"s_load_dword s95, s[{S_K}:{S_K+1}], {128*i+ (0)}")
    if 'pspin' in opt:
        a("s_memtime s[96:97]\ns_waitcnt lgkmcnt(0)\ns_mov_b32 s95, s96")
        a.label("L_PSPIN")
        a("s_memtime s[96:97]\ns_waitcnt lgkmcnt(0)\ns_sub_u32 s96, s96, s95\ns_cmp_lt_u32 s96, 8000\ns_cbranch_scc1 L_PSPIN")
    if 'prspin' in opt:
        a("s_memrealtime s[96:97]\ns_waitcnt lgkmcnt(0)\ns_mov_b32 s95, s96")
        a.label("L_PSPIN")
        a("s_memrealtime s[96:97]\ns_waitcnt lgkmcnt(0)\ns_sub_u32 s96, s96, s95\ns_cmp_lt_u32 s96, 400\ns_cbranch_scc1 L_PSPIN")
    for nm, sreg, nb in (('pw1', SRD_W1, 16384), ('px', SRD_X, 2048), ('pws', None, 16384), ('pw2', None, 16384)):
        if nm in opt:
            if nm == 'pws': srd(a, SRD_WS, S_WS, WS_BYTES); sreg = SRD_WS
            if nm == 'pw2': srd(a, SRD_W2, S_W2, W_BYTES); sreg = SRD_W2
            a(f"s_cmp_eq_u32 s{S_WV}, 4")
            a("s_cbranch_scc0 L_PLD")
            a(f"s_mul_i32 s95, s2, {nb}")
            if nm == 'pws': a(f"s_add_u32 s95, s95, {64<<20}")
            for i in range(16):
                a(f"buffer_load_dword v30, off, s[{sreg}:{sreg+3}], s95")
                a("s_waitcnt vmcnt(0)")
                a(f"s_add_u32 s95, s95, {nb//16}")
            a.label("L_PLD")
    stamp(a, 1)
    NT_ON[0] = True
    issue_stage1(a)
    if 'ldiag' in opt: stamp(a, 2)
    issue_stage1(a)
    NT_ON[0] = 'nt2' in opt
    if 'ldiag' in opt: stamp(a, 3)
    srd(a, SRD_W2, S_W2, W_BYTES)
    srd(a, SRD_WS, S_WS, WS_BYTES)
    srd(a, SRD_DBG, S_DBG, 256)
    loader_addr_w2(a)
    if 'ldiag' not in opt: stamp(a, 2)
    a("s_waitcnt vmcnt(7)")
    if 'ldiag' in opt: stamp(a, 4)
    a("s_barrier")
    if 'ldiag' not in opt: stamp(a, 3)
    issue_stage1(a, True)
    NT_ON[0] = False
    if 'ldiag' in opt:
        stamp(a, 5)
        a("s_waitcnt vmcnt(7)")
        stamp(a, 6)
        a("s_barrier")
        issue_stage1(a)
        stamp(a, 7)
        a("s_waitcnt vmcnt(7)")
        stamp(a, 8)
        a("s_barrier")
        issue_stage1(a)
        stamp(a, 9)
    a(f"s_mov_b32 s{S_N}, {2 if 'ldiag' in opt else 0}")
    a.label("L_LD1")
    if 'ldiag' in opt: LD_DONE[0] = True
    a("s_waitcnt vmcnt(7)")
    a("s_barrier")
    issue_stage1(a, True)
    a(f"s_add_u32 s{S_N}, s{S_N}, 1")
    a(f"s_cmp_lt_u32 s{S_N}, 6")
    a("s_cbranch_scc1 L_LD1")
    a(f"s_mul_i32 s{S_W2B}, s{S_XG}, {576*1152}")
    a(f"s_mul_i32 s{S_T0}, s{S_J}, 288")
    a(f"s_add_u32 s{S_W2B}, s{S_W2B}, s{S_T0}")
    w2t = 'now2t' not in opt and 'sw2' not in opt
    if w2t:
        a(f"s_lshl_b32 s{S_T0}, s{S_MT}, 2")
        a(f"s_add_u32 s{S_T0}, s{S_T0}, s{S_J}")
        a(f"s_mul_i32 s{S_T0}, s{S_T0}, 162")
        a(f"s_mul_i32 s{S_T1}, s{S_CW}, 41")
        a(f"s_add_u32 s{S_T0}, s{S_T0}, s{S_T1}")
        a(f"s_lshl_b32 s{S_T0}, s{S_T0}, 7")
        a(f"s_mul_i32 s{S_T1}, s{S_XG}, {576*1152}")
        a(f"s_add_u32 s{S_T0}, s{S_T0}, s{S_T1}")
        a(f"v_min_u32 v{L_T}, 40, v0")
        a(f"v_lshlrev_b32 v{L_T}, 7, v{L_T}")
        a(f"buffer_load_dword v{L_T+2}, v{L_T}, s[{SRD_W2}:{SRD_W2+3}], s{S_T0} offen" + ("" if 'nont' in opt else " nt"))
    a("s_waitcnt vmcnt(%d)" % (8 if w2t else 7))
    a("s_barrier")
    nA, nB, nC = 0, 0, 3
    for o in opt:
        if o.startswith('sch'): nA, nB, nC = int(o[3]), int(o[4]), int(o[5])
    assert nA + nB + nC <= 4
    wnext = [9]
    def W_now():
        issue_w2(a); wnext[0] += 1
    for _ in range(nA): W_now()
    a("s_waitcnt vmcnt(%d)" % ((1 if w2t else 0) + 5*nA))
    a("s_barrier")
    a("s_barrier")
    stamp(a, 4)
    for _ in range(nB): W_now()
    poll_pub(a, "L", L_T)
    a(f"s_lshl_b32 s{S_T2}, s{S_GRP}, 5")
    a(f"s_add_u32 s{S_T2}, s{S_T2}, {FLAG_OFF}")
    a(f"v_and_b32 v{L_T+1}, 15, v0")
    a(f"v_lshlrev_b32 v{L_T+1}, 2, v{L_T+1}")
    a("s_barrier")
    stamp(a, 5)
    for _ in range(nC): W_now()
    a(f"s_mov_b32 s{S_T3}, 0")
    a.label("L_PF")
    a(f"s_add_u32 s{S_T3}, s{S_T3}, 1")
    a(f"s_cmp_gt_u32 s{S_T3}, {SPIN}")
    a(f"s_cbranch_scc1 L_PFX")
    a(f"buffer_load_dword v{L_T}, v{L_T+1}, s[{SRD_WS}:{SRD_WS+3}], s{S_T2} offen sc1")
    a("s_waitcnt vmcnt(0)")
    a(f"v_cmp_ne_u32 vcc, 1, v{L_T}")
    a("s_cbranch_vccnz L_PF")
    a.label("L_PFX")
    stamp(a, 6)
    q = []
    def iss(name, cnt, fn):
        fn(); q.append((name, cnt))
    def wait(*names):
        idx = [i for i, (nm, c) in enumerate(q) if nm in names]
        last = max(idx) if idx else -1
        a("s_waitcnt vmcnt(%d)" % sum(c for nm, c in q[last+1:]))
    H = lambda n: iss(f"h{n}", h_count(n), lambda: issue_h(a, n))
    def Wn(n):
        assert wnext[0] == n, (wnext, n)
        iss(f"W{n}", 5, lambda: issue_w2(a)); wnext[0] += 1
    H(0); H(1); H(2)
    wait("h0")
    a("s_barrier")
    stamp(a, 7)
    assert wnext[0] >= 10
    hn = 3
    for s in range(10, 18):
        nw = wnext[0]
        if nw <= 17 and (nw <= 12 or nw <= s + 1):
            Wn(nw)
        if hn <= 8:
            H(hn); hn += 1
        if hn <= 8 and 'h2' in opt:
            H(hn); hn += 1
        wait(f"h{s-9}", f"W{s}")
        have = [nm for nm, c in q]
        assert (f"h{s-9}" in have) and (f"W{s}" in have or s < wnext[0]), (s, have)
        a("s_barrier")
    stamp(a, 8)
    a(f"s_lshl_b32 s{S_T0}, s{S_MT}, 2")
    a(f"s_add_u32 s{S_T0}, s{S_T0}, s{S_J}")
    a(f"s_mul_i32 s{S_T0}, s{S_T0}, {INBOX_B}")
    a(f"s_mul_i32 s{S_T1}, s{S_XG}, 18432")
    a(f"s_add_u32 s{S_T0}, s{S_T0}, s{S_T1}")
    a(f"s_add_u32 s{S_INB}, s{S_T0}, {INBOX_OFF}")
    a("s_barrier")
    reducer(a, "L", single=False)
    stamp(a, 9)
    LD_DONE[0] = False
    dump_stamps(a, 1, 10, "LD", 4)
    a("s_endpgm")

C_BF, C_BS = 2, 4
C_A, C_A8, C_AC, C_A8C = 6, 7, 8, 9
C_T = 10
C_BP = 108
A0, B0, A1, B1 = 16, 36, 44, 64
ACC = 72
C_E = 112
C_CHK = 14
S_CHK = 92

def reads_step(Aset, Bset, s0):
    ins = [f"ds_read_b128 v[{Bset}:{Bset+3}], v{C_BF+s0}"]
    def A(t):
        vaddr = C_AC if t < 4 else C_A8C
        off = s0*9216 + (32*t if t < 4 else 0)
        return [f"ds_read_b64_tr_b16 v[{Aset+4*t}:{Aset+4*t+1}], v{vaddr} offset:{off}",
                f"ds_read_b64_tr_b16 v[{Aset+4*t+2}:{Aset+4*t+3}], v{vaddr} offset:{off+4608}"]
    ins += A(0)
    ins.append(f"ds_read_b128 v[{Bset+4}:{Bset+7}], v{C_BS+s0}")
    for t in range(1, 5): ins += A(t)
    return ins

def mfmas(Aset, Bset):
    def m(acc, t, b):
        return f"v_mfma_f32_16x16x32_bf16 v[{ACC+4*acc}:{ACC+4*acc+3}], v[{Aset+4*t}:{Aset+4*t+3}], v[{Bset+4*b}:{Bset+4*b+3}], v[{ACC+4*acc}:{ACC+4*acc+3}]"
    out = []
    for t in range(4):
        out.append(m(t, t, 0)); out.append(m(4+t, t, 1))
    out.append(m(8, 4, 0))
    return out

def block(a, r, m):
    for u in range(9):
        a(m[u])
        if r and u < 6:
            a(r[2*u]); a(r[2*u+1])

def set_stage_addrs(a, first=False):
    a(f"v_add_u32 v{C_AC}, s{S_RSLOT}, v{C_A}")
    a(f"v_add_u32 v{C_A8C}, s{S_RSLOT}, v{C_A8}")
    for i, r in enumerate((C_BF, C_BF+1, C_BS, C_BS+1)):
        if first: a(f"v_mov_b32 v{r}, v{C_BP+i}")
        else:     a(f"v_add_u32 v{r}, 2048, v{r}")

def compute_loop_diag(a, name, k0):
    for n in range(9):
        a("s_waitcnt lgkmcnt(0)")
        if n: a(f"s_mov_b32 s{S_TS+k0+n-1}, s96")
        block(a, reads_step(A1, B1, 1), mfmas(A0, B0))
        slot_advance(a, S_RSLOT)
        set_stage_addrs(a)
        if n == 8: break
        a("s_barrier")
        a("s_memtime s[96:97]")
        a("s_waitcnt lgkmcnt(0)")
        block(a, reads_step(A0, B0, 0), mfmas(A1, B1))
    a("s_waitcnt lgkmcnt(0)")
    block(a, None, mfmas(A1, B1))
    a("s_memtime s[96:97]")
    a("s_waitcnt lgkmcnt(0)")
    a(f"s_mov_b32 s{S_TS+k0+8}, s96")

def compute_loop(a, name):
    if 'diag' in opt:
        return compute_loop_diag(a, name, 0 if name == "C1" else 10)
    a(f"s_mov_b32 s{S_N}, 0")
    a.label(f"L_{name}")
    a("s_waitcnt lgkmcnt(0)")
    block(a, reads_step(A1, B1, 1), mfmas(A0, B0))
    slot_advance(a, S_RSLOT)
    set_stage_addrs(a)
    a(f"s_cmp_eq_u32 s{S_N}, 8")
    a(f"s_cbranch_scc1 L_{name}_LAST")
    a("s_barrier")
    a("s_waitcnt lgkmcnt(0)")
    block(a, reads_step(A0, B0, 0), mfmas(A1, B1))
    a(f"s_add_u32 s{S_N}, s{S_N}, 1")
    a(f"s_branch L_{name}")
    a.label(f"L_{name}_LAST")
    a("s_waitcnt lgkmcnt(0)")
    block(a, None, mfmas(A1, B1))

def zero_acc(a):
    for i in range(0, 36, 2): a(f"v_pk_mov_b32 v[{ACC+i}:{ACC+i+1}], 0, 0")

def touches(a):
    t0, t1, t2 = C_T, C_T+1, C_T+2
    if 'nocode' not in opt:
        a(f"s_getpc_b64 s[{S_K}:{S_K+1}]")
        a.label("L_PC")
        a(f"s_sub_u32 s{S_K}, s{S_K}, (L_PC - {KNAME})")
        a(f"s_subb_u32 s{S_K+1}, s{S_K+1}, 0")
        a(f"v_lshlrev_b32 v{t0}, 7, v0")
        a(f"s_lshl_b32 s{S_T0}, s{S_CW}, 13")
        a(f"v_add_u32 v{t0}, s{S_T0}, v{t0}")
        a(f"v_cmp_gt_u32 vcc, (L_CODE_END - {KNAME}), v{t0}")
        a(f"s_and_saveexec_b64 s[{S_T0}:{S_T0+1}], vcc") if False else None
        a(f"v_min_u32 v{t0}, (L_CODE_END - {KNAME} - 4), v{t0}")
        a(f"global_load_dword v{C_E}, v{t0}, s[{S_K}:{S_K+1}]")

def touches_x(a):
    t0, t1, t2 = C_T, C_T+1, C_T+2
    a(f"s_mul_i32 s{S_T0}, s{S_CW}, 36")
    a(f"v_min_u32 v{t0}, 35, v0")
    a(f"v_add_u32 v{t0}, s{S_T0}, v{t0}")
    a(f"v_lshrrev_b32 v{t1}, 4, v{t0}")
    a(f"v_and_b32 v{t0}, 15, v{t0}")
    a(f"v_mul_u32_u24 v{t0}, 1152, v{t0}")
    a(f"v_lshl_add_u32 v{t0}, v{t1}, 7, v{t0}")
    a(f"s_lshl_b32 s{S_T0}, s{S_MT}, 2")
    a(f"s_add_u32 s{S_T0}, s{S_T0}, s{S_J}")
    a(f"s_mul_i32 s{S_T0}, s{S_T0}, {16*1152}")
    a(f"buffer_load_dword v{C_E+1}, v{t0}, s[{SRD_X}:{SRD_X+3}], s{S_T0} offen")
    if 'half' in opt:
        a(f"buffer_load_dword v{C_E+5}, v{t0}, s[{SRD_X}:{SRD_X+3}], s{S_T0} offen offset:64")

def touches_w2(a):
    t0, t1 = C_T, C_T+1
    a(f"s_lshl_b32 s{S_T0}, s{S_MT}, 2")
    a(f"s_add_u32 s{S_T0}, s{S_T0}, s{S_J}")
    a(f"s_mul_i32 s{S_T0}, s{S_T0}, 162")
    a(f"s_mul_i32 s{S_T1}, s{S_CW}, 41")
    a(f"s_add_u32 s{S_T0}, s{S_T0}, s{S_T1}")
    a(f"s_lshl_b32 s{S_T0}, s{S_T0}, 7")
    a(f"s_mul_i32 s{S_T1}, s{S_XG}, {576*1152}")
    a(f"s_add_u32 s{S_T0}, s{S_T0}, s{S_T1}")
    a(f"v_min_u32 v{t0}, 40, v0")
    a(f"v_lshlrev_b32 v{t0}, 7, v{t0}")
    a(f"buffer_load_dword v{C_E+2}, v{t0}, s[{SRD_W2}:{SRD_W2+3}], s{S_T0} offen")
    if 'half' in opt:
        a(f"buffer_load_dword v{C_E+4}, v{t0}, s[{SRD_W2}:{SRD_W2+3}], s{S_T0} offen offset:64")

def touches_ws(a):
    t0, t1 = C_T, C_T+1
    a(f"v_and_b32 v{t0}, 7, v0")
    a(f"v_lshlrev_b32 v{t0}, 21, v{t0}")
    a(f"buffer_load_dword v{C_E+3}, v{t0}, s[{SRD_WS}:{SRD_WS+3}], 0 offen")

def compute(a):
    DIAG_C[0] = True
    t0, t1, t2 = C_T, C_T+1, C_T+2
    if 'codepf' in opt: touches(a)
    a(f"v_lshrrev_b32 v{t0}, 2, v0")
    a(f"v_mul_u32_u24 v{t0}, 288, v{t0}")
    a(f"v_and_b32 v{t1}, 3, v0")
    a(f"v_lshl_add_u32 v{t0}, v{t1}, 3, v{t0}")
    a(f"v_add_u32 v{C_A8}, 256, v{t0}")
    a(f"s_and_b32 s{S_T0}, s{S_CW}, 1")
    a(f"s_lshl_b32 s{S_T0}, s{S_T0}, 7")
    a(f"v_add_u32 v{C_A}, s{S_T0}, v{t0}")
    a(f"s_mul_i32 s{S_T1}, s{S_CW}, {WST}")
    a(f"s_add_u32 s{S_T1}, s{S_T1}, {LB}")
    a(f"s_xor_b32 s{S_T2}, s{S_CW}, 1")
    a(f"s_mul_i32 s{S_T2}, s{S_T2}, {WST}")
    a(f"s_add_u32 s{S_T2}, s{S_T2}, {LB}")
    a(f"v_and_b32 v{t0}, 15, v0")
    a(f"v_lshrrev_b32 v{t1}, 1, v{t0}")
    a(f"v_lshrrev_b32 v{t2}, 4, v0")
    a(f"v_xor_b32 v{t1}, v{t1}, v{t2}")
    a(f"v_lshlrev_b32 v{t1}, 4, v{t1}")
    a(f"v_lshl_add_u32 v{t2}, v{t0}, 7, v{t1}")
    a(f"v_xor_b32 v{t1}, 64, v{t1}")
    a(f"v_lshl_add_u32 v{t1}, v{t0}, 7, v{t1}")
    a(f"v_add_u32 v{C_BP}, s{S_T1}, v{t2}")
    a(f"v_add_u32 v{C_BP+1}, s{S_T1}, v{t1}")
    a(f"v_add_u32 v{C_BP+2}, s{S_T2}, v{t2}")
    a(f"v_add_u32 v{C_BP+3}, s{S_T2}, v{t1}")
    a(f"s_mov_b32 s{S_RSLOT}, 0")
    set_stage_addrs(a, True)
    zero_acc(a)
    a("s_waitcnt lgkmcnt(0)")
    srd(a, SRD_X, S_X, X_BYTES)
    srd(a, SRD_W2, S_W2, W_BYTES)
    srd(a, SRD_WS, S_WS, WS_BYTES)
    srd(a, SRD_DBG, S_DBG, 256)
    if 'xpf' in opt: touches_x(a)
    if 'wspf' in opt: touches_ws(a)
    if 'w2early' in opt: touches_w2(a)
    a(f"s_cmp_eq_u32 s2, 0")
    a("s_cbranch_scc0 L_NOCLR")
    a(f"s_lshl_b32 s{S_T0}, s{S_CW}, 11")
    a(f"s_add_u32 s{S_T0}, s{S_T0}, {FLAG_OFF}")
    a(f"v_pk_mov_b32 v[{A1}:{A1+1}], 0, 0\nv_pk_mov_b32 v[{A1+2}:{A1+3}], 0, 0")
    a(f"v_lshlrev_b32 v{t1}, 4, v0")
    a(f"buffer_store_dwordx4 v[{A1}:{A1+3}], v{t1}, s[{SRD_WS}:{SRD_WS+3}], s{S_T0} offen sc1")
    a(f"buffer_store_dwordx4 v[{A1}:{A1+3}], v{t1}, s[{SRD_WS}:{SRD_WS+3}], s{S_T0} offen offset:1024 sc1")
    a("s_waitcnt vmcnt(0)")
    a.label("L_NOCLR")
    a("s_barrier")
    stamp(a, 1)
    for ins in reads_step(A0, B0, 0): a(ins)
    a(f"s_lshl_b32 s{S_T0}, s{S_MT}, 2")
    a(f"s_add_u32 s{S_T0}, s{S_T0}, s{S_J}")
    a(f"s_mul_i32 s{S_T0}, s{S_T0}, {INBOX_B}")
    a(f"s_mul_i32 s{S_T1}, s{S_XG}, 18432")
    a(f"s_add_u32 s{S_T0}, s{S_T0}, s{S_T1}")
    a(f"s_add_u32 s{S_INB}, s{S_T0}, {INBOX_OFF}")
    a(f"s_mul_i32 s{S_T1}, s{S_CW}, 4608")
    a(f"s_add_u32 s{S_T0}, s{S_INB}, s{S_T1}")
    for i in range(4): a(f"v_mov_b32 v{C_E+4+i}, -1")
    a(f"v_lshlrev_b32 v{t1}, 4, v0")
    a(f"v_min_u32 v{t2}, 31, v0")
    a(f"v_lshlrev_b32 v{t2}, 4, v{t2}")
    for i in range(4):
        a(f"buffer_store_dwordx4 v[{C_E+4}:{C_E+7}], v{t1}, s[{SRD_WS}:{SRD_WS+3}], s{S_T0} offen offset:{1024*i} sc1")
    a(f"s_add_u32 s{S_T0}, s{S_T0}, 4096")
    a(f"buffer_store_dwordx4 v[{C_E+4}:{C_E+7}], v{t2}, s[{SRD_WS}:{SRD_WS+3}], s{S_T0} offen sc1")
    a(f"s_lshl_b32 s{S_T1}, s2, 2")
    a(f"s_or_b32 s{S_T1}, s{S_T1}, s{S_CW}")
    a(f"s_cmp_eq_u32 s{S_T1}, 0")
    a("s_cbranch_scc0 L_NOPUB")
    a(f"v_mov_b32 v{t0}, 1")
    a("s_mov_b64 exec, 1")
    a(f"buffer_store_dword v{t0}, off, s[{SRD_DBG}:{SRD_DBG+3}], 0 sc1")
    a("s_mov_b64 exec, -1")
    a.label("L_NOPUB")
    compute_loop(a, "C1")
    a("s_barrier")
    stamp(a, 2)
    a("s_waitcnt vmcnt(0)")
    a(f"buffer_load_dword v{t0}, off, s[{SRD_DBG}:{SRD_DBG+3}], 0 sc1")
    a(f"s_mov_b32 s{S_K}, 0xbfb8aa3b")
    a(f"s_mov_b32 s{S_K+1}, 0xbfb8aa3b")
    a(f"s_xor_b32 s{S_T2}, s{S_CW}, 1")
    a(f"s_sub_i32 s{S_T2}, s{S_T2}, s{S_CW}")
    a(f"s_mul_i32 s{S_T2}, s{S_T2}, {WST}")
    a(f"s_lshr_b32 s{S_T3}, s{S_J}, 1")
    a(f"s_mul_i32 s{S_T3}, s{S_T3}, {9*1024}")
    a(f"s_add_u32 s{S_T3}, s{S_T3}, {4*1024}")
    a(f"s_add_u32 s{S_T3}, s{S_T3}, s{S_HB}")
    a(f"s_and_b32 s{S_P}, s{S_J}, 1")
    a(f"s_lshl_b32 s{S_P}, s{S_P}, 9")
    a(f"s_add_u32 s{S_XROW}, s{S_T3}, s{S_P}")
    a(f"s_mul_i32 s{S_T3}, s{S_J}, 9")
    a(f"s_add_u32 s{S_T3}, s{S_T3}, 1")
    a(f"s_lshr_b32 s{S_T3}, s{S_T3}, 1")
    a(f"s_and_b32 s{S_P}, s{S_CW}, 1")
    a(f"s_lshl_b32 s{S_P}, s{S_P}, 1")
    a(f"s_add_u32 s{S_T3}, s{S_T3}, s{S_P}")
    a(f"s_lshl_b32 s{S_T3}, s{S_T3}, 10")
    a(f"s_add_u32 s{S_WCOL}, s{S_T3}, s{S_HB}")
    a(f"s_add_u32 s{S_WLDS}, s{S_WCOL}, s{S_T2}")
    a(f"s_lshl_b32 s{S_BLDS}, s{S_GRP}, 5")
    a(f"s_add_u32 s{S_BLDS}, s{S_BLDS}, {FLAG_OFF}")
    a(f"s_lshl_b32 s{S_P}, s{S_J}, 2")
    a(f"s_add_u32 s{S_P}, s{S_P}, s{S_CW}")
    a(f"s_lshl_b32 s{S_P}, s{S_P}, 2")
    a(f"s_add_u32 s{S_BLDS}, s{S_BLDS}, s{S_P}")
    a(f"v_lshlrev_b32 v{t1}, 4, v0")
    a(f"v_mov_b32 v{t2}, 1")
    W = f"s[{SRD_WS}:{SRD_WS+3}]"
    hsc = "" if 'hplain' in opt else " sc1"
    for u in range(9):
        x = ACC + 4*u
        e = C_E + 4*(u & 1)
        for r in (0, 2): a(f"v_pk_mul_f32 v[{e+r}:{e+r+1}], v[{x+r}:{x+r+1}], s[{S_K}:{S_K+1}]")
        for r in range(4): a(f"v_exp_f32 v{e+r}, v{e+r}")
        for r in (0, 2): a(f"v_pk_add_f32 v[{e+r}:{e+r+1}], v[{e+r}:{e+r+1}], 1.0 op_sel_hi:[1,0]")
        for r in range(4): a(f"v_rcp_f32 v{e+r}, v{e+r}")
        for r in (0, 2): a(f"v_pk_mul_f32 v[{x+r}:{x+r+1}], v[{x+r}:{x+r+1}], v[{e+r}:{e+r+1}]")
        a(f"v_cvt_pk_bf16_f32 v{A0+2*u}, v{x}, v{x+1}")
        a(f"v_cvt_pk_bf16_f32 v{A0+2*u+1}, v{x+2}, v{x+3}")
        if u in (1, 3, 5, 7):
            q = u >> 1
            sreg = S_WCOL if q < 2 else S_WLDS
            a(f"buffer_store_dwordx4 v[{A0+4*q}:{A0+4*q+3}], v{t1}, {W}, s{sreg} offen offset:{1024*(q&1)}{hsc}")
    if 'nosingle' not in opt:
        a(f"v_lshlrev_b32 v{C_T+3}, 3, v0")
        a(f"buffer_store_dwordx2 v[{A0+16}:{A0+17}], v{C_T+3}, {W}, s{S_XROW} offen{hsc}")
    stamp(a, 8)
    poll_pub(a, "C", t0, preloaded=True)
    a("s_mov_b64 exec, 1")
    a(f"buffer_store_dword v{t2}, off, {W}, s{S_BLDS}{hsc}")
    a("s_mov_b64 exec, -1")
    a("s_barrier")
    stamp(a, 3)
    a(f"s_mul_i32 s{S_T1}, s{S_CW}, {WST}")
    a(f"s_add_u32 s{S_T1}, s{S_T1}, {LB}")
    a(f"s_xor_b32 s{S_T2}, s{S_CW}, 1")
    a(f"s_mul_i32 s{S_T2}, s{S_T2}, {WST}")
    a(f"s_add_u32 s{S_T2}, s{S_T2}, {LB}")
    a(f"v_add_u32 v{C_BP}, s{S_T1}, v{t1}")
    a(f"v_add_u32 v{C_BP+1}, 1024, v{C_BP}")
    a(f"v_add_u32 v{C_BP+2}, s{S_T2}, v{t1}")
    a(f"v_add_u32 v{C_BP+3}, 1024, v{C_BP+2}")
    set_stage_addrs(a, True)
    zero_acc(a)
    a(f"v_lshrrev_b32 v{C_CHK}, 2, v0")
    a(f"v_and_b32 v{C_CHK}, 7, v{C_CHK}")
    a(f"v_lshlrev_b32 v{C_CHK}, 10, v{C_CHK}")
    a(f"v_and_b32 v{C_CHK+1}, 3, v0")
    a(f"v_lshl_add_u32 v{C_CHK}, v{C_CHK+1}, 2, v{C_CHK}")
    a(f"s_lshl_b32 s{S_CHK}, s{S_MT}, 7")
    a(f"s_lshl_b32 s{S_T0}, s{S_J}, 4")
    a(f"s_add_u32 s{S_CHK}, s{S_CHK}, s{S_T0}")
    a(f"s_add_u32 s{S_CHK}, s{S_CHK}, {FLAG_OFF}")
    a("s_barrier")
    stamp(a, 4)
    for ins in reads_step(A0, B0, 0): a(ins)
    a(f"buffer_load_dword v{C_CHK+1}, v{C_CHK}, s[{SRD_WS}:{SRD_WS+3}], s{S_CHK} offen sc1")
    compute_loop(a, "C2")
    stamp(a, 5)
    W = f"s[{SRD_WS}:{SRD_WS+3}]"
    a("s_waitcnt vmcnt(0)")
    a(f"v_cmp_ne_u32 vcc, 1, v{C_CHK+1}")
    a("s_cbranch_vccz L_CHKOK")
    a(f"s_mov_b32 s{S_T3}, 0")
    a.label("L_CHK")
    a(f"s_add_u32 s{S_T3}, s{S_T3}, 1")
    a(f"s_cmp_gt_u32 s{S_T3}, {SPIN}")
    a("s_cbranch_scc1 L_CHKOK")
    a(f"buffer_load_dword v{C_CHK+1}, v{C_CHK}, {W}, s{S_CHK} offen sc1")
    a("s_waitcnt vmcnt(0)")
    a(f"v_cmp_ne_u32 vcc, 1, v{C_CHK+1}")
    a("s_cbranch_vccnz L_CHK")
    a.label("L_CHKOK")
    a(f"v_lshrrev_b32 v{t0}, 4, v0")
    a(f"v_lshlrev_b32 v{t0}, 3, v{t0}")
    a(f"v_and_b32 v{t1}, 7, v0")
    a(f"v_add_u32 v{t0}, v{t0}, v{t1}")
    a(f"v_bfe_u32 v{t1}, v0, 3, 1")
    a(f"v_mul_u32_u24 v{t1}, 18432, v{t1}")
    a(f"v_lshl_add_u32 v{t2}, v{t0}, 3, v{t1}")
    a(f"v_lshl_add_u32 v{t1}, v{t0}, 4, v{t1}")
    a(f"s_lshl_b32 s{S_T0}, s{S_MT}, 2")
    a(f"s_add_u32 s{S_T0}, s{S_T0}, s{S_J}")
    a(f"s_mul_i32 s{S_T0}, s{S_T0}, {INBOX_B}")
    a(f"s_mul_i32 s{S_T1}, s{S_XG}, 2304")
    a(f"s_add_u32 s{S_T0}, s{S_T0}, s{S_T1}")
    a(f"s_add_u32 s{S_T0}, s{S_T0}, {INBOX_OFF}")
    a(f"s_mul_i32 s{S_T1}, s{S_CW}, {2*18432}")
    a(f"s_add_u32 s{S_T1}, s{S_T1}, s{S_T0}")
    a(f"s_xor_b32 s{S_T2}, s{S_CW}, 1")
    a(f"s_mul_i32 s{S_T2}, s{S_T2}, {2*18432}")
    a(f"s_add_u32 s{S_T2}, s{S_T2}, s{S_T0}")
    a(f"s_and_b32 s{S_T0}, s{S_CW}, 1")
    a(f"s_lshl_b32 s{S_T0}, s{S_T0}, 10")
    a(f"s_add_u32 s{S_T2}, s{S_T2}, s{S_T0}")
    a(f"s_add_u32 s{S_T0}, s{S_T1}, s{S_T0}")
    a(f"s_add_u32 s{S_T1}, s{S_T1}, 2048")
    a(f"s_mov_b32 s{S_K}, 0xfffffffe")
    for q in range(4):
        for u in (2*q, 2*q+1):
            x = ACC + 4*u
            a(f"v_cvt_pk_bf16_f32 v{A0+2*u}, v{x}, v{x+1}")
            a(f"v_cvt_pk_bf16_f32 v{A0+2*u+1}, v{x+2}, v{x+3}")
        for d in range(4): a(f"v_min_u32 v{A0+4*q+d}, s{S_K}, v{A0+4*q+d}")
        sreg = S_T0 if q < 2 else S_T2
        a(f"buffer_store_dwordx4 v[{A0+4*q}:{A0+4*q+3}], v{t1}, {W}, s{sreg} offen offset:{512*(q&1)} sc1")
    x = ACC + 32
    a(f"v_cvt_pk_bf16_f32 v{A0+16}, v{x}, v{x+1}")
    a(f"v_cvt_pk_bf16_f32 v{A0+17}, v{x+2}, v{x+3}")
    for d in range(2): a(f"v_min_u32 v{A0+16+d}, s{S_K}, v{A0+16+d}")
    a(f"buffer_store_dwordx2 v[{A0+16}:{A0+17}], v{t2}, {W}, s{S_T1} offen sc1")
    a("s_barrier")
    stamp(a, 6)
    a(f"s_cmp_eq_u32 s{S_CW}, 0")
    a("s_cbranch_scc0 L_CDONE")
    reducer(a, "C", single=True)
    a.label("L_CDONE")
    if 'ts' in opt or amp_on():
        a("s_waitcnt vmcnt(0)")
    stamp(a, 7)
    amp_spin(a, 'C', 7)
    if 'clk' in opt:
        a("s_memtime s[96:97]")
        a("s_waitcnt lgkmcnt(0)")
        a("s_sub_u32 s78, s96, s98")
        a("s_mov_b32 s79, 0")
    dump_stamps(a, 0, 10 if ('diag' in opt or 'clk' in opt) else 9, "C", 0)
    DIAG_C[0] = False

def kernel_main(a):
    name = KNAME
    a(f".globl {name}\n.p2align 8\n.type {name},@function\n{name}:")
    a(f"s_cmp_ge_u32 s2, 256")
    a(f"s_cbranch_scc1 L_END")
    stamp(a, 0)
    if 'clk' in opt: a("s_memtime s[98:99]")
    a("s_load_dwordx8 s[4:11], s[0:1], 0")
    a("s_load_dwordx4 s[12:15], s[0:1], 32")
    a("v_lshrrev_b32 v1, 6, v0")
    a("v_and_b32 v0, 63, v0")
    a(f"v_readfirstlane_b32 s{S_WV}, v1")
    if 'spf' in opt:
        a(f"s_getpc_b64 s[{S_K}:{S_K+1}]")
        a.label("L_PC0")
        a(f"s_lshl_b32 s{S_T0}, s{S_WV}, 10")
        a(f"s_add_u32 s{S_T0}, s{S_T0}, 256")
        a(f"s_add_u32 s{S_K}, s{S_K}, s{S_T0}")
        a(f"s_addc_u32 s{S_K+1}, s{S_K+1}, 0")
        for i in range(8):
            a(f"s_load_dword s{S_T3}, s[{S_K}:{S_K+1}], {128*i}")
    if 'xmap' in opt:
        a(f"s_and_b32 s{S_J}, s2, 3")
        a(f"s_lshr_b32 s{S_XG}, s2, 2")
        a(f"s_and_b32 s{S_XG}, s{S_XG}, 7")
    else:
        a(f"s_and_b32 s{S_XG}, s2, 7")
        a(f"s_lshr_b32 s{S_J}, s2, 3")
        a(f"s_and_b32 s{S_J}, s{S_J}, 3")
    a(f"s_lshr_b32 s{S_MT}, s2, 5")
    a(f"s_lshl_b32 s{S_GRP}, s{S_XG}, 3")
    a(f"s_add_u32 s{S_GRP}, s{S_GRP}, s{S_MT}")
    a(f"s_lshr_b32 s{S_HB}, s{S_GRP}, 4")
    a(f"s_lshl_b32 s{S_HB}, s{S_HB}, 21")
    a(f"s_and_b32 s{S_T0}, s{S_GRP}, 15")
    a(f"s_mul_i32 s{S_T0}, s{S_T0}, {GRP_BYTES}")
    a(f"s_add_u32 s{S_HB}, s{S_HB}, s{S_T0}")
    a(f"s_lshl_b32 s{S_GRP}, s{S_GRP}, 2")
    a(f"s_and_b32 s{S_CW}, s{S_WV}, 3")
    a(f"s_mul_i32 s{S_T0}, s{S_CW}, {WST}")
    a(f"s_add_u32 s{S_HB}, s{S_HB}, s{S_T0}")
    a(f"s_add_u32 s{S_HB}, s{S_HB}, {H_OFF}")
    a(f"s_cmp_lt_u32 s{S_WV}, 4")
    a("s_cbranch_scc1 L_COMPUTE")
    loader(a)
    a.label("L_COMPUTE")
    compute(a)
    a.label("L_END")
    a("s_endpgm")
    a.label("L_CODE_END")
    if 'spf' in opt or 'spf2' in opt: a(".fill 512, 4, 0xbf800000")
    a(kd(name, vgpr=120, sgpr=102))

def main():
    for o in sys.argv[2:]: opt.add(o)
    a = Asm()
    a(HEADER.rstrip())
    a(f"; @launch grid=(256,1,1) block=(512,1,1) lds={LDS_BYTES}")
    a('.amdgcn_target "amdgcn-amd-amdhsa--gfx950"')
    a(".text")
    kernel_main(a)
    open(sys.argv[1], "w").write(a.text())

main()
```

```python
import sys
from common import *

X_BYTES = 512*576*2
W_BYTES = 576*4608*2
OUT_BYTES = 512*576*2
WS_BYTES = 268435456
PAGE = 2*1024*1024
H_OFF = 4096
GRP_BYTES = 4*18432
FLAG_OFF = 4*PAGE + 4096
FLAG2_OFF = FLAG_OFF + 8192
INBOX_OFF = 5*PAGE + 4096
INBOX_B = 8*8*2304
KNAME = "standalone__dense_activation_silu__sampling_kernel"
WST = 18432
SLOT = WST
NSLOT = 4
LB = NSLOT*SLOT
LDS_BYTES = LB + 4*WST + 2048
TS_OFF = 128 << 20
SPIN = 1 << 17

opt = set()
NT_ON = [False]
def NT(): return " nt" if (NT_ON[0] and 'nont' not in opt) or 'allnt' in opt else ""

S_X, S_W1, S_W2, S_OUT, S_DBG, S_WS = 4, 6, 8, 10, 12, 14
SRD_X, SRD_W1, SRD_WS, SRD_W2, SRD_DBG = 16, 20, 24, 40, 44
S_WV, S_XG, S_J, S_MT, S_CW = 28, 29, 30, 31, 32
S_N, S_WOFF, S_DSLOT, S_RSLOT = 33, 34, 35, 36
S_T0, S_T1, S_T2, S_T3 = 37, 38, 39, 48
S_WLDS, S_P, S_XROW, S_BLDS, S_HB, S_GRP, S_FAST, S_HSLOT = 49, 50, 51, 52, 53, 54, 55, 56
S_WCOL, S_HOFF = 57, 58
S_P2, S_PH, S_W2B = 92, 93, 94
S_INB = 59
S_PA, S_PB, S_PS = 93, 94, 95
S_BDST = 56
S_TS = 60
S_K = 84

LD_DONE = [False]
def amp_on(): return any(o.startswith('amp') for o in opt)
def amp_spin(a, tag, final_idx):
    for o in opt:
        if o.startswith('amp') and o[3] == tag:
            ia, ib = int(o[4]), int(o[5])
            a("s_waitcnt lgkmcnt(0)")
            a(f"s_sub_u32 s95, s{S_TS+2*ib}, s{S_TS+2*ia}")
            a("s_mul_i32 s95, s95, 3")
            a("s_memrealtime s[96:97]\ns_waitcnt lgkmcnt(0)\ns_mov_b32 s94, s96")
            a.label(f"L_AMP{tag}")
            a(f"s_memrealtime s[96:97]\ns_waitcnt lgkmcnt(0)\ns_sub_u32 s96, s96, s94\ns_cmp_lt_u32 s96, s95\ns_cbranch_scc1 L_AMP{tag}")
def stamp(a, i):
    if amp_on():
        a(f"s_memrealtime s[{S_TS+2*i}:{S_TS+2*i+1}]"); return
    if 'ldiag' in opt and LD_DONE[0]: return
    if 'ts' in opt and not ('diag' in opt and DIAG_C[0]): a(f"s_memrealtime s[{S_TS+2*i}:{S_TS+2*i+1}]")
DIAG_C = [False]

def dump_stamps(a, kidx, n, tag, wave):
    if 'ts' not in opt: return
    a("s_waitcnt lgkmcnt(0) vmcnt(0)")
    a(f"s_cmp_eq_u32 s{S_WV}, {wave}")
    a(f"s_cbranch_scc0 L_NOTS{tag}")
    a(f"s_lshl_b32 s80, s2, 7")
    a(f"s_add_u32 s80, s80, {TS_OFF + kidx*512*128}")
    a(f"s_mov_b32 s88, s14\ns_mov_b32 s89, s15\ns_mov_b32 s90, {WS_BYTES}\ns_mov_b32 s91, 0x20000")
    a("v_mov_b32 v2, 0")
    for i in range(n):
        a(f"v_mov_b32 v4, s{S_TS+2*i}\nv_mov_b32 v5, s{S_TS+2*i+1}")
        a(f"buffer_store_dwordx2 v[4:5], v2, s[88:91], s80 offen offset:{8*i}")
        a("s_nop 1")
    a.label(f"L_NOTS{tag}")

def srd(a, base, ptr, nbytes):
    a(f"s_mov_b32 s{base}, s{ptr}")
    a(f"s_mov_b32 s{base+1}, s{ptr+1}")
    a(f"s_mov_b32 s{base+2}, {nbytes}")
    a(f"s_mov_b32 s{base+3}, 0x20000")

def slot_advance(a, reg):
    a(f"s_add_u32 s{reg}, s{reg}, {SLOT}")
    a(f"s_cmp_eq_u32 s{reg}, {NSLOT*SLOT}")
    a(f"s_cselect_b32 s{reg}, 0, s{reg}")

L_W1, L_W2, L_X, L_H, L_T = 1, 6, 11, 13, 14

def loader_addr_setup(a):
    t0, t1, t2, t3 = L_T, L_T+1, L_T+2, L_T+3
    a(f"v_lshrrev_b32 v{t0}, 3, v0")
    a(f"v_lshrrev_b32 v{t1}, 4, v0")
    a(f"v_and_b32 v{t2}, 7, v0")
    a(f"v_xor_b32 v{t1}, v{t1}, v{t2}")
    a(f"v_lshlrev_b32 v{t1}, 4, v{t1}")
    a(f"v_mul_u32_u24 v{t0}, 1152, v{t0}")
    a(f"v_add_u32 v{L_X}, v{t0}, v{t1}")
    a(f"v_xor_b32 v{t1}, 64, v{t1}")
    a(f"v_add_u32 v{t0}, {8*1152}, v{t0}")
    a(f"v_add_u32 v{L_X+1}, v{t0}, v{t1}")
    a(f"v_lshlrev_b32 v{L_H}, 4, v0")
    a(f"v_lshrrev_b32 v{t0}, 1, v0")
    a(f"v_and_b32 v{t0}, 1, v{t0}")
    a(f"v_lshlrev_b32 v{t0}, 9, v{t0}")
    a(f"v_lshrrev_b32 v{t1}, 2, v0")
    a(f"v_lshl_add_u32 v{t0}, v{t1}, 3, v{t0}")
    a(f"v_and_b32 v{t1}, 1, v0")
    a(f"v_lshl_add_u32 v{L_HS}, v{t1}, 2, v{t0}")
    a(f"s_lshr_b32 s{S_T0}, s{S_CW}, 1")
    a(f"s_lshl_b32 s{S_T0}, s{S_T0}, 5")
    a(f"s_and_b32 s{S_T1}, s{S_CW}, 1")
    a(f"s_lshl_b32 s{S_T1}, s{S_T1}, 2")
    a(f"s_add_u32 s{S_T0}, s{S_T0}, s{S_T1}")
    a(f"s_and_b32 s{S_T1}, s{S_J}, 1")
    a(f"s_lshl_b32 s{S_T1}, s{S_T1}, 1")
    a(f"s_movk_i32 s{S_T2}, 9216")
    for i in range(5):
        a(f"v_add_u32 v{t0}, {64*i}, v0")
        a(f"v_mul_u32_u24 v{t1}, 3641, v{t0}")
        a(f"v_lshrrev_b32 v{L_W2+i}, 16, v{t1}")
        a(f"v_mul_u32_u24 v{t2}, 18, v{L_W2+i}")
        a(f"v_sub_u32 v{20+i}, v{t0}, v{t2}")
        a(f"v_add_u32 v{t0}, s{S_T1}, v{20+i}")
        a(f"v_subrev_u32 v{t2}, 18, v{t0}")
        a(f"v_min_u32 v{t0}, v{t0}, v{t2}")
        a(f"v_lshrrev_b32 v{t2}, 2, v{L_W2+i}")
        a(f"v_and_b32 v{t1}, 3, v{L_W2+i}")
        a(f"v_lshl_add_u32 v{t1}, v{t2}, 3, v{t1}")
        a(f"v_add_u32 v{t1}, s{S_T0}, v{t1}")
        a(f"v_lshlrev_b32 v{t0}, 4, v{t0}")
        a(f"v_mad_u32_u24 v{L_W1+i}, v{t1}, s{S_T2}, v{t0}")

def loader_addr_w2(a):
    t0 = L_T
    a(f"s_lshl_b32 s{S_T3}, s{S_CW}, 4")
    a(f"s_movk_i32 s{S_T2}, 1152")
    for i in range(5):
        a(f"v_add_u32 v{t0}, s{S_T3}, v{L_W2+i}")
        a(f"v_lshlrev_b32 v{20+i}, 4, v{20+i}")
        a(f"v_mad_u32_u24 v{L_W2+i}, v{t0}, s{S_T2}, v{20+i}")

def issue_w(a, vbase, srdreg):
    for i in range(5):
        if i == 0: a(f"s_add_u32 m0, s{S_DSLOT}, s{S_WLDS}")
        else:      a(f"s_add_u32 m0, m0, 1024")
        a("s_mov_b32 exec_hi, 0" if i == 4 else "s_nop 0")
        a(f"buffer_load_dwordx4 v{vbase+i}, s[{srdreg}:{srdreg+3}], s{S_WOFF} offen{NT()} lds")
    a("s_mov_b32 exec_hi, -1")
    slot_advance(a, S_DSLOT)

S_PF = 96
def spf_w2_setup(a):
    a(f"s_lshl_b32 s{S_T0}, s{S_MT}, 2")
    a(f"s_add_u32 s{S_T0}, s{S_T0}, s{S_J}")
    a(f"s_mul_i32 s{S_T0}, s{S_T0}, 162")
    a(f"s_mul_i32 s{S_T1}, s{S_CW}, 40")
    a(f"s_add_u32 s{S_T0}, s{S_T0}, s{S_T1}")
    a(f"s_lshl_b32 s{S_T0}, s{S_T0}, 7")
    a(f"s_mul_i32 s{S_T1}, s{S_XG}, {576*1152}")
    a(f"s_add_u32 s{S_T0}, s{S_T0}, s{S_T1}")
    a(f"s_add_u32 s{S_PF}, s{S_W2}, s{S_T0}")
    a(f"s_addc_u32 s{S_PF+1}, s{S_W2+1}, 0")
def spf_w2(a):
    for i in range(6):
        a(f"s_load_dword s95, s[{S_PF}:{S_PF+1}], {128*i}")
    a(f"s_add_u32 s{S_PF}, s{S_PF}, 768")
    a(f"s_addc_u32 s{S_PF+1}, s{S_PF+1}, 0")

S_TN, S_TST, S_TREAL, S_TOFF = 97, 93, 95, 96
L_TV = 26
def stag(): return 'stag' in opt
def st_cnt(): return 9 if stag() else 7
def issue_touch(a):
    a(f"s_cmp_eq_u32 s{S_TN}, s{S_TST}")
    a(f"s_cselect_b32 s{S_TOFF}, s{S_TREAL}, 0x70000000")
    a(f"s_add_u32 s{S_TN}, s{S_TN}, 1")
    a(f"buffer_load_dword v{L_TV+1}, v{L_TV}, s[{SRD_W2}:{SRD_W2+3}], s{S_TOFF} offen")
def touch_setup(a):
    a(f"s_lshl_b32 s{S_T0}, s{S_MT}, 2")
    a(f"s_add_u32 s{S_T0}, s{S_T0}, s{S_J}")
    a(f"s_mul_i32 s{S_T0}, s{S_T0}, 162")
    a(f"s_mul_i32 s{S_T1}, s{S_CW}, 41")
    a(f"s_add_u32 s{S_T0}, s{S_T0}, s{S_T1}")
    a(f"s_lshl_b32 s{S_T0}, s{S_T0}, 7")
    a(f"s_mul_i32 s{S_T1}, s{S_XG}, {576*1152}")
    a(f"s_add_u32 s{S_TREAL}, s{S_T0}, s{S_T1}")
    a(f"v_min_u32 v{L_TV}, 40, v0")
    a(f"v_lshlrev_b32 v{L_TV}, 7, v{L_TV}")
    a(f"s_mov_b32 s{S_TN}, 0")
    for o in opt:
        if o.startswith('stg'):
            a(f"s_lshr_b32 s{S_TST}, s{S_MT}, {o[3]}")
            a(f"s_add_u32 s{S_TST}, s{S_TST}, {o[4]}")
            break
    else:
        a(f"s_add_u32 s{S_TST}, s{S_MT}, 1")

def issue_stage1(a, pf=False):
    issue_stage1_(a)
    if stag(): issue_touch(a)

def issue_stage1_(a, pf=False):
    a(f"s_lshl_b32 s{S_T0}, s{S_P}, 7")
    a(f"s_add_u32 s{S_T0}, s{S_T0}, s{S_XROW}")
    a(f"s_mov_b32 m0, s{S_BDST}")
    a(f"s_mul_i32 s{S_WOFF}, s{S_P}, {64*9216}")
    a(f"buffer_load_dwordx4 v{L_X}, s[{SRD_X}:{SRD_X+3}], s{S_T0} offen{NT()} lds")
    a(f"s_add_u32 m0, m0, 1024")
    a(f"s_add_u32 s{S_WOFF}, s{S_WOFF}, s{S_WCOL}")
    a(f"buffer_load_dwordx4 v{L_X+1}, s[{SRD_X}:{SRD_X+3}], s{S_T0} offen{NT()} lds")
    a(f"s_add_u32 s{S_BDST}, s{S_BDST}, 2048")
    issue_w(a, L_W1, SRD_W1)
    a(f"s_add_u32 s{S_P}, s{S_P}, 1")
    a(f"s_cmp_eq_u32 s{S_P}, 9")
    a(f"s_cselect_b32 s{S_P}, 0, s{S_P}")

def wrap9(a, reg):
    a(f"s_add_u32 s{reg}, s{reg}, 1")
    a(f"s_cmp_eq_u32 s{reg}, 9")
    a(f"s_cselect_b32 s{reg}, 0, s{reg}")

def issue_w2(a):
    a(f"s_mul_i32 s{S_WOFF}, s{S_P2}, {64*1152}")
    a(f"s_add_u32 s{S_WOFF}, s{S_WOFF}, s{S_W2B}")
    issue_w(a, L_W2, SRD_W2)
    wrap9(a, S_P2)

L_HS = 25
def issue_h(a, n):
    W = f"s[{SRD_WS}:{SRD_WS+3}]"
    for s0 in range(2):
        ks = 2*n + s0
        a(f"s_add_u32 m0, s{S_BLDS}, {ks*1024}")
        a(f"s_add_u32 s{S_HOFF}, s{S_HB}, {ks*1024}")
        if ks not in (4, 13):
            a(f"buffer_load_dwordx4 v{L_H}, {W}, s{S_HOFF} offen sc1 lds")
        else:
            for q in range(4):
                if q: a("s_add_u32 m0, m0, 128\ns_nop 0")
                a(f"buffer_load_dword v{L_HS}, {W}, s{S_HOFF} offen offset:{128*q} sc1 lds")
def h_count(n): return 5 if n in (2, 6) else 2

def poll_pub(a, tag, vtmp, preloaded=False):
    if preloaded:
        a("s_waitcnt vmcnt(0)")
        a(f"v_cmp_ne_u32 vcc, 1, v{vtmp}")
        a(f"s_cbranch_vccz L_PGX{tag}")
    a(f"s_mov_b32 s{S_T3}, 0")
    a.label(f"L_PG{tag}")
    a(f"s_add_u32 s{S_T3}, s{S_T3}, 1")
    a(f"s_cmp_gt_u32 s{S_T3}, {SPIN}")
    a(f"s_cbranch_scc1 L_PGX{tag}")
    a(f"buffer_load_dword v{vtmp}, off, s[{SRD_DBG}:{SRD_DBG+3}], 0 sc1")
    a("s_waitcnt vmcnt(0)")
    a(f"v_cmp_ne_u32 vcc, 1, v{vtmp}")
    a(f"s_cbranch_vccnz L_PG{tag}")
    a.label(f"L_PGX{tag}")

R_D, R_ACC, R_T, R_A = 72, 88, 92, 96
def reducer(a, tag, single):
    W = f"s[{SRD_WS}:{SRD_WS+3}]"
    if single:
        a(f"v_min_u32 v{R_A}, 31, v0")
        a(f"v_mov_b32 v{R_T}, v{R_A}")
        a(f"v_lshlrev_b32 v{R_A}, 3, v{R_A}")
        a(f"s_add_u32 s{S_T0}, s{S_INB}, 2048")
        a(f"s_mov_b32 s{S_T2}, 256")
        a(f"v_mov_b32 v{R_T+1}, 0")
    else:
        a(f"v_lshlrev_b32 v{R_A}, 3, v0")
        a(f"v_lshrrev_b32 v{R_T}, 1, v0")
        a(f"s_lshl_b32 s{S_T0}, s{S_CW}, 9")
        a(f"s_add_u32 s{S_T0}, s{S_T0}, s{S_INB}")
        a(f"s_lshl_b32 s{S_T2}, s{S_CW}, 6")
        a(f"v_and_b32 v{R_T+1}, 1, v0")
    a(f"v_and_b32 v{R_T+2}, 7, v{R_T}")
    a(f"v_mul_u32_u24 v{R_T+2}, 1152, v{R_T+2}")
    a(f"v_lshrrev_b32 v{R_T}, 3, v{R_T}")
    a(f"v_lshl_add_u32 v{R_T+2}, v{R_T}, 3, v{R_T+2}")
    a(f"v_lshl_add_u32 v{R_A+1}, v{R_T+1}, 5, v{R_T+2}")
    a(f"s_lshl_b32 s{S_T1}, s{S_MT}, 3")
    a(f"s_add_u32 s{S_T1}, s{S_T1}, s{S_XG}")
    a(f"s_mul_i32 s{S_T1}, s{S_T1}, {8*1152}")
    a(f"s_add_u32 s{S_T2}, s{S_T2}, s{S_T1}")
    a(f"s_mul_i32 s{S_T1}, s{S_J}, 288")
    a(f"s_add_u32 s{S_T2}, s{S_T2}, s{S_T1}")
    srd(a, SRD_X, S_OUT, OUT_BYTES)
    a(f"s_mov_b32 s{S_T3}, 0")
    a.label(f"L_RP{tag}")
    a(f"s_mov_b32 s{S_T1}, s{S_T0}")
    for xg in range(8):
        a(f"buffer_load_dwordx2 v[{R_D+2*xg}:{R_D+2*xg+1}], v{R_A}, {W}, s{S_T1} offen sc1")
        if xg < 7: a(f"s_add_u32 s{S_T1}, s{S_T1}, 2304")
    a(f"s_add_u32 s{S_T3}, s{S_T3}, 1")
    a(f"s_cmp_gt_u32 s{S_T3}, {SPIN}")
    a(f"s_cbranch_scc1 L_RPX{tag}")
    a("s_waitcnt vmcnt(0)")
    a(f"v_max3_u32 v{R_T}, v{R_D}, v{R_D+1}, v{R_D+2}")
    for i in range(3, 15, 2):
        a(f"v_max3_u32 v{R_T}, v{R_T}, v{R_D+i}, v{R_D+i+1}")
    a(f"v_max_u32 v{R_T}, v{R_T}, v{R_D+15}")
    a(f"v_cmp_eq_u32 vcc, -1, v{R_T}")
    a(f"s_cbranch_vccnz L_RP{tag}")
    a.label(f"L_RPX{tag}")
    a("s_waitcnt vmcnt(0)")
    for xg in range(8):
        for d in range(2):
            src = R_D + 2*xg + d
            if xg == 0:
                a(f"v_lshlrev_b32 v{R_ACC+2*d}, 16, v{src}")
                a(f"v_and_b32 v{R_ACC+2*d+1}, 0xffff0000, v{src}")
            else:
                a(f"v_lshlrev_b32 v{R_T+2*d}, 16, v{src}")
                a(f"v_and_b32 v{R_T+2*d+1}, 0xffff0000, v{src}")
        if xg:
            for d in range(4): a(f"v_add_f32 v{R_ACC+d}, v{R_ACC+d}, v{R_T+d}")
    a(f"v_cvt_pk_bf16_f32 v{R_D}, v{R_ACC}, v{R_ACC+1}")
    a(f"v_cvt_pk_bf16_f32 v{R_D+1}, v{R_ACC+2}, v{R_ACC+3}")
    if single: a("s_mov_b32 exec_hi, 0")
    a(f"buffer_store_dwordx2 v[{R_D}:{R_D+1}], v{R_A+1}, s[{SRD_X}:{SRD_X+3}], s{S_T2} offen")
    if single: a("s_mov_b32 exec_hi, -1")

L_F = 28
def loader_fill(a):
    W = f"s[{SRD_WS}:{SRD_WS+3}]"
    a(f"s_mul_i32 s{S_T1}, s{S_CW}, 4608")
    a(f"s_add_u32 s{S_T0}, s{S_INB}, s{S_T1}")
    for i in range(4):
        a(f"buffer_store_dwordx4 v[{L_F}:{L_F+3}], v{L_H}, {W}, s{S_T0} offen offset:{1024*i} sc1")
    a(f"s_add_u32 s{S_T0}, s{S_T0}, 4096")
    a(f"buffer_store_dwordx4 v[{L_F}:{L_F+3}], v{L_F+4}, {W}, s{S_T0} offen sc1")
def loader_tail_setup(a):
    a(f"s_lshl_b32 s{S_T0}, s{S_MT}, 2")
    a(f"s_add_u32 s{S_T0}, s{S_T0}, s{S_J}")
    a(f"s_mul_i32 s{S_T0}, s{S_T0}, {INBOX_B}")
    a(f"s_mul_i32 s{S_T1}, s{S_XG}, 18432")
    a(f"s_add_u32 s{S_T0}, s{S_T0}, s{S_T1}")
    a(f"s_add_u32 s{S_INB}, s{S_T0}, {INBOX_OFF}")
    for i in range(4): a(f"v_mov_b32 v{L_F+i}, -1")
    a(f"v_min_u32 v{L_F+4}, 31, v0")
    a(f"v_lshlrev_b32 v{L_F+4}, 4, v{L_F+4}")
    a(f"v_mov_b32 v{L_F+5}, 1")
    a(f"s_lshl_b32 s{S_F2}, s{S_GRP}, 5")
    a(f"s_lshl_b32 s{S_T0}, s{S_J}, 2")
    a(f"s_add_u32 s{S_T0}, s{S_T0}, s{S_CW}")
    a(f"s_lshl_b32 s{S_T0}, s{S_T0}, 2")
    a(f"s_add_u32 s{S_F2}, s{S_F2}, s{S_T0}")
    a(f"s_add_u32 s{S_F2}, s{S_F2}, {FLAG2_OFF}")
    a(f"v_lshrrev_b32 v{L_F+6}, 2, v0")
    a(f"v_and_b32 v{L_F+6}, 7, v{L_F+6}")
    a(f"v_lshlrev_b32 v{L_F+6}, 10, v{L_F+6}")
    a(f"v_and_b32 v{L_F+7}, 3, v0")
    a(f"v_lshl_add_u32 v{L_F+6}, v{L_F+7}, 2, v{L_F+6}")
    a(f"s_lshl_b32 s{S_CK}, s{S_MT}, 7")
    a(f"s_lshl_b32 s{S_T0}, s{S_J}, 4")
    a(f"s_add_u32 s{S_CK}, s{S_CK}, s{S_T0}")
    a(f"s_add_u32 s{S_CK}, s{S_CK}, {FLAG_OFF if ('fill0' in opt or 'fillb' in opt) else FLAG2_OFF}")
    a(f"s_mul_i32 s{S_T0}, s{S_J}, 24")
    a(f"v_min_u32 v{L_F+8}, 23, v0")
    a(f"v_add_u32 v{L_F+8}, s{S_T0}, v{L_F+8}")
    a(f"v_lshlrev_b32 v{L_F+8}, 7, v{L_F+8}")
    a(f"s_add_u32 s{S_HT}, s{S_HB}, {3*2048}")
S_F2, S_CK, S_HT = 50, 51, 55

def loader(a):
    a.label("L_LOADER")
    loader_addr_setup(a)
    a(f"s_lshl_b32 s{S_T0}, s{S_MT}, 2")
    a(f"s_add_u32 s{S_T0}, s{S_T0}, s{S_CW}")
    a(f"s_mul_i32 s{S_XROW}, s{S_T0}, {16*1152}")
    a(f"s_mul_i32 s{S_BLDS}, s{S_CW}, {WST}")
    a(f"s_add_u32 s{S_BLDS}, s{S_BLDS}, {LB}")
    a(f"s_mov_b32 s{S_BDST}, s{S_BLDS}")
    a(f"s_mul_i32 s{S_WCOL}, s{S_XG}, 1152")
    a(f"s_mul_i32 s{S_T0}, s{S_J}, 288")
    a(f"s_add_u32 s{S_WCOL}, s{S_WCOL}, s{S_T0}")
    a(f"s_mul_i32 s{S_WLDS}, s{S_CW}, 4608")
    a(f"s_mov_b32 s{S_DSLOT}, 0")
    if 'norot' in opt: a(f"s_mov_b32 s{S_P}, 0")
    else:
        a(f"s_lshl_b32 s{S_P}, s{S_J}, 1")
        a(f"s_add_u32 s{S_P}, s{S_P}, s{S_MT}")
        a(f"s_sub_u32 s{S_T0}, s{S_P}, 9")
        a(f"s_cmp_ge_u32 s{S_P}, 9")
        a(f"s_cselect_b32 s{S_P}, s{S_T0}, s{S_P}")
    a(f"s_mov_b32 s{S_P2}, 0")
    a("s_waitcnt lgkmcnt(0)")
    srd(a, SRD_X, S_X, X_BYTES)
    srd(a, SRD_W1, S_W1, W_BYTES)
    if stag():
        srd(a, SRD_W2, S_W2, W_BYTES)
        touch_setup(a)
    if 'spf2' in opt:
        a(f"s_getpc_b64 s[{S_K}:{S_K+1}]")
        a(f"s_mul_i32 s{S_T0}, s{S_CW}, 1792")
        a(f"s_add_u32 s{S_K}, s{S_K}, s{S_T0}")
        a(f"s_addc_u32 s{S_K+1}, s{S_K+1}, 0")
        for i in range(14):
            a(f"s_load_dword s95, s[{S_K}:{S_K+1}], {128*i+ (0)}")
    if 'pspin' in opt:
        a("s_memtime s[96:97]\ns_waitcnt lgkmcnt(0)\ns_mov_b32 s95, s96")
        a.label("L_PSPIN")
        a("s_memtime s[96:97]\ns_waitcnt lgkmcnt(0)\ns_sub_u32 s96, s96, s95\ns_cmp_lt_u32 s96, 8000\ns_cbranch_scc1 L_PSPIN")
    if 'prspin' in opt:
        a("s_memrealtime s[96:97]\ns_waitcnt lgkmcnt(0)\ns_mov_b32 s95, s96")
        a.label("L_PSPIN")
        a("s_memrealtime s[96:97]\ns_waitcnt lgkmcnt(0)\ns_sub_u32 s96, s96, s95\ns_cmp_lt_u32 s96, 400\ns_cbranch_scc1 L_PSPIN")
    for nm, sreg, nb in (('pw1', SRD_W1, 16384), ('px', SRD_X, 2048), ('pws', None, 16384), ('pw2', None, 16384), ('pt64', None, 0), ('pt2m', None, 0), ('pw1e', SRD_W1, 16384)):
        if nm in opt:
            if nm in ('pws', 'pt64', 'pt2m'): srd(a, SRD_WS, S_WS, WS_BYTES); sreg = SRD_WS
            if nm == 'pw2': srd(a, SRD_W2, S_W2, W_BYTES); sreg = SRD_W2
            a(f"s_cmp_eq_u32 s{S_WV}, 4")
            a("s_cbranch_scc0 L_PLD")
            a(f"s_mul_i32 s95, s2, {nb}")
            if nm == 'pws': a(f"s_add_u32 s95, s95, {64<<20}")
            step = nb//16
            if nm == 'pt64':
                a(f"s_lshl_b32 s95, s2, 7"); a(f"s_add_u32 s95, s95, {64<<20}"); step = 65536
            if nm == 'pt2m':
                a(f"s_lshl_b32 s95, s2, 7"); a(f"s_add_u32 s95, s95, {64<<20}"); step = 2 << 20
            if nm == 'pw1e':
                a(f"s_lshl_b32 s95, s2, 12"); a(f"s_add_u32 s95, s95, {5308416 - (1<<20)}"); step = 256
            for i in range(16):
                a(f"buffer_load_dword v30, off, s[{sreg}:{sreg+3}], s95")
                a("s_waitcnt vmcnt(0)")
                a(f"s_add_u32 s95, s95, {step}")
            a.label("L_PLD")
    stamp(a, 1)
    NT_ON[0] = True
    issue_stage1(a)
    if 'ldiag' in opt: stamp(a, 2)
    issue_stage1(a)
    NT_ON[0] = 'nt2' in opt
    if 'ldiag' in opt: stamp(a, 3)
    srd(a, SRD_W2, S_W2, W_BYTES)
    srd(a, SRD_WS, S_WS, WS_BYTES)
    srd(a, SRD_DBG, S_DBG, 256)
    loader_addr_w2(a)
    if 'ldiag' not in opt: stamp(a, 2)
    a("s_waitcnt vmcnt(%d)" % st_cnt())
    if 'ldiag' in opt: stamp(a, 4)
    a("s_barrier")
    if 'ldiag' not in opt: stamp(a, 3)
    issue_stage1(a, True)
    NT_ON[0] = False
    if 'ldiag' in opt:
        stamp(a, 5)
        a("s_waitcnt vmcnt(7)")
        stamp(a, 6)
        a("s_barrier")
        issue_stage1(a)
        stamp(a, 7)
        a("s_waitcnt vmcnt(7)")
        stamp(a, 8)
        a("s_barrier")
        issue_stage1(a)
        stamp(a, 9)
    a(f"s_mov_b32 s{S_N}, {2 if 'ldiag' in opt else 0}")
    a.label("L_LD1")
    if 'ldiag' in opt: LD_DONE[0] = True
    a("s_waitcnt vmcnt(%d)" % st_cnt())
    a("s_barrier")
    issue_stage1(a, True)
    a(f"s_add_u32 s{S_N}, s{S_N}, 1")
    a(f"s_cmp_lt_u32 s{S_N}, 6")
    a("s_cbranch_scc1 L_LD1")
    a(f"s_mul_i32 s{S_W2B}, s{S_XG}, {576*1152}")
    a(f"s_mul_i32 s{S_T0}, s{S_J}, 288")
    a(f"s_add_u32 s{S_W2B}, s{S_W2B}, s{S_T0}")
    loader_tail_setup(a)
    w2t = 'now2t' not in opt and 'sw2' not in opt and not stag()
    if w2t:
        a(f"s_lshl_b32 s{S_T0}, s{S_MT}, 2")
        a(f"s_add_u32 s{S_T0}, s{S_T0}, s{S_J}")
        a(f"s_mul_i32 s{S_T0}, s{S_T0}, 162")
        a(f"s_mul_i32 s{S_T1}, s{S_CW}, 41")
        a(f"s_add_u32 s{S_T0}, s{S_T0}, s{S_T1}")
        a(f"s_lshl_b32 s{S_T0}, s{S_T0}, 7")
        a(f"s_mul_i32 s{S_T1}, s{S_XG}, {576*1152}")
        a(f"s_add_u32 s{S_T0}, s{S_T0}, s{S_T1}")
        a(f"v_min_u32 v{L_T}, 40, v0")
        a(f"v_lshlrev_b32 v{L_T}, 7, v{L_T}")
        a(f"buffer_load_dword v{L_T+2}, v{L_T}, s[{SRD_W2}:{SRD_W2+3}], s{S_T0} offen" + ("" if 'nont' in opt else " nt"))
    a("s_waitcnt vmcnt(%d)" % (9 if stag() else (8 if w2t else 7)))
    a("s_barrier")
    nA, nB, nC = 0, 0, 3
    for o in opt:
        if o.startswith('sch'): nA, nB, nC = int(o[3]), int(o[4]), int(o[5])
    assert nA + nB + nC <= 4
    wnext = [9]
    def W_now():
        issue_w2(a); wnext[0] += 1
    for _ in range(nA): W_now()
    a("s_waitcnt vmcnt(%d)" % ((1 if (w2t or stag()) else 0) + 5*nA))
    a("s_barrier")
    a("s_barrier")
    stamp(a, 4)
    for _ in range(nB): W_now()
    poll_pub(a, "L", L_T)
    a(f"s_lshl_b32 s{S_T2}, s{S_GRP}, 5")
    a(f"s_add_u32 s{S_T2}, s{S_T2}, {FLAG_OFF}")
    a(f"v_and_b32 v{L_T+1}, 15, v0")
    a(f"v_lshlrev_b32 v{L_T+1}, 2, v{L_T+1}")
    a("s_barrier")
    stamp(a, 5)
    for _ in range(nC): W_now()
    a(f"s_mov_b32 s{S_T3}, 0")
    a.label("L_PF")
    a(f"s_add_u32 s{S_T3}, s{S_T3}, 1")
    a(f"s_cmp_gt_u32 s{S_T3}, {SPIN}")
    a(f"s_cbranch_scc1 L_PFX")
    a(f"buffer_load_dword v{L_T}, v{L_T+1}, s[{SRD_WS}:{SRD_WS+3}], s{S_T2} offen sc1")
    a("s_waitcnt vmcnt(0)")
    a(f"v_cmp_ne_u32 vcc, 1, v{L_T}")
    a("s_cbranch_vccnz L_PF")
    a.label("L_PFX")
    stamp(a, 6)
    q = []
    def iss(name, cnt, fn):
        fn(); q.append((name, cnt))
    def wait(*names):
        idx = [i for i, (nm, c) in enumerate(q) if nm in names]
        last = max(idx) if idx else -1
        a("s_waitcnt vmcnt(%d)" % sum(c for nm, c in q[last+1:]))
    H = lambda n: iss(f"h{n}", h_count(n), lambda: issue_h(a, n))
    def Wn(n):
        assert wnext[0] == n, (wnext, n)
        iss(f"W{n}", 5, lambda: issue_w2(a)); wnext[0] += 1
    W_ = f"s[{SRD_WS}:{SRD_WS+3}]"
    if 'nohw' not in opt:
        iss("hw", 1, lambda: a(f"buffer_load_dword v{L_F+9}, v{L_F+8}, {W_}, s{S_HT} offen sc1"))
    H(0); H(1); H(2)
    wait("h0")
    a("s_barrier")
    stamp(a, 7)
    assert wnext[0] >= 10
    fill_at = 10; pub_at = 12; chk_at = 15
    for o in opt:
        if o.startswith('fillat'): fill_at = int(o[6:]); pub_at = min(fill_at + 2, 16); chk_at = max(chk_at, min(pub_at + 1, 16))
    hn = 3
    for s in range(10, 18):
        nw = wnext[0]
        if nw <= 17 and (nw <= 12 or nw <= s + 1):
            Wn(nw)
        if hn <= 8:
            H(hn); hn += 1
        if hn <= 8 and 'h2' in opt:
            H(hn); hn += 1
        ext = 'fill0' in opt or 'fillb' in opt
        if s == fill_at and not ext: iss("fill", 5, lambda: loader_fill(a))
        if s == chk_at:
            iss("chk", 1, lambda: a(f"buffer_load_dword v{L_F+7}, v{L_F+6}, {W_}, s{S_CK} offen sc1"))
        if s == pub_at and not ext:
            wait("fill", f"h{s-9}", f"W{s}")
            def pub():
                a("s_mov_b64 exec, 1")
                a(f"buffer_store_dword v{L_F+5}, off, {W_}, s{S_F2} sc1")
                a("s_mov_b64 exec, -1")
            iss("pub", 1, pub)
        if s == 17:
            a("s_waitcnt vmcnt(0)")
            a(f"v_cmp_ne_u32 vcc, 1, v{L_F+7}")
            a("s_cbranch_vccz L_CHKOK")
            a(f"s_mov_b32 s{S_T3}, 0")
            a.label("L_CHK")
            a(f"s_add_u32 s{S_T3}, s{S_T3}, 1")
            a(f"s_cmp_gt_u32 s{S_T3}, {SPIN}")
            a("s_cbranch_scc1 L_CHKOK")
            a(f"buffer_load_dword v{L_F+7}, v{L_F+6}, {W_}, s{S_CK} offen sc1")
            a("s_waitcnt vmcnt(0)")
            a(f"v_cmp_ne_u32 vcc, 1, v{L_F+7}")
            a("s_cbranch_vccnz L_CHK")
            a.label("L_CHKOK")
        wait(f"h{s-9}", f"W{s}")
        have = [nm for nm, c in q]
        assert (f"h{s-9}" in have) and (f"W{s}" in have or s < wnext[0]), (s, have)
        a("s_barrier")
    stamp(a, 8)
    a("s_barrier")
    reducer(a, "L", single=False)
    stamp(a, 9)
    LD_DONE[0] = False
    dump_stamps(a, 1, 10, "LD", 4)
    a("s_endpgm")

C_BF, C_BS = 2, 4
C_A, C_A8, C_AC, C_A8C = 6, 7, 8, 9
C_T = 10
C_BP = 108
A0, B0, A1, B1 = 16, 36, 44, 64
ACC = 72
C_E = 112
C_CHK = 14
S_CHK = 92

def reads_step(Aset, Bset, s0):
    ins = [f"ds_read_b128 v[{Bset}:{Bset+3}], v{C_BF+s0}"]
    def A(t):
        vaddr = C_AC if t < 4 else C_A8C
        off = s0*9216 + (32*t if t < 4 else 0)
        return [f"ds_read_b64_tr_b16 v[{Aset+4*t}:{Aset+4*t+1}], v{vaddr} offset:{off}",
                f"ds_read_b64_tr_b16 v[{Aset+4*t+2}:{Aset+4*t+3}], v{vaddr} offset:{off+4608}"]
    ins += A(0)
    ins.append(f"ds_read_b128 v[{Bset+4}:{Bset+7}], v{C_BS+s0}")
    for t in range(1, 5): ins += A(t)
    return ins

def mfmas(Aset, Bset):
    def m(acc, t, b):
        return f"v_mfma_f32_16x16x32_bf16 v[{ACC+4*acc}:{ACC+4*acc+3}], v[{Aset+4*t}:{Aset+4*t+3}], v[{Bset+4*b}:{Bset+4*b+3}], v[{ACC+4*acc}:{ACC+4*acc+3}]"
    out = []
    for t in range(4):
        out.append(m(t, t, 0)); out.append(m(4+t, t, 1))
    out.append(m(8, 4, 0))
    return out

def block(a, r, m):
    for u in range(9):
        a(m[u])
        if r and u < 6:
            a(r[2*u]); a(r[2*u+1])

def set_stage_addrs(a, first=False):
    a(f"v_add_u32 v{C_AC}, s{S_RSLOT}, v{C_A}")
    a(f"v_add_u32 v{C_A8C}, s{S_RSLOT}, v{C_A8}")
    for i, r in enumerate((C_BF, C_BF+1, C_BS, C_BS+1)):
        if first: a(f"v_mov_b32 v{r}, v{C_BP+i}")
        else:     a(f"v_add_u32 v{r}, 2048, v{r}")

def compute_loop_diag(a, name, k0):
    for n in range(9):
        a("s_waitcnt lgkmcnt(0)")
        if n: a(f"s_mov_b32 s{S_TS+k0+n-1}, s96")
        block(a, reads_step(A1, B1, 1), mfmas(A0, B0))
        slot_advance(a, S_RSLOT)
        set_stage_addrs(a)
        if n == 8: break
        a("s_barrier")
        a("s_memtime s[96:97]")
        a("s_waitcnt lgkmcnt(0)")
        block(a, reads_step(A0, B0, 0), mfmas(A1, B1))
    a("s_waitcnt lgkmcnt(0)")
    block(a, None, mfmas(A1, B1))
    a("s_memtime s[96:97]")
    a("s_waitcnt lgkmcnt(0)")
    a(f"s_mov_b32 s{S_TS+k0+8}, s96")

def loop_hooks(a, name, sfx="", n=None):
    if name != "C2": return
    if n is not None:
        W = f"s[{SRD_WS}:{SRD_WS+3}]"
        if n == 2:
            a("s_waitcnt vmcnt(0)")
            a("s_mov_b64 exec, 1")
            a(f"buffer_store_dword v{C_T}, off, {W}, s{S_BLDS} sc1")
            a("s_mov_b64 exec, -1")
        if n == 6:
            a(f"buffer_load_dword v{C_CHK+1}, v{C_CHK}, {W}, s{S_CHK} offen sc1")
        return
    W = f"s[{SRD_WS}:{SRD_WS+3}]"
    a(f"s_cmp_eq_u32 s{S_N}, 2")
    a("s_cbranch_scc0 L_HK1" + sfx)
    a("s_waitcnt vmcnt(0)")
    a("s_mov_b64 exec, 1")
    a(f"buffer_store_dword v{C_T}, off, {W}, s{S_BLDS} offset:0 sc1".replace("offset:0 ", ""))
    a("s_mov_b64 exec, -1")
    a.label("L_HK1" + sfx)
    a(f"s_cmp_eq_u32 s{S_N}, 6")
    a("s_cbranch_scc0 L_HK2" + sfx)
    a(f"buffer_load_dword v{C_CHK+1}, v{C_CHK}, {W}, s{S_CHK} offen sc1")
    a.label("L_HK2" + sfx)

def compute_loop(a, name):
    if 'diag' in opt:
        return compute_loop_diag(a, name, 0 if name == "C1" else 10)
    a(f"s_mov_b32 s{S_N}, 0")
    a.label(f"L_{name}")
    a("s_waitcnt lgkmcnt(0)")
    block(a, reads_step(A1, B1, 1), mfmas(A0, B0))
    slot_advance(a, S_RSLOT)
    set_stage_addrs(a)
    a(f"s_cmp_eq_u32 s{S_N}, 8")
    a(f"s_cbranch_scc1 L_{name}_LAST")
    a("s_barrier")
    a("s_waitcnt lgkmcnt(0)")
    block(a, reads_step(A0, B0, 0), mfmas(A1, B1))
    a(f"s_add_u32 s{S_N}, s{S_N}, 1")
    a(f"s_branch L_{name}")
    a.label(f"L_{name}_LAST")
    a("s_waitcnt lgkmcnt(0)")
    block(a, None, mfmas(A1, B1))

def zero_acc(a):
    for i in range(0, 36, 2): a(f"v_pk_mov_b32 v[{ACC+i}:{ACC+i+1}], 0, 0")

def touches(a):
    t0, t1, t2 = C_T, C_T+1, C_T+2
    if 'nocode' not in opt:
        a(f"s_getpc_b64 s[{S_K}:{S_K+1}]")
        a.label("L_PC")
        a(f"s_sub_u32 s{S_K}, s{S_K}, (L_PC - {KNAME})")
        a(f"s_subb_u32 s{S_K+1}, s{S_K+1}, 0")
        a(f"v_lshlrev_b32 v{t0}, 7, v0")
        a(f"s_lshl_b32 s{S_T0}, s{S_CW}, 13")
        a(f"v_add_u32 v{t0}, s{S_T0}, v{t0}")
        a(f"v_cmp_gt_u32 vcc, (L_CODE_END - {KNAME}), v{t0}")
        a(f"s_and_saveexec_b64 s[{S_T0}:{S_T0+1}], vcc") if False else None
        a(f"v_min_u32 v{t0}, (L_CODE_END - {KNAME} - 4), v{t0}")
        a(f"global_load_dword v{C_E}, v{t0}, s[{S_K}:{S_K+1}]")

def touches_x(a):
    t0, t1, t2 = C_T, C_T+1, C_T+2
    a(f"s_mul_i32 s{S_T0}, s{S_CW}, 36")
    a(f"v_min_u32 v{t0}, 35, v0")
    a(f"v_add_u32 v{t0}, s{S_T0}, v{t0}")
    a(f"v_lshrrev_b32 v{t1}, 4, v{t0}")
    a(f"v_and_b32 v{t0}, 15, v{t0}")
    a(f"v_mul_u32_u24 v{t0}, 1152, v{t0}")
    a(f"v_lshl_add_u32 v{t0}, v{t1}, 7, v{t0}")
    a(f"s_lshl_b32 s{S_T0}, s{S_MT}, 2")
    a(f"s_add_u32 s{S_T0}, s{S_T0}, s{S_J}")
    a(f"s_mul_i32 s{S_T0}, s{S_T0}, {16*1152}")
    a(f"buffer_load_dword v{C_E+1}, v{t0}, s[{SRD_X}:{SRD_X+3}], s{S_T0} offen")
    if 'half' in opt:
        a(f"buffer_load_dword v{C_E+5}, v{t0}, s[{SRD_X}:{SRD_X+3}], s{S_T0} offen offset:64")

def touches_w2(a):
    t0, t1 = C_T, C_T+1
    a(f"s_lshl_b32 s{S_T0}, s{S_MT}, 2")
    a(f"s_add_u32 s{S_T0}, s{S_T0}, s{S_J}")
    a(f"s_mul_i32 s{S_T0}, s{S_T0}, 162")
    a(f"s_mul_i32 s{S_T1}, s{S_CW}, 41")
    a(f"s_add_u32 s{S_T0}, s{S_T0}, s{S_T1}")
    a(f"s_lshl_b32 s{S_T0}, s{S_T0}, 7")
    a(f"s_mul_i32 s{S_T1}, s{S_XG}, {576*1152}")
    a(f"s_add_u32 s{S_T0}, s{S_T0}, s{S_T1}")
    a(f"v_min_u32 v{t0}, 40, v0")
    a(f"v_lshlrev_b32 v{t0}, 7, v{t0}")
    a(f"buffer_load_dword v{C_E+2}, v{t0}, s[{SRD_W2}:{SRD_W2+3}], s{S_T0} offen")
    if 'half' in opt:
        a(f"buffer_load_dword v{C_E+4}, v{t0}, s[{SRD_W2}:{SRD_W2+3}], s{S_T0} offen offset:64")

def touches_ws(a):
    t0, t1 = C_T, C_T+1
    a(f"v_and_b32 v{t0}, 7, v0")
    a(f"v_lshlrev_b32 v{t0}, 21, v{t0}")
    a(f"buffer_load_dword v{C_E+3}, v{t0}, s[{SRD_WS}:{SRD_WS+3}], 0 offen")

def sentinel_fill(a):
    t1, t2 = C_T+1, C_T+2
    a(f"s_mul_i32 s{S_T1}, s{S_CW}, 4608")
    a(f"s_add_u32 s{S_T0}, s{S_INB}, s{S_T1}")
    for i in range(4): a(f"v_mov_b32 v{C_E+4+i}, -1")
    a(f"v_lshlrev_b32 v{C_E}, 4, v0")
    a(f"v_min_u32 v{C_E+1}, 31, v0")
    a(f"v_lshlrev_b32 v{C_E+1}, 4, v{C_E+1}")
    for i in range(4):
        a(f"buffer_store_dwordx4 v[{C_E+4}:{C_E+7}], v{C_E}, s[{SRD_WS}:{SRD_WS+3}], s{S_T0} offen offset:{1024*i} sc1")
    a(f"s_add_u32 s{S_T0}, s{S_T0}, 4096")
    a(f"buffer_store_dwordx4 v[{C_E+4}:{C_E+7}], v{C_E+1}, s[{SRD_WS}:{SRD_WS+3}], s{S_T0} offen sc1")

def compute(a):
    DIAG_C[0] = True
    t0, t1, t2 = C_T, C_T+1, C_T+2
    if 'codepf' in opt: touches(a)
    a(f"v_lshrrev_b32 v{t0}, 2, v0")
    a(f"v_mul_u32_u24 v{t0}, 288, v{t0}")
    a(f"v_and_b32 v{t1}, 3, v0")
    a(f"v_lshl_add_u32 v{t0}, v{t1}, 3, v{t0}")
    a(f"v_add_u32 v{C_A8}, 256, v{t0}")
    a(f"s_and_b32 s{S_T0}, s{S_CW}, 1")
    a(f"s_lshl_b32 s{S_T0}, s{S_T0}, 7")
    a(f"v_add_u32 v{C_A}, s{S_T0}, v{t0}")
    a(f"s_mul_i32 s{S_T1}, s{S_CW}, {WST}")
    a(f"s_add_u32 s{S_T1}, s{S_T1}, {LB}")
    a(f"s_xor_b32 s{S_T2}, s{S_CW}, 1")
    a(f"s_mul_i32 s{S_T2}, s{S_T2}, {WST}")
    a(f"s_add_u32 s{S_T2}, s{S_T2}, {LB}")
    a(f"v_and_b32 v{t0}, 15, v0")
    a(f"v_lshrrev_b32 v{t1}, 1, v{t0}")
    a(f"v_lshrrev_b32 v{t2}, 4, v0")
    a(f"v_xor_b32 v{t1}, v{t1}, v{t2}")
    a(f"v_lshlrev_b32 v{t1}, 4, v{t1}")
    a(f"v_lshl_add_u32 v{t2}, v{t0}, 7, v{t1}")
    a(f"v_xor_b32 v{t1}, 64, v{t1}")
    a(f"v_lshl_add_u32 v{t1}, v{t0}, 7, v{t1}")
    a(f"v_add_u32 v{C_BP}, s{S_T1}, v{t2}")
    a(f"v_add_u32 v{C_BP+1}, s{S_T1}, v{t1}")
    a(f"v_add_u32 v{C_BP+2}, s{S_T2}, v{t2}")
    a(f"v_add_u32 v{C_BP+3}, s{S_T2}, v{t1}")
    a(f"s_mov_b32 s{S_RSLOT}, 0")
    set_stage_addrs(a, True)
    zero_acc(a)
    a(f"s_lshl_b32 s{S_T0}, s{S_MT}, 2")
    a(f"s_add_u32 s{S_T0}, s{S_T0}, s{S_J}")
    a(f"s_mul_i32 s{S_T0}, s{S_T0}, {INBOX_B}")
    a(f"s_add_u32 s{S_T0}, s{S_T0}, {INBOX_OFF}")
    a(f"s_mul_i32 s{S_T1}, s{S_XG}, 18432")
    a(f"s_add_u32 s{S_INB}, s{S_T0}, s{S_T1}")
    a(f"s_mul_i32 s{S_T1}, s{S_XG}, 2304")
    a(f"s_add_u32 s{S_T0}, s{S_T0}, s{S_T1}")
    a(f"s_mul_i32 s{S_T1}, s{S_CW}, {2*18432}")
    a(f"s_add_u32 s{S_T1}, s{S_T1}, s{S_T0}")
    a(f"s_xor_b32 s{S_T2}, s{S_CW}, 1")
    a(f"s_mul_i32 s{S_T2}, s{S_T2}, {2*18432}")
    a(f"s_add_u32 s{S_T2}, s{S_T2}, s{S_T0}")
    a(f"s_and_b32 s{S_T0}, s{S_CW}, 1")
    a(f"s_lshl_b32 s{S_T0}, s{S_T0}, 10")
    a(f"s_add_u32 s{S_PB}, s{S_T2}, s{S_T0}")
    a(f"s_add_u32 s{S_PA}, s{S_T1}, s{S_T0}")
    a(f"s_add_u32 s{S_PS}, s{S_T1}, 2048")
    a(f"s_xor_b32 s{S_T2}, s{S_CW}, 1")
    a(f"s_sub_i32 s{S_T2}, s{S_T2}, s{S_CW}")
    a(f"s_mul_i32 s{S_T2}, s{S_T2}, {WST}")
    a(f"s_lshr_b32 s{S_T1}, s{S_J}, 1")
    a(f"s_mul_i32 s{S_T1}, s{S_T1}, {9*1024}")
    a(f"s_add_u32 s{S_T1}, s{S_T1}, {4*1024}")
    a(f"s_add_u32 s{S_T1}, s{S_T1}, s{S_HB}")
    a(f"s_and_b32 s{S_P}, s{S_J}, 1")
    a(f"s_lshl_b32 s{S_P}, s{S_P}, 9")
    a(f"s_add_u32 s{S_XROW}, s{S_T1}, s{S_P}")
    a(f"s_mul_i32 s{S_T1}, s{S_J}, 9")
    a(f"s_add_u32 s{S_T1}, s{S_T1}, 1")
    a(f"s_lshr_b32 s{S_T1}, s{S_T1}, 1")
    a(f"s_and_b32 s{S_P}, s{S_CW}, 1")
    a(f"s_lshl_b32 s{S_P}, s{S_P}, 1")
    a(f"s_add_u32 s{S_T1}, s{S_T1}, s{S_P}")
    a(f"s_lshl_b32 s{S_T1}, s{S_T1}, 10")
    a(f"s_add_u32 s{S_WCOL}, s{S_T1}, s{S_HB}")
    a(f"s_add_u32 s{S_WLDS}, s{S_WCOL}, s{S_T2}")
    a(f"s_lshl_b32 s{S_BLDS}, s{S_GRP}, 5")
    a(f"s_add_u32 s{S_BLDS}, s{S_BLDS}, {FLAG_OFF}")
    a(f"s_lshl_b32 s{S_P}, s{S_J}, 2")
    a(f"s_add_u32 s{S_P}, s{S_P}, s{S_CW}")
    a(f"s_lshl_b32 s{S_P}, s{S_P}, 2")
    a(f"s_add_u32 s{S_BLDS}, s{S_BLDS}, s{S_P}")
    a(f"s_lshl_b32 s{S_CHK}, s{S_MT}, 7")
    a(f"s_lshl_b32 s{S_T0}, s{S_J}, 4")
    a(f"s_add_u32 s{S_CHK}, s{S_CHK}, s{S_T0}")
    a(f"s_add_u32 s{S_CHK}, s{S_CHK}, {FLAG2_OFF}")
    a(f"s_mov_b32 s{S_K}, 0xbfb8aa3b")
    a(f"s_mov_b32 s{S_K+1}, 0xbfb8aa3b")
    if 'prio' in opt: a("s_setprio 2")
    a("s_waitcnt lgkmcnt(0)")
    srd(a, SRD_X, S_X, X_BYTES)
    srd(a, SRD_W2, S_W2, W_BYTES)
    srd(a, SRD_WS, S_WS, WS_BYTES)
    srd(a, SRD_DBG, S_DBG, 256)
    if 'fill0' in opt: sentinel_fill(a)
    if 'xpf' in opt: touches_x(a)
    if 'wspf' in opt: touches_ws(a)
    if 'w2early' in opt: touches_w2(a)
    a(f"s_cmp_eq_u32 s2, 0")
    a("s_cbranch_scc0 L_NOCLR")
    a(f"s_lshl_b32 s{S_T0}, s{S_CW}, 12")
    a(f"s_add_u32 s{S_T0}, s{S_T0}, {FLAG_OFF}")
    a(f"v_pk_mov_b32 v[{A1}:{A1+1}], 0, 0\nv_pk_mov_b32 v[{A1+2}:{A1+3}], 0, 0")
    a(f"v_lshlrev_b32 v{t1}, 4, v0")
    for i in range(4):
        a(f"buffer_store_dwordx4 v[{A1}:{A1+3}], v{t1}, s[{SRD_WS}:{SRD_WS+3}], s{S_T0} offen offset:{1024*i} sc1")
    a("s_waitcnt vmcnt(0)")
    a.label("L_NOCLR")
    a("s_barrier")
    stamp(a, 1)
    for ins in reads_step(A0, B0, 0): a(ins)
    a(f"s_lshl_b32 s{S_T1}, s2, 2")
    a(f"s_or_b32 s{S_T1}, s{S_T1}, s{S_CW}")
    a(f"s_cmp_eq_u32 s{S_T1}, 0")
    a("s_cbranch_scc0 L_NOPUB")
    a(f"v_mov_b32 v{t0}, 1")
    a("s_mov_b64 exec, 1")
    a(f"buffer_store_dword v{t0}, off, s[{SRD_DBG}:{SRD_DBG+3}], 0 sc1")
    a("s_mov_b64 exec, -1")
    a.label("L_NOPUB")
    compute_loop(a, "C1")
    a("s_barrier")
    stamp(a, 2)
    a("s_waitcnt vmcnt(0)")
    a(f"buffer_load_dword v{t0}, off, s[{SRD_DBG}:{SRD_DBG+3}], 0 sc1")
    a(f"v_lshlrev_b32 v{t1}, 4, v0")
    a(f"v_mov_b32 v{t2}, 1")
    W = f"s[{SRD_WS}:{SRD_WS+3}]"
    hsc = "" if 'hplain' in opt else " sc1"
    for u in range(9):
        x = ACC + 4*u
        e = C_E + 4*(u & 1)
        for r in (0, 2): a(f"v_pk_mul_f32 v[{e+r}:{e+r+1}], v[{x+r}:{x+r+1}], s[{S_K}:{S_K+1}]")
        for r in range(4): a(f"v_exp_f32 v{e+r}, v{e+r}")
        for r in (0, 2): a(f"v_pk_add_f32 v[{e+r}:{e+r+1}], v[{e+r}:{e+r+1}], 1.0 op_sel_hi:[1,0]")
        for r in range(4): a(f"v_rcp_f32 v{e+r}, v{e+r}")
        for r in (0, 2): a(f"v_pk_mul_f32 v[{x+r}:{x+r+1}], v[{x+r}:{x+r+1}], v[{e+r}:{e+r+1}]")
        a(f"v_cvt_pk_bf16_f32 v{A0+2*u}, v{x}, v{x+1}")
        a(f"v_cvt_pk_bf16_f32 v{A0+2*u+1}, v{x+2}, v{x+3}")
        if u in (1, 3, 5, 7):
            q = u >> 1
            sreg = S_WCOL if q < 2 else S_WLDS
            a(f"buffer_store_dwordx4 v[{A0+4*q}:{A0+4*q+3}], v{t1}, {W}, s{sreg} offen offset:{1024*(q&1)}{hsc}")
    if 'nosingle' not in opt:
        a(f"v_lshlrev_b32 v{C_T+3}, 3, v0")
        a(f"buffer_store_dwordx2 v[{A0+16}:{A0+17}], v{C_T+3}, {W}, s{S_XROW} offen{hsc}")
    stamp(a, 8)
    poll_pub(a, "C", t0, preloaded=True)
    a("s_mov_b64 exec, 1")
    a(f"buffer_store_dword v{t2}, off, {W}, s{S_BLDS}{hsc}")
    a("s_mov_b64 exec, -1")
    a("s_barrier")
    stamp(a, 3)
    a(f"s_mul_i32 s{S_T1}, s{S_CW}, {WST}")
    a(f"s_add_u32 s{S_T1}, s{S_T1}, {LB}")
    a(f"s_xor_b32 s{S_T2}, s{S_CW}, 1")
    a(f"s_mul_i32 s{S_T2}, s{S_T2}, {WST}")
    a(f"s_add_u32 s{S_T2}, s{S_T2}, {LB}")
    a(f"v_add_u32 v{C_BP}, s{S_T1}, v{t1}")
    a(f"v_add_u32 v{C_BP+1}, 1024, v{C_BP}")
    a(f"v_add_u32 v{C_BP+2}, s{S_T2}, v{t1}")
    a(f"v_add_u32 v{C_BP+3}, 1024, v{C_BP+2}")
    set_stage_addrs(a, True)
    zero_acc(a)
    a(f"v_lshrrev_b32 v{t0}, 4, v0")
    a(f"v_lshlrev_b32 v{t0}, 3, v{t0}")
    a(f"v_and_b32 v{t1}, 7, v0")
    a(f"v_add_u32 v{t0}, v{t0}, v{t1}")
    a(f"v_bfe_u32 v{t1}, v0, 3, 1")
    a(f"v_mul_u32_u24 v{t1}, 18432, v{t1}")
    a(f"v_lshl_add_u32 v{t2}, v{t0}, 3, v{t1}")
    a(f"v_lshl_add_u32 v{t1}, v{t0}, 4, v{t1}")
    a(f"v_mov_b32 v{t0}, 1")
    a("s_barrier")
    stamp(a, 4)
    for ins in reads_step(A0, B0, 0): a(ins)
    compute_loop(a, "C2")
    stamp(a, 5)
    W = f"s[{SRD_WS}:{SRD_WS+3}]"
    a(f"s_mov_b32 s{S_K}, 0xfffffffe")
    for q in range(4):
        for u in (2*q, 2*q+1):
            x = ACC + 4*u
            a(f"v_cvt_pk_bf16_f32 v{A0+2*u}, v{x}, v{x+1}")
            a(f"v_cvt_pk_bf16_f32 v{A0+2*u+1}, v{x+2}, v{x+3}")
        for d in range(4): a(f"v_min_u32 v{A0+4*q+d}, s{S_K}, v{A0+4*q+d}")
        sreg = S_PA if q < 2 else S_PB
        a(f"buffer_store_dwordx4 v[{A0+4*q}:{A0+4*q+3}], v{t1}, {W}, s{sreg} offen offset:{512*(q&1)} sc1")
    x = ACC + 32
    a(f"v_cvt_pk_bf16_f32 v{A0+16}, v{x}, v{x+1}")
    a(f"v_cvt_pk_bf16_f32 v{A0+17}, v{x+2}, v{x+3}")
    for d in range(2): a(f"v_min_u32 v{A0+16+d}, s{S_K}, v{A0+16+d}")
    a(f"buffer_store_dwordx2 v[{A0+16}:{A0+17}], v{t2}, {W}, s{S_PS} offen sc1")
    if 'ackE' in opt: a("s_waitcnt vmcnt(0)")
    a("s_barrier")
    stamp(a, 6)
    a(f"s_cmp_eq_u32 s{S_CW}, 0")
    a("s_cbranch_scc0 L_CDONE")
    reducer(a, "C", single=True)
    a.label("L_CDONE")
    if 'ts' in opt or amp_on():
        a("s_waitcnt vmcnt(0)")
    stamp(a, 7)
    amp_spin(a, 'C', 7)
    if 'clk' in opt:
        a("s_memtime s[96:97]")
        a("s_waitcnt lgkmcnt(0)")
        a("s_sub_u32 s78, s96, s98")
        a("s_mov_b32 s79, 0")
    dump_stamps(a, 0, 10 if ('diag' in opt or 'clk' in opt) else 9, "C", 0)
    DIAG_C[0] = False

def kernel_main(a):
    name = KNAME
    a(f".globl {name}\n.p2align 8\n.type {name},@function\n{name}:")
    a(f"s_cmp_ge_u32 s2, 256")
    a(f"s_cbranch_scc1 L_END")
    stamp(a, 0)
    if 'clk' in opt: a("s_memtime s[98:99]")
    a("s_load_dwordx8 s[4:11], s[0:1], 0")
    a("s_load_dwordx4 s[12:15], s[0:1], 32")
    a("v_lshrrev_b32 v1, 6, v0")
    a("v_and_b32 v0, 63, v0")
    a(f"v_readfirstlane_b32 s{S_WV}, v1")
    if 'spf' in opt:
        a(f"s_getpc_b64 s[{S_K}:{S_K+1}]")
        a.label("L_PC0")
        a(f"s_lshl_b32 s{S_T0}, s{S_WV}, 10")
        a(f"s_add_u32 s{S_T0}, s{S_T0}, 256")
        a(f"s_add_u32 s{S_K}, s{S_K}, s{S_T0}")
        a(f"s_addc_u32 s{S_K+1}, s{S_K+1}, 0")
        for i in range(8):
            a(f"s_load_dword s{S_T3}, s[{S_K}:{S_K+1}], {128*i}")
    if 'xmap' in opt:
        a(f"s_and_b32 s{S_J}, s2, 3")
        a(f"s_lshr_b32 s{S_XG}, s2, 2")
        a(f"s_and_b32 s{S_XG}, s{S_XG}, 7")
    else:
        a(f"s_and_b32 s{S_XG}, s2, 7")
        a(f"s_lshr_b32 s{S_J}, s2, 3")
        a(f"s_and_b32 s{S_J}, s{S_J}, 3")
    a(f"s_lshr_b32 s{S_MT}, s2, 5")
    a(f"s_lshl_b32 s{S_GRP}, s{S_XG}, 3")
    a(f"s_add_u32 s{S_GRP}, s{S_GRP}, s{S_MT}")
    a(f"s_lshr_b32 s{S_HB}, s{S_GRP}, 4")
    a(f"s_lshl_b32 s{S_HB}, s{S_HB}, 21")
    a(f"s_and_b32 s{S_T0}, s{S_GRP}, 15")
    a(f"s_mul_i32 s{S_T0}, s{S_T0}, {GRP_BYTES}")
    a(f"s_add_u32 s{S_HB}, s{S_HB}, s{S_T0}")
    a(f"s_lshl_b32 s{S_GRP}, s{S_GRP}, 2")
    a(f"s_and_b32 s{S_CW}, s{S_WV}, 3")
    a(f"s_mul_i32 s{S_T0}, s{S_CW}, {WST}")
    a(f"s_add_u32 s{S_HB}, s{S_HB}, s{S_T0}")
    a(f"s_add_u32 s{S_HB}, s{S_HB}, {H_OFF}")
    a(f"s_cmp_lt_u32 s{S_WV}, 4")
    a("s_cbranch_scc1 L_COMPUTE")
    loader(a)
    a.label("L_COMPUTE")
    compute(a)
    a.label("L_END")
    a("s_endpgm")
    a.label("L_CODE_END")
    if 'spf' in opt or 'spf2' in opt: a(".fill 512, 4, 0xbf800000")
    a(kd(name, vgpr=120, sgpr=102))

def main():
    for o in sys.argv[2:]: opt.add(o)
    a = Asm()
    a(HEADER.rstrip())
    a(f"; @launch grid=(256,1,1) block=(512,1,1) lds={LDS_BYTES}")
    a('.amdgcn_target "amdgcn-amd-amdhsa--gfx950"')
    a(".text")
    kernel_main(a)
    open(sys.argv[1], "w").write(a.text())

main()
```

```python
import sys
from common import *

X_BYTES = 512*576*2
W_BYTES = 576*4608*2
OUT_BYTES = 512*576*2
WS_BYTES = 268435456
PAGE = 2*1024*1024
H_OFF = 4096
GRP_BYTES = 4*18432
FLAG_OFF = 4*PAGE + 4096
FLAG2_OFF = FLAG_OFF + 8192
INBOX_OFF = 5*PAGE + 4096
INBOX_B = 8*8*2304
KNAME = "standalone__dense_activation_silu__sampling_kernel"
WST = 18432
SLOT = WST
NSLOT = 4
LB = NSLOT*SLOT
LDS_BYTES = LB + 4*WST + 2048
TS_OFF = 128 << 20
SPIN = 1 << 17

opt = set()
NT_ON = [False]
def NT(): return " nt" if (NT_ON[0] and 'nont' not in opt) or 'allnt' in opt else ""

S_X, S_W1, S_W2, S_OUT, S_DBG, S_WS = 4, 6, 8, 10, 12, 14
SRD_X, SRD_W1, SRD_WS, SRD_W2, SRD_DBG = 16, 20, 24, 40, 44
S_WV, S_XG, S_J, S_MT, S_CW = 28, 29, 30, 31, 32
S_N, S_WOFF, S_DSLOT, S_RSLOT = 33, 34, 35, 36
S_T0, S_T1, S_T2, S_T3 = 37, 38, 39, 48
S_WLDS, S_P, S_XROW, S_BLDS, S_HB, S_GRP, S_FAST, S_HSLOT = 49, 50, 51, 52, 53, 54, 55, 56
S_WCOL, S_HOFF = 57, 58
S_P2, S_PH, S_W2B = 92, 93, 94
S_INB = 59
S_PA, S_PB, S_PS = 93, 94, 95
S_BDST = 56
S_TS = 60
S_K = 84

LD_DONE = [False]
def amp_on(): return any(o.startswith('amp') for o in opt)
def amp_spin(a, tag, final_idx):
    for o in opt:
        if o.startswith('amp') and o[3] == tag:
            ia, ib = int(o[4]), int(o[5])
            a("s_waitcnt lgkmcnt(0)")
            a(f"s_sub_u32 s95, s{S_TS+2*ib}, s{S_TS+2*ia}")
            a("s_mul_i32 s95, s95, 3")
            a("s_memrealtime s[96:97]\ns_waitcnt lgkmcnt(0)\ns_mov_b32 s94, s96")
            a.label(f"L_AMP{tag}")
            a(f"s_memrealtime s[96:97]\ns_waitcnt lgkmcnt(0)\ns_sub_u32 s96, s96, s94\ns_cmp_lt_u32 s96, s95\ns_cbranch_scc1 L_AMP{tag}")
def stamp(a, i):
    if amp_on():
        a(f"s_memrealtime s[{S_TS+2*i}:{S_TS+2*i+1}]"); return
    if 'ldiag' in opt and LD_DONE[0]: return
    if 'ts' in opt and not ('diag' in opt and DIAG_C[0]): a(f"s_memrealtime s[{S_TS+2*i}:{S_TS+2*i+1}]")
DIAG_C = [False]

def dump_stamps(a, kidx, n, tag, wave):
    if 'ts' not in opt: return
    a("s_waitcnt lgkmcnt(0) vmcnt(0)")
    a(f"s_cmp_eq_u32 s{S_WV}, {wave}")
    a(f"s_cbranch_scc0 L_NOTS{tag}")
    a(f"s_lshl_b32 s80, s2, 7")
    a(f"s_add_u32 s80, s80, {TS_OFF + kidx*512*128}")
    a(f"s_mov_b32 s88, s14\ns_mov_b32 s89, s15\ns_mov_b32 s90, {WS_BYTES}\ns_mov_b32 s91, 0x20000")
    a("v_mov_b32 v2, 0")
    for i in range(n):
        a(f"v_mov_b32 v4, s{S_TS+2*i}\nv_mov_b32 v5, s{S_TS+2*i+1}")
        a(f"buffer_store_dwordx2 v[4:5], v2, s[88:91], s80 offen offset:{8*i}")
        a("s_nop 1")
    a.label(f"L_NOTS{tag}")

def srd(a, base, ptr, nbytes):
    a(f"s_mov_b32 s{base}, s{ptr}")
    a(f"s_mov_b32 s{base+1}, s{ptr+1}")
    a(f"s_mov_b32 s{base+2}, {nbytes}")
    a(f"s_mov_b32 s{base+3}, 0x20000")

def slot_advance(a, reg):
    a(f"s_add_u32 s{reg}, s{reg}, {SLOT}")
    a(f"s_cmp_eq_u32 s{reg}, {NSLOT*SLOT}")
    a(f"s_cselect_b32 s{reg}, 0, s{reg}")

L_W1, L_W2, L_X, L_H, L_T = 1, 6, 11, 13, 14

def loader_addr_setup(a):
    t0, t1, t2, t3 = L_T, L_T+1, L_T+2, L_T+3
    a(f"v_lshrrev_b32 v{t0}, 3, v0")
    a(f"v_lshrrev_b32 v{t1}, 4, v0")
    a(f"v_and_b32 v{t2}, 7, v0")
    a(f"v_xor_b32 v{t1}, v{t1}, v{t2}")
    a(f"v_lshlrev_b32 v{t1}, 4, v{t1}")
    a(f"v_mul_u32_u24 v{t0}, 1152, v{t0}")
    a(f"v_add_u32 v{L_X}, v{t0}, v{t1}")
    a(f"v_xor_b32 v{t1}, 64, v{t1}")
    a(f"v_add_u32 v{t0}, {8*1152}, v{t0}")
    a(f"v_add_u32 v{L_X+1}, v{t0}, v{t1}")
    a(f"v_lshlrev_b32 v{L_H}, 4, v0")
    a(f"v_lshrrev_b32 v{t0}, 1, v0")
    a(f"v_and_b32 v{t0}, 1, v{t0}")
    a(f"v_lshlrev_b32 v{t0}, 9, v{t0}")
    a(f"v_lshrrev_b32 v{t1}, 2, v0")
    a(f"v_lshl_add_u32 v{t0}, v{t1}, 3, v{t0}")
    a(f"v_and_b32 v{t1}, 1, v0")
    a(f"v_lshl_add_u32 v{L_HS}, v{t1}, 2, v{t0}")
    a(f"s_lshr_b32 s{S_T0}, s{S_CW}, 1")
    a(f"s_lshl_b32 s{S_T0}, s{S_T0}, 5")
    a(f"s_and_b32 s{S_T1}, s{S_CW}, 1")
    a(f"s_lshl_b32 s{S_T1}, s{S_T1}, 2")
    a(f"s_add_u32 s{S_T0}, s{S_T0}, s{S_T1}")
    a(f"s_and_b32 s{S_T1}, s{S_J}, 1")
    a(f"s_lshl_b32 s{S_T1}, s{S_T1}, 1")
    a(f"s_movk_i32 s{S_T2}, 9216")
    for i in range(5):
        a(f"v_add_u32 v{t0}, {64*i}, v0")
        a(f"v_mul_u32_u24 v{t1}, 3641, v{t0}")
        a(f"v_lshrrev_b32 v{L_W2+i}, 16, v{t1}")
        a(f"v_mul_u32_u24 v{t2}, 18, v{L_W2+i}")
        a(f"v_sub_u32 v{20+i}, v{t0}, v{t2}")
        a(f"v_add_u32 v{t0}, s{S_T1}, v{20+i}")
        a(f"v_subrev_u32 v{t2}, 18, v{t0}")
        a(f"v_min_u32 v{t0}, v{t0}, v{t2}")
        a(f"v_lshrrev_b32 v{t2}, 2, v{L_W2+i}")
        a(f"v_and_b32 v{t1}, 3, v{L_W2+i}")
        a(f"v_lshl_add_u32 v{t1}, v{t2}, 3, v{t1}")
        a(f"v_add_u32 v{t1}, s{S_T0}, v{t1}")
        a(f"v_lshlrev_b32 v{t0}, 4, v{t0}")
        a(f"v_mad_u32_u24 v{L_W1+i}, v{t1}, s{S_T2}, v{t0}")

def loader_addr_w2(a):
    t0 = L_T
    a(f"s_lshl_b32 s{S_T3}, s{S_CW}, 4")
    a(f"s_movk_i32 s{S_T2}, 1152")
    for i in range(5):
        a(f"v_add_u32 v{t0}, s{S_T3}, v{L_W2+i}")
        a(f"v_lshlrev_b32 v{20+i}, 4, v{20+i}")
        a(f"v_mad_u32_u24 v{L_W2+i}, v{t0}, s{S_T2}, v{20+i}")

def issue_w(a, vbase, srdreg):
    for i in range(5):
        if i == 0: a(f"s_add_u32 m0, s{S_DSLOT}, s{S_WLDS}")
        else:      a(f"s_add_u32 m0, m0, 1024")
        a("s_mov_b32 exec_hi, 0" if i == 4 else "s_nop 0")
        a(f"buffer_load_dwordx4 v{vbase+i}, s[{srdreg}:{srdreg+3}], s{S_WOFF} offen{NT()} lds")
    a("s_mov_b32 exec_hi, -1")
    slot_advance(a, S_DSLOT)

S_PF = 96
def spf_w2_setup(a):
    a(f"s_lshl_b32 s{S_T0}, s{S_MT}, 2")
    a(f"s_add_u32 s{S_T0}, s{S_T0}, s{S_J}")
    a(f"s_mul_i32 s{S_T0}, s{S_T0}, 162")
    a(f"s_mul_i32 s{S_T1}, s{S_CW}, 40")
    a(f"s_add_u32 s{S_T0}, s{S_T0}, s{S_T1}")
    a(f"s_lshl_b32 s{S_T0}, s{S_T0}, 7")
    a(f"s_mul_i32 s{S_T1}, s{S_XG}, {576*1152}")
    a(f"s_add_u32 s{S_T0}, s{S_T0}, s{S_T1}")
    a(f"s_add_u32 s{S_PF}, s{S_W2}, s{S_T0}")
    a(f"s_addc_u32 s{S_PF+1}, s{S_W2+1}, 0")
def spf_w2(a):
    for i in range(6):
        a(f"s_load_dword s95, s[{S_PF}:{S_PF+1}], {128*i}")
    a(f"s_add_u32 s{S_PF}, s{S_PF}, 768")
    a(f"s_addc_u32 s{S_PF+1}, s{S_PF+1}, 0")

S_TN, S_TST, S_TREAL, S_TOFF = 97, 93, 95, 96
L_TV = 26
def stag(): return 'stag' in opt
def st_cnt(): return 9 if stag() else 7
def issue_touch(a):
    a(f"s_cmp_eq_u32 s{S_TN}, s{S_TST}")
    a(f"s_cselect_b32 s{S_TOFF}, s{S_TREAL}, 0x70000000")
    a(f"s_add_u32 s{S_TN}, s{S_TN}, 1")
    a(f"buffer_load_dword v{L_TV+1}, v{L_TV}, s[{SRD_W2}:{SRD_W2+3}], s{S_TOFF} offen")
def touch_setup(a):
    a(f"s_lshl_b32 s{S_T0}, s{S_MT}, 2")
    a(f"s_add_u32 s{S_T0}, s{S_T0}, s{S_J}")
    a(f"s_mul_i32 s{S_T0}, s{S_T0}, 162")
    a(f"s_mul_i32 s{S_T1}, s{S_CW}, 41")
    a(f"s_add_u32 s{S_T0}, s{S_T0}, s{S_T1}")
    a(f"s_lshl_b32 s{S_T0}, s{S_T0}, 7")
    a(f"s_mul_i32 s{S_T1}, s{S_XG}, {576*1152}")
    a(f"s_add_u32 s{S_TREAL}, s{S_T0}, s{S_T1}")
    a(f"v_min_u32 v{L_TV}, 40, v0")
    a(f"v_lshlrev_b32 v{L_TV}, 7, v{L_TV}")
    a(f"s_mov_b32 s{S_TN}, 0")
    for o in opt:
        if o.startswith('stg'):
            a(f"s_lshr_b32 s{S_TST}, s{S_MT}, {o[3]}")
            a(f"s_add_u32 s{S_TST}, s{S_TST}, {o[4]}")
            break
    else:
        a(f"s_add_u32 s{S_TST}, s{S_MT}, 1")

def issue_stage1(a, pf=False):
    issue_stage1_(a)
    if stag(): issue_touch(a)

def issue_stage1_(a, pf=False):
    a(f"s_lshl_b32 s{S_T0}, s{S_P}, 7")
    a(f"s_add_u32 s{S_T0}, s{S_T0}, s{S_XROW}")
    a(f"s_mov_b32 m0, s{S_BDST}")
    a(f"s_mul_i32 s{S_WOFF}, s{S_P}, {64*9216}")
    a(f"buffer_load_dwordx4 v{L_X}, s[{SRD_X}:{SRD_X+3}], s{S_T0} offen{NT()} lds")
    a(f"s_add_u32 m0, m0, 1024")
    a(f"s_add_u32 s{S_WOFF}, s{S_WOFF}, s{S_WCOL}")
    a(f"buffer_load_dwordx4 v{L_X+1}, s[{SRD_X}:{SRD_X+3}], s{S_T0} offen{NT()} lds")
    a(f"s_add_u32 s{S_BDST}, s{S_BDST}, 2048")
    issue_w(a, L_W1, SRD_W1)
    a(f"s_add_u32 s{S_P}, s{S_P}, 1")
    a(f"s_cmp_eq_u32 s{S_P}, 9")
    a(f"s_cselect_b32 s{S_P}, 0, s{S_P}")

def wrap9(a, reg):
    a(f"s_add_u32 s{reg}, s{reg}, 1")
    a(f"s_cmp_eq_u32 s{reg}, 9")
    a(f"s_cselect_b32 s{reg}, 0, s{reg}")

def issue_w2(a):
    a(f"s_mul_i32 s{S_WOFF}, s{S_P2}, {64*1152}")
    a(f"s_add_u32 s{S_WOFF}, s{S_WOFF}, s{S_W2B}")
    issue_w(a, L_W2, SRD_W2)
    wrap9(a, S_P2)

L_HS = 25
def issue_h(a, n):
    W = f"s[{SRD_WS}:{SRD_WS+3}]"
    for s0 in range(2):
        ks = 2*n + s0
        a(f"s_add_u32 m0, s{S_BLDS}, {ks*1024}")
        a(f"s_add_u32 s{S_HOFF}, s{S_HB}, {ks*1024}")
        if ks not in (4, 13):
            a(f"buffer_load_dwordx4 v{L_H}, {W}, s{S_HOFF} offen sc1 lds")
        else:
            for q in range(4):
                if q: a("s_add_u32 m0, m0, 128\ns_nop 0")
                a(f"buffer_load_dword v{L_HS}, {W}, s{S_HOFF} offen offset:{128*q} sc1 lds")
def h_count(n): return 5 if n in (2, 6) else 2

def poll_pub(a, tag, vtmp, preloaded=False):
    if preloaded:
        a("s_waitcnt vmcnt(0)")
        a(f"v_cmp_ne_u32 vcc, 1, v{vtmp}")
        a(f"s_cbranch_vccz L_PGX{tag}")
    a(f"s_mov_b32 s{S_T3}, 0")
    a.label(f"L_PG{tag}")
    a(f"s_add_u32 s{S_T3}, s{S_T3}, 1")
    a(f"s_cmp_gt_u32 s{S_T3}, {SPIN}")
    a(f"s_cbranch_scc1 L_PGX{tag}")
    a(f"buffer_load_dword v{vtmp}, off, s[{SRD_DBG}:{SRD_DBG+3}], 0 sc1")
    a("s_waitcnt vmcnt(0)")
    a(f"v_cmp_ne_u32 vcc, 1, v{vtmp}")
    a(f"s_cbranch_vccnz L_PG{tag}")
    a.label(f"L_PGX{tag}")

R_D, R_ACC, R_T, R_A = 72, 88, 92, 96
def reducer(a, tag, single):
    W = f"s[{SRD_WS}:{SRD_WS+3}]"
    if single:
        a(f"v_min_u32 v{R_A}, 31, v0")
        a(f"v_mov_b32 v{R_T}, v{R_A}")
        a(f"v_lshlrev_b32 v{R_A}, 3, v{R_A}")
        a(f"s_add_u32 s{S_T0}, s{S_INB}, 2048")
        a(f"s_mov_b32 s{S_T2}, 256")
        a(f"v_mov_b32 v{R_T+1}, 0")
    else:
        a(f"v_lshlrev_b32 v{R_A}, 3, v0")
        a(f"v_lshrrev_b32 v{R_T}, 1, v0")
        a(f"s_lshl_b32 s{S_T0}, s{S_CW}, 9")
        a(f"s_add_u32 s{S_T0}, s{S_T0}, s{S_INB}")
        a(f"s_lshl_b32 s{S_T2}, s{S_CW}, 6")
        a(f"v_and_b32 v{R_T+1}, 1, v0")
    a(f"v_and_b32 v{R_T+2}, 7, v{R_T}")
    a(f"v_mul_u32_u24 v{R_T+2}, 1152, v{R_T+2}")
    a(f"v_lshrrev_b32 v{R_T}, 3, v{R_T}")
    a(f"v_lshl_add_u32 v{R_T+2}, v{R_T}, 3, v{R_T+2}")
    a(f"v_lshl_add_u32 v{R_A+1}, v{R_T+1}, 5, v{R_T+2}")
    a(f"s_lshl_b32 s{S_T1}, s{S_MT}, 3")
    a(f"s_add_u32 s{S_T1}, s{S_T1}, s{S_XG}")
    a(f"s_mul_i32 s{S_T1}, s{S_T1}, {8*1152}")
    a(f"s_add_u32 s{S_T2}, s{S_T2}, s{S_T1}")
    a(f"s_mul_i32 s{S_T1}, s{S_J}, 288")
    a(f"s_add_u32 s{S_T2}, s{S_T2}, s{S_T1}")
    srd(a, SRD_X, S_OUT, OUT_BYTES)
    a(f"s_mov_b32 s{S_T3}, 0")
    a.label(f"L_RP{tag}")
    a(f"s_mov_b32 s{S_T1}, s{S_T0}")
    for xg in range(8):
        a(f"buffer_load_dwordx2 v[{R_D+2*xg}:{R_D+2*xg+1}], v{R_A}, {W}, s{S_T1} offen sc1")
        if xg < 7: a(f"s_add_u32 s{S_T1}, s{S_T1}, 2304")
    a(f"s_add_u32 s{S_T3}, s{S_T3}, 1")
    a(f"s_cmp_gt_u32 s{S_T3}, {SPIN}")
    a(f"s_cbranch_scc1 L_RPX{tag}")
    a("s_waitcnt vmcnt(0)")
    a(f"v_max3_u32 v{R_T}, v{R_D}, v{R_D+1}, v{R_D+2}")
    for i in range(3, 15, 2):
        a(f"v_max3_u32 v{R_T}, v{R_T}, v{R_D+i}, v{R_D+i+1}")
    a(f"v_max_u32 v{R_T}, v{R_T}, v{R_D+15}")
    a(f"v_cmp_eq_u32 vcc, -1, v{R_T}")
    a(f"s_cbranch_vccnz L_RP{tag}")
    a.label(f"L_RPX{tag}")
    a("s_waitcnt vmcnt(0)")
    for xg in range(8):
        for d in range(2):
            src = R_D + 2*xg + d
            if xg == 0:
                a(f"v_lshlrev_b32 v{R_ACC+2*d}, 16, v{src}")
                a(f"v_and_b32 v{R_ACC+2*d+1}, 0xffff0000, v{src}")
            else:
                a(f"v_lshlrev_b32 v{R_T+2*d}, 16, v{src}")
                a(f"v_and_b32 v{R_T+2*d+1}, 0xffff0000, v{src}")
        if xg:
            for d in range(4): a(f"v_add_f32 v{R_ACC+d}, v{R_ACC+d}, v{R_T+d}")
    a(f"v_cvt_pk_bf16_f32 v{R_D}, v{R_ACC}, v{R_ACC+1}")
    a(f"v_cvt_pk_bf16_f32 v{R_D+1}, v{R_ACC+2}, v{R_ACC+3}")
    if single: a("s_mov_b32 exec_hi, 0")
    a(f"buffer_store_dwordx2 v[{R_D}:{R_D+1}], v{R_A+1}, s[{SRD_X}:{SRD_X+3}], s{S_T2} offen")
    if single: a("s_mov_b32 exec_hi, -1")

L_F = 28
def loader_fill(a):
    W = f"s[{SRD_WS}:{SRD_WS+3}]"
    a(f"s_mul_i32 s{S_T1}, s{S_CW}, 4608")
    a(f"s_add_u32 s{S_T0}, s{S_INB}, s{S_T1}")
    for i in range(4):
        a(f"buffer_store_dwordx4 v[{L_F}:{L_F+3}], v{L_H}, {W}, s{S_T0} offen offset:{1024*i} sc1")
    a(f"s_add_u32 s{S_T0}, s{S_T0}, 4096")
    a(f"buffer_store_dwordx4 v[{L_F}:{L_F+3}], v{L_F+4}, {W}, s{S_T0} offen sc1")
def loader_tail_setup(a):
    a(f"s_lshl_b32 s{S_T0}, s{S_MT}, 2")
    a(f"s_add_u32 s{S_T0}, s{S_T0}, s{S_J}")
    a(f"s_mul_i32 s{S_T0}, s{S_T0}, {INBOX_B}")
    a(f"s_mul_i32 s{S_T1}, s{S_XG}, 18432")
    a(f"s_add_u32 s{S_T0}, s{S_T0}, s{S_T1}")
    a(f"s_add_u32 s{S_INB}, s{S_T0}, {INBOX_OFF}")
    for i in range(4): a(f"v_mov_b32 v{L_F+i}, -1")
    a(f"v_min_u32 v{L_F+4}, 31, v0")
    a(f"v_lshlrev_b32 v{L_F+4}, 4, v{L_F+4}")
    a(f"v_mov_b32 v{L_F+5}, 1")
    a(f"s_lshl_b32 s{S_F2}, s{S_GRP}, 5")
    a(f"s_lshl_b32 s{S_T0}, s{S_J}, 2")
    a(f"s_add_u32 s{S_T0}, s{S_T0}, s{S_CW}")
    a(f"s_lshl_b32 s{S_T0}, s{S_T0}, 2")
    a(f"s_add_u32 s{S_F2}, s{S_F2}, s{S_T0}")
    a(f"s_add_u32 s{S_F2}, s{S_F2}, {FLAG2_OFF}")
    if 'wgflag' in opt and ('fill0' in opt or 'fill1' in opt):
        a(f"v_and_b32 v{L_F+6}, 7, v0")
        a(f"v_lshlrev_b32 v{L_F+6}, 10, v{L_F+6}")
    else:
        a(f"v_lshrrev_b32 v{L_F+6}, 2, v0")
        a(f"v_and_b32 v{L_F+6}, 7, v{L_F+6}")
        a(f"v_lshlrev_b32 v{L_F+6}, 10, v{L_F+6}")
        a(f"v_and_b32 v{L_F+7}, 3, v0")
        a(f"v_lshl_add_u32 v{L_F+6}, v{L_F+7}, 2, v{L_F+6}")
    a(f"s_lshl_b32 s{S_CK}, s{S_MT}, 7")
    a(f"s_lshl_b32 s{S_T0}, s{S_J}, 4")
    a(f"s_add_u32 s{S_CK}, s{S_CK}, s{S_T0}")
    a(f"s_add_u32 s{S_CK}, s{S_CK}, {FLAG_OFF if ('fill0' in opt or 'fill1' in opt or 'fillb' in opt) else FLAG2_OFF}")
    a(f"s_mul_i32 s{S_T0}, s{S_J}, 24")
    a(f"v_min_u32 v{L_F+8}, 23, v0")
    a(f"v_add_u32 v{L_F+8}, s{S_T0}, v{L_F+8}")
    a(f"v_lshlrev_b32 v{L_F+8}, 7, v{L_F+8}")
    a(f"s_add_u32 s{S_HT}, s{S_HB}, {3*2048}")
S_F2, S_CK, S_HT = 50, 51, 55

def loader(a):
    a.label("L_LOADER")
    loader_addr_setup(a)
    a(f"s_lshl_b32 s{S_T0}, s{S_MT}, 2")
    a(f"s_add_u32 s{S_T0}, s{S_T0}, s{S_CW}")
    a(f"s_mul_i32 s{S_XROW}, s{S_T0}, {16*1152}")
    a(f"s_mul_i32 s{S_BLDS}, s{S_CW}, {WST}")
    a(f"s_add_u32 s{S_BLDS}, s{S_BLDS}, {LB}")
    a(f"s_mov_b32 s{S_BDST}, s{S_BLDS}")
    a(f"s_mul_i32 s{S_WCOL}, s{S_XG}, 1152")
    a(f"s_mul_i32 s{S_T0}, s{S_J}, 288")
    a(f"s_add_u32 s{S_WCOL}, s{S_WCOL}, s{S_T0}")
    a(f"s_mul_i32 s{S_WLDS}, s{S_CW}, 4608")
    a(f"s_mov_b32 s{S_DSLOT}, 0")
    if 'norot' in opt: a(f"s_mov_b32 s{S_P}, 0")
    else:
        rk = 0
        for o in opt:
            if o.startswith('rotk'): rk = int(o[4])
        a(f"s_lshl_b32 s{S_P}, s{S_J}, 1")
        if rk:
            a(f"s_lshr_b32 s{S_T0}, s{S_MT}, {rk}")
            a(f"s_lshl_b32 s{S_T0}, s{S_T0}, {rk}")
            a(f"s_add_u32 s{S_P}, s{S_P}, s{S_T0}")
        else:
            a(f"s_add_u32 s{S_P}, s{S_P}, s{S_MT}")
        a(f"s_sub_u32 s{S_T0}, s{S_P}, 9")
        a(f"s_cmp_ge_u32 s{S_P}, 9")
        a(f"s_cselect_b32 s{S_P}, s{S_T0}, s{S_P}")
    a(f"s_mov_b32 s{S_P2}, 0")
    if 'sdiag' in opt: a("s_memrealtime s[78:79]")
    a("s_waitcnt lgkmcnt(0)")
    if 'sdiag' in opt: a("s_memrealtime s[76:77]")
    srd(a, SRD_X, S_X, X_BYTES)
    srd(a, SRD_W1, S_W1, W_BYTES)
    if stag():
        srd(a, SRD_W2, S_W2, W_BYTES)
        touch_setup(a)
    if 'spf2' in opt:
        a(f"s_getpc_b64 s[{S_K}:{S_K+1}]")
        a(f"s_mul_i32 s{S_T0}, s{S_CW}, 1792")
        a(f"s_add_u32 s{S_K}, s{S_K}, s{S_T0}")
        a(f"s_addc_u32 s{S_K+1}, s{S_K+1}, 0")
        for i in range(14):
            a(f"s_load_dword s95, s[{S_K}:{S_K+1}], {128*i+ (0)}")
    if 'pspin' in opt:
        a("s_memtime s[96:97]\ns_waitcnt lgkmcnt(0)\ns_mov_b32 s95, s96")
        a.label("L_PSPIN")
        a("s_memtime s[96:97]\ns_waitcnt lgkmcnt(0)\ns_sub_u32 s96, s96, s95\ns_cmp_lt_u32 s96, 8000\ns_cbranch_scc1 L_PSPIN")
    if 'prspin' in opt:
        a("s_memrealtime s[96:97]\ns_waitcnt lgkmcnt(0)\ns_mov_b32 s95, s96")
        a.label("L_PSPIN")
        a("s_memrealtime s[96:97]\ns_waitcnt lgkmcnt(0)\ns_sub_u32 s96, s96, s95\ns_cmp_lt_u32 s96, 400\ns_cbranch_scc1 L_PSPIN")
    for nm, sreg, nb in (('pw1', SRD_W1, 16384), ('px', SRD_X, 2048), ('pws', None, 16384), ('pw2', None, 16384), ('pt64', None, 0), ('pt2m', None, 0), ('pw1e', SRD_W1, 16384)):
        if nm in opt:
            if nm in ('pws', 'pt64', 'pt2m'): srd(a, SRD_WS, S_WS, WS_BYTES); sreg = SRD_WS
            if nm == 'pw2': srd(a, SRD_W2, S_W2, W_BYTES); sreg = SRD_W2
            a(f"s_cmp_eq_u32 s{S_WV}, 4")
            a("s_cbranch_scc0 L_PLD")
            a(f"s_mul_i32 s95, s2, {nb}")
            if nm == 'pws': a(f"s_add_u32 s95, s95, {64<<20}")
            step = nb//16
            if nm == 'pt64':
                a(f"s_lshl_b32 s95, s2, 7"); a(f"s_add_u32 s95, s95, {64<<20}"); step = 65536
            if nm == 'pt2m':
                a(f"s_lshl_b32 s95, s2, 7"); a(f"s_add_u32 s95, s95, {64<<20}"); step = 2 << 20
            if nm == 'pw1e':
                a(f"s_lshl_b32 s95, s2, 12"); a(f"s_add_u32 s95, s95, {5308416 - (1<<20)}"); step = 256
            for i in range(16):
                a(f"buffer_load_dword v30, off, s[{sreg}:{sreg+3}], s95")
                a("s_waitcnt vmcnt(0)")
                a(f"s_add_u32 s95, s95, {step}")
            a.label("L_PLD")
    stamp(a, 1)
    NT_ON[0] = True
    issue_stage1(a)
    if 'fill1' in opt: a("s_barrier")
    if 'ldiag' in opt: stamp(a, 2)
    issue_stage1(a)
    NT_ON[0] = 'nt2' in opt
    if 'ldiag' in opt: stamp(a, 3)
    srd(a, SRD_W2, S_W2, W_BYTES)
    srd(a, SRD_WS, S_WS, WS_BYTES)
    srd(a, SRD_DBG, S_DBG, 256)
    loader_addr_w2(a)
    if 'ldiag' not in opt: stamp(a, 2)
    a("s_waitcnt vmcnt(%d)" % st_cnt())
    if 'ldiag' in opt: stamp(a, 4)
    a("s_barrier")
    if 'ldiag' not in opt: stamp(a, 3)
    issue_stage1(a, True)
    NT_ON[0] = False
    if 'ldiag' in opt:
        stamp(a, 5)
        a("s_waitcnt vmcnt(7)")
        stamp(a, 6)
        a("s_barrier")
        issue_stage1(a)
        stamp(a, 7)
        a("s_waitcnt vmcnt(7)")
        stamp(a, 8)
        a("s_barrier")
        issue_stage1(a)
        stamp(a, 9)
    a(f"s_mov_b32 s{S_N}, {2 if 'ldiag' in opt else 0}")
    a.label("L_LD1")
    if 'ldiag' in opt: LD_DONE[0] = True
    a("s_waitcnt vmcnt(%d)" % st_cnt())
    a("s_barrier")
    issue_stage1(a, True)
    a(f"s_add_u32 s{S_N}, s{S_N}, 1")
    a(f"s_cmp_lt_u32 s{S_N}, 6")
    a("s_cbranch_scc1 L_LD1")
    a(f"s_mul_i32 s{S_W2B}, s{S_XG}, {576*1152}")
    a(f"s_mul_i32 s{S_T0}, s{S_J}, 288")
    a(f"s_add_u32 s{S_W2B}, s{S_W2B}, s{S_T0}")
    loader_tail_setup(a)
    w2t = 'now2t' not in opt and 'sw2' not in opt and not stag()
    if w2t:
        a(f"s_lshl_b32 s{S_T0}, s{S_MT}, 2")
        a(f"s_add_u32 s{S_T0}, s{S_T0}, s{S_J}")
        a(f"s_mul_i32 s{S_T0}, s{S_T0}, 162")
        a(f"s_mul_i32 s{S_T1}, s{S_CW}, 41")
        a(f"s_add_u32 s{S_T0}, s{S_T0}, s{S_T1}")
        a(f"s_lshl_b32 s{S_T0}, s{S_T0}, 7")
        a(f"s_mul_i32 s{S_T1}, s{S_XG}, {576*1152}")
        a(f"s_add_u32 s{S_T0}, s{S_T0}, s{S_T1}")
        a(f"v_min_u32 v{L_T}, 40, v0")
        a(f"v_lshlrev_b32 v{L_T}, 7, v{L_T}")
        a(f"buffer_load_dword v{L_T+2}, v{L_T}, s[{SRD_W2}:{SRD_W2+3}], s{S_T0} offen" + ("" if 'nont' in opt else " nt"))
    a("s_waitcnt vmcnt(%d)" % (9 if stag() else (8 if w2t else 7)))
    a("s_barrier")
    nA, nB, nC = 0, 0, 3
    for o in opt:
        if o.startswith('sch'): nA, nB, nC = int(o[3]), int(o[4]), int(o[5])
    assert nA + nB + nC <= 4
    wnext = [9]
    def W_now():
        issue_w2(a); wnext[0] += 1
    for _ in range(nA): W_now()
    a("s_waitcnt vmcnt(%d)" % ((1 if (w2t or stag()) else 0) + 5*nA))
    a("s_barrier")
    a("s_barrier")
    stamp(a, 4)
    for _ in range(nB): W_now()
    poll_pub(a, "L", L_T)
    a(f"s_lshl_b32 s{S_T2}, s{S_GRP}, 5")
    a(f"s_add_u32 s{S_T2}, s{S_T2}, {FLAG_OFF}")
    if 'wgflag' in opt:
        a(f"v_and_b32 v{L_T+1}, 3, v0")
        a(f"v_lshlrev_b32 v{L_T+1}, 4, v{L_T+1}")
    else:
        a(f"v_and_b32 v{L_T+1}, 15, v0")
        a(f"v_lshlrev_b32 v{L_T+1}, 2, v{L_T+1}")
    a("s_barrier")
    stamp(a, 5)
    for _ in range(nC): W_now()
    if 'onepoll' in opt:
        a(f"s_cmp_eq_u32 s{S_CW}, 0")
        a("s_cbranch_scc0 L_PFX")
    a(f"s_mov_b32 s{S_T3}, 0")
    a.label("L_PF")
    a(f"s_add_u32 s{S_T3}, s{S_T3}, 1")
    a(f"s_cmp_gt_u32 s{S_T3}, {SPIN}")
    a(f"s_cbranch_scc1 L_PFX")
    a(f"buffer_load_dword v{L_T}, v{L_T+1}, s[{SRD_WS}:{SRD_WS+3}], s{S_T2} offen sc1")
    a("s_waitcnt vmcnt(0)")
    a(f"v_cmp_ne_u32 vcc, 1, v{L_T}")
    a("s_cbranch_vccnz L_PF")
    a.label("L_PFX")
    if 'onepoll' in opt: a("s_barrier")
    stamp(a, 6)
    q = []
    def iss(name, cnt, fn):
        fn(); q.append((name, cnt))
    def wait(*names):
        idx = [i for i, (nm, c) in enumerate(q) if nm in names]
        last = max(idx) if idx else -1
        a("s_waitcnt vmcnt(%d)" % sum(c for nm, c in q[last+1:]))
    H = lambda n: iss(f"h{n}", h_count(n), lambda: issue_h(a, n))
    def Wn(n):
        assert wnext[0] == n, (wnext, n)
        iss(f"W{n}", 5, lambda: issue_w2(a)); wnext[0] += 1
    W_ = f"s[{SRD_WS}:{SRD_WS+3}]"
    if 'nohw' not in opt:
        iss("hw", 1, lambda: a(f"buffer_load_dword v{L_F+9}, v{L_F+8}, {W_}, s{S_HT} offen sc1"))
    H(0); H(1); H(2)
    wait("h0")
    a("s_barrier")
    stamp(a, 7)
    assert wnext[0] >= 10
    fill_at = 10; pub_at = 12; chk_at = 15
    for o in opt:
        if o.startswith('fillat'): fill_at = int(o[6:]); pub_at = min(fill_at + 2, 16); chk_at = max(chk_at, min(pub_at + 1, 16))
    hn = 3
    for s in range(10, 18):
        nw = wnext[0]
        if nw <= 17 and (nw <= 12 or nw <= s + 1):
            Wn(nw)
        if hn <= 8:
            H(hn); hn += 1
        if hn <= 8 and 'h2' in opt:
            H(hn); hn += 1
        ext = 'fill0' in opt or 'fill1' in opt or 'fillb' in opt
        if s == fill_at and not ext: iss("fill", 5, lambda: loader_fill(a))
        if s == chk_at:
            iss("chk", 1, lambda: a(f"buffer_load_dword v{L_F+7}, v{L_F+6}, {W_}, s{S_CK} offen sc1"))
        if s == pub_at and not ext:
            wait("fill", f"h{s-9}", f"W{s}")
            def pub():
                a("s_mov_b64 exec, 1")
                a(f"buffer_store_dword v{L_F+5}, off, {W_}, s{S_F2} sc1")
                a("s_mov_b64 exec, -1")
            iss("pub", 1, pub)
        if s == 17:
            a("s_waitcnt vmcnt(0)")
            a(f"v_cmp_ne_u32 vcc, 1, v{L_F+7}")
            a("s_cbranch_vccz L_CHKOK")
            a(f"s_mov_b32 s{S_T3}, 0")
            a.label("L_CHK")
            a(f"s_add_u32 s{S_T3}, s{S_T3}, 1")
            a(f"s_cmp_gt_u32 s{S_T3}, {SPIN}")
            a("s_cbranch_scc1 L_CHKOK")
            a(f"buffer_load_dword v{L_F+7}, v{L_F+6}, {W_}, s{S_CK} offen sc1")
            a("s_waitcnt vmcnt(0)")
            a(f"v_cmp_ne_u32 vcc, 1, v{L_F+7}")
            a("s_cbranch_vccnz L_CHK")
            a.label("L_CHKOK")
        wait(f"h{s-9}", f"W{s}")
        have = [nm for nm, c in q]
        assert (f"h{s-9}" in have) and (f"W{s}" in have or s < wnext[0]), (s, have)
        a("s_barrier")
    if 'sdiag' not in opt: stamp(a, 8)
    a("s_barrier")
    reducer(a, "L", single=False)
    if 'sdiag' not in opt: stamp(a, 9)
    LD_DONE[0] = False
    dump_stamps(a, 1, 10, "LD", 4)
    a("s_endpgm")

C_BF, C_BS = 2, 4
C_A, C_A8, C_AC, C_A8C = 6, 7, 8, 9
C_T = 10
C_BP = 108
A0, B0, A1, B1 = 16, 36, 44, 64
ACC = 72
C_E = 112
C_CHK = 14
S_CHK = 92

def reads_step(Aset, Bset, s0):
    ins = [f"ds_read_b128 v[{Bset}:{Bset+3}], v{C_BF+s0}"]
    def A(t):
        vaddr = C_AC if t < 4 else C_A8C
        off = s0*9216 + (32*t if t < 4 else 0)
        return [f"ds_read_b64_tr_b16 v[{Aset+4*t}:{Aset+4*t+1}], v{vaddr} offset:{off}",
                f"ds_read_b64_tr_b16 v[{Aset+4*t+2}:{Aset+4*t+3}], v{vaddr} offset:{off+4608}"]
    ins += A(0)
    ins.append(f"ds_read_b128 v[{Bset+4}:{Bset+7}], v{C_BS+s0}")
    for t in range(1, 5): ins += A(t)
    return ins

def mfmas(Aset, Bset):
    def m(acc, t, b):
        return f"v_mfma_f32_16x16x32_bf16 v[{ACC+4*acc}:{ACC+4*acc+3}], v[{Aset+4*t}:{Aset+4*t+3}], v[{Bset+4*b}:{Bset+4*b+3}], v[{ACC+4*acc}:{ACC+4*acc+3}]"
    out = []
    for t in range(4):
        out.append(m(t, t, 0)); out.append(m(4+t, t, 1))
    out.append(m(8, 4, 0))
    return out

def block(a, r, m):
    for u in range(9):
        a(m[u])
        if r and u < 6:
            a(r[2*u]); a(r[2*u+1])

def set_stage_addrs(a, first=False):
    a(f"v_add_u32 v{C_AC}, s{S_RSLOT}, v{C_A}")
    a(f"v_add_u32 v{C_A8C}, s{S_RSLOT}, v{C_A8}")
    for i, r in enumerate((C_BF, C_BF+1, C_BS, C_BS+1)):
        if first: a(f"v_mov_b32 v{r}, v{C_BP+i}")
        else:     a(f"v_add_u32 v{r}, 2048, v{r}")

def compute_loop_diag(a, name, k0):
    for n in range(9):
        a("s_waitcnt lgkmcnt(0)")
        if n: a(f"s_mov_b32 s{S_TS+k0+n-1}, s96")
        block(a, reads_step(A1, B1, 1), mfmas(A0, B0))
        slot_advance(a, S_RSLOT)
        set_stage_addrs(a)
        if n == 8: break
        a("s_barrier")
        a("s_memtime s[96:97]")
        a("s_waitcnt lgkmcnt(0)")
        block(a, reads_step(A0, B0, 0), mfmas(A1, B1))
    a("s_waitcnt lgkmcnt(0)")
    block(a, None, mfmas(A1, B1))
    a("s_memtime s[96:97]")
    a("s_waitcnt lgkmcnt(0)")
    a(f"s_mov_b32 s{S_TS+k0+8}, s96")

def loop_hooks(a, name, sfx="", n=None):
    if name != "C2": return
    if n is not None:
        W = f"s[{SRD_WS}:{SRD_WS+3}]"
        if n == 2:
            a("s_waitcnt vmcnt(0)")
            a("s_mov_b64 exec, 1")
            a(f"buffer_store_dword v{C_T}, off, {W}, s{S_BLDS} sc1")
            a("s_mov_b64 exec, -1")
        if n == 6:
            a(f"buffer_load_dword v{C_CHK+1}, v{C_CHK}, {W}, s{S_CHK} offen sc1")
        return
    W = f"s[{SRD_WS}:{SRD_WS+3}]"
    a(f"s_cmp_eq_u32 s{S_N}, 2")
    a("s_cbranch_scc0 L_HK1" + sfx)
    a("s_waitcnt vmcnt(0)")
    a("s_mov_b64 exec, 1")
    a(f"buffer_store_dword v{C_T}, off, {W}, s{S_BLDS} offset:0 sc1".replace("offset:0 ", ""))
    a("s_mov_b64 exec, -1")
    a.label("L_HK1" + sfx)
    a(f"s_cmp_eq_u32 s{S_N}, 6")
    a("s_cbranch_scc0 L_HK2" + sfx)
    a(f"buffer_load_dword v{C_CHK+1}, v{C_CHK}, {W}, s{S_CHK} offen sc1")
    a.label("L_HK2" + sfx)

def compute_loop(a, name):
    if 'diag' in opt:
        return compute_loop_diag(a, name, 0 if name == "C1" else 10)
    a(f"s_mov_b32 s{S_N}, 0")
    a.label(f"L_{name}")
    a("s_waitcnt lgkmcnt(0)")
    block(a, reads_step(A1, B1, 1), mfmas(A0, B0))
    slot_advance(a, S_RSLOT)
    set_stage_addrs(a)
    a(f"s_cmp_eq_u32 s{S_N}, 8")
    a(f"s_cbranch_scc1 L_{name}_LAST")
    a("s_barrier")
    a("s_waitcnt lgkmcnt(0)")
    block(a, reads_step(A0, B0, 0), mfmas(A1, B1))
    a(f"s_add_u32 s{S_N}, s{S_N}, 1")
    a(f"s_branch L_{name}")
    a.label(f"L_{name}_LAST")
    a("s_waitcnt lgkmcnt(0)")
    block(a, None, mfmas(A1, B1))

def zero_acc(a):
    for i in range(0, 36, 2): a(f"v_pk_mov_b32 v[{ACC+i}:{ACC+i+1}], 0, 0")

def touches(a):
    t0, t1, t2 = C_T, C_T+1, C_T+2
    if 'nocode' not in opt:
        a(f"s_getpc_b64 s[{S_K}:{S_K+1}]")
        a.label("L_PC")
        a(f"s_sub_u32 s{S_K}, s{S_K}, (L_PC - {KNAME})")
        a(f"s_subb_u32 s{S_K+1}, s{S_K+1}, 0")
        a(f"v_lshlrev_b32 v{t0}, 7, v0")
        a(f"s_lshl_b32 s{S_T0}, s{S_CW}, 13")
        a(f"v_add_u32 v{t0}, s{S_T0}, v{t0}")
        a(f"v_cmp_gt_u32 vcc, (L_CODE_END - {KNAME}), v{t0}")
        a(f"s_and_saveexec_b64 s[{S_T0}:{S_T0+1}], vcc") if False else None
        a(f"v_min_u32 v{t0}, (L_CODE_END - {KNAME} - 4), v{t0}")
        a(f"global_load_dword v{C_E}, v{t0}, s[{S_K}:{S_K+1}]")

def touches_x(a):
    t0, t1, t2 = C_T, C_T+1, C_T+2
    a(f"s_mul_i32 s{S_T0}, s{S_CW}, 36")
    a(f"v_min_u32 v{t0}, 35, v0")
    a(f"v_add_u32 v{t0}, s{S_T0}, v{t0}")
    a(f"v_lshrrev_b32 v{t1}, 4, v{t0}")
    a(f"v_and_b32 v{t0}, 15, v{t0}")
    a(f"v_mul_u32_u24 v{t0}, 1152, v{t0}")
    a(f"v_lshl_add_u32 v{t0}, v{t1}, 7, v{t0}")
    a(f"s_lshl_b32 s{S_T0}, s{S_MT}, 2")
    a(f"s_add_u32 s{S_T0}, s{S_T0}, s{S_J}")
    a(f"s_mul_i32 s{S_T0}, s{S_T0}, {16*1152}")
    a(f"buffer_load_dword v{C_E+1}, v{t0}, s[{SRD_X}:{SRD_X+3}], s{S_T0} offen")
    if 'half' in opt:
        a(f"buffer_load_dword v{C_E+5}, v{t0}, s[{SRD_X}:{SRD_X+3}], s{S_T0} offen offset:64")

def touches_w2(a):
    t0, t1 = C_T, C_T+1
    a(f"s_lshl_b32 s{S_T0}, s{S_MT}, 2")
    a(f"s_add_u32 s{S_T0}, s{S_T0}, s{S_J}")
    a(f"s_mul_i32 s{S_T0}, s{S_T0}, 162")
    a(f"s_mul_i32 s{S_T1}, s{S_CW}, 41")
    a(f"s_add_u32 s{S_T0}, s{S_T0}, s{S_T1}")
    a(f"s_lshl_b32 s{S_T0}, s{S_T0}, 7")
    a(f"s_mul_i32 s{S_T1}, s{S_XG}, {576*1152}")
    a(f"s_add_u32 s{S_T0}, s{S_T0}, s{S_T1}")
    a(f"v_min_u32 v{t0}, 40, v0")
    a(f"v_lshlrev_b32 v{t0}, 7, v{t0}")
    a(f"buffer_load_dword v{C_E+2}, v{t0}, s[{SRD_W2}:{SRD_W2+3}], s{S_T0} offen")
    if 'half' in opt:
        a(f"buffer_load_dword v{C_E+4}, v{t0}, s[{SRD_W2}:{SRD_W2+3}], s{S_T0} offen offset:64")

def touches_ws(a):
    t0, t1 = C_T, C_T+1
    a(f"v_and_b32 v{t0}, 7, v0")
    a(f"v_lshlrev_b32 v{t0}, 21, v{t0}")
    a(f"buffer_load_dword v{C_E+3}, v{t0}, s[{SRD_WS}:{SRD_WS+3}], 0 offen")

def sentinel_fill(a):
    t1, t2 = C_T+1, C_T+2
    a(f"s_mul_i32 s{S_T1}, s{S_CW}, 4608")
    a(f"s_add_u32 s{S_T0}, s{S_INB}, s{S_T1}")
    for i in range(4): a(f"v_mov_b32 v{C_E+4+i}, -1")
    a(f"v_lshlrev_b32 v{C_E}, 4, v0")
    a(f"v_min_u32 v{C_E+1}, 31, v0")
    a(f"v_lshlrev_b32 v{C_E+1}, 4, v{C_E+1}")
    for i in range(4):
        a(f"buffer_store_dwordx4 v[{C_E+4}:{C_E+7}], v{C_E}, s[{SRD_WS}:{SRD_WS+3}], s{S_T0} offen offset:{1024*i} sc1")
    a(f"s_add_u32 s{S_T0}, s{S_T0}, 4096")
    a(f"buffer_store_dwordx4 v[{C_E+4}:{C_E+7}], v{C_E+1}, s[{SRD_WS}:{SRD_WS+3}], s{S_T0} offen sc1")

def compute(a):
    DIAG_C[0] = True
    t0, t1, t2 = C_T, C_T+1, C_T+2
    if 'codepf' in opt: touches(a)
    a(f"v_lshrrev_b32 v{t0}, 2, v0")
    a(f"v_mul_u32_u24 v{t0}, 288, v{t0}")
    a(f"v_and_b32 v{t1}, 3, v0")
    a(f"v_lshl_add_u32 v{t0}, v{t1}, 3, v{t0}")
    a(f"v_add_u32 v{C_A8}, 256, v{t0}")
    a(f"s_and_b32 s{S_T0}, s{S_CW}, 1")
    a(f"s_lshl_b32 s{S_T0}, s{S_T0}, 7")
    a(f"v_add_u32 v{C_A}, s{S_T0}, v{t0}")
    a(f"s_mul_i32 s{S_T1}, s{S_CW}, {WST}")
    a(f"s_add_u32 s{S_T1}, s{S_T1}, {LB}")
    a(f"s_xor_b32 s{S_T2}, s{S_CW}, 1")
    a(f"s_mul_i32 s{S_T2}, s{S_T2}, {WST}")
    a(f"s_add_u32 s{S_T2}, s{S_T2}, {LB}")
    a(f"v_and_b32 v{t0}, 15, v0")
    a(f"v_lshrrev_b32 v{t1}, 1, v{t0}")
    a(f"v_lshrrev_b32 v{t2}, 4, v0")
    a(f"v_xor_b32 v{t1}, v{t1}, v{t2}")
    a(f"v_lshlrev_b32 v{t1}, 4, v{t1}")
    a(f"v_lshl_add_u32 v{t2}, v{t0}, 7, v{t1}")
    a(f"v_xor_b32 v{t1}, 64, v{t1}")
    a(f"v_lshl_add_u32 v{t1}, v{t0}, 7, v{t1}")
    a(f"v_add_u32 v{C_BP}, s{S_T1}, v{t2}")
    a(f"v_add_u32 v{C_BP+1}, s{S_T1}, v{t1}")
    a(f"v_add_u32 v{C_BP+2}, s{S_T2}, v{t2}")
    a(f"v_add_u32 v{C_BP+3}, s{S_T2}, v{t1}")
    a(f"s_mov_b32 s{S_RSLOT}, 0")
    set_stage_addrs(a, True)
    zero_acc(a)
    a(f"s_lshl_b32 s{S_T0}, s{S_MT}, 2")
    a(f"s_add_u32 s{S_T0}, s{S_T0}, s{S_J}")
    a(f"s_mul_i32 s{S_T0}, s{S_T0}, {INBOX_B}")
    a(f"s_add_u32 s{S_T0}, s{S_T0}, {INBOX_OFF}")
    a(f"s_mul_i32 s{S_T1}, s{S_XG}, 18432")
    a(f"s_add_u32 s{S_INB}, s{S_T0}, s{S_T1}")
    a(f"s_mul_i32 s{S_T1}, s{S_XG}, 2304")
    a(f"s_add_u32 s{S_T0}, s{S_T0}, s{S_T1}")
    a(f"s_mul_i32 s{S_T1}, s{S_CW}, {2*18432}")
    a(f"s_add_u32 s{S_T1}, s{S_T1}, s{S_T0}")
    a(f"s_xor_b32 s{S_T2}, s{S_CW}, 1")
    a(f"s_mul_i32 s{S_T2}, s{S_T2}, {2*18432}")
    a(f"s_add_u32 s{S_T2}, s{S_T2}, s{S_T0}")
    a(f"s_and_b32 s{S_T0}, s{S_CW}, 1")
    a(f"s_lshl_b32 s{S_T0}, s{S_T0}, 10")
    a(f"s_add_u32 s{S_PB}, s{S_T2}, s{S_T0}")
    a(f"s_add_u32 s{S_PA}, s{S_T1}, s{S_T0}")
    a(f"s_add_u32 s{S_PS}, s{S_T1}, 2048")
    a(f"s_xor_b32 s{S_T2}, s{S_CW}, 1")
    a(f"s_sub_i32 s{S_T2}, s{S_T2}, s{S_CW}")
    a(f"s_mul_i32 s{S_T2}, s{S_T2}, {WST}")
    a(f"s_lshr_b32 s{S_T1}, s{S_J}, 1")
    a(f"s_mul_i32 s{S_T1}, s{S_T1}, {9*1024}")
    a(f"s_add_u32 s{S_T1}, s{S_T1}, {4*1024}")
    a(f"s_add_u32 s{S_T1}, s{S_T1}, s{S_HB}")
    a(f"s_and_b32 s{S_P}, s{S_J}, 1")
    a(f"s_lshl_b32 s{S_P}, s{S_P}, 9")
    a(f"s_add_u32 s{S_XROW}, s{S_T1}, s{S_P}")
    a(f"s_mul_i32 s{S_T1}, s{S_J}, 9")
    a(f"s_add_u32 s{S_T1}, s{S_T1}, 1")
    a(f"s_lshr_b32 s{S_T1}, s{S_T1}, 1")
    a(f"s_and_b32 s{S_P}, s{S_CW}, 1")
    a(f"s_lshl_b32 s{S_P}, s{S_P}, 1")
    a(f"s_add_u32 s{S_T1}, s{S_T1}, s{S_P}")
    a(f"s_lshl_b32 s{S_T1}, s{S_T1}, 10")
    a(f"s_add_u32 s{S_WCOL}, s{S_T1}, s{S_HB}")
    a(f"s_add_u32 s{S_WLDS}, s{S_WCOL}, s{S_T2}")
    a(f"s_lshl_b32 s{S_BLDS}, s{S_GRP}, 5")
    a(f"s_add_u32 s{S_BLDS}, s{S_BLDS}, {FLAG_OFF}")
    a(f"s_lshl_b32 s{S_P}, s{S_J}, 2")
    a(f"s_add_u32 s{S_P}, s{S_P}, s{S_CW}")
    a(f"s_lshl_b32 s{S_P}, s{S_P}, 2")
    a(f"s_add_u32 s{S_BLDS}, s{S_BLDS}, s{S_P}")
    a(f"s_lshl_b32 s{S_CHK}, s{S_MT}, 7")
    a(f"s_lshl_b32 s{S_T0}, s{S_J}, 4")
    a(f"s_add_u32 s{S_CHK}, s{S_CHK}, s{S_T0}")
    a(f"s_add_u32 s{S_CHK}, s{S_CHK}, {FLAG2_OFF}")
    a(f"s_mov_b32 s{S_K}, 0xbfb8aa3b")
    a(f"s_mov_b32 s{S_K+1}, 0xbfb8aa3b")
    if 'prio' in opt: a("s_setprio 2")
    a("s_waitcnt lgkmcnt(0)")
    srd(a, SRD_X, S_X, X_BYTES)
    srd(a, SRD_W2, S_W2, W_BYTES)
    srd(a, SRD_WS, S_WS, WS_BYTES)
    srd(a, SRD_DBG, S_DBG, 256)
    if 'fill1' in opt: a("s_barrier")
    if 'fill0' in opt or 'fill1' in opt: sentinel_fill(a)
    if 'xpf' in opt: touches_x(a)
    if 'wspf' in opt: touches_ws(a)
    if 'w2early' in opt: touches_w2(a)
    a(f"s_cmp_eq_u32 s2, 0")
    a("s_cbranch_scc0 L_NOCLR")
    a(f"s_lshl_b32 s{S_T0}, s{S_CW}, 12")
    a(f"s_add_u32 s{S_T0}, s{S_T0}, {FLAG_OFF}")
    a(f"v_pk_mov_b32 v[{A1}:{A1+1}], 0, 0\nv_pk_mov_b32 v[{A1+2}:{A1+3}], 0, 0")
    a(f"v_lshlrev_b32 v{t1}, 4, v0")
    for i in range(4):
        a(f"buffer_store_dwordx4 v[{A1}:{A1+3}], v{t1}, s[{SRD_WS}:{SRD_WS+3}], s{S_T0} offen offset:{1024*i} sc1")
    a("s_waitcnt vmcnt(0)")
    a.label("L_NOCLR")
    a("s_barrier")
    stamp(a, 1)
    for ins in reads_step(A0, B0, 0): a(ins)
    a(f"s_lshl_b32 s{S_T1}, s2, 2")
    a(f"s_or_b32 s{S_T1}, s{S_T1}, s{S_CW}")
    a(f"s_cmp_eq_u32 s{S_T1}, 0")
    a("s_cbranch_scc0 L_NOPUB")
    a(f"v_mov_b32 v{t0}, 1")
    a("s_mov_b64 exec, 1")
    a(f"buffer_store_dword v{t0}, off, s[{SRD_DBG}:{SRD_DBG+3}], 0 sc1")
    a("s_mov_b64 exec, -1")
    a.label("L_NOPUB")
    compute_loop(a, "C1")
    a("s_barrier")
    stamp(a, 2)
    a("s_waitcnt vmcnt(0)")
    a(f"buffer_load_dword v{t0}, off, s[{SRD_DBG}:{SRD_DBG+3}], 0 sc1")
    a(f"v_lshlrev_b32 v{t1}, 4, v0")
    a(f"v_mov_b32 v{t2}, 1")
    W = f"s[{SRD_WS}:{SRD_WS+3}]"
    hsc = "" if 'hplain' in opt else " sc1"
    for u in range(9):
        x = ACC + 4*u
        e = C_E + 4*(u & 1)
        for r in (0, 2): a(f"v_pk_mul_f32 v[{e+r}:{e+r+1}], v[{x+r}:{x+r+1}], s[{S_K}:{S_K+1}]")
        for r in range(4): a(f"v_exp_f32 v{e+r}, v{e+r}")
        for r in (0, 2): a(f"v_pk_add_f32 v[{e+r}:{e+r+1}], v[{e+r}:{e+r+1}], 1.0 op_sel_hi:[1,0]")
        for r in range(4): a(f"v_rcp_f32 v{e+r}, v{e+r}")
        for r in (0, 2): a(f"v_pk_mul_f32 v[{x+r}:{x+r+1}], v[{x+r}:{x+r+1}], v[{e+r}:{e+r+1}]")
        a(f"v_cvt_pk_bf16_f32 v{A0+2*u}, v{x}, v{x+1}")
        a(f"v_cvt_pk_bf16_f32 v{A0+2*u+1}, v{x+2}, v{x+3}")
        if u in (1, 3, 5, 7):
            q = u >> 1
            sreg = S_WCOL if q < 2 else S_WLDS
            a(f"buffer_store_dwordx4 v[{A0+4*q}:{A0+4*q+3}], v{t1}, {W}, s{sreg} offen offset:{1024*(q&1)}{hsc}")
    if 'nosingle' not in opt:
        a(f"v_lshlrev_b32 v{C_T+3}, 3, v0")
        a(f"buffer_store_dwordx2 v[{A0+16}:{A0+17}], v{C_T+3}, {W}, s{S_XROW} offen{hsc}")
    stamp(a, 8)
    poll_pub(a, "C", t0, preloaded=True)
    if 'wgflag' not in opt:
        a("s_mov_b64 exec, 1")
        a(f"buffer_store_dword v{t2}, off, {W}, s{S_BLDS}{hsc}")
        a("s_mov_b64 exec, -1")
    a("s_barrier")
    if 'wgflag' in opt:
        a(f"s_cmp_eq_u32 s{S_CW}, 0")
        a("s_cbranch_scc0 L_NOFLAG")
        a("s_mov_b64 exec, 1")
        a(f"buffer_store_dword v{t2}, off, {W}, s{S_BLDS}{hsc}")
        a("s_mov_b64 exec, -1")
        a.label("L_NOFLAG")
    stamp(a, 3)
    a(f"s_mul_i32 s{S_T1}, s{S_CW}, {WST}")
    a(f"s_add_u32 s{S_T1}, s{S_T1}, {LB}")
    a(f"s_xor_b32 s{S_T2}, s{S_CW}, 1")
    a(f"s_mul_i32 s{S_T2}, s{S_T2}, {WST}")
    a(f"s_add_u32 s{S_T2}, s{S_T2}, {LB}")
    a(f"v_add_u32 v{C_BP}, s{S_T1}, v{t1}")
    a(f"v_add_u32 v{C_BP+1}, 1024, v{C_BP}")
    a(f"v_add_u32 v{C_BP+2}, s{S_T2}, v{t1}")
    a(f"v_add_u32 v{C_BP+3}, 1024, v{C_BP+2}")
    set_stage_addrs(a, True)
    zero_acc(a)
    a(f"v_lshrrev_b32 v{t0}, 4, v0")
    a(f"v_lshlrev_b32 v{t0}, 3, v{t0}")
    a(f"v_and_b32 v{t1}, 7, v0")
    a(f"v_add_u32 v{t0}, v{t0}, v{t1}")
    a(f"v_bfe_u32 v{t1}, v0, 3, 1")
    a(f"v_mul_u32_u24 v{t1}, 18432, v{t1}")
    a(f"v_lshl_add_u32 v{t2}, v{t0}, 3, v{t1}")
    a(f"v_lshl_add_u32 v{t1}, v{t0}, 4, v{t1}")
    a(f"v_mov_b32 v{t0}, 1")
    if 'onepoll' in opt: a("s_barrier")
    a("s_barrier")
    stamp(a, 4)
    for ins in reads_step(A0, B0, 0): a(ins)
    compute_loop(a, "C2")
    stamp(a, 5)
    W = f"s[{SRD_WS}:{SRD_WS+3}]"
    a(f"s_mov_b32 s{S_K}, 0xfffffffe")
    for q in range(4):
        for u in (2*q, 2*q+1):
            x = ACC + 4*u
            a(f"v_cvt_pk_bf16_f32 v{A0+2*u}, v{x}, v{x+1}")
            a(f"v_cvt_pk_bf16_f32 v{A0+2*u+1}, v{x+2}, v{x+3}")
        for d in range(4): a(f"v_min_u32 v{A0+4*q+d}, s{S_K}, v{A0+4*q+d}")
        sreg = S_PA if q < 2 else S_PB
        a(f"buffer_store_dwordx4 v[{A0+4*q}:{A0+4*q+3}], v{t1}, {W}, s{sreg} offen offset:{512*(q&1)} sc1")
    x = ACC + 32
    a(f"v_cvt_pk_bf16_f32 v{A0+16}, v{x}, v{x+1}")
    a(f"v_cvt_pk_bf16_f32 v{A0+17}, v{x+2}, v{x+3}")
    for d in range(2): a(f"v_min_u32 v{A0+16+d}, s{S_K}, v{A0+16+d}")
    a(f"buffer_store_dwordx2 v[{A0+16}:{A0+17}], v{t2}, {W}, s{S_PS} offen sc1")
    if 'ackE' in opt: a("s_waitcnt vmcnt(0)")
    a("s_barrier")
    stamp(a, 6)
    a(f"s_cmp_eq_u32 s{S_CW}, 0")
    a("s_cbranch_scc0 L_CDONE")
    reducer(a, "C", single=True)
    a.label("L_CDONE")
    if 'ts' in opt or amp_on():
        a("s_waitcnt vmcnt(0)")
    stamp(a, 7)
    amp_spin(a, 'C', 7)
    if 'clk' in opt:
        a("s_memtime s[96:97]")
        a("s_waitcnt lgkmcnt(0)")
        a("s_sub_u32 s78, s96, s98")
        a("s_mov_b32 s79, 0")
    dump_stamps(a, 0, 10 if ('diag' in opt or 'clk' in opt) else 9, "C", 0)
    DIAG_C[0] = False

def kernel_main(a):
    name = KNAME
    a(f".globl {name}\n.p2align 8\n.type {name},@function\n{name}:")
    a(f"s_cmp_ge_u32 s2, 256")
    a(f"s_cbranch_scc1 L_END")
    stamp(a, 0)
    if 'clk' in opt: a("s_memtime s[98:99]")
    a("s_load_dwordx8 s[4:11], s[0:1], 0")
    a("s_load_dwordx4 s[12:15], s[0:1], 32")
    a("v_lshrrev_b32 v1, 6, v0")
    a("v_and_b32 v0, 63, v0")
    a(f"v_readfirstlane_b32 s{S_WV}, v1")
    if 'spf' in opt:
        a(f"s_getpc_b64 s[{S_K}:{S_K+1}]")
        a.label("L_PC0")
        a(f"s_lshl_b32 s{S_T0}, s{S_WV}, 10")
        a(f"s_add_u32 s{S_T0}, s{S_T0}, 256")
        a(f"s_add_u32 s{S_K}, s{S_K}, s{S_T0}")
        a(f"s_addc_u32 s{S_K+1}, s{S_K+1}, 0")
        for i in range(8):
            a(f"s_load_dword s{S_T3}, s[{S_K}:{S_K+1}], {128*i}")
    if 'xmap' in opt:
        a(f"s_and_b32 s{S_J}, s2, 3")
        a(f"s_lshr_b32 s{S_XG}, s2, 2")
        a(f"s_and_b32 s{S_XG}, s{S_XG}, 7")
    else:
        a(f"s_and_b32 s{S_XG}, s2, 7")
        a(f"s_lshr_b32 s{S_J}, s2, 3")
        a(f"s_and_b32 s{S_J}, s{S_J}, 3")
    a(f"s_lshr_b32 s{S_MT}, s2, 5")
    a(f"s_lshl_b32 s{S_GRP}, s{S_XG}, 3")
    a(f"s_add_u32 s{S_GRP}, s{S_GRP}, s{S_MT}")
    a(f"s_lshr_b32 s{S_HB}, s{S_GRP}, 4")
    a(f"s_lshl_b32 s{S_HB}, s{S_HB}, 21")
    a(f"s_and_b32 s{S_T0}, s{S_GRP}, 15")
    a(f"s_mul_i32 s{S_T0}, s{S_T0}, {GRP_BYTES}")
    a(f"s_add_u32 s{S_HB}, s{S_HB}, s{S_T0}")
    a(f"s_lshl_b32 s{S_GRP}, s{S_GRP}, 2")
    a(f"s_and_b32 s{S_CW}, s{S_WV}, 3")
    a(f"s_mul_i32 s{S_T0}, s{S_CW}, {WST}")
    a(f"s_add_u32 s{S_HB}, s{S_HB}, s{S_T0}")
    a(f"s_add_u32 s{S_HB}, s{S_HB}, {H_OFF}")
    a(f"s_cmp_lt_u32 s{S_WV}, 4")
    a("s_cbranch_scc1 L_COMPUTE")
    loader(a)
    a.label("L_COMPUTE")
    compute(a)
    a.label("L_END")
    a("s_endpgm")
    a.label("L_CODE_END")
    if 'spf' in opt or 'spf2' in opt: a(".fill 512, 4, 0xbf800000")
    a(kd(name, vgpr=120, sgpr=102))

def check_barriers(lines):
    iL = lines.index("L_LOADER:"); iC = lines.index("L_COMPUTE:")
    def count(seg, loops):
        tot = 0; mult = 1; endlab = None
        for ln in seg:
            t = ln.strip()
            if t.endswith(":") and t[:-1] in loops:
                mult, endlab = loops[t[:-1]]
            elif endlab and (t == endlab or t == endlab + ":"):
                mult = 1; endlab = None
            if t == "s_barrier": tot += mult
        return tot
    ld1 = 4 if 'ldiag' in opt else 6
    nl = count(lines[iL:iC], {"L_LD1": (ld1, "s_cbranch_scc1 L_LD1")})
    nc = count(lines[iC:], {"L_C1": (8, "L_C1_LAST"), "L_C2": (8, "L_C2_LAST")})
    assert nl == nc, f"barrier mismatch loader {nl} compute {nc}"

def main():
    for o in sys.argv[2:]: opt.add(o)
    a = Asm()
    a(HEADER.rstrip())
    a(f"; @launch grid=(256,1,1) block=(512,1,1) lds={LDS_BYTES}")
    a('.amdgcn_target "amdgcn-amd-amdhsa--gfx950"')
    a(".text")
    kernel_main(a)
    check_barriers(a.lines)
    open(sys.argv[1], "w").write(a.text())

main()
```

```python
import sys
from common import *

X_BYTES = 512*576*2
W_BYTES = 576*4608*2
OUT_BYTES = 512*576*2
WS_BYTES = 268435456
PAGE = 2*1024*1024
H_OFF = 4096
GRP_BYTES = 73728
FLAG_OFF = 4*PAGE + 4096
INBOX_OFF = 5*PAGE + 4096
INBOX_B = 8*8*2304
WST = 18432
NSL = 6
LB = NSL*WST
NBP = 5
MHB = NBP*4096
MHS = 36864
LDS_BYTES = LB + 2*MHB
TS_OFF = 128 << 20
SPIN = 1 << 17
KNAME = "standalone__dense_activation_silu__sampling_kernel"
opt = set()

S_X, S_W1, S_W2, S_OUT, S_DBG, S_WS = 4, 6, 8, 10, 12, 14
SRD_X, SRD_W1, SRD_WS, SRD_W2, SRD_DBG = 16, 20, 24, 40, 44
S_WV, S_XG, S_J, S_MT, S_CW = 28, 29, 30, 31, 32
S_N, S_WOFF, S_DSLOT = 33, 34, 35
S_T0, S_T1, S_T2, S_T3 = 36, 37, 38, 39
S_HB, S_GRP, S_INB = 53, 54, 58
S_TS = 60
S_K = 84
S_P, S_XROW, S_BDST, S_WCOL, S_WLDS = 48, 49, 50, 51, 52
S_W2B, S_KAP, S_HOFF, S_CK, S_KH, S_HDST = 55, 56, 57, 59, 92, 94
S_TST, S_TREAL, S_TOFF, S_TN = 93, 95, 96, 97
S_BBEG, S_BEND = 86, 87
S_PH, S_HST, S_HSP, S_FLG, S_PA, S_PS = 48, 49, 50, 51, 52, 55

def stamp(a, i):
    if 'ts' in opt:
        a(f"s_memrealtime s[{S_TS+2*i}:{S_TS+2*i+1}]")
def stampw(a, i):
    if 'ts' in opt:
        a(f"s_memrealtime s[{S_TS+2*i}:{S_TS+2*i+1}]")
        a("s_waitcnt lgkmcnt(0)")

def dump_stamps(a, kidx, n, tag, wave):
    if 'ts' not in opt: return
    a("s_waitcnt lgkmcnt(0) vmcnt(0)")
    a(f"s_cmp_eq_u32 s{S_WV}, {wave}")
    a(f"s_cbranch_scc0 L_NOTS{tag}")
    a(f"s_lshl_b32 s80, s2, 7")
    a(f"s_add_u32 s80, s80, {TS_OFF + kidx*512*128}")
    a(f"s_mov_b32 s88, s14\ns_mov_b32 s89, s15\ns_mov_b32 s90, {WS_BYTES}\ns_mov_b32 s91, 0x20000")
    a("v_mov_b32 v2, 0")
    for i in range(n):
        a(f"v_mov_b32 v4, s{S_TS+2*i}\nv_mov_b32 v5, s{S_TS+2*i+1}")
        a(f"buffer_store_dwordx2 v[4:5], v2, s[88:91], s80 offen offset:{8*i}")
        a("s_nop 1")
    a.label(f"L_NOTS{tag}")

def srd(a, base, ptr, nbytes):
    a(f"s_mov_b32 s{base}, s{ptr}")
    a(f"s_mov_b32 s{base+1}, s{ptr+1}")
    a(f"s_mov_b32 s{base+2}, {nbytes}")
    a(f"s_mov_b32 s{base+3}, 0x20000")
def R(base): return f"s[{base}:{base+3}]"

def wrap(a, reg, inc, mod):
    a(f"s_add_u32 s{reg}, s{reg}, {inc}")
    a(f"s_sub_u32 s{S_T3}, s{reg}, {mod}")
    a(f"s_cmp_ge_u32 s{reg}, {mod}")
    a(f"s_cselect_b32 s{reg}, s{S_T3}, s{reg}")

def group_bases(a):
    a(f"s_lshl_b32 s{S_GRP}, s{S_XG}, 3")
    a(f"s_add_u32 s{S_GRP}, s{S_GRP}, s{S_MT}")
    a(f"s_lshr_b32 s{S_HB}, s{S_GRP}, 4")
    a(f"s_lshl_b32 s{S_HB}, s{S_HB}, 21")
    a(f"s_and_b32 s{S_T0}, s{S_GRP}, 15")
    a(f"s_mul_i32 s{S_T0}, s{S_T0}, {GRP_BYTES}")
    a(f"s_add_u32 s{S_HB}, s{S_HB}, s{S_T0}")
    a(f"s_add_u32 s{S_HB}, s{S_HB}, {H_OFF}")
    a(f"s_lshl_b32 s{S_GRP}, s{S_GRP}, 2")

def inbox_block(a, dst):
    a(f"s_lshl_b32 s{dst}, s{S_MT}, 2")
    a(f"s_add_u32 s{dst}, s{dst}, s{S_J}")
    a(f"s_mul_i32 s{dst}, s{dst}, {INBOX_B}")
    a(f"s_add_u32 s{dst}, s{dst}, {INBOX_OFF}")

def poll_pub(a, tag, vtmp, preloaded=False):
    if preloaded:
        a("s_waitcnt vmcnt(0)")
        a(f"v_cmp_ne_u32 vcc, 1, v{vtmp}")
        a(f"s_cbranch_vccz L_PGX{tag}")
    a(f"s_mov_b32 s{S_T3}, 0")
    a.label(f"L_PG{tag}")
    a(f"s_add_u32 s{S_T3}, s{S_T3}, 1")
    a(f"s_cmp_gt_u32 s{S_T3}, {SPIN}")
    a(f"s_cbranch_scc1 L_PGX{tag}")
    a(f"buffer_load_dword v{vtmp}, off, {R(SRD_DBG)}, 0 sc1")
    a("s_waitcnt vmcnt(0)")
    a(f"v_cmp_ne_u32 vcc, 1, v{vtmp}")
    a(f"s_cbranch_vccnz L_PG{tag}")
    a.label(f"L_PGX{tag}")

def poll_ones(a, tag, vdst, vaddr, soff):
    a(f"s_mov_b32 s{S_T3}, 0")
    a.label(f"L_PO{tag}")
    a(f"s_add_u32 s{S_T3}, s{S_T3}, 1")
    a(f"s_cmp_gt_u32 s{S_T3}, {SPIN}")
    a(f"s_cbranch_scc1 L_POX{tag}")
    a(f"buffer_load_dword v{vdst}, v{vaddr}, {R(SRD_WS)}, s{soff} offen sc1")
    a("s_waitcnt vmcnt(0)")
    a(f"v_cmp_ne_u32 vcc, 1, v{vdst}")
    a(f"s_cbranch_vccnz L_PO{tag}")
    a.label(f"L_POX{tag}")

R_D, R_ACC, R_T, R_A = 80, 96, 100, 104
def reducer(a, tag, single):
    W = R(SRD_WS)
    if single:
        a(f"v_min_u32 v{R_T}, 31, v0")
        a(f"v_lshlrev_b32 v{R_A}, 3, v{R_T}")
        a(f"s_add_u32 s{S_T0}, s{S_INB}, 2048")
        a(f"v_and_b32 v{R_T+1}, 7, v{R_T}")
        a(f"v_mul_u32_u24 v{R_T+1}, 1152, v{R_T+1}")
        a(f"v_lshrrev_b32 v{R_T}, 3, v{R_T}")
        a(f"v_lshl_add_u32 v{R_A+1}, v{R_T}, 3, v{R_T+1}")
        a(f"s_mov_b32 s{S_T2}, 256")
    else:
        a(f"v_lshlrev_b32 v{R_A}, 3, v0")
        a(f"s_lshl_b32 s{S_T0}, s{S_CW}, 9")
        a(f"s_add_u32 s{S_T0}, s{S_T0}, s{S_INB}")
        a(f"v_bfe_u32 v{R_T}, v0, 1, 3")
        a(f"v_mul_u32_u24 v{R_T}, 1152, v{R_T}")
        a(f"v_lshrrev_b32 v{R_T+1}, 5, v0")
        a(f"v_lshl_add_u32 v{R_T}, v{R_T+1}, 5, v{R_T}")
        a(f"v_and_b32 v{R_T+1}, 1, v0")
        a(f"v_lshl_add_u32 v{R_T}, v{R_T+1}, 4, v{R_T}")
        a(f"v_bfe_u32 v{R_T+1}, v0, 4, 1")
        a(f"v_lshl_add_u32 v{R_A+1}, v{R_T+1}, 3, v{R_T}")
        a(f"s_lshl_b32 s{S_T2}, s{S_CW}, 6")
    a(f"s_lshl_b32 s{S_T1}, s{S_MT}, 3")
    a(f"s_add_u32 s{S_T1}, s{S_T1}, s{S_XG}")
    a(f"s_mul_i32 s{S_T1}, s{S_T1}, {8*1152}")
    a(f"s_add_u32 s{S_T2}, s{S_T2}, s{S_T1}")
    a(f"s_mul_i32 s{S_T1}, s{S_J}, 288")
    a(f"s_add_u32 s{S_T2}, s{S_T2}, s{S_T1}")
    srd(a, SRD_X, S_OUT, OUT_BYTES)
    return
def reducer_run(a, tag, single):
    W = R(SRD_WS)
    a(f"s_mov_b32 s{S_T3}, 0")
    a.label(f"L_RP{tag}")
    a(f"s_mov_b32 s{S_T1}, s{S_T0}")
    for xg in range(8):
        a(f"buffer_load_dwordx2 v[{R_D+2*xg}:{R_D+2*xg+1}], v{R_A}, {W}, s{S_T1} offen sc1")
        if xg < 7: a(f"s_add_u32 s{S_T1}, s{S_T1}, 2304")
    a(f"s_add_u32 s{S_T3}, s{S_T3}, 1")
    a(f"s_cmp_gt_u32 s{S_T3}, {SPIN}")
    a(f"s_cbranch_scc1 L_RPX{tag}")
    a("s_waitcnt vmcnt(0)")
    a(f"v_max3_u32 v{R_T}, v{R_D}, v{R_D+1}, v{R_D+2}")
    for i in range(3, 15, 2):
        a(f"v_max3_u32 v{R_T}, v{R_T}, v{R_D+i}, v{R_D+i+1}")
    a(f"v_max_u32 v{R_T}, v{R_T}, v{R_D+15}")
    a(f"v_cmp_eq_u32 vcc, -1, v{R_T}")
    a(f"s_cbranch_vccnz L_RP{tag}")
    a.label(f"L_RPX{tag}")
    a("s_waitcnt vmcnt(0)")
    for xg in range(8):
        for d in range(2):
            src = R_D + 2*xg + d
            dst = R_ACC if xg == 0 else R_T
            a(f"v_lshlrev_b32 v{dst+2*d}, 16, v{src}")
            a(f"v_and_b32 v{dst+2*d+1}, 0xffff0000, v{src}")
        if xg:
            for d in range(4): a(f"v_add_f32 v{R_ACC+d}, v{R_ACC+d}, v{R_T+d}")
    a(f"v_cvt_pk_bf16_f32 v{R_D}, v{R_ACC}, v{R_ACC+1}")
    a(f"v_cvt_pk_bf16_f32 v{R_D+1}, v{R_ACC+2}, v{R_ACC+3}")
    if single: a("s_mov_b32 exec_hi, 0")
    a(f"buffer_store_dwordx2 v[{R_D}:{R_D+1}], v{R_A+1}, {R(SRD_X)}, s{S_T2} offen")
    if single: a("s_mov_b32 exec_hi, -1")

L_W1, L_W2, L_X, L_H, L_T = 1, 6, 11, 13, 14
L_RHO, L_C16 = 20, 25
L_TV, L_PF, L_CK = 30, 32, 34

def issue_x(a):
    a(f"s_lshl_b32 s{S_T0}, s{S_P}, 7")
    a(f"s_mov_b32 m0, s{S_BDST}")
    a(f"s_add_u32 s{S_T0}, s{S_T0}, s{S_XROW}")
    a(f"buffer_load_dwordx4 v{L_X}, {R(SRD_X)}, s{S_T0} offen lds")
    a(f"s_add_u32 m0, m0, 1024")
    a(f"s_add_u32 s{S_BDST}, s{S_BDST}, 4096")
    a(f"buffer_load_dwordx4 v{L_X+1}, {R(SRD_X)}, s{S_T0} offen lds")
    a(f"s_cmp_eq_u32 s{S_BDST}, s{S_BEND}")
    a(f"s_cselect_b32 s{S_BDST}, s{S_BBEG}, s{S_BDST}")

def issue_w_one(a, i, vbase, srdreg):
    if i == 0: a(f"s_add_u32 m0, s{S_DSLOT}, s{S_WLDS}")
    else:      a(f"s_add_u32 m0, m0, 1024")
    a("s_mov_b32 exec_hi, 0" if i == 4 else "s_nop 0")
    a(f"buffer_load_dwordx4 v{vbase+i}, {R(srdreg)}, s{S_WOFF} offen lds")
    if i == 4: a("s_mov_b32 exec_hi, -1")
def slot_next(a):
    a(f"s_add_u32 s{S_DSLOT}, s{S_DSLOT}, {WST}")
    a(f"s_cmp_eq_u32 s{S_DSLOT}, {NSL*WST}")
    a(f"s_cselect_b32 s{S_DSLOT}, 0, s{S_DSLOT}")
def w1_off(a):
    a(f"s_mul_i32 s{S_WOFF}, s{S_P}, {64*9216}")
    a(f"s_add_u32 s{S_WOFF}, s{S_WOFF}, s{S_WCOL}")
def issue_touch(a):
    a(f"s_cmp_eq_u32 s{S_TN}, s{S_TST}")
    a(f"s_cselect_b32 s{S_TOFF}, s{S_TREAL}, 0x70000000")
    a(f"s_add_u32 s{S_TN}, s{S_TN}, 1")
    a(f"buffer_load_dword v{L_TV+1}, v{L_TV}, {R(SRD_W2)}, s{S_TOFF} offen")
L_FS = 36
S_FU, S_FB = 98, 99
def spread(): return 'spread' in opt
def issue_fill(a):
    a(f"s_cmp_lt_u32 s{S_FU}, {18*1024}")
    a(f"s_cselect_b32 s{S_T0}, s{S_FU}, 0x60000000")
    a(f"s_add_u32 s{S_T0}, s{S_T0}, s{S_FB}")
    a(f"s_add_u32 s{S_FU}, s{S_FU}, 4096")
    a(f"buffer_store_dwordx4 v[{L_FS}:{L_FS+3}], v{L_H}, {R(SRD_WS)}, s{S_T0} offen sc1")
def issue_stage1(a):
    issue_x(a)
    w1_off(a)
    for i in range(5): issue_w_one(a, i, L_W1, SRD_W1)
    slot_next(a)
    wrap(a, S_P, 1, 9)
    issue_touch(a)
    if spread(): issue_fill(a)
def issue_w2(a):
    a(f"s_mul_i32 s{S_WOFF}, s{S_KAP}, {16*1152}")
    a(f"s_add_u32 s{S_WOFF}, s{S_WOFF}, s{S_W2B}")
    for i in range(5): issue_w_one(a, i, L_W2, SRD_W2)
    slot_next(a)
    wrap(a, S_KAP, 4, 36)
def issue_h(a):
    a(f"s_lshl_b32 s{S_HOFF}, s{S_KH}, 10")
    a(f"s_mov_b32 m0, s{S_HDST}")
    a(f"s_add_u32 s{S_HOFF}, s{S_HOFF}, s{S_HB}")
    a(f"buffer_load_dwordx4 v{L_H}, {R(SRD_WS)}, s{S_HOFF} offen sc1 lds")
    a(f"s_add_u32 m0, m0, {MHB}")
    a(f"s_add_u32 s{S_HOFF}, s{S_HOFF}, {MHS}")
    a(f"buffer_load_dwordx4 v{L_H}, {R(SRD_WS)}, s{S_HOFF} offen sc1 lds")
    a(f"s_add_u32 s{S_HDST}, s{S_HDST}, 4096")
    a(f"s_cmp_eq_u32 s{S_HDST}, s{S_BEND}")
    a(f"s_cselect_b32 s{S_HDST}, s{S_BBEG}, s{S_HDST}")
    wrap(a, S_KH, 4, 36)

def w_voff(a, i):
    t0, t1 = L_T, L_T+1
    a(f"v_add_u32 v{t0}, {64*i}, v0")
    a(f"v_mul_u32_u24 v{t1}, 3641, v{t0}")
    a(f"v_lshrrev_b32 v{L_RHO+i}, 16, v{t1}")
    a(f"v_lshlrev_b32 v{t0}, 4, v{t0}")
    a(f"v_mad_i32_i24 v{L_C16+i}, v{L_RHO+i}, s{S_T1}, v{t0}")
    a(f"v_and_b32 v{t0}, 1, v{L_RHO+i}")
    a(f"v_and_b32 v{t1}, 8, v{L_RHO+i}")
    a(f"v_lshl_add_u32 v{t1}, v{t0}, 2, v{t1}")
    a(f"v_bfe_u32 v{t0}, v{L_RHO+i}, 1, 2")
    a(f"v_add_u32 v{t1}, v{t1}, v{t0}")
    a(f"v_mad_u32_u24 v{L_W1+i}, v{t1}, s{S_T2}, v{L_C16+i}")
def w2_voffs(a):
    t0, t1 = L_T, L_T+1
    a(f"s_movk_i32 s{S_T2}, 1152")
    for i in range(5):
        a(f"v_and_b32 v{t0}, 1, v{L_RHO+i}")
        a(f"v_lshrrev_b32 v{t1}, 3, v{L_RHO+i}")
        a(f"v_lshlrev_b32 v{t1}, 2, v{t1}")
        a(f"v_lshl_add_u32 v{t1}, v{t0}, 3, v{t1}")
        a(f"v_bfe_u32 v{t0}, v{L_RHO+i}, 1, 2")
        a(f"v_add_u32 v{t1}, v{t1}, v{t0}")
        a(f"v_mad_u32_u24 v{L_W2+i}, v{t1}, s{S_T2}, v{L_C16+i}")

def loader(a):
    a.label("L_LOADER")
    t0, t1, t2 = L_T, L_T+1, L_T+2
    a(f"v_lshrrev_b32 v{t0}, 3, v0")
    a(f"v_lshrrev_b32 v{t1}, 4, v0")
    a(f"v_and_b32 v{t2}, 7, v0")
    a(f"v_xor_b32 v{t1}, v{t1}, v{t2}")
    a(f"v_lshlrev_b32 v{t1}, 4, v{t1}")
    a(f"v_mul_u32_u24 v{t0}, 1152, v{t0}")
    a(f"v_add_u32 v{L_X}, v{t0}, v{t1}")
    a(f"v_xor_b32 v{t1}, 64, v{t1}")
    a(f"v_add_u32 v{t0}, {8*1152}, v{t0}")
    a(f"v_add_u32 v{L_X+1}, v{t0}, v{t1}")
    a(f"s_lshl_b32 s{S_T0}, s{S_MT}, 2")
    a(f"s_add_u32 s{S_T0}, s{S_T0}, s{S_CW}")
    a(f"s_mul_i32 s{S_XROW}, s{S_T0}, {16*1152}")
    a(f"s_lshr_b32 s{S_T0}, s{S_CW}, 1")
    a(f"s_mul_i32 s{S_BDST}, s{S_T0}, {MHB}")
    a(f"s_and_b32 s{S_T0}, s{S_CW}, 1")
    a(f"s_lshl_b32 s{S_T0}, s{S_T0}, 11")
    a(f"s_add_u32 s{S_BDST}, s{S_BDST}, s{S_T0}")
    a(f"s_add_u32 s{S_BDST}, s{S_BDST}, {LB}")
    a(f"s_mov_b32 s{S_BBEG}, s{S_BDST}")
    a(f"s_add_u32 s{S_BEND}, s{S_BDST}, {NBP*4096}")
    if 'norot' in opt: a(f"s_mov_b32 s{S_P}, 0")
    else:
        a(f"s_lshl_b32 s{S_P}, s{S_J}, 1")
        wrap_reg = S_P
        a(f"s_add_u32 s{S_P}, s{S_P}, s{S_MT}")
        a(f"s_sub_u32 s{S_T0}, s{S_P}, 9")
        a(f"s_cmp_ge_u32 s{S_P}, 9")
        a(f"s_cselect_b32 s{S_P}, s{S_T0}, s{S_P}")
    a(f"s_mul_i32 s{S_WCOL}, s{S_XG}, 1152")
    a(f"s_mul_i32 s{S_T0}, s{S_J}, 288")
    a(f"s_add_u32 s{S_WCOL}, s{S_WCOL}, s{S_T0}")
    a(f"s_mul_i32 s{S_T0}, s{S_CW}, {16*9216}")
    a(f"s_add_u32 s{S_WCOL}, s{S_WCOL}, s{S_T0}")
    a(f"s_mul_i32 s{S_WLDS}, s{S_CW}, 4608")
    a(f"s_mov_b32 s{S_DSLOT}, 0")
    a(f"s_movk_i32 s{S_T1}, -288")
    a(f"s_movk_i32 s{S_T2}, 9216")
    w_voff(a, 0)
    a("s_waitcnt lgkmcnt(0)")
    srd(a, SRD_X, S_X, X_BYTES)
    srd(a, SRD_W1, S_W1, W_BYTES)
    stamp(a, 1)
    issue_x(a)
    w1_off(a)
    issue_w_one(a, 0, L_W1, SRD_W1)
    for i in range(1, 5):
        w_voff(a, i)
        issue_w_one(a, i, L_W1, SRD_W1)
    slot_next(a)
    wrap(a, S_P, 1, 9)
    srd(a, SRD_W2, S_W2, W_BYTES)
    a(f"s_lshl_b32 s{S_T0}, s{S_MT}, 2")
    a(f"s_add_u32 s{S_T0}, s{S_T0}, s{S_J}")
    a(f"s_mul_i32 s{S_T0}, s{S_T0}, 162")
    a(f"s_mul_i32 s{S_T1}, s{S_CW}, 41")
    a(f"s_add_u32 s{S_T0}, s{S_T0}, s{S_T1}")
    a(f"s_lshl_b32 s{S_T0}, s{S_T0}, 7")
    a(f"s_mul_i32 s{S_W2B}, s{S_XG}, {576*1152}")
    a(f"s_add_u32 s{S_TREAL}, s{S_T0}, s{S_W2B}")
    a(f"v_min_u32 v{L_TV}, 40, v0")
    a(f"v_lshlrev_b32 v{L_TV}, 7, v{L_TV}")
    a(f"s_mov_b32 s{S_TN}, 1")
    a(f"s_add_u32 s{S_TST}, s{S_MT}, 1")
    if spread():
        srd(a, SRD_WS, S_WS, WS_BYTES)
        a(f"v_lshlrev_b32 v{L_H}, 4, v0")
        for i in range(4): a(f"v_mov_b32 v{L_FS+i}, -1")
        inbox_block(a, S_FB)
        a(f"s_mul_i32 s{S_T1}, s{S_XG}, 18432")
        a(f"s_add_u32 s{S_FB}, s{S_FB}, s{S_T1}")
        fstart = 1
        for o in opt:
            if o.startswith('fs'): fstart = int(o[2])
        a(f"s_lshl_b32 s{S_FU}, s{S_CW}, 10")
        a(f"s_sub_u32 s{S_FU}, s{S_FU}, {4096*fstart}")
    issue_stage1(a)
    stamp(a, 2)
    srd(a, SRD_WS, S_WS, WS_BYTES)
    srd(a, SRD_DBG, S_DBG, 256)
    w2_voffs(a)
    group_bases(a)
    a(f"s_mul_i32 s{S_T0}, s{S_J}, 288")
    a(f"s_add_u32 s{S_W2B}, s{S_W2B}, s{S_T0}")
    a(f"s_mul_i32 s{S_KAP}, s{S_J}, 9")
    a(f"s_add_u32 s{S_KAP}, s{S_KAP}, s{S_CW}")
    a(f"s_add_u32 s{S_KH}, s{S_KAP}, 8")
    a(f"s_sub_u32 s{S_T0}, s{S_KH}, 36")
    a(f"s_cmp_ge_u32 s{S_KH}, 36")
    a(f"s_cselect_b32 s{S_KH}, s{S_T0}, s{S_KH}")
    a(f"s_lshl_b32 s{S_HDST}, s{S_CW}, 10")
    a(f"s_add_u32 s{S_HDST}, s{S_HDST}, {LB + 2*4096}")
    a(f"v_lshlrev_b32 v{L_H}, 4, v0")
    inbox_block(a, S_INB)
    a(f"s_mul_i32 s{S_T1}, s{S_XG}, 18432")
    a(f"s_add_u32 s{S_INB}, s{S_INB}, s{S_T1}")
    a(f"v_and_b32 v{L_PF}, 15, v0")
    a(f"v_lshlrev_b32 v{L_PF}, 2, v{L_PF}")
    a(f"v_lshrrev_b32 v{L_CK}, 2, v0")
    a(f"v_and_b32 v{L_CK}, 7, v{L_CK}")
    a(f"v_lshlrev_b32 v{L_CK}, 10, v{L_CK}")
    a(f"v_and_b32 v{L_CK+1}, 3, v0")
    a(f"v_lshl_add_u32 v{L_CK}, v{L_CK+1}, 2, v{L_CK}")
    a(f"s_lshl_b32 s{S_CK}, s{S_MT}, 7")
    a(f"s_lshl_b32 s{S_T0}, s{S_J}, 4")
    a(f"s_add_u32 s{S_CK}, s{S_CK}, s{S_T0}")
    a(f"s_add_u32 s{S_CK}, s{S_CK}, {FLAG_OFF}")
    a("s_waitcnt vmcnt(%d)" % (9 if spread() else 8))
    a("s_barrier")
    stamp(a, 3)
    issue_stage1(a)
    a(f"s_mov_b32 s{S_N}, 0")
    a.label("L_LD1")
    a("s_waitcnt vmcnt(%d)" % (11 if spread() else 9))
    a("s_barrier")
    issue_stage1(a)
    a(f"s_add_u32 s{S_N}, s{S_N}, 1")
    a(f"s_cmp_lt_u32 s{S_N}, 6")
    a("s_cbranch_scc1 L_LD1")
    tail = 2 if spread() else 1
    q = [("st7", 7), ("x7", tail), ("st8", 7), ("x8", tail)]
    def iss(name, cnt, fn):
        fn(); q.append((name, cnt))
    def wait(*names):
        idx = [i for i, (nm, c) in enumerate(q) if nm in names]
        last = max(idx) if idx else -1
        n = sum(c for nm, c in q[last+1:])
        a("s_waitcnt vmcnt(%d)" % n)
    def drained(): q.clear()
    nW = [0]; nH = [2]
    def Wn():
        n = nW[0]; iss(f"W{n}", 5, lambda: issue_w2(a)); nW[0] += 1
    def Hn():
        n = nH[0]; iss(f"h{n}", 2, lambda: issue_h(a)); nH[0] += 1
    sch = (0, 1, 1, 1, 1)
    for o in opt:
        if o.startswith('sch'): sch = tuple(int(c) for c in o[3:8])
    a(f"s_mov_b32 s{S_DSLOT}, {4*WST}")
    a(f"s_lshl_b32 s{S_BBEG}, s{S_CW}, 10")
    a(f"s_add_u32 s{S_BBEG}, s{S_BBEG}, {LB}")
    a(f"s_add_u32 s{S_BEND}, s{S_BBEG}, {NBP*4096}")
    wait("st7")
    a("s_barrier")
    for _ in range(sch[0]): Wn()
    assert nW[0] <= 2
    wait("st8")
    a("s_barrier")
    for _ in range(sch[1]): Wn()
    assert nW[0] <= 3
    a("s_barrier")
    stamp(a, 4)
    for _ in range(sch[2]): Wn()
    assert nW[0] >= 1
    a(f"buffer_load_dword v{L_T}, off, {R(SRD_DBG)}, 0 sc1"); q.append(("pub", 1))
    a(f"s_lshl_b32 s{S_T2}, s{S_GRP}, 5")
    a(f"s_add_u32 s{S_T2}, s{S_T2}, {FLAG_OFF}")
    wait("W0")
    a("s_barrier")
    stamp(a, 5)
    for _ in range(sch[3]): Wn()
    assert nW[0] >= 2
    wait("W1")
    a("s_barrier")
    for _ in range(sch[4]): Wn()
    assert nW[0] <= 6
    poll_pub(a, "L", L_T, preloaded=True); drained()
    poll_ones(a, "F", L_T, L_PF, S_T2)
    stamp(a, 6)
    Hn(); Hn()
    if nW[0] <= 2: Wn()
    wait("h2", "W2")
    a("s_barrier")
    stamp(a, 7)
    for s in range(3, 9):
        k = 0
        while nH[0] <= 8 and (nH[0] <= 4 or nH[0] <= s + 2) and nH[0] <= s + 1:
            Hn()
        while nW[0] <= 8 and (nW[0] <= 5 or nW[0] <= s + 3) and (nW[0] <= s or k < 1):
            Wn(); k += 1
        if s == 6:
            iss("chk", 1, lambda: a(f"buffer_load_dword v{L_CK+1}, v{L_CK}, {R(SRD_WS)}, s{S_CK} offen sc1"))
        if s == 8:
            a("s_waitcnt vmcnt(0)")
            a(f"v_cmp_ne_u32 vcc, 1, v{L_CK+1}")
            a("s_cbranch_vccz L_POXK")
            poll_ones(a, "K", L_CK+1, L_CK, S_CK)
            drained()
        assert nW[0] > s and nH[0] > s, (s, nW, nH)
        wait(f"h{s}", f"W{s}")
        a("s_barrier")
    stamp(a, 8)
    reducer(a, "L", single=False)
    a("s_barrier")
    reducer_run(a, "L", single=False)
    stamp(a, 9)
    dump_stamps(a, 1, 10, "LD", 4)
    a("s_endpgm")

C_A32, C_A8 = 2, 124
C_B32, C_B8 = 6, 10
C_T = 12
SETS = (16, 48)
ACC = 80
C_E = 116

def reads_step(st, n, s0):
    sl = n % NSL
    A32 = C_A32 + (sl >> 1); A8 = C_A8 + (sl >> 1)
    base = (sl & 1)*WST + s0*9216
    bo = (n % NBP)*4096
    def a32(c, kh):
        d = st + (kh*2 + c)*4
        off = base + kh*4608 + 64*c
        return [f"ds_read_b64_tr_b16 v[{d}:{d+1}], v{A32} offset:{off}",
                f"ds_read_b64_tr_b16 v[{d+2}:{d+3}], v{A32} offset:{off+288}"]
    def b32(kh):
        d = st + 20 + 4*kh
        return [f"ds_read_b128 v[{d}:{d+3}], v{C_B32 + 2*s0 + kh} offset:{bo}"]
    ins = b32(0) + a32(0, 0) + a32(1, 0) + b32(1) + a32(0, 1) + a32(1, 1)
    ins.append(f"ds_read_b128 v[{st+28}:{st+31}], v{C_B8 + s0} offset:{bo}")
    ins.append(f"ds_read_b64_tr_b16 v[{st+16}:{st+17}], v{A8} offset:{base}")
    ins.append(f"ds_read_b64_tr_b16 v[{st+18}:{st+19}], v{A8} offset:{base+288}")
    return ins

def mfmas(st):
    out = []
    for kh in range(2):
        for c in range(2):
            acc = ACC + 16*c
            A = st + (kh*2 + c)*4; B = st + 20 + 4*kh
            out.append(f"v_mfma_f32_32x32x16_bf16 v[{acc}:{acc+15}], v[{A}:{A+3}], v[{B}:{B+3}], v[{acc}:{acc+15}]")
    out.append(f"v_mfma_f32_16x16x32_bf16 v[{ACC+32}:{ACC+35}], v[{st+16}:{st+19}], v[{st+28}:{st+31}], v[{ACC+32}:{ACC+35}]")
    return out

NEED = [3, 5, 8, 10, 13]
def block(a, r, m):
    k = 0
    for u in range(5):
        a(f"s_waitcnt lgkmcnt({13 - NEED[u] + k})")
        a(m[u])
        if r:
            for _ in range(3 if u < 4 else 1):
                a(r[k]); k += 1

def body(a):
    for n in range(9):
        block(a, reads_step(SETS[1], n, 1), mfmas(SETS[0]))
        if n == 1:
            a(f"s_cmp_eq_u32 s{S_PH}, 0")
            a("s_cbranch_scc1 L_NOFLAG")
            poll_pub(a, "C", C_T, preloaded=True)
            a("s_mov_b64 exec, 1")
            a(f"buffer_store_dword v{C_T+3}, off, {R(SRD_WS)}, s{S_FLG} sc1")
            a("s_mov_b64 exec, -1")
            a.label("L_NOFLAG")
        if n < 8:
            a("s_barrier")
            if 'diag' in opt:
                a(f"s_memtime s[{S_TS}:{S_TS+1}]") if False else None
            block(a, reads_step(SETS[0], n+1, 0), mfmas(SETS[1]))
        else:
            block(a, None, mfmas(SETS[1]))

def zero_acc(a):
    for i in range(0, 36, 2): a(f"v_pk_mov_b32 v[{ACC+i}:{ACC+i+1}], 0, 0")

def silu4(a, x, e):
    for r in (0, 2): a(f"v_pk_mul_f32 v[{e+r}:{e+r+1}], v[{x+r}:{x+r+1}], s[{S_K}:{S_K+1}]")
    for r in range(4): a(f"v_exp_f32 v{e+r}, v{e+r}")
    for r in (0, 2): a(f"v_pk_add_f32 v[{e+r}:{e+r+1}], v[{e+r}:{e+r+1}], 1.0 op_sel_hi:[1,0]")
    for r in range(4): a(f"v_rcp_f32 v{e+r}, v{e+r}")
    for r in (0, 2): a(f"v_pk_mul_f32 v[{x+r}:{x+r+1}], v[{x+r}:{x+r+1}], v[{e+r}:{e+r+1}]")

def compute(a):
    t0, t1, t2, t3 = C_T, C_T+1, C_T+2, C_T+3
    W = R(SRD_WS)
    a(f"s_and_b32 s{S_T0}, s{S_CW}, 1")
    a(f"s_lshr_b32 s{S_T1}, s{S_CW}, 1")
    a(f"v_bfe_u32 v{t0}, v0, 2, 2")
    a(f"v_mul_u32_u24 v{t0}, 576, v{t0}")
    a(f"v_and_b32 v{t1}, 3, v0")
    a(f"v_lshl_add_u32 v{t0}, v{t1}, 3, v{t0}")
    a(f"v_lshrrev_b32 v{t1}, 4, v0")
    a(f"v_mul_u32_u24 v{t2}, 2304, v{t1}")
    a(f"v_add_u32 v{t2}, v{t2}, v{t0}")
    a(f"v_add_u32 v{C_A8}, 256, v{t2}")
    a(f"v_add_u32 v{C_A8+1}, {2*WST}, v{C_A8}")
    a(f"v_add_u32 v{C_A8+2}, {4*WST}, v{C_A8}")
    a(f"v_lshrrev_b32 v{t2}, 5, v0")
    a(f"v_mul_u32_u24 v{t2}, 2304, v{t2}")
    a(f"v_add_u32 v{t0}, v{t0}, v{t2}")
    a(f"v_and_b32 v{t1}, 1, v{t1}")
    a(f"v_lshl_add_u32 v{t0}, v{t1}, 5, v{t0}")
    a(f"s_lshl_b32 s{S_T2}, s{S_T0}, 7")
    a(f"v_add_u32 v{C_A32}, s{S_T2}, v{t0}")
    a(f"v_add_u32 v{C_A32+1}, {2*WST}, v{C_A32}")
    a(f"v_add_u32 v{C_A32+2}, {4*WST}, v{C_A32}")
    a(f"s_mul_i32 s{S_T1}, s{S_T1}, {MHB}")
    a(f"s_add_u32 s{S_T1}, s{S_T1}, {LB}")
    a(f"v_and_b32 v{t0}, 15, v0")
    a(f"v_lshrrev_b32 v{t1}, 1, v{t0}")
    a(f"v_lshlrev_b32 v{t0}, 7, v{t0}")
    a(f"v_add_u32 v{t0}, s{S_T1}, v{t0}")
    a(f"v_bfe_u32 v{t2}, v0, 4, 1")
    a(f"v_lshl_add_u32 v{t2}, v{t2}, 11, v{t0}")
    a(f"v_lshrrev_b32 v{t3}, 5, v0")
    a(f"v_xor_b32 v{t3}, v{t3}, v{t1}")
    a(f"v_lshlrev_b32 v{t3}, 4, v{t3}")
    for k4 in range(4):
        if k4: a(f"v_xor_b32 v{C_E}, {32*k4}, v{t3}")
        a(f"v_add_u32 v{C_B32+k4}, v{t2}, v{C_E if k4 else t3}")
    a(f"s_lshl_b32 s{S_T2}, s{S_T0}, 11")
    a(f"v_add_u32 v{t0}, s{S_T2}, v{t0}")
    a(f"v_lshrrev_b32 v{t3}, 4, v0")
    a(f"v_xor_b32 v{t3}, v{t3}, v{t1}")
    a(f"v_lshlrev_b32 v{t3}, 4, v{t3}")
    a(f"v_add_u32 v{C_B8}, v{t0}, v{t3}")
    a(f"v_xor_b32 v{t3}, 64, v{t3}")
    a(f"v_add_u32 v{C_B8+1}, v{t0}, v{t3}")
    zero_acc(a)
    group_bases(a)
    inbox_block(a, S_PA)
    a(f"s_mul_i32 s{S_T0}, s{S_XG}, 18432")
    a(f"s_add_u32 s{S_INB}, s{S_PA}, s{S_T0}")
    a(f"s_mul_i32 s{S_T0}, s{S_XG}, 2304")
    a(f"s_add_u32 s{S_PA}, s{S_PA}, s{S_T0}")
    a(f"s_mul_i32 s{S_T0}, s{S_CW}, {2*18432}")
    a(f"s_add_u32 s{S_PS}, s{S_PA}, s{S_T0}")
    a(f"s_add_u32 s{S_PS}, s{S_PS}, 2048")
    a(f"s_lshr_b32 s{S_T0}, s{S_CW}, 1")
    a(f"s_mul_i32 s{S_T0}, s{S_T0}, {4*18432}")
    a(f"s_add_u32 s{S_PA}, s{S_PA}, s{S_T0}")
    a(f"s_and_b32 s{S_T0}, s{S_CW}, 1")
    a(f"s_lshl_b32 s{S_T0}, s{S_T0}, 10")
    a(f"s_add_u32 s{S_PA}, s{S_PA}, s{S_T0}")
    a(f"s_lshr_b32 s{S_T0}, s{S_CW}, 1")
    a(f"s_mul_i32 s{S_T0}, s{S_T0}, {MHS}")
    a(f"s_add_u32 s{S_T0}, s{S_T0}, s{S_HB}")
    a(f"s_mul_i32 s{S_T1}, s{S_J}, {9*1024}")
    a(f"s_add_u32 s{S_T0}, s{S_T0}, s{S_T1}")
    a(f"s_and_b32 s{S_T1}, s{S_CW}, 1")
    a(f"s_lshl_b32 s{S_T2}, s{S_T1}, 12")
    a(f"s_add_u32 s{S_HST}, s{S_T0}, s{S_T2}")
    a(f"s_lshl_b32 s{S_T2}, s{S_T1}, 8")
    a(f"s_add_u32 s{S_HSP}, s{S_T0}, s{S_T2}")
    a(f"s_add_u32 s{S_HSP}, s{S_HSP}, {8*1024}")
    a(f"s_lshl_b32 s{S_FLG}, s{S_GRP}, 5")
    a(f"s_lshl_b32 s{S_T0}, s{S_J}, 2")
    a(f"s_add_u32 s{S_T0}, s{S_T0}, s{S_CW}")
    a(f"s_lshl_b32 s{S_T0}, s{S_T0}, 2")
    a(f"s_add_u32 s{S_FLG}, s{S_FLG}, s{S_T0}")
    a(f"s_add_u32 s{S_FLG}, s{S_FLG}, {FLAG_OFF}")
    a(f"s_mov_b32 s{S_K}, 0xbfb8aa3b")
    a(f"s_mov_b32 s{S_K+1}, 0xbfb8aa3b")
    a(f"s_mov_b32 s{S_PH}, 0")
    a("s_waitcnt lgkmcnt(0)")
    srd(a, SRD_WS, S_WS, WS_BYTES)
    srd(a, SRD_DBG, S_DBG, 256)
    a(f"v_lshlrev_b32 v{C_E}, 4, v0")
    if not spread():
        a(f"s_mul_i32 s{S_T1}, s{S_CW}, 4608")
        a(f"s_add_u32 s{S_T0}, s{S_INB}, s{S_T1}")
        for i in range(4): a(f"v_mov_b32 v{C_E+4+i}, -1")
        a(f"v_lshlrev_b32 v{C_E}, 4, v0")
        a(f"v_min_u32 v{C_E+1}, 31, v0")
        a(f"v_lshlrev_b32 v{C_E+1}, 4, v{C_E+1}")
        for i in range(4):
            a(f"buffer_store_dwordx4 v[{C_E+4}:{C_E+7}], v{C_E}, {W}, s{S_T0} offen offset:{1024*i} sc1")
        a(f"s_add_u32 s{S_T0}, s{S_T0}, 4096")
        a(f"buffer_store_dwordx4 v[{C_E+4}:{C_E+7}], v{C_E+1}, {W}, s{S_T0} offen sc1")
    a(f"s_cmp_eq_u32 s2, 0")
    a("s_cbranch_scc0 L_NOCLR")
    a(f"s_lshl_b32 s{S_T0}, s{S_CW}, 11")
    a(f"s_add_u32 s{S_T0}, s{S_T0}, {FLAG_OFF}")
    a(f"v_pk_mov_b32 v[{SETS[1]}:{SETS[1]+1}], 0, 0\nv_pk_mov_b32 v[{SETS[1]+2}:{SETS[1]+3}], 0, 0")
    for i in range(2):
        a(f"buffer_store_dwordx4 v[{SETS[1]}:{SETS[1]+3}], v{C_E}, {W}, s{S_T0} offen offset:{1024*i} sc1")
    a("s_waitcnt vmcnt(0)")
    a.label("L_NOCLR")
    a("s_barrier")
    stampw(a, 1)
    for ins in reads_step(SETS[0], 0, 0): a(ins)
    a(f"s_lshl_b32 s{S_T1}, s2, 2")
    a(f"s_or_b32 s{S_T1}, s{S_T1}, s{S_CW}")
    a(f"s_cmp_eq_u32 s{S_T1}, 0")
    a("s_cbranch_scc0 L_BODY")
    a(f"v_mov_b32 v{t0}, 1")
    a("s_mov_b64 exec, 1")
    a(f"buffer_store_dword v{t0}, off, {R(SRD_DBG)}, 0 sc1")
    a("s_mov_b64 exec, -1")
    a.label("L_BODY")
    body(a)
    a(f"s_cmp_eq_u32 s{S_PH}, 0")
    a("s_cbranch_scc0 L_EPI2")
    a("s_barrier")
    stamp(a, 2)
    a("s_waitcnt vmcnt(0)")
    a(f"buffer_load_dword v{t0}, off, {R(SRD_DBG)}, 0 sc1")
    a(f"v_lshlrev_b32 v{t1}, 4, v0")
    a(f"s_lshr_b32 s{S_T0}, s{S_CW}, 1")
    a(f"s_mul_i32 s{S_T0}, s{S_T0}, {MHB}")
    a(f"s_add_u32 s{S_T0}, s{S_T0}, {LB}")
    a(f"s_and_b32 s{S_T1}, s{S_CW}, 1")
    a(f"s_lshl_b32 s{S_T2}, s{S_T1}, 12")
    a(f"s_add_u32 s{S_T2}, s{S_T2}, s{S_T0}")
    a(f"v_add_u32 v{t2}, s{S_T2}, v{t1}")
    P = SETS[0]
    x = ACC + 32
    silu4(a, x, C_E)
    a(f"v_cvt_pk_bf16_f32 v{P+16}, v{x}, v{x+1}")
    a(f"v_cvt_pk_bf16_f32 v{P+17}, v{x+2}, v{x+3}")
    a(f"v_mov_b32 v{P+18}, v{P+16}")
    a(f"v_mov_b32 v{P+19}, v{P+17}")
    a(f"v_bfe_u32 v{t3}, v0, 4, 1")
    a(f"v_lshlrev_b32 v{t3}, 9, v{t3}")
    a(f"v_and_b32 v{C_E+4}, 15, v0")
    a(f"v_lshl_add_u32 v{t3}, v{C_E+4}, 4, v{t3}")
    a(f"v_permlane32_swap_b32 v{P+16}, v{P+18}")
    a(f"v_permlane32_swap_b32 v{P+17}, v{P+19}")
    a("s_mov_b32 exec_hi, 0")
    a(f"buffer_store_dwordx4 v[{P+16}:{P+19}], v{t3}, {W}, s{S_HSP} offen sc1")
    a("s_mov_b32 exec_hi, -1")
    for c in range(2):
        for hb in range(2):
            x = ACC + 16*c + 8*hb
            d = P + 4*(2*c + hb)
            silu4(a, x, C_E); silu4(a, x+4, C_E+4)
            for i in range(4): a(f"v_cvt_pk_bf16_f32 v{d+i}, v{x+2*i}, v{x+2*i+1}")
            a(f"buffer_store_dwordx4 v[{d}:{d+3}], v{t1}, {W}, s{S_HST} offen offset:{1024*(2*c+hb)} sc1")
            a(f"ds_write_b128 v{t2}, v[{d}:{d+3}] offset:{1024*(2*c+hb)}")
    stamp(a, 8)
    for k4 in range(4):
        if k4 == 0: a(f"v_add_u32 v{C_B32}, s{S_T0}, v{t1}")
        else:       a(f"v_add_u32 v{C_B32+k4}, {1024*k4}, v{C_B32}")
    a(f"v_lshrrev_b32 v{t2}, 4, v0")
    a(f"v_lshlrev_b32 v{t2}, 9, v{t2}")
    a(f"v_and_b32 v{t3}, 15, v0")
    a(f"v_lshl_add_u32 v{t2}, v{t3}, 4, v{t2}")
    a(f"s_lshl_b32 s{S_T1}, s{S_T1}, 8")
    a(f"s_add_u32 s{S_T0}, s{S_T0}, s{S_T1}")
    a(f"v_add_u32 v{C_B8}, s{S_T0}, v{t2}")
    a(f"v_add_u32 v{C_B8+1}, 2048, v{C_B8}")
    for b in (C_A32, C_A8):
        a(f"v_mov_b32 v{t2}, v{b}")
        a(f"v_mov_b32 v{b}, v{b+2}")
        a(f"v_mov_b32 v{b+2}, v{b+1}")
        a(f"v_mov_b32 v{b+1}, v{t2}")
    zero_acc(a)
    a(f"v_mov_b32 v{t3}, 1")
    a(f"s_mov_b32 s{S_PH}, 1")
    a("s_waitcnt lgkmcnt(0)")
    a("s_barrier")
    stampw(a, 3)
    for ins in reads_step(SETS[0], 0, 0): a(ins)
    a("s_branch L_BODY")
    a.label("L_EPI2")
    stamp(a, 5)
    a(f"v_bfe_u32 v{t0}, v0, 3, 2")
    a(f"v_mul_u32_u24 v{t0}, 18432, v{t0}")
    a(f"v_lshrrev_b32 v{t1}, 5, v0")
    a(f"v_lshl_add_u32 v{t0}, v{t1}, 7, v{t0}")
    a(f"v_and_b32 v{t1}, 7, v0")
    a(f"v_lshl_add_u32 v{t0}, v{t1}, 4, v{t0}")
    a(f"v_lshrrev_b32 v{t2}, 4, v0")
    a(f"v_lshl_add_u32 v{t2}, v{t2}, 3, v{t1}")
    a(f"v_bfe_u32 v{t1}, v0, 3, 1")
    a(f"v_mul_u32_u24 v{t1}, 18432, v{t1}")
    a(f"v_lshl_add_u32 v{t1}, v{t2}, 3, v{t1}")
    a(f"s_mov_b32 s{S_K}, 0xfffffffe")
    P = SETS[0]
    for c in range(2):
        for hb in range(2):
            x = ACC + 16*c + 8*hb
            d = P + 4*(2*c + hb)
            for i in range(4): a(f"v_cvt_pk_bf16_f32 v{d+i}, v{x+2*i}, v{x+2*i+1}")
            for i in range(4): a(f"v_min_u32 v{d+i}, s{S_K}, v{d+i}")
            a(f"buffer_store_dwordx4 v[{d}:{d+3}], v{t0}, {W}, s{S_PA} offen offset:{256*(2*c+hb)} sc1")
    x = ACC + 32
    a(f"v_cvt_pk_bf16_f32 v{P+16}, v{x}, v{x+1}")
    a(f"v_cvt_pk_bf16_f32 v{P+17}, v{x+2}, v{x+3}")
    for d in range(2): a(f"v_min_u32 v{P+16+d}, s{S_K}, v{P+16+d}")
    a(f"buffer_store_dwordx2 v[{P+16}:{P+17}], v{t1}, {W}, s{S_PS} offen sc1")
    a("s_barrier")
    stamp(a, 6)
    a(f"s_cmp_eq_u32 s{S_CW}, 0")
    a("s_cbranch_scc0 L_CDONE")
    reducer(a, "C", single=True)
    reducer_run(a, "C", single=True)
    a.label("L_CDONE")
    if 'ts' in opt: a("s_waitcnt vmcnt(0)")
    stamp(a, 7)
    dump_stamps(a, 0, 9, "C", 0)

def kernel_main(a):
    name = KNAME
    a(f".globl {name}\n.p2align 8\n.type {name},@function\n{name}:")
    a(f"s_cmp_ge_u32 s2, 256")
    a(f"s_cbranch_scc1 L_END")
    stamp(a, 0)
    a("s_load_dwordx8 s[4:11], s[0:1], 0")
    a("s_load_dwordx4 s[12:15], s[0:1], 32")
    a("v_lshrrev_b32 v1, 6, v0")
    a("v_and_b32 v0, 63, v0")
    a(f"v_readfirstlane_b32 s{S_WV}, v1")
    if 'xmap' in opt:
        a(f"s_and_b32 s{S_J}, s2, 3")
        a(f"s_lshr_b32 s{S_XG}, s2, 2")
        a(f"s_and_b32 s{S_XG}, s{S_XG}, 7")
    else:
        a(f"s_and_b32 s{S_XG}, s2, 7")
        a(f"s_lshr_b32 s{S_J}, s2, 3")
        a(f"s_and_b32 s{S_J}, s{S_J}, 3")
    a(f"s_lshr_b32 s{S_MT}, s2, 5")
    a("s_nop 0")
    a(f"s_and_b32 s{S_CW}, s{S_WV}, 3")
    a(f"s_cmp_lt_u32 s{S_WV}, 4")
    a("s_cbranch_scc1 L_COMPUTE")
    loader(a)
    a.label("L_COMPUTE")
    compute(a)
    a.label("L_END")
    a("s_endpgm")
    a.label("L_CODE_END")
    a(kd(name, vgpr=128, sgpr=102))

def check_barriers(lines):
    iL = lines.index("L_LOADER:"); iC = lines.index("L_COMPUTE:")
    iB = lines.index("L_BODY:"); iE2 = lines.index("L_EPI2:")
    cnt = lambda seg: sum(1 for ln in seg if ln.strip() == "s_barrier")
    seg = lines[iL:iC]
    i1 = seg.index("L_LD1:"); i2 = seg.index("s_cbranch_scc1 L_LD1")
    nl = cnt(seg) + 5*cnt(seg[i1:i2])
    iT = [i for i in range(iB, iE2) if lines[i].strip() == "s_cbranch_scc0 L_EPI2"][0]
    nb = cnt(lines[iB:iT])
    nc = cnt(lines[iC:iB]) + 2*nb + cnt(lines[iT:iE2]) + cnt(lines[iE2:])
    assert nl == nc, f"barrier mismatch loader {nl} compute {nc}"
    return nl

def main():
    for o in sys.argv[2:]: opt.add(o)
    a = Asm()
    a(HEADER.rstrip())
    a(f"; @launch grid=(256,1,1) block=(512,1,1) lds={LDS_BYTES}")
    a('.amdgcn_target "amdgcn-amd-amdhsa--gfx950"')
    a(".text")
    kernel_main(a)
    check_barriers(a.lines)
    open(sys.argv[1], "w").write(a.text())

main()
```

```python
import sys
from common import *

X_BYTES = 512*576*2
W_BYTES = 576*4608*2
OUT_BYTES = 512*576*2
WS_BYTES = 268435456
PAGE = 2*1024*1024
H_OFF = 4096
GRP_BYTES = 73728
FLAG_OFF = 4*PAGE + 4096
INBOX_OFF = 5*PAGE + 4096
INBOX_B = 8*8*2304
WST = 18432
NSL = 6
LB = NSL*WST
NBP = 5
MHB = NBP*4096
MHS = 36864
LDS_BYTES = LB + 2*MHB
TS_OFF = 128 << 20
SPIN = 1 << 17
KNAME = "standalone__dense_activation_silu__sampling_kernel"
opt = set()

S_X, S_W1, S_W2, S_OUT, S_DBG, S_WS = 4, 6, 8, 10, 12, 14
SRD_X, SRD_W1, SRD_WS, SRD_W2, SRD_DBG = 16, 20, 24, 40, 44
S_WV, S_XG, S_J, S_MT, S_CW = 28, 29, 30, 31, 32
S_N, S_WOFF, S_DSLOT = 33, 34, 35
S_T0, S_T1, S_T2, S_T3 = 36, 37, 38, 39
S_HB, S_GRP, S_INB = 53, 54, 58
S_TS = 60
S_K = 84
S_P, S_XROW, S_BDST, S_WCOL, S_WLDS = 48, 49, 50, 51, 52
S_W2B, S_KAP, S_HOFF, S_CK, S_KH, S_HDST = 55, 56, 57, 59, 92, 94
S_TST, S_TREAL, S_TOFF, S_TN = 93, 95, 96, 97
S_BBEG, S_BEND = 86, 87
S_PH, S_HST, S_HSP, S_FLG, S_PA, S_PS = 48, 49, 50, 51, 52, 55

def amp_on(): return any(o.startswith('amp') for o in opt)
def amp_spin(a):
    for o in opt:
        if o.startswith('amp'):
            ia, ib = int(o[3]), int(o[4])
            a("s_waitcnt lgkmcnt(0) vmcnt(0)")
            a(f"s_sub_u32 s95, s{S_TS+2*ib}, s{S_TS+2*ia}")
            a("s_mul_i32 s95, s95, 3")
            a("s_memrealtime s[96:97]\ns_waitcnt lgkmcnt(0)\ns_mov_b32 s94, s96")
            a.label("L_AMP")
            a("s_memrealtime s[96:97]\ns_waitcnt lgkmcnt(0)\ns_sub_u32 s96, s96, s94\ns_cmp_lt_u32 s96, s95\ns_cbranch_scc1 L_AMP")
def stamp(a, i):
    if 'ts' in opt or amp_on():
        a(f"s_memrealtime s[{S_TS+2*i}:{S_TS+2*i+1}]")
def stampw(a, i):
    if 'ts' in opt or amp_on():
        a(f"s_memrealtime s[{S_TS+2*i}:{S_TS+2*i+1}]")
        a("s_waitcnt lgkmcnt(0)")

def dump_stamps(a, kidx, n, tag, wave):
    if 'ts' not in opt: return
    a("s_waitcnt lgkmcnt(0) vmcnt(0)")
    a(f"s_cmp_eq_u32 s{S_WV}, {wave}")
    a(f"s_cbranch_scc0 L_NOTS{tag}")
    a(f"s_lshl_b32 s80, s2, 7")
    a(f"s_add_u32 s80, s80, {TS_OFF + kidx*512*128}")
    a(f"s_mov_b32 s88, s14\ns_mov_b32 s89, s15\ns_mov_b32 s90, {WS_BYTES}\ns_mov_b32 s91, 0x20000")
    a("v_mov_b32 v2, 0")
    for i in range(n):
        a(f"v_mov_b32 v4, s{S_TS+2*i}\nv_mov_b32 v5, s{S_TS+2*i+1}")
        a(f"buffer_store_dwordx2 v[4:5], v2, s[88:91], s80 offen offset:{8*i}")
        a("s_nop 1")
    a.label(f"L_NOTS{tag}")

def srd(a, base, ptr, nbytes):
    a(f"s_mov_b32 s{base}, s{ptr}")
    a(f"s_mov_b32 s{base+1}, s{ptr+1}")
    a(f"s_mov_b32 s{base+2}, {nbytes}")
    a(f"s_mov_b32 s{base+3}, 0x20000")
def R(base): return f"s[{base}:{base+3}]"

def wrap(a, reg, inc, mod):
    a(f"s_add_u32 s{reg}, s{reg}, {inc}")
    a(f"s_sub_u32 s{S_T3}, s{reg}, {mod}")
    a(f"s_cmp_ge_u32 s{reg}, {mod}")
    a(f"s_cselect_b32 s{reg}, s{S_T3}, s{reg}")

def group_bases(a):
    a(f"s_lshl_b32 s{S_GRP}, s{S_XG}, 3")
    a(f"s_add_u32 s{S_GRP}, s{S_GRP}, s{S_MT}")
    a(f"s_lshr_b32 s{S_HB}, s{S_GRP}, 4")
    a(f"s_lshl_b32 s{S_HB}, s{S_HB}, 21")
    a(f"s_and_b32 s{S_T0}, s{S_GRP}, 15")
    a(f"s_mul_i32 s{S_T0}, s{S_T0}, {GRP_BYTES}")
    a(f"s_add_u32 s{S_HB}, s{S_HB}, s{S_T0}")
    a(f"s_add_u32 s{S_HB}, s{S_HB}, {H_OFF}")
    a(f"s_lshl_b32 s{S_GRP}, s{S_GRP}, 2")

def inbox_block(a, dst):
    a(f"s_lshl_b32 s{dst}, s{S_MT}, 2")
    a(f"s_add_u32 s{dst}, s{dst}, s{S_J}")
    a(f"s_mul_i32 s{dst}, s{dst}, {INBOX_B}")
    a(f"s_add_u32 s{dst}, s{dst}, {INBOX_OFF}")

def poll_pub(a, tag, vtmp, preloaded=False):
    if preloaded:
        a("s_waitcnt vmcnt(0)")
        a(f"v_cmp_ne_u32 vcc, 1, v{vtmp}")
        a(f"s_cbranch_vccz L_PGX{tag}")
    a(f"s_mov_b32 s{S_T3}, 0")
    a.label(f"L_PG{tag}")
    a(f"s_add_u32 s{S_T3}, s{S_T3}, 1")
    a(f"s_cmp_gt_u32 s{S_T3}, {SPIN}")
    a(f"s_cbranch_scc1 L_PGX{tag}")
    a(f"buffer_load_dword v{vtmp}, off, {R(SRD_DBG)}, 0 sc1")
    a("s_waitcnt vmcnt(0)")
    a(f"v_cmp_ne_u32 vcc, 1, v{vtmp}")
    a(f"s_cbranch_vccnz L_PG{tag}")
    a.label(f"L_PGX{tag}")

def poll_ones(a, tag, vdst, vaddr, soff):
    a(f"s_mov_b32 s{S_T3}, 0")
    a.label(f"L_PO{tag}")
    a(f"s_add_u32 s{S_T3}, s{S_T3}, 1")
    a(f"s_cmp_gt_u32 s{S_T3}, {SPIN}")
    a(f"s_cbranch_scc1 L_POX{tag}")
    a(f"buffer_load_dword v{vdst}, v{vaddr}, {R(SRD_WS)}, s{soff} offen sc1")
    a("s_waitcnt vmcnt(0)")
    a(f"v_cmp_ne_u32 vcc, 1, v{vdst}")
    a(f"s_cbranch_vccnz L_PO{tag}")
    a.label(f"L_POX{tag}")

R_D, R_ACC, R_T, R_A = 80, 96, 100, 104
def reducer(a, tag, single):
    W = R(SRD_WS)
    if single:
        a(f"v_min_u32 v{R_T}, 31, v0")
        a(f"v_lshlrev_b32 v{R_A}, 3, v{R_T}")
        a(f"s_add_u32 s{S_T0}, s{S_INB}, 2048")
        a(f"v_and_b32 v{R_T+1}, 7, v{R_T}")
        a(f"v_mul_u32_u24 v{R_T+1}, 1152, v{R_T+1}")
        a(f"v_lshrrev_b32 v{R_T}, 3, v{R_T}")
        a(f"v_lshl_add_u32 v{R_A+1}, v{R_T}, 3, v{R_T+1}")
        a(f"s_mov_b32 s{S_T2}, 256")
    else:
        a(f"v_lshlrev_b32 v{R_A}, 3, v0")
        a(f"s_lshl_b32 s{S_T0}, s{S_CW}, 9")
        a(f"s_add_u32 s{S_T0}, s{S_T0}, s{S_INB}")
        a(f"v_bfe_u32 v{R_T}, v0, 1, 3")
        a(f"v_mul_u32_u24 v{R_T}, 1152, v{R_T}")
        a(f"v_lshrrev_b32 v{R_T+1}, 5, v0")
        a(f"v_lshl_add_u32 v{R_T}, v{R_T+1}, 5, v{R_T}")
        a(f"v_and_b32 v{R_T+1}, 1, v0")
        a(f"v_lshl_add_u32 v{R_T}, v{R_T+1}, 4, v{R_T}")
        a(f"v_bfe_u32 v{R_T+1}, v0, 4, 1")
        a(f"v_lshl_add_u32 v{R_A+1}, v{R_T+1}, 3, v{R_T}")
        a(f"s_lshl_b32 s{S_T2}, s{S_CW}, 6")
    a(f"s_lshl_b32 s{S_T1}, s{S_MT}, 3")
    a(f"s_add_u32 s{S_T1}, s{S_T1}, s{S_XG}")
    a(f"s_mul_i32 s{S_T1}, s{S_T1}, {8*1152}")
    a(f"s_add_u32 s{S_T2}, s{S_T2}, s{S_T1}")
    a(f"s_mul_i32 s{S_T1}, s{S_J}, 288")
    a(f"s_add_u32 s{S_T2}, s{S_T2}, s{S_T1}")
    srd(a, SRD_X, S_OUT, OUT_BYTES)
    return
def reducer_run(a, tag, single):
    W = R(SRD_WS)
    a(f"s_mov_b32 s{S_T3}, 0")
    a.label(f"L_RP{tag}")
    a(f"s_mov_b32 s{S_T1}, s{S_T0}")
    for xg in range(8):
        a(f"buffer_load_dwordx2 v[{R_D+2*xg}:{R_D+2*xg+1}], v{R_A}, {W}, s{S_T1} offen sc1")
        if xg < 7: a(f"s_add_u32 s{S_T1}, s{S_T1}, 2304")
    a(f"s_add_u32 s{S_T3}, s{S_T3}, 1")
    a(f"s_cmp_gt_u32 s{S_T3}, {SPIN}")
    a(f"s_cbranch_scc1 L_RPX{tag}")
    a("s_waitcnt vmcnt(0)")
    a(f"v_max3_u32 v{R_T}, v{R_D}, v{R_D+1}, v{R_D+2}")
    for i in range(3, 15, 2):
        a(f"v_max3_u32 v{R_T}, v{R_T}, v{R_D+i}, v{R_D+i+1}")
    a(f"v_max_u32 v{R_T}, v{R_T}, v{R_D+15}")
    a(f"v_cmp_eq_u32 vcc, -1, v{R_T}")
    a(f"s_cbranch_vccnz L_RP{tag}")
    a.label(f"L_RPX{tag}")
    a("s_waitcnt vmcnt(0)")
    for xg in range(8):
        for d in range(2):
            src = R_D + 2*xg + d
            dst = R_ACC if xg == 0 else R_T
            a(f"v_lshlrev_b32 v{dst+2*d}, 16, v{src}")
            a(f"v_and_b32 v{dst+2*d+1}, 0xffff0000, v{src}")
        if xg:
            for d in range(4): a(f"v_add_f32 v{R_ACC+d}, v{R_ACC+d}, v{R_T+d}")
    a(f"v_cvt_pk_bf16_f32 v{R_D}, v{R_ACC}, v{R_ACC+1}")
    a(f"v_cvt_pk_bf16_f32 v{R_D+1}, v{R_ACC+2}, v{R_ACC+3}")
    if single: a("s_mov_b32 exec_hi, 0")
    a(f"buffer_store_dwordx2 v[{R_D}:{R_D+1}], v{R_A+1}, {R(SRD_X)}, s{S_T2} offen")
    if single: a("s_mov_b32 exec_hi, -1")

L_W1, L_W2, L_X, L_H, L_T = 1, 6, 11, 13, 14
L_RHO, L_C16 = 20, 25
L_TV, L_PF, L_CK = 30, 32, 34

def issue_x(a):
    a(f"s_lshl_b32 s{S_T0}, s{S_P}, 7")
    a(f"s_mov_b32 m0, s{S_BDST}")
    a(f"s_add_u32 s{S_T0}, s{S_T0}, s{S_XROW}")
    a(f"buffer_load_dwordx4 v{L_X}, {R(SRD_X)}, s{S_T0} offen lds")
    a(f"s_add_u32 m0, m0, 1024")
    a(f"s_add_u32 s{S_BDST}, s{S_BDST}, 4096")
    a(f"buffer_load_dwordx4 v{L_X+1}, {R(SRD_X)}, s{S_T0} offen lds")
    a(f"s_cmp_eq_u32 s{S_BDST}, s{S_BEND}")
    a(f"s_cselect_b32 s{S_BDST}, s{S_BBEG}, s{S_BDST}")

def issue_w_one(a, i, vbase, srdreg):
    if i == 0: a(f"s_add_u32 m0, s{S_DSLOT}, s{S_WLDS}")
    else:      a(f"s_add_u32 m0, m0, 1024")
    a("s_mov_b32 exec_hi, 0" if i == 4 else "s_nop 0")
    a(f"buffer_load_dwordx4 v{vbase+i}, {R(srdreg)}, s{S_WOFF} offen lds")
    if i == 4: a("s_mov_b32 exec_hi, -1")
def slot_next(a):
    a(f"s_add_u32 s{S_DSLOT}, s{S_DSLOT}, {WST}")
    a(f"s_cmp_eq_u32 s{S_DSLOT}, {NSL*WST}")
    a(f"s_cselect_b32 s{S_DSLOT}, 0, s{S_DSLOT}")
def w1_off(a):
    a(f"s_mul_i32 s{S_WOFF}, s{S_P}, {64*9216}")
    a(f"s_add_u32 s{S_WOFF}, s{S_WOFF}, s{S_WCOL}")
def issue_touch(a):
    a(f"s_cmp_eq_u32 s{S_TN}, s{S_TST}")
    a(f"s_cselect_b32 s{S_TOFF}, s{S_TREAL}, 0x70000000")
    a(f"s_add_u32 s{S_TN}, s{S_TN}, 1")
    a(f"buffer_load_dword v{L_TV+1}, v{L_TV}, {R(SRD_W2)}, s{S_TOFF} offen")
L_FS = 36
S_FU, S_FB = 98, 99
def spread(): return 'spread' in opt
def issue_fill(a):
    a(f"s_cmp_lt_u32 s{S_FU}, {18*1024}")
    a(f"s_cselect_b32 s{S_T0}, s{S_FU}, 0x60000000")
    a(f"s_add_u32 s{S_T0}, s{S_T0}, s{S_FB}")
    a(f"s_add_u32 s{S_FU}, s{S_FU}, 4096")
    a(f"buffer_store_dwordx4 v[{L_FS}:{L_FS+3}], v{L_H}, {R(SRD_WS)}, s{S_T0} offen sc1")
def issue_stage1(a):
    issue_x(a)
    w1_off(a)
    for i in range(5): issue_w_one(a, i, L_W1, SRD_W1)
    slot_next(a)
    wrap(a, S_P, 1, 9)
    issue_touch(a)
    if spread(): issue_fill(a)
def issue_w2(a):
    a(f"s_mul_i32 s{S_WOFF}, s{S_KAP}, {16*1152}")
    a(f"s_add_u32 s{S_WOFF}, s{S_WOFF}, s{S_W2B}")
    for i in range(5): issue_w_one(a, i, L_W2, SRD_W2)
    slot_next(a)
    wrap(a, S_KAP, 4, 36)
def issue_h(a):
    a(f"s_lshl_b32 s{S_HOFF}, s{S_KH}, 10")
    a(f"s_mov_b32 m0, s{S_HDST}")
    a(f"s_add_u32 s{S_HOFF}, s{S_HOFF}, s{S_HB}")
    a(f"buffer_load_dwordx4 v{L_H}, {R(SRD_WS)}, s{S_HOFF} offen sc1 lds")
    a(f"s_add_u32 m0, m0, {MHB}")
    a(f"s_add_u32 s{S_HOFF}, s{S_HOFF}, {MHS}")
    a(f"buffer_load_dwordx4 v{L_H}, {R(SRD_WS)}, s{S_HOFF} offen sc1 lds")
    a(f"s_add_u32 s{S_HDST}, s{S_HDST}, 4096")
    a(f"s_cmp_eq_u32 s{S_HDST}, s{S_BEND}")
    a(f"s_cselect_b32 s{S_HDST}, s{S_BBEG}, s{S_HDST}")
    wrap(a, S_KH, 4, 36)

def w_voff(a, i):
    t0, t1 = L_T, L_T+1
    a(f"v_add_u32 v{t0}, {64*i}, v0")
    a(f"v_mul_u32_u24 v{t1}, 3641, v{t0}")
    a(f"v_lshrrev_b32 v{L_RHO+i}, 16, v{t1}")
    a(f"v_lshlrev_b32 v{t0}, 4, v{t0}")
    a(f"v_mad_i32_i24 v{L_C16+i}, v{L_RHO+i}, s{S_T1}, v{t0}")
    a(f"v_and_b32 v{t0}, 1, v{L_RHO+i}")
    a(f"v_and_b32 v{t1}, 8, v{L_RHO+i}")
    a(f"v_lshl_add_u32 v{t1}, v{t0}, 2, v{t1}")
    a(f"v_bfe_u32 v{t0}, v{L_RHO+i}, 1, 2")
    a(f"v_add_u32 v{t1}, v{t1}, v{t0}")
    a(f"v_mad_u32_u24 v{L_W1+i}, v{t1}, s{S_T2}, v{L_C16+i}")
def w2_voffs(a):
    t0, t1 = L_T, L_T+1
    a(f"s_movk_i32 s{S_T2}, 1152")
    for i in range(5):
        a(f"v_and_b32 v{t0}, 1, v{L_RHO+i}")
        a(f"v_lshrrev_b32 v{t1}, 3, v{L_RHO+i}")
        a(f"v_lshlrev_b32 v{t1}, 2, v{t1}")
        a(f"v_lshl_add_u32 v{t1}, v{t0}, 3, v{t1}")
        a(f"v_bfe_u32 v{t0}, v{L_RHO+i}, 1, 2")
        a(f"v_add_u32 v{t1}, v{t1}, v{t0}")
        a(f"v_mad_u32_u24 v{L_W2+i}, v{t1}, s{S_T2}, v{L_C16+i}")

def loader(a):
    a.label("L_LOADER")
    t0, t1, t2 = L_T, L_T+1, L_T+2
    a(f"v_lshrrev_b32 v{t0}, 3, v0")
    a(f"v_lshrrev_b32 v{t1}, 4, v0")
    a(f"v_and_b32 v{t2}, 7, v0")
    a(f"v_xor_b32 v{t1}, v{t1}, v{t2}")
    a(f"v_lshlrev_b32 v{t1}, 4, v{t1}")
    a(f"v_mul_u32_u24 v{t0}, 1152, v{t0}")
    a(f"v_add_u32 v{L_X}, v{t0}, v{t1}")
    a(f"v_xor_b32 v{t1}, 64, v{t1}")
    a(f"v_add_u32 v{t0}, {8*1152}, v{t0}")
    a(f"v_add_u32 v{L_X+1}, v{t0}, v{t1}")
    a(f"s_lshl_b32 s{S_T0}, s{S_MT}, 2")
    a(f"s_add_u32 s{S_T0}, s{S_T0}, s{S_CW}")
    a(f"s_mul_i32 s{S_XROW}, s{S_T0}, {16*1152}")
    a(f"s_lshr_b32 s{S_T0}, s{S_CW}, 1")
    a(f"s_mul_i32 s{S_BDST}, s{S_T0}, {MHB}")
    a(f"s_and_b32 s{S_T0}, s{S_CW}, 1")
    a(f"s_lshl_b32 s{S_T0}, s{S_T0}, 11")
    a(f"s_add_u32 s{S_BDST}, s{S_BDST}, s{S_T0}")
    a(f"s_add_u32 s{S_BDST}, s{S_BDST}, {LB}")
    a(f"s_mov_b32 s{S_BBEG}, s{S_BDST}")
    a(f"s_add_u32 s{S_BEND}, s{S_BDST}, {NBP*4096}")
    if 'norot' in opt: a(f"s_mov_b32 s{S_P}, 0")
    else:
        a(f"s_lshl_b32 s{S_P}, s{S_J}, 1")
        wrap_reg = S_P
        a(f"s_add_u32 s{S_P}, s{S_P}, s{S_MT}")
        a(f"s_sub_u32 s{S_T0}, s{S_P}, 9")
        a(f"s_cmp_ge_u32 s{S_P}, 9")
        a(f"s_cselect_b32 s{S_P}, s{S_T0}, s{S_P}")
    a(f"s_mul_i32 s{S_WCOL}, s{S_XG}, 1152")
    a(f"s_mul_i32 s{S_T0}, s{S_J}, 288")
    a(f"s_add_u32 s{S_WCOL}, s{S_WCOL}, s{S_T0}")
    a(f"s_mul_i32 s{S_T0}, s{S_CW}, {16*9216}")
    a(f"s_add_u32 s{S_WCOL}, s{S_WCOL}, s{S_T0}")
    a(f"s_mul_i32 s{S_WLDS}, s{S_CW}, 4608")
    a(f"s_mov_b32 s{S_DSLOT}, 0")
    a(f"s_movk_i32 s{S_T1}, -288")
    a(f"s_movk_i32 s{S_T2}, 9216")
    w_voff(a, 0)
    a("s_waitcnt lgkmcnt(0)")
    srd(a, SRD_X, S_X, X_BYTES)
    srd(a, SRD_W1, S_W1, W_BYTES)
    stamp(a, 1)
    issue_x(a)
    w1_off(a)
    issue_w_one(a, 0, L_W1, SRD_W1)
    for i in range(1, 5):
        w_voff(a, i)
        issue_w_one(a, i, L_W1, SRD_W1)
    slot_next(a)
    wrap(a, S_P, 1, 9)
    srd(a, SRD_W2, S_W2, W_BYTES)
    a(f"s_lshl_b32 s{S_T0}, s{S_MT}, 2")
    a(f"s_add_u32 s{S_T0}, s{S_T0}, s{S_J}")
    a(f"s_mul_i32 s{S_T0}, s{S_T0}, 162")
    a(f"s_mul_i32 s{S_T1}, s{S_CW}, 41")
    a(f"s_add_u32 s{S_T0}, s{S_T0}, s{S_T1}")
    a(f"s_lshl_b32 s{S_T0}, s{S_T0}, 7")
    a(f"s_mul_i32 s{S_W2B}, s{S_XG}, {576*1152}")
    a(f"s_add_u32 s{S_TREAL}, s{S_T0}, s{S_W2B}")
    a(f"v_min_u32 v{L_TV}, 40, v0")
    a(f"v_lshlrev_b32 v{L_TV}, 7, v{L_TV}")
    a(f"s_mov_b32 s{S_TN}, 1")
    a(f"s_add_u32 s{S_TST}, s{S_MT}, 1")
    if spread():
        srd(a, SRD_WS, S_WS, WS_BYTES)
        a(f"v_lshlrev_b32 v{L_H}, 4, v0")
        for i in range(4): a(f"v_mov_b32 v{L_FS+i}, -1")
        inbox_block(a, S_FB)
        a(f"s_mul_i32 s{S_T1}, s{S_XG}, 18432")
        a(f"s_add_u32 s{S_FB}, s{S_FB}, s{S_T1}")
        fstart = 1
        for o in opt:
            if o.startswith('fs'): fstart = int(o[2])
        a(f"s_lshl_b32 s{S_FU}, s{S_CW}, 10")
        a(f"s_sub_u32 s{S_FU}, s{S_FU}, {4096*fstart}")
    issue_stage1(a)
    stamp(a, 2)
    srd(a, SRD_WS, S_WS, WS_BYTES)
    srd(a, SRD_DBG, S_DBG, 256)
    w2_voffs(a)
    group_bases(a)
    a(f"s_mul_i32 s{S_T0}, s{S_J}, 288")
    a(f"s_add_u32 s{S_W2B}, s{S_W2B}, s{S_T0}")
    a(f"s_mul_i32 s{S_KAP}, s{S_J}, 9")
    a(f"s_add_u32 s{S_KAP}, s{S_KAP}, s{S_CW}")
    a(f"s_add_u32 s{S_KH}, s{S_KAP}, 8")
    a(f"s_sub_u32 s{S_T0}, s{S_KH}, 36")
    a(f"s_cmp_ge_u32 s{S_KH}, 36")
    a(f"s_cselect_b32 s{S_KH}, s{S_T0}, s{S_KH}")
    a(f"s_lshl_b32 s{S_HDST}, s{S_CW}, 10")
    a(f"s_add_u32 s{S_HDST}, s{S_HDST}, {LB + 2*4096}")
    a(f"v_lshlrev_b32 v{L_H}, 4, v0")
    inbox_block(a, S_INB)
    a(f"s_mul_i32 s{S_T1}, s{S_XG}, 18432")
    a(f"s_add_u32 s{S_INB}, s{S_INB}, s{S_T1}")
    a(f"v_and_b32 v{L_PF}, 15, v0")
    a(f"v_lshlrev_b32 v{L_PF}, 2, v{L_PF}")
    a(f"v_lshrrev_b32 v{L_CK}, 2, v0")
    a(f"v_and_b32 v{L_CK}, 7, v{L_CK}")
    a(f"v_lshlrev_b32 v{L_CK}, 10, v{L_CK}")
    a(f"v_and_b32 v{L_CK+1}, 3, v0")
    a(f"v_lshl_add_u32 v{L_CK}, v{L_CK+1}, 2, v{L_CK}")
    a(f"s_lshl_b32 s{S_CK}, s{S_MT}, 7")
    a(f"s_lshl_b32 s{S_T0}, s{S_J}, 4")
    a(f"s_add_u32 s{S_CK}, s{S_CK}, s{S_T0}")
    a(f"s_add_u32 s{S_CK}, s{S_CK}, {FLAG_OFF}")
    a("s_waitcnt vmcnt(%d)" % (9 if spread() else 8))
    a("s_barrier")
    stamp(a, 3)
    issue_stage1(a)
    a(f"s_mov_b32 s{S_N}, 0")
    a.label("L_LD1")
    a("s_waitcnt vmcnt(%d)" % (11 if spread() else 9))
    a("s_barrier")
    issue_stage1(a)
    a(f"s_add_u32 s{S_N}, s{S_N}, 1")
    a(f"s_cmp_lt_u32 s{S_N}, 6")
    a("s_cbranch_scc1 L_LD1")
    tail = 2 if spread() else 1
    q = [("st7", 7), ("x7", tail), ("st8", 7), ("x8", tail)]
    def iss(name, cnt, fn):
        fn(); q.append((name, cnt))
    def wait(*names):
        idx = [i for i, (nm, c) in enumerate(q) if nm in names]
        last = max(idx) if idx else -1
        n = sum(c for nm, c in q[last+1:])
        a("s_waitcnt vmcnt(%d)" % n)
    def drained(): q.clear()
    nW = [0]; nH = [2]
    def Wn():
        n = nW[0]; iss(f"W{n}", 5, lambda: issue_w2(a)); nW[0] += 1
    def Hn():
        n = nH[0]; iss(f"h{n}", 2, lambda: issue_h(a)); nH[0] += 1
    sch = (0, 1, 1, 1, 1)
    for o in opt:
        if o.startswith('sch'): sch = tuple(int(c) for c in o[3:8])
    a(f"s_mov_b32 s{S_DSLOT}, {4*WST}")
    a(f"s_lshl_b32 s{S_BBEG}, s{S_CW}, 10")
    a(f"s_add_u32 s{S_BBEG}, s{S_BBEG}, {LB}")
    a(f"s_add_u32 s{S_BEND}, s{S_BBEG}, {NBP*4096}")
    wait("st7")
    a("s_barrier")
    for _ in range(sch[0]): Wn()
    assert nW[0] <= 2
    wait("st8")
    a("s_barrier")
    for _ in range(sch[1]): Wn()
    assert nW[0] <= 3
    a("s_barrier")
    stamp(a, 4)
    for _ in range(sch[2]): Wn()
    assert nW[0] >= 1
    a(f"buffer_load_dword v{L_T}, off, {R(SRD_DBG)}, 0 sc1"); q.append(("pub", 1))
    a(f"s_lshl_b32 s{S_T2}, s{S_GRP}, 5")
    a(f"s_add_u32 s{S_T2}, s{S_T2}, {FLAG_OFF}")
    wait("W0")
    a("s_barrier")
    stamp(a, 5)
    for _ in range(sch[3]): Wn()
    assert nW[0] >= 2
    wait("W1")
    a("s_barrier")
    for _ in range(sch[4]): Wn()
    assert nW[0] <= 6
    poll_pub(a, "L", L_T, preloaded=True); drained()
    poll_ones(a, "F", L_T, L_PF, S_T2)
    stamp(a, 6)
    Hn(); Hn()
    if nW[0] <= 2: Wn()
    wait("h2", "W2")
    a("s_barrier")
    stamp(a, 7)
    for s in range(3, 9):
        k = 0
        while nH[0] <= 8 and (nH[0] <= 4 or nH[0] <= s + 2) and nH[0] <= s + 1:
            Hn()
        while nW[0] <= 8 and (nW[0] <= 5 or nW[0] <= s + 3) and (nW[0] <= s or k < 1):
            Wn(); k += 1
        if s == 6:
            iss("chk", 1, lambda: a(f"buffer_load_dword v{L_CK+1}, v{L_CK}, {R(SRD_WS)}, s{S_CK} offen sc1"))
        if s == 8:
            a("s_waitcnt vmcnt(0)")
            a(f"v_cmp_ne_u32 vcc, 1, v{L_CK+1}")
            a("s_cbranch_vccz L_POXK")
            poll_ones(a, "K", L_CK+1, L_CK, S_CK)
            drained()
        assert nW[0] > s and nH[0] > s, (s, nW, nH)
        wait(f"h{s}", f"W{s}")
        a("s_barrier")
    stamp(a, 8)
    reducer(a, "L", single=False)
    a("s_barrier")
    reducer_run(a, "L", single=False)
    stamp(a, 9)
    dump_stamps(a, 1, 10, "LD", 4)
    a("s_endpgm")

C_A32, C_A8 = 2, 124
C_B32, C_B8 = 6, 10
C_T = 12
SETS = (16, 48)
ACC = 80
C_E = 116

def reads_step(st, n, s0):
    sl = n % NSL
    A32 = C_A32 + (sl >> 1); A8 = C_A8 + (sl >> 1)
    base = (sl & 1)*WST + s0*9216
    bo = (n % NBP)*4096
    def a32(c, kh):
        d = st + (kh*2 + c)*4
        off = base + kh*4608 + 64*c
        return [f"ds_read_b64_tr_b16 v[{d}:{d+1}], v{A32} offset:{off}",
                f"ds_read_b64_tr_b16 v[{d+2}:{d+3}], v{A32} offset:{off+288}"]
    def b32(kh):
        d = st + 20 + 4*kh
        return [f"ds_read_b128 v[{d}:{d+3}], v{C_B32 + 2*s0 + kh} offset:{bo}"]
    ins = b32(0) + a32(0, 0) + a32(1, 0) + b32(1) + a32(0, 1) + a32(1, 1)
    ins.append(f"ds_read_b128 v[{st+28}:{st+31}], v{C_B8 + s0} offset:{bo}")
    ins.append(f"ds_read_b64_tr_b16 v[{st+16}:{st+17}], v{A8} offset:{base}")
    ins.append(f"ds_read_b64_tr_b16 v[{st+18}:{st+19}], v{A8} offset:{base+288}")
    return ins

def mfmas(st):
    out = []
    for kh in range(2):
        for c in range(2):
            acc = ACC + 16*c
            A = st + (kh*2 + c)*4; B = st + 20 + 4*kh
            out.append(f"v_mfma_f32_32x32x16_bf16 v[{acc}:{acc+15}], v[{A}:{A+3}], v[{B}:{B+3}], v[{acc}:{acc+15}]")
    out.append(f"v_mfma_f32_16x16x32_bf16 v[{ACC+32}:{ACC+35}], v[{st+16}:{st+19}], v[{st+28}:{st+31}], v[{ACC+32}:{ACC+35}]")
    return out

NEED = [3, 5, 8, 10, 13]
def block(a, r, m):
    k = 0
    for u in range(5):
        a(f"s_waitcnt lgkmcnt({13 - NEED[u] + k})")
        a(m[u])
        if r:
            for _ in range(3 if u < 4 else 1):
                a(r[k]); k += 1

def body(a):
    for n in range(9):
        block(a, reads_step(SETS[1], n, 1), mfmas(SETS[0]))
        if n == 1:
            a(f"s_cmp_eq_u32 s{S_PH}, 0")
            a("s_cbranch_scc1 L_NOFLAG")
            poll_pub(a, "C", C_T, preloaded=True)
            a("s_mov_b64 exec, 1")
            a(f"buffer_store_dword v{C_T+3}, off, {R(SRD_WS)}, s{S_FLG} sc1")
            a("s_mov_b64 exec, -1")
            a.label("L_NOFLAG")
        if n < 8:
            a("s_barrier")
            if 'diag' in opt:
                a(f"s_memtime s[{S_TS}:{S_TS+1}]") if False else None
            block(a, reads_step(SETS[0], n+1, 0), mfmas(SETS[1]))
        else:
            block(a, None, mfmas(SETS[1]))

def zero_acc(a):
    for i in range(0, 36, 2): a(f"v_pk_mov_b32 v[{ACC+i}:{ACC+i+1}], 0, 0")

def silu4(a, x, e):
    for r in (0, 2): a(f"v_pk_mul_f32 v[{e+r}:{e+r+1}], v[{x+r}:{x+r+1}], s[{S_K}:{S_K+1}]")
    for r in range(4): a(f"v_exp_f32 v{e+r}, v{e+r}")
    for r in (0, 2): a(f"v_pk_add_f32 v[{e+r}:{e+r+1}], v[{e+r}:{e+r+1}], 1.0 op_sel_hi:[1,0]")
    for r in range(4): a(f"v_rcp_f32 v{e+r}, v{e+r}")
    for r in (0, 2): a(f"v_pk_mul_f32 v[{x+r}:{x+r+1}], v[{x+r}:{x+r+1}], v[{e+r}:{e+r+1}]")

def compute(a):
    t0, t1, t2, t3 = C_T, C_T+1, C_T+2, C_T+3
    W = R(SRD_WS)
    a(f"s_and_b32 s{S_T0}, s{S_CW}, 1")
    a(f"s_lshr_b32 s{S_T1}, s{S_CW}, 1")
    a(f"v_bfe_u32 v{t0}, v0, 2, 2")
    a(f"v_mul_u32_u24 v{t0}, 576, v{t0}")
    a(f"v_and_b32 v{t1}, 3, v0")
    a(f"v_lshl_add_u32 v{t0}, v{t1}, 3, v{t0}")
    a(f"v_lshrrev_b32 v{t1}, 4, v0")
    a(f"v_mul_u32_u24 v{t2}, 2304, v{t1}")
    a(f"v_add_u32 v{t2}, v{t2}, v{t0}")
    a(f"v_add_u32 v{C_A8}, 256, v{t2}")
    a(f"v_add_u32 v{C_A8+1}, {2*WST}, v{C_A8}")
    a(f"v_add_u32 v{C_A8+2}, {4*WST}, v{C_A8}")
    a(f"v_lshrrev_b32 v{t2}, 5, v0")
    a(f"v_mul_u32_u24 v{t2}, 2304, v{t2}")
    a(f"v_add_u32 v{t0}, v{t0}, v{t2}")
    a(f"v_and_b32 v{t1}, 1, v{t1}")
    a(f"v_lshl_add_u32 v{t0}, v{t1}, 5, v{t0}")
    a(f"s_lshl_b32 s{S_T2}, s{S_T0}, 7")
    a(f"v_add_u32 v{C_A32}, s{S_T2}, v{t0}")
    a(f"v_add_u32 v{C_A32+1}, {2*WST}, v{C_A32}")
    a(f"v_add_u32 v{C_A32+2}, {4*WST}, v{C_A32}")
    a(f"s_mul_i32 s{S_T1}, s{S_T1}, {MHB}")
    a(f"s_add_u32 s{S_T1}, s{S_T1}, {LB}")
    a(f"v_and_b32 v{t0}, 15, v0")
    a(f"v_lshrrev_b32 v{t1}, 1, v{t0}")
    a(f"v_lshlrev_b32 v{t0}, 7, v{t0}")
    a(f"v_add_u32 v{t0}, s{S_T1}, v{t0}")
    a(f"v_bfe_u32 v{t2}, v0, 4, 1")
    a(f"v_lshl_add_u32 v{t2}, v{t2}, 11, v{t0}")
    a(f"v_lshrrev_b32 v{t3}, 5, v0")
    a(f"v_xor_b32 v{t3}, v{t3}, v{t1}")
    a(f"v_lshlrev_b32 v{t3}, 4, v{t3}")
    for k4 in range(4):
        if k4: a(f"v_xor_b32 v{C_E}, {32*k4}, v{t3}")
        a(f"v_add_u32 v{C_B32+k4}, v{t2}, v{C_E if k4 else t3}")
    a(f"s_lshl_b32 s{S_T2}, s{S_T0}, 11")
    a(f"v_add_u32 v{t0}, s{S_T2}, v{t0}")
    a(f"v_lshrrev_b32 v{t3}, 4, v0")
    a(f"v_xor_b32 v{t3}, v{t3}, v{t1}")
    a(f"v_lshlrev_b32 v{t3}, 4, v{t3}")
    a(f"v_add_u32 v{C_B8}, v{t0}, v{t3}")
    a(f"v_xor_b32 v{t3}, 64, v{t3}")
    a(f"v_add_u32 v{C_B8+1}, v{t0}, v{t3}")
    zero_acc(a)
    group_bases(a)
    inbox_block(a, S_PA)
    a(f"s_mul_i32 s{S_T0}, s{S_XG}, 18432")
    a(f"s_add_u32 s{S_INB}, s{S_PA}, s{S_T0}")
    a(f"s_mul_i32 s{S_T0}, s{S_XG}, 2304")
    a(f"s_add_u32 s{S_PA}, s{S_PA}, s{S_T0}")
    a(f"s_mul_i32 s{S_T0}, s{S_CW}, {2*18432}")
    a(f"s_add_u32 s{S_PS}, s{S_PA}, s{S_T0}")
    a(f"s_add_u32 s{S_PS}, s{S_PS}, 2048")
    a(f"s_lshr_b32 s{S_T0}, s{S_CW}, 1")
    a(f"s_mul_i32 s{S_T0}, s{S_T0}, {4*18432}")
    a(f"s_add_u32 s{S_PA}, s{S_PA}, s{S_T0}")
    a(f"s_and_b32 s{S_T0}, s{S_CW}, 1")
    a(f"s_lshl_b32 s{S_T0}, s{S_T0}, 10")
    a(f"s_add_u32 s{S_PA}, s{S_PA}, s{S_T0}")
    a(f"s_lshr_b32 s{S_T0}, s{S_CW}, 1")
    a(f"s_mul_i32 s{S_T0}, s{S_T0}, {MHS}")
    a(f"s_add_u32 s{S_T0}, s{S_T0}, s{S_HB}")
    a(f"s_mul_i32 s{S_T1}, s{S_J}, {9*1024}")
    a(f"s_add_u32 s{S_T0}, s{S_T0}, s{S_T1}")
    a(f"s_and_b32 s{S_T1}, s{S_CW}, 1")
    a(f"s_lshl_b32 s{S_T2}, s{S_T1}, 12")
    a(f"s_add_u32 s{S_HST}, s{S_T0}, s{S_T2}")
    a(f"s_lshl_b32 s{S_T2}, s{S_T1}, 8")
    a(f"s_add_u32 s{S_HSP}, s{S_T0}, s{S_T2}")
    a(f"s_add_u32 s{S_HSP}, s{S_HSP}, {8*1024}")
    a(f"s_lshl_b32 s{S_FLG}, s{S_GRP}, 5")
    a(f"s_lshl_b32 s{S_T0}, s{S_J}, 2")
    a(f"s_add_u32 s{S_T0}, s{S_T0}, s{S_CW}")
    a(f"s_lshl_b32 s{S_T0}, s{S_T0}, 2")
    a(f"s_add_u32 s{S_FLG}, s{S_FLG}, s{S_T0}")
    a(f"s_add_u32 s{S_FLG}, s{S_FLG}, {FLAG_OFF}")
    a(f"s_mov_b32 s{S_K}, 0xbfb8aa3b")
    a(f"s_mov_b32 s{S_K+1}, 0xbfb8aa3b")
    a(f"s_mov_b32 s{S_PH}, 0")
    a("s_waitcnt lgkmcnt(0)")
    srd(a, SRD_WS, S_WS, WS_BYTES)
    srd(a, SRD_DBG, S_DBG, 256)
    a(f"v_lshlrev_b32 v{C_E}, 4, v0")
    if not spread():
        a(f"s_mul_i32 s{S_T1}, s{S_CW}, 4608")
        a(f"s_add_u32 s{S_T0}, s{S_INB}, s{S_T1}")
        for i in range(4): a(f"v_mov_b32 v{C_E+4+i}, -1")
        a(f"v_lshlrev_b32 v{C_E}, 4, v0")
        a(f"v_min_u32 v{C_E+1}, 31, v0")
        a(f"v_lshlrev_b32 v{C_E+1}, 4, v{C_E+1}")
        for i in range(4):
            a(f"buffer_store_dwordx4 v[{C_E+4}:{C_E+7}], v{C_E}, {W}, s{S_T0} offen offset:{1024*i} sc1")
        a(f"s_add_u32 s{S_T0}, s{S_T0}, 4096")
        a(f"buffer_store_dwordx4 v[{C_E+4}:{C_E+7}], v{C_E+1}, {W}, s{S_T0} offen sc1")
    a(f"s_cmp_eq_u32 s2, 0")
    a("s_cbranch_scc0 L_NOCLR")
    a(f"s_lshl_b32 s{S_T0}, s{S_CW}, 11")
    a(f"s_add_u32 s{S_T0}, s{S_T0}, {FLAG_OFF}")
    a(f"v_pk_mov_b32 v[{SETS[1]}:{SETS[1]+1}], 0, 0\nv_pk_mov_b32 v[{SETS[1]+2}:{SETS[1]+3}], 0, 0")
    for i in range(2):
        a(f"buffer_store_dwordx4 v[{SETS[1]}:{SETS[1]+3}], v{C_E}, {W}, s{S_T0} offen offset:{1024*i} sc1")
    a("s_waitcnt vmcnt(0)")
    a.label("L_NOCLR")
    a("s_barrier")
    stampw(a, 1)
    for ins in reads_step(SETS[0], 0, 0): a(ins)
    a(f"s_lshl_b32 s{S_T1}, s2, 2")
    a(f"s_or_b32 s{S_T1}, s{S_T1}, s{S_CW}")
    a(f"s_cmp_eq_u32 s{S_T1}, 0")
    a("s_cbranch_scc0 L_BODY")
    a(f"v_mov_b32 v{t0}, 1")
    a("s_mov_b64 exec, 1")
    a(f"buffer_store_dword v{t0}, off, {R(SRD_DBG)}, 0 sc1")
    a("s_mov_b64 exec, -1")
    a.label("L_BODY")
    body(a)
    a(f"s_cmp_eq_u32 s{S_PH}, 0")
    a("s_cbranch_scc0 L_EPI2")
    a("s_barrier")
    stamp(a, 2)
    a("s_waitcnt vmcnt(0)")
    a(f"buffer_load_dword v{t0}, off, {R(SRD_DBG)}, 0 sc1")
    a(f"v_lshlrev_b32 v{t1}, 4, v0")
    a(f"s_lshr_b32 s{S_T0}, s{S_CW}, 1")
    a(f"s_mul_i32 s{S_T0}, s{S_T0}, {MHB}")
    a(f"s_add_u32 s{S_T0}, s{S_T0}, {LB}")
    a(f"s_and_b32 s{S_T1}, s{S_CW}, 1")
    a(f"s_lshl_b32 s{S_T2}, s{S_T1}, 12")
    a(f"s_add_u32 s{S_T2}, s{S_T2}, s{S_T0}")
    a(f"v_add_u32 v{t2}, s{S_T2}, v{t1}")
    P = SETS[0]
    x = ACC + 32
    silu4(a, x, C_E)
    a(f"v_cvt_pk_bf16_f32 v{P+16}, v{x}, v{x+1}")
    a(f"v_cvt_pk_bf16_f32 v{P+17}, v{x+2}, v{x+3}")
    a(f"v_mov_b32 v{P+18}, v{P+16}")
    a(f"v_mov_b32 v{P+19}, v{P+17}")
    a(f"v_bfe_u32 v{t3}, v0, 4, 1")
    a(f"v_lshlrev_b32 v{t3}, 9, v{t3}")
    a(f"v_and_b32 v{C_E+4}, 15, v0")
    a(f"v_lshl_add_u32 v{t3}, v{C_E+4}, 4, v{t3}")
    a(f"v_permlane32_swap_b32 v{P+16}, v{P+18}")
    a(f"v_permlane32_swap_b32 v{P+17}, v{P+19}")
    a("s_mov_b32 exec_hi, 0")
    a(f"buffer_store_dwordx4 v[{P+16}:{P+19}], v{t3}, {W}, s{S_HSP} offen sc1")
    a("s_mov_b32 exec_hi, -1")
    for c in range(2):
        for hb in range(2):
            x = ACC + 16*c + 8*hb
            d = P + 4*(2*c + hb)
            silu4(a, x, C_E); silu4(a, x+4, C_E+4)
            for i in range(4): a(f"v_cvt_pk_bf16_f32 v{d+i}, v{x+2*i}, v{x+2*i+1}")
            a(f"buffer_store_dwordx4 v[{d}:{d+3}], v{t1}, {W}, s{S_HST} offen offset:{1024*(2*c+hb)} sc1")
            a(f"ds_write_b128 v{t2}, v[{d}:{d+3}] offset:{1024*(2*c+hb)}")
    stamp(a, 8)
    for k4 in range(4):
        if k4 == 0: a(f"v_add_u32 v{C_B32}, s{S_T0}, v{t1}")
        else:       a(f"v_add_u32 v{C_B32+k4}, {1024*k4}, v{C_B32}")
    a(f"v_lshrrev_b32 v{t2}, 4, v0")
    a(f"v_lshlrev_b32 v{t2}, 9, v{t2}")
    a(f"v_and_b32 v{t3}, 15, v0")
    a(f"v_lshl_add_u32 v{t2}, v{t3}, 4, v{t2}")
    a(f"s_lshl_b32 s{S_T1}, s{S_T1}, 8")
    a(f"s_add_u32 s{S_T0}, s{S_T0}, s{S_T1}")
    a(f"v_add_u32 v{C_B8}, s{S_T0}, v{t2}")
    a(f"v_add_u32 v{C_B8+1}, 2048, v{C_B8}")
    for b in (C_A32, C_A8):
        a(f"v_mov_b32 v{t2}, v{b}")
        a(f"v_mov_b32 v{b}, v{b+2}")
        a(f"v_mov_b32 v{b+2}, v{b+1}")
        a(f"v_mov_b32 v{b+1}, v{t2}")
    zero_acc(a)
    a(f"v_mov_b32 v{t3}, 1")
    a(f"s_mov_b32 s{S_PH}, 1")
    a("s_waitcnt lgkmcnt(0)")
    a("s_barrier")
    stampw(a, 3)
    for ins in reads_step(SETS[0], 0, 0): a(ins)
    a("s_branch L_BODY")
    a.label("L_EPI2")
    stamp(a, 5)
    a(f"v_bfe_u32 v{t0}, v0, 3, 2")
    a(f"v_mul_u32_u24 v{t0}, 18432, v{t0}")
    a(f"v_lshrrev_b32 v{t1}, 5, v0")
    a(f"v_lshl_add_u32 v{t0}, v{t1}, 7, v{t0}")
    a(f"v_and_b32 v{t1}, 7, v0")
    a(f"v_lshl_add_u32 v{t0}, v{t1}, 4, v{t0}")
    a(f"v_lshrrev_b32 v{t2}, 4, v0")
    a(f"v_lshl_add_u32 v{t2}, v{t2}, 3, v{t1}")
    a(f"v_bfe_u32 v{t1}, v0, 3, 1")
    a(f"v_mul_u32_u24 v{t1}, 18432, v{t1}")
    a(f"v_lshl_add_u32 v{t1}, v{t2}, 3, v{t1}")
    a(f"s_mov_b32 s{S_K}, 0xfffffffe")
    P = SETS[0]
    for c in range(2):
        for hb in range(2):
            x = ACC + 16*c + 8*hb
            d = P + 4*(2*c + hb)
            for i in range(4): a(f"v_cvt_pk_bf16_f32 v{d+i}, v{x+2*i}, v{x+2*i+1}")
            for i in range(4): a(f"v_min_u32 v{d+i}, s{S_K}, v{d+i}")
            a(f"buffer_store_dwordx4 v[{d}:{d+3}], v{t0}, {W}, s{S_PA} offen offset:{256*(2*c+hb)} sc1")
    x = ACC + 32
    a(f"v_cvt_pk_bf16_f32 v{P+16}, v{x}, v{x+1}")
    a(f"v_cvt_pk_bf16_f32 v{P+17}, v{x+2}, v{x+3}")
    for d in range(2): a(f"v_min_u32 v{P+16+d}, s{S_K}, v{P+16+d}")
    a(f"buffer_store_dwordx2 v[{P+16}:{P+17}], v{t1}, {W}, s{S_PS} offen sc1")
    a("s_barrier")
    stamp(a, 6)
    a(f"s_cmp_eq_u32 s{S_CW}, 0")
    a("s_cbranch_scc0 L_CDONE")
    reducer(a, "C", single=True)
    reducer_run(a, "C", single=True)
    a.label("L_CDONE")
    if 'ts' in opt or amp_on(): a("s_waitcnt vmcnt(0)")
    stamp(a, 7)
    amp_spin(a)
    dump_stamps(a, 0, 9, "C", 0)

def kernel_main(a):
    name = KNAME
    a(f".globl {name}\n.p2align 8\n.type {name},@function\n{name}:")
    a(f"s_cmp_ge_u32 s2, 256")
    a(f"s_cbranch_scc1 L_END")
    stamp(a, 0)
    a("s_load_dwordx8 s[4:11], s[0:1], 0")
    a("s_load_dwordx4 s[12:15], s[0:1], 32")
    a("v_lshrrev_b32 v1, 6, v0")
    a("v_and_b32 v0, 63, v0")
    a(f"v_readfirstlane_b32 s{S_WV}, v1")
    if 'xmap' in opt:
        a(f"s_and_b32 s{S_J}, s2, 3")
        a(f"s_lshr_b32 s{S_XG}, s2, 2")
        a(f"s_and_b32 s{S_XG}, s{S_XG}, 7")
    else:
        a(f"s_and_b32 s{S_XG}, s2, 7")
        a(f"s_lshr_b32 s{S_J}, s2, 3")
        a(f"s_and_b32 s{S_J}, s{S_J}, 3")
    a(f"s_lshr_b32 s{S_MT}, s2, 5")
    a("s_nop 0")
    a(f"s_and_b32 s{S_CW}, s{S_WV}, 3")
    a(f"s_cmp_lt_u32 s{S_WV}, 4")
    a("s_cbranch_scc1 L_COMPUTE")
    loader(a)
    a.label("L_COMPUTE")
    compute(a)
    a.label("L_END")
    a("s_endpgm")
    a.label("L_CODE_END")
    a(kd(name, vgpr=128, sgpr=102))

def check_barriers(lines):
    iL = lines.index("L_LOADER:"); iC = lines.index("L_COMPUTE:")
    iB = lines.index("L_BODY:"); iE2 = lines.index("L_EPI2:")
    cnt = lambda seg: sum(1 for ln in seg if ln.strip() == "s_barrier")
    seg = lines[iL:iC]
    i1 = seg.index("L_LD1:"); i2 = seg.index("s_cbranch_scc1 L_LD1")
    nl = cnt(seg) + 5*cnt(seg[i1:i2])
    iT = [i for i in range(iB, iE2) if lines[i].strip() == "s_cbranch_scc0 L_EPI2"][0]
    nb = cnt(lines[iB:iT])
    nc = cnt(lines[iC:iB]) + 2*nb + cnt(lines[iT:iE2]) + cnt(lines[iE2:])
    assert nl == nc, f"barrier mismatch loader {nl} compute {nc}"
    return nl

def main():
    for o in sys.argv[2:]: opt.add(o)
    a = Asm()
    a(HEADER.rstrip())
    a(f"; @launch grid=(256,1,1) block=(512,1,1) lds={LDS_BYTES}")
    a('.amdgcn_target "amdgcn-amd-amdhsa--gfx950"')
    a(".text")
    kernel_main(a)
    check_barriers(a.lines)
    open(sys.argv[1], "w").write(a.text())

main()
```

```python
import sys
from common import *

X_BYTES = 512*576*2
W_BYTES = 576*4608*2
OUT_BYTES = 512*576*2
WS_BYTES = 268435456
PAGE = 2*1024*1024
H_OFF = 4096
GRP_BYTES = 73728
FLAG_OFF = 4*PAGE + 4096
def FSPLIT(): return 'fsplit' in opt
INBOX_OFF = 5*PAGE + 4096
INBOX_B = 8*8*2304
WST = 18432
NSL = 6
LB = NSL*WST
NBP = 5
MHB = NBP*4096
MHS = 36864
LDS_BYTES = LB + 2*MHB
TS_OFF = 128 << 20
SPIN = 1 << 17
KNAME = "standalone__dense_activation_silu__sampling_kernel"
opt = set()

S_X, S_W1, S_W2, S_OUT, S_DBG, S_WS = 4, 6, 8, 10, 12, 14
SRD_X, SRD_W1, SRD_WS, SRD_W2, SRD_DBG = 16, 20, 24, 40, 44
S_WV, S_XG, S_J, S_MT, S_CW = 28, 29, 30, 31, 32
S_N, S_WOFF, S_DSLOT = 33, 34, 35
S_T0, S_T1, S_T2, S_T3 = 36, 37, 38, 39
S_HB, S_GRP, S_INB = 53, 54, 58
S_TS = 60
S_K = 84
S_P, S_XROW, S_BDST, S_WCOL, S_WLDS = 48, 49, 50, 51, 52
S_W2B, S_KAP, S_HOFF, S_CK, S_KH, S_HDST = 55, 56, 57, 59, 92, 94
S_TST, S_TREAL, S_TOFF, S_TN = 93, 95, 96, 97
S_BBEG, S_BEND = 86, 87
S_PH, S_HST, S_HSP, S_FLG, S_PA, S_PS = 48, 49, 50, 51, 52, 55

def amp_on(): return any(o.startswith('amp') for o in opt)
def amp_spin(a):
    for o in opt:
        if o.startswith('amp'):
            ia, ib = int(o[3]), int(o[4])
            a("s_waitcnt lgkmcnt(0) vmcnt(0)")
            a(f"s_sub_u32 s95, s{S_TS+2*ib}, s{S_TS+2*ia}")
            a("s_mul_i32 s95, s95, 3")
            a("s_memrealtime s[96:97]\ns_waitcnt lgkmcnt(0)\ns_mov_b32 s94, s96")
            a.label("L_AMP")
            a("s_memrealtime s[96:97]\ns_waitcnt lgkmcnt(0)\ns_sub_u32 s96, s96, s94\ns_cmp_lt_u32 s96, s95\ns_cbranch_scc1 L_AMP")
DIAGC = [False]
def stamp(a, i):
    if 'diag' in opt and DIAGC[0]: return
    if 'ts' in opt or amp_on():
        a(f"s_memrealtime s[{S_TS+2*i}:{S_TS+2*i+1}]")
def stampw(a, i):
    if 'diag' in opt and DIAGC[0]: return
    if 'ts' in opt or amp_on():
        a(f"s_memrealtime s[{S_TS+2*i}:{S_TS+2*i+1}]")
        a("s_waitcnt lgkmcnt(0)")

def dump_stamps(a, kidx, n, tag, wave):
    if 'ts' not in opt: return
    a("s_waitcnt lgkmcnt(0) vmcnt(0)")
    a(f"s_cmp_eq_u32 s{S_WV}, {wave}")
    a(f"s_cbranch_scc0 L_NOTS{tag}")
    a(f"s_lshl_b32 s80, s2, 7")
    a(f"s_add_u32 s80, s80, {TS_OFF + kidx*512*128}")
    a(f"s_mov_b32 s88, s14\ns_mov_b32 s89, s15\ns_mov_b32 s90, {WS_BYTES}\ns_mov_b32 s91, 0x20000")
    a("v_mov_b32 v2, 0")
    for i in range(n):
        a(f"v_mov_b32 v4, s{S_TS+2*i}\nv_mov_b32 v5, s{S_TS+2*i+1}")
        a(f"buffer_store_dwordx2 v[4:5], v2, s[88:91], s80 offen offset:{8*i}")
        a("s_nop 1")
    a.label(f"L_NOTS{tag}")

def srd(a, base, ptr, nbytes):
    a(f"s_mov_b32 s{base}, s{ptr}")
    a(f"s_mov_b32 s{base+1}, s{ptr+1}")
    a(f"s_mov_b32 s{base+2}, {nbytes}")
    a(f"s_mov_b32 s{base+3}, 0x20000")
def R(base): return f"s[{base}:{base+3}]"

def wrap(a, reg, inc, mod):
    a(f"s_add_u32 s{reg}, s{reg}, {inc}")
    a(f"s_sub_u32 s{S_T3}, s{reg}, {mod}")
    a(f"s_cmp_ge_u32 s{reg}, {mod}")
    a(f"s_cselect_b32 s{reg}, s{S_T3}, s{reg}")

def group_bases(a):
    a(f"s_lshl_b32 s{S_GRP}, s{S_XG}, 3")
    a(f"s_add_u32 s{S_GRP}, s{S_GRP}, s{S_MT}")
    a(f"s_lshr_b32 s{S_HB}, s{S_GRP}, 4")
    a(f"s_lshl_b32 s{S_HB}, s{S_HB}, 21")
    a(f"s_and_b32 s{S_T0}, s{S_GRP}, 15")
    a(f"s_mul_i32 s{S_T0}, s{S_T0}, {GRP_BYTES}")
    a(f"s_add_u32 s{S_HB}, s{S_HB}, s{S_T0}")
    a(f"s_add_u32 s{S_HB}, s{S_HB}, {H_OFF}")
    a(f"s_lshl_b32 s{S_GRP}, s{S_GRP}, 2")

def inbox_block(a, dst):
    a(f"s_lshl_b32 s{dst}, s{S_MT}, 2")
    a(f"s_add_u32 s{dst}, s{dst}, s{S_J}")
    a(f"s_mul_i32 s{dst}, s{dst}, {INBOX_B}")
    a(f"s_add_u32 s{dst}, s{dst}, {INBOX_OFF}")

def poll_pub(a, tag, vtmp, preloaded=False):
    if preloaded:
        a("s_waitcnt vmcnt(0)")
        a(f"v_cmp_ne_u32 vcc, 1, v{vtmp}")
        a(f"s_cbranch_vccz L_PGX{tag}")
    a(f"s_mov_b32 s{S_T3}, 0")
    a.label(f"L_PG{tag}")
    a(f"s_add_u32 s{S_T3}, s{S_T3}, 1")
    a(f"s_cmp_gt_u32 s{S_T3}, {SPIN}")
    a(f"s_cbranch_scc1 L_PGX{tag}")
    a(f"buffer_load_dword v{vtmp}, off, {R(SRD_DBG)}, 0 sc1")
    a("s_waitcnt vmcnt(0)")
    a(f"v_cmp_ne_u32 vcc, 1, v{vtmp}")
    a(f"s_cbranch_vccnz L_PG{tag}")
    a.label(f"L_PGX{tag}")

def poll_ones(a, tag, vdst, vaddr, soff):
    a(f"s_mov_b32 s{S_T3}, 0")
    a.label(f"L_PO{tag}")
    a(f"s_add_u32 s{S_T3}, s{S_T3}, 1")
    a(f"s_cmp_gt_u32 s{S_T3}, {SPIN}")
    a(f"s_cbranch_scc1 L_POX{tag}")
    a(f"buffer_load_dword v{vdst}, v{vaddr}, {R(SRD_WS)}, s{soff} offen sc1")
    a("s_waitcnt vmcnt(0)")
    a(f"v_cmp_ne_u32 vcc, 1, v{vdst}")
    a(f"s_cbranch_vccnz L_PO{tag}")
    a.label(f"L_POX{tag}")

R_D, R_ACC, R_T, R_A = 80, 96, 100, 104
def reducer(a, tag, single):
    W = R(SRD_WS)
    if single:
        a(f"v_min_u32 v{R_T}, 31, v0")
        a(f"v_lshlrev_b32 v{R_A}, 3, v{R_T}")
        a(f"s_add_u32 s{S_T0}, s{S_INB}, 2048")
        a(f"v_and_b32 v{R_T+1}, 7, v{R_T}")
        a(f"v_mul_u32_u24 v{R_T+1}, 1152, v{R_T+1}")
        a(f"v_lshrrev_b32 v{R_T}, 3, v{R_T}")
        a(f"v_lshl_add_u32 v{R_A+1}, v{R_T}, 3, v{R_T+1}")
        a(f"s_mov_b32 s{S_T2}, 256")
    else:
        a(f"v_lshlrev_b32 v{R_A}, 3, v0")
        a(f"s_lshl_b32 s{S_T0}, s{S_CW}, 9")
        a(f"s_add_u32 s{S_T0}, s{S_T0}, s{S_INB}")
        a(f"v_bfe_u32 v{R_T}, v0, 1, 3")
        a(f"v_mul_u32_u24 v{R_T}, 1152, v{R_T}")
        a(f"v_lshrrev_b32 v{R_T+1}, 5, v0")
        a(f"v_lshl_add_u32 v{R_T}, v{R_T+1}, 5, v{R_T}")
        a(f"v_and_b32 v{R_T+1}, 1, v0")
        a(f"v_lshl_add_u32 v{R_T}, v{R_T+1}, 4, v{R_T}")
        a(f"v_bfe_u32 v{R_T+1}, v0, 4, 1")
        a(f"v_lshl_add_u32 v{R_A+1}, v{R_T+1}, 3, v{R_T}")
        a(f"s_lshl_b32 s{S_T2}, s{S_CW}, 6")
    a(f"s_lshl_b32 s{S_T1}, s{S_MT}, 3")
    a(f"s_add_u32 s{S_T1}, s{S_T1}, s{S_XG}")
    a(f"s_mul_i32 s{S_T1}, s{S_T1}, {8*1152}")
    a(f"s_add_u32 s{S_T2}, s{S_T2}, s{S_T1}")
    a(f"s_mul_i32 s{S_T1}, s{S_J}, 288")
    a(f"s_add_u32 s{S_T2}, s{S_T2}, s{S_T1}")
    srd(a, SRD_X, S_OUT, OUT_BYTES)
    return
def reducer_run(a, tag, single):
    W = R(SRD_WS)
    a(f"s_mov_b32 s{S_T3}, 0")
    a.label(f"L_RP{tag}")
    a(f"s_mov_b32 s{S_T1}, s{S_T0}")
    for xg in range(8):
        a(f"buffer_load_dwordx2 v[{R_D+2*xg}:{R_D+2*xg+1}], v{R_A}, {W}, s{S_T1} offen sc1")
        if xg < 7: a(f"s_add_u32 s{S_T1}, s{S_T1}, 2304")
    a(f"s_add_u32 s{S_T3}, s{S_T3}, 1")
    a(f"s_cmp_gt_u32 s{S_T3}, {SPIN}")
    a(f"s_cbranch_scc1 L_RPX{tag}")
    a("s_waitcnt vmcnt(0)")
    a(f"v_max3_u32 v{R_T}, v{R_D}, v{R_D+1}, v{R_D+2}")
    for i in range(3, 15, 2):
        a(f"v_max3_u32 v{R_T}, v{R_T}, v{R_D+i}, v{R_D+i+1}")
    a(f"v_max_u32 v{R_T}, v{R_T}, v{R_D+15}")
    a(f"v_cmp_eq_u32 vcc, -1, v{R_T}")
    a(f"s_cbranch_vccnz L_RP{tag}")
    a.label(f"L_RPX{tag}")
    a("s_waitcnt vmcnt(0)")
    for xg in range(8):
        for d in range(2):
            src = R_D + 2*xg + d
            dst = R_ACC if xg == 0 else R_T
            a(f"v_lshlrev_b32 v{dst+2*d}, 16, v{src}")
            a(f"v_and_b32 v{dst+2*d+1}, 0xffff0000, v{src}")
        if xg:
            for d in range(4): a(f"v_add_f32 v{R_ACC+d}, v{R_ACC+d}, v{R_T+d}")
    a(f"v_cvt_pk_bf16_f32 v{R_D}, v{R_ACC}, v{R_ACC+1}")
    a(f"v_cvt_pk_bf16_f32 v{R_D+1}, v{R_ACC+2}, v{R_ACC+3}")
    if single: a("s_mov_b32 exec_hi, 0")
    a(f"buffer_store_dwordx2 v[{R_D}:{R_D+1}], v{R_A+1}, {R(SRD_X)}, s{S_T2} offen")
    if single: a("s_mov_b32 exec_hi, -1")

L_W1, L_W2, L_X, L_H, L_T = 1, 6, 11, 13, 14
L_RHO, L_C16 = 20, 25
L_TV, L_PF, L_CK = 30, 32, 34

def issue_x(a):
    a(f"s_lshl_b32 s{S_T0}, s{S_P}, 7")
    a(f"s_mov_b32 m0, s{S_BDST}")
    a(f"s_add_u32 s{S_T0}, s{S_T0}, s{S_XROW}")
    a(f"buffer_load_dwordx4 v{L_X}, {R(SRD_X)}, s{S_T0} offen lds")
    a(f"s_add_u32 m0, m0, 1024")
    a(f"s_add_u32 s{S_BDST}, s{S_BDST}, 4096")
    a(f"buffer_load_dwordx4 v{L_X+1}, {R(SRD_X)}, s{S_T0} offen lds")
    a(f"s_cmp_eq_u32 s{S_BDST}, s{S_BEND}")
    a(f"s_cselect_b32 s{S_BDST}, s{S_BBEG}, s{S_BDST}")

def issue_w_one(a, i, vbase, srdreg):
    if i == 0: a(f"s_add_u32 m0, s{S_DSLOT}, s{S_WLDS}")
    else:      a(f"s_add_u32 m0, m0, 1024")
    a("s_mov_b32 exec_hi, 0" if i == 4 else "s_nop 0")
    a(f"buffer_load_dwordx4 v{vbase+i}, {R(srdreg)}, s{S_WOFF} offen lds")
    if i == 4: a("s_mov_b32 exec_hi, -1")
def slot_next(a):
    a(f"s_add_u32 s{S_DSLOT}, s{S_DSLOT}, {WST}")
    a(f"s_cmp_eq_u32 s{S_DSLOT}, {NSL*WST}")
    a(f"s_cselect_b32 s{S_DSLOT}, 0, s{S_DSLOT}")
def w1_off(a):
    a(f"s_mul_i32 s{S_WOFF}, s{S_P}, {64*9216}")
    a(f"s_add_u32 s{S_WOFF}, s{S_WOFF}, s{S_WCOL}")
def issue_touch(a):
    a(f"s_cmp_eq_u32 s{S_TN}, s{S_TST}")
    a(f"s_cselect_b32 s{S_TOFF}, s{S_TREAL}, 0x70000000")
    a(f"s_add_u32 s{S_TN}, s{S_TN}, 1")
    a(f"buffer_load_dword v{L_TV+1}, v{L_TV}, {R(SRD_W2)}, s{S_TOFF} offen")
L_FS = 36
S_FU, S_FB = 98, 99
def spread(): return 'spread' in opt
def issue_fill(a):
    a(f"s_cmp_lt_u32 s{S_FU}, {18*1024}")
    a(f"s_cselect_b32 s{S_T0}, s{S_FU}, 0x60000000")
    a(f"s_add_u32 s{S_T0}, s{S_T0}, s{S_FB}")
    a(f"s_add_u32 s{S_FU}, s{S_FU}, 4096")
    a(f"buffer_store_dwordx4 v[{L_FS}:{L_FS+3}], v{L_H}, {R(SRD_WS)}, s{S_T0} offen sc1")
def issue_stage1(a):
    issue_x(a)
    w1_off(a)
    for i in range(5): issue_w_one(a, i, L_W1, SRD_W1)
    slot_next(a)
    wrap(a, S_P, 1, 9)
    issue_touch(a)
    if spread(): issue_fill(a)
def issue_w2(a):
    a(f"s_mul_i32 s{S_WOFF}, s{S_KAP}, {16*1152}")
    a(f"s_add_u32 s{S_WOFF}, s{S_WOFF}, s{S_W2B}")
    for i in range(5): issue_w_one(a, i, L_W2, SRD_W2)
    slot_next(a)
    wrap(a, S_KAP, 4, 36)
def issue_h(a):
    a(f"s_lshl_b32 s{S_HOFF}, s{S_KH}, 10")
    a(f"s_mov_b32 m0, s{S_HDST}")
    a(f"s_add_u32 s{S_HOFF}, s{S_HOFF}, s{S_HB}")
    a(f"buffer_load_dwordx4 v{L_H}, {R(SRD_WS)}, s{S_HOFF} offen sc1 lds")
    a(f"s_add_u32 m0, m0, {MHB}")
    a(f"s_add_u32 s{S_HOFF}, s{S_HOFF}, {MHS}")
    a(f"buffer_load_dwordx4 v{L_H}, {R(SRD_WS)}, s{S_HOFF} offen sc1 lds")
    a(f"s_add_u32 s{S_HDST}, s{S_HDST}, 4096")
    a(f"s_cmp_eq_u32 s{S_HDST}, s{S_BEND}")
    a(f"s_cselect_b32 s{S_HDST}, s{S_BBEG}, s{S_HDST}")
    wrap(a, S_KH, 4, 36)

def w_voff(a, i):
    t0, t1 = L_T, L_T+1
    a(f"v_add_u32 v{t0}, {64*i}, v0")
    a(f"v_mul_u32_u24 v{t1}, 3641, v{t0}")
    a(f"v_lshrrev_b32 v{L_RHO+i}, 16, v{t1}")
    a(f"v_lshlrev_b32 v{t0}, 4, v{t0}")
    a(f"v_mad_i32_i24 v{L_C16+i}, v{L_RHO+i}, s{S_T1}, v{t0}")
    a(f"v_and_b32 v{t0}, 1, v{L_RHO+i}")
    a(f"v_and_b32 v{t1}, 8, v{L_RHO+i}")
    a(f"v_lshl_add_u32 v{t1}, v{t0}, 2, v{t1}")
    a(f"v_bfe_u32 v{t0}, v{L_RHO+i}, 1, 2")
    a(f"v_add_u32 v{t1}, v{t1}, v{t0}")
    a(f"v_mad_u32_u24 v{L_W1+i}, v{t1}, s{S_T2}, v{L_C16+i}")
def w2_voffs(a):
    t0, t1 = L_T, L_T+1
    a(f"s_movk_i32 s{S_T2}, 1152")
    for i in range(5):
        a(f"v_and_b32 v{t0}, 1, v{L_RHO+i}")
        a(f"v_lshrrev_b32 v{t1}, 3, v{L_RHO+i}")
        a(f"v_lshlrev_b32 v{t1}, 2, v{t1}")
        a(f"v_lshl_add_u32 v{t1}, v{t0}, 3, v{t1}")
        a(f"v_bfe_u32 v{t0}, v{L_RHO+i}, 1, 2")
        a(f"v_add_u32 v{t1}, v{t1}, v{t0}")
        a(f"v_mad_u32_u24 v{L_W2+i}, v{t1}, s{S_T2}, v{L_C16+i}")

def loader(a):
    a.label("L_LOADER")
    if 'lprio' in opt: a("s_setprio 3")
    t0, t1, t2 = L_T, L_T+1, L_T+2
    a(f"v_lshrrev_b32 v{t0}, 3, v0")
    a(f"v_lshrrev_b32 v{t1}, 4, v0")
    a(f"v_and_b32 v{t2}, 7, v0")
    a(f"v_xor_b32 v{t1}, v{t1}, v{t2}")
    a(f"v_lshlrev_b32 v{t1}, 4, v{t1}")
    a(f"v_mul_u32_u24 v{t0}, 1152, v{t0}")
    a(f"v_add_u32 v{L_X}, v{t0}, v{t1}")
    a(f"v_xor_b32 v{t1}, 64, v{t1}")
    a(f"v_add_u32 v{t0}, {8*1152}, v{t0}")
    a(f"v_add_u32 v{L_X+1}, v{t0}, v{t1}")
    a(f"s_lshl_b32 s{S_T0}, s{S_MT}, 2")
    a(f"s_add_u32 s{S_T0}, s{S_T0}, s{S_CW}")
    a(f"s_mul_i32 s{S_XROW}, s{S_T0}, {16*1152}")
    a(f"s_lshr_b32 s{S_T0}, s{S_CW}, 1")
    a(f"s_mul_i32 s{S_BDST}, s{S_T0}, {MHB}")
    a(f"s_and_b32 s{S_T0}, s{S_CW}, 1")
    a(f"s_lshl_b32 s{S_T0}, s{S_T0}, 11")
    a(f"s_add_u32 s{S_BDST}, s{S_BDST}, s{S_T0}")
    a(f"s_add_u32 s{S_BDST}, s{S_BDST}, {LB}")
    a(f"s_mov_b32 s{S_BBEG}, s{S_BDST}")
    a(f"s_add_u32 s{S_BEND}, s{S_BDST}, {NBP*4096}")
    if 'norot' in opt: a(f"s_mov_b32 s{S_P}, 0")
    else:
        a(f"s_lshl_b32 s{S_P}, s{S_J}, 1")
        wrap_reg = S_P
        a(f"s_add_u32 s{S_P}, s{S_P}, s{S_MT}")
        a(f"s_sub_u32 s{S_T0}, s{S_P}, 9")
        a(f"s_cmp_ge_u32 s{S_P}, 9")
        a(f"s_cselect_b32 s{S_P}, s{S_T0}, s{S_P}")
    a(f"s_mul_i32 s{S_WCOL}, s{S_XG}, 1152")
    a(f"s_mul_i32 s{S_T0}, s{S_J}, 288")
    a(f"s_add_u32 s{S_WCOL}, s{S_WCOL}, s{S_T0}")
    a(f"s_mul_i32 s{S_T0}, s{S_CW}, {16*9216}")
    a(f"s_add_u32 s{S_WCOL}, s{S_WCOL}, s{S_T0}")
    a(f"s_mul_i32 s{S_WLDS}, s{S_CW}, 4608")
    a(f"s_mov_b32 s{S_DSLOT}, 0")
    a(f"s_movk_i32 s{S_T1}, -288")
    a(f"s_movk_i32 s{S_T2}, 9216")
    w_voff(a, 0)
    a("s_waitcnt lgkmcnt(0)")
    srd(a, SRD_X, S_X, X_BYTES)
    srd(a, SRD_W1, S_W1, W_BYTES)
    stamp(a, 1)
    issue_x(a)
    w1_off(a)
    issue_w_one(a, 0, L_W1, SRD_W1)
    for i in range(1, 5):
        w_voff(a, i)
        issue_w_one(a, i, L_W1, SRD_W1)
    slot_next(a)
    wrap(a, S_P, 1, 9)
    srd(a, SRD_W2, S_W2, W_BYTES)
    a(f"s_lshl_b32 s{S_T0}, s{S_MT}, 2")
    a(f"s_add_u32 s{S_T0}, s{S_T0}, s{S_J}")
    a(f"s_mul_i32 s{S_T0}, s{S_T0}, 162")
    a(f"s_mul_i32 s{S_T1}, s{S_CW}, 41")
    a(f"s_add_u32 s{S_T0}, s{S_T0}, s{S_T1}")
    a(f"s_lshl_b32 s{S_T0}, s{S_T0}, 7")
    a(f"s_mul_i32 s{S_W2B}, s{S_XG}, {576*1152}")
    a(f"s_add_u32 s{S_TREAL}, s{S_T0}, s{S_W2B}")
    a(f"v_min_u32 v{L_TV}, 40, v0")
    a(f"v_lshlrev_b32 v{L_TV}, 7, v{L_TV}")
    a(f"s_mov_b32 s{S_TN}, 1")
    a(f"s_add_u32 s{S_TST}, s{S_MT}, 1")
    if spread():
        srd(a, SRD_WS, S_WS, WS_BYTES)
        a(f"v_lshlrev_b32 v{L_H}, 4, v0")
        for i in range(4): a(f"v_mov_b32 v{L_FS+i}, -1")
        inbox_block(a, S_FB)
        a(f"s_mul_i32 s{S_T1}, s{S_XG}, 18432")
        a(f"s_add_u32 s{S_FB}, s{S_FB}, s{S_T1}")
        fstart = 1
        for o in opt:
            if o.startswith('fs'): fstart = int(o[2])
        a(f"s_lshl_b32 s{S_FU}, s{S_CW}, 10")
        a(f"s_sub_u32 s{S_FU}, s{S_FU}, {4096*fstart}")
    issue_stage1(a)
    stamp(a, 2)
    srd(a, SRD_WS, S_WS, WS_BYTES)
    srd(a, SRD_DBG, S_DBG, 256)
    w2_voffs(a)
    group_bases(a)
    a(f"s_mul_i32 s{S_T0}, s{S_J}, 288")
    a(f"s_add_u32 s{S_W2B}, s{S_W2B}, s{S_T0}")
    a(f"s_mul_i32 s{S_KAP}, s{S_J}, 9")
    a(f"s_add_u32 s{S_KAP}, s{S_KAP}, s{S_CW}")
    a(f"s_add_u32 s{S_KH}, s{S_KAP}, 8")
    a(f"s_sub_u32 s{S_T0}, s{S_KH}, 36")
    a(f"s_cmp_ge_u32 s{S_KH}, 36")
    a(f"s_cselect_b32 s{S_KH}, s{S_T0}, s{S_KH}")
    a(f"s_lshl_b32 s{S_HDST}, s{S_CW}, 10")
    a(f"s_add_u32 s{S_HDST}, s{S_HDST}, {LB + 2*4096}")
    a(f"v_lshlrev_b32 v{L_H}, 4, v0")
    inbox_block(a, S_INB)
    a(f"s_mul_i32 s{S_T1}, s{S_XG}, 18432")
    a(f"s_add_u32 s{S_INB}, s{S_INB}, s{S_T1}")
    if FSPLIT():
        a(f"v_bfe_u32 v{L_PF}, v0, 2, 2")
        a(f"v_lshlrev_b32 v{L_PF}, 6, v{L_PF}")
        a(f"v_and_b32 v{L_PF+1}, 3, v0")
        a(f"v_lshl_add_u32 v{L_PF}, v{L_PF+1}, 2, v{L_PF}")
    else:
        a(f"v_and_b32 v{L_PF}, 15, v0")
        a(f"v_lshlrev_b32 v{L_PF}, 2, v{L_PF}")
    a(f"v_lshrrev_b32 v{L_CK}, 2, v0")
    a(f"v_and_b32 v{L_CK}, 7, v{L_CK}")
    a(f"v_lshlrev_b32 v{L_CK}, {11 if FSPLIT() else 10}, v{L_CK}")
    a(f"v_and_b32 v{L_CK+1}, 3, v0")
    a(f"v_lshl_add_u32 v{L_CK}, v{L_CK+1}, 2, v{L_CK}")
    a(f"s_lshl_b32 s{S_CK}, s{S_MT}, {8 if FSPLIT() else 7}")
    a(f"s_lshl_b32 s{S_T0}, s{S_J}, {6 if FSPLIT() else 4}")
    a(f"s_add_u32 s{S_CK}, s{S_CK}, s{S_T0}")
    a(f"s_add_u32 s{S_CK}, s{S_CK}, {FLAG_OFF}")
    a("s_waitcnt vmcnt(%d)" % (9 if spread() else 8))
    a("s_barrier")
    stamp(a, 3)
    issue_stage1(a)
    a(f"s_mov_b32 s{S_N}, 0")
    a.label("L_LD1")
    a("s_waitcnt vmcnt(%d)" % (11 if spread() else 9))
    a("s_barrier")
    issue_stage1(a)
    a(f"s_add_u32 s{S_N}, s{S_N}, 1")
    a(f"s_cmp_lt_u32 s{S_N}, 6")
    a("s_cbranch_scc1 L_LD1")
    tail = 2 if spread() else 1
    q = [("st7", 7), ("x7", tail), ("st8", 7), ("x8", tail)]
    def iss(name, cnt, fn):
        fn(); q.append((name, cnt))
    def wait(*names):
        idx = [i for i, (nm, c) in enumerate(q) if nm in names]
        last = max(idx) if idx else -1
        n = sum(c for nm, c in q[last+1:])
        a("s_waitcnt vmcnt(%d)" % n)
    def drained(): q.clear()
    nW = [0]; nH = [2]
    def Wn():
        n = nW[0]; iss(f"W{n}", 5, lambda: issue_w2(a)); nW[0] += 1
    def Hn():
        n = nH[0]; iss(f"h{n}", 2, lambda: issue_h(a)); nH[0] += 1
    sch = (0, 1, 1, 1, 1)
    for o in opt:
        if o.startswith('sch'): sch = tuple(int(c) for c in o[3:8])
    a(f"s_mov_b32 s{S_DSLOT}, {4*WST}")
    a(f"s_lshl_b32 s{S_BBEG}, s{S_CW}, 10")
    a(f"s_add_u32 s{S_BBEG}, s{S_BBEG}, {LB}")
    a(f"s_add_u32 s{S_BEND}, s{S_BBEG}, {NBP*4096}")
    wait("st7")
    a("s_barrier")
    for _ in range(sch[0]): Wn()
    assert nW[0] <= 2
    wait("st8")
    a("s_barrier")
    for _ in range(sch[1]): Wn()
    assert nW[0] <= 3
    a("s_barrier")
    stamp(a, 4)
    for _ in range(sch[2]): Wn()
    assert nW[0] >= 1
    a(f"buffer_load_dword v{L_T}, off, {R(SRD_DBG)}, 0 sc1"); q.append(("pub", 1))
    a(f"s_lshl_b32 s{S_T2}, s{S_GRP}, {6 if FSPLIT() else 5}")
    a(f"s_add_u32 s{S_T2}, s{S_T2}, {FLAG_OFF}")
    wait("W0")
    a("s_barrier")
    stamp(a, 5)
    for _ in range(sch[3]): Wn()
    assert nW[0] >= 2
    wait("W1")
    a("s_barrier")
    for _ in range(sch[4]): Wn()
    assert nW[0] <= 6
    poll_pub(a, "L", L_T, preloaded=True); drained()
    poll_ones(a, "F", L_T, L_PF, S_T2)
    stamp(a, 6)
    Hn(); Hn()
    if nW[0] <= 2: Wn()
    wait("h2", "W2")
    a("s_barrier")
    stamp(a, 7)
    for s in range(3, 9):
        k = 0
        while nH[0] <= 8 and (nH[0] <= 4 or nH[0] <= s + 2) and nH[0] <= s + 1:
            Hn()
        while nW[0] <= 8 and (nW[0] <= 5 or nW[0] <= s + 3) and (nW[0] <= s or k < 1):
            Wn(); k += 1
        if s == 6:
            iss("chk", 1, lambda: a(f"buffer_load_dword v{L_CK+1}, v{L_CK}, {R(SRD_WS)}, s{S_CK} offen sc1"))
        if s == 8:
            a("s_waitcnt vmcnt(0)")
            a(f"v_cmp_ne_u32 vcc, 1, v{L_CK+1}")
            a("s_cbranch_vccz L_POXK")
            poll_ones(a, "K", L_CK+1, L_CK, S_CK)
            drained()
        assert nW[0] > s and nH[0] > s, (s, nW, nH)
        wait(f"h{s}", f"W{s}")
        a("s_barrier")
    stamp(a, 8)
    reducer(a, "L", single=False)
    a("s_barrier")
    reducer_run(a, "L", single=False)
    stamp(a, 9)
    dump_stamps(a, 1, 10, "LD", 4)
    a("s_endpgm")

C_A32, C_A8 = 2, 124
C_B32, C_B8 = 6, 10
C_T = 12
SETS = (16, 48)
ACC = 80
C_E = 116

def reads_step(st, n, s0):
    sl = n % NSL
    A32 = C_A32 + (sl >> 1); A8 = C_A8 + (sl >> 1)
    base = (sl & 1)*WST + s0*9216
    bo = (n % NBP)*4096
    def a32(c, kh):
        d = st + (kh*2 + c)*4
        off = base + kh*4608 + 64*c
        return [f"ds_read_b64_tr_b16 v[{d}:{d+1}], v{A32} offset:{off}",
                f"ds_read_b64_tr_b16 v[{d+2}:{d+3}], v{A32} offset:{off+288}"]
    def b32(kh):
        d = st + 20 + 4*kh
        return [f"ds_read_b128 v[{d}:{d+3}], v{C_B32 + 2*s0 + kh} offset:{bo}"]
    ins = b32(0) + a32(0, 0) + a32(1, 0) + b32(1) + a32(0, 1) + a32(1, 1)
    ins.append(f"ds_read_b128 v[{st+28}:{st+31}], v{C_B8 + s0} offset:{bo}")
    ins.append(f"ds_read_b64_tr_b16 v[{st+16}:{st+17}], v{A8} offset:{base}")
    ins.append(f"ds_read_b64_tr_b16 v[{st+18}:{st+19}], v{A8} offset:{base+288}")
    return ins

def mfmas(st):
    out = []
    for kh in range(2):
        for c in range(2):
            acc = ACC + 16*c
            A = st + (kh*2 + c)*4; B = st + 20 + 4*kh
            out.append(f"v_mfma_f32_32x32x16_bf16 v[{acc}:{acc+15}], v[{A}:{A+3}], v[{B}:{B+3}], v[{acc}:{acc+15}]")
    out.append(f"v_mfma_f32_16x16x32_bf16 v[{ACC+32}:{ACC+35}], v[{st+16}:{st+19}], v[{st+28}:{st+31}], v[{ACC+32}:{ACC+35}]")
    return out

NEED = [3, 5, 8, 10, 13]
def block(a, r, m):
    k = 0
    for u in range(5):
        a(f"s_waitcnt lgkmcnt({13 - NEED[u] + k})")
        a(m[u])
        if r:
            for _ in range(3 if u < 4 else 1):
                a(r[k]); k += 1

def body(a):
    for n in range(9):
        block(a, reads_step(SETS[1], n, 1), mfmas(SETS[0]))
        if n == 1:
            a(f"s_cmp_eq_u32 s{S_PH}, 0")
            a("s_cbranch_scc1 L_NOFLAG")
            poll_pub(a, "C", C_T, preloaded=True)
            a("s_mov_b64 exec, 1")
            a(f"buffer_store_dword v{C_T+3}, off, {R(SRD_WS)}, s{S_FLG} sc1")
            a("s_mov_b64 exec, -1")
            a.label("L_NOFLAG")
        if n < 8:
            a("s_barrier")
            if 'diag' in opt:
                a("s_memtime s[96:97]\ns_waitcnt lgkmcnt(0)")
                a(f"s_mov_b32 s{70+n}, s96")
            block(a, reads_step(SETS[0], n+1, 0), mfmas(SETS[1]))
        else:
            block(a, None, mfmas(SETS[1]))
            if 'diag' in opt:
                a("s_memtime s[96:97]\ns_waitcnt lgkmcnt(0)")
                a(f"s_mov_b32 s78, s96")

def zero_acc(a):
    for i in range(0, 36, 2): a(f"v_pk_mov_b32 v[{ACC+i}:{ACC+i+1}], 0, 0")

def silu4(a, x, e):
    for r in (0, 2): a(f"v_pk_mul_f32 v[{e+r}:{e+r+1}], v[{x+r}:{x+r+1}], s[{S_K}:{S_K+1}]")
    for r in range(4): a(f"v_exp_f32 v{e+r}, v{e+r}")
    for r in (0, 2): a(f"v_pk_add_f32 v[{e+r}:{e+r+1}], v[{e+r}:{e+r+1}], 1.0 op_sel_hi:[1,0]")
    for r in range(4): a(f"v_rcp_f32 v{e+r}, v{e+r}")
    for r in (0, 2): a(f"v_pk_mul_f32 v[{x+r}:{x+r+1}], v[{x+r}:{x+r+1}], v[{e+r}:{e+r+1}]")

def compute(a):
    DIAGC[0] = True
    t0, t1, t2, t3 = C_T, C_T+1, C_T+2, C_T+3
    W = R(SRD_WS)
    a(f"s_and_b32 s{S_T0}, s{S_CW}, 1")
    a(f"s_lshr_b32 s{S_T1}, s{S_CW}, 1")
    a(f"v_bfe_u32 v{t0}, v0, 2, 2")
    a(f"v_mul_u32_u24 v{t0}, 576, v{t0}")
    a(f"v_and_b32 v{t1}, 3, v0")
    a(f"v_lshl_add_u32 v{t0}, v{t1}, 3, v{t0}")
    a(f"v_lshrrev_b32 v{t1}, 4, v0")
    a(f"v_mul_u32_u24 v{t2}, 2304, v{t1}")
    a(f"v_add_u32 v{t2}, v{t2}, v{t0}")
    a(f"v_add_u32 v{C_A8}, 256, v{t2}")
    a(f"v_add_u32 v{C_A8+1}, {2*WST}, v{C_A8}")
    a(f"v_add_u32 v{C_A8+2}, {4*WST}, v{C_A8}")
    a(f"v_lshrrev_b32 v{t2}, 5, v0")
    a(f"v_mul_u32_u24 v{t2}, 2304, v{t2}")
    a(f"v_add_u32 v{t0}, v{t0}, v{t2}")
    a(f"v_and_b32 v{t1}, 1, v{t1}")
    a(f"v_lshl_add_u32 v{t0}, v{t1}, 5, v{t0}")
    a(f"s_lshl_b32 s{S_T2}, s{S_T0}, 7")
    a(f"v_add_u32 v{C_A32}, s{S_T2}, v{t0}")
    a(f"v_add_u32 v{C_A32+1}, {2*WST}, v{C_A32}")
    a(f"v_add_u32 v{C_A32+2}, {4*WST}, v{C_A32}")
    a(f"s_mul_i32 s{S_T1}, s{S_T1}, {MHB}")
    a(f"s_add_u32 s{S_T1}, s{S_T1}, {LB}")
    a(f"v_and_b32 v{t0}, 15, v0")
    a(f"v_lshrrev_b32 v{t1}, 1, v{t0}")
    a(f"v_lshlrev_b32 v{t0}, 7, v{t0}")
    a(f"v_add_u32 v{t0}, s{S_T1}, v{t0}")
    a(f"v_bfe_u32 v{t2}, v0, 4, 1")
    a(f"v_lshl_add_u32 v{t2}, v{t2}, 11, v{t0}")
    a(f"v_lshrrev_b32 v{t3}, 5, v0")
    a(f"v_xor_b32 v{t3}, v{t3}, v{t1}")
    a(f"v_lshlrev_b32 v{t3}, 4, v{t3}")
    for k4 in range(4):
        if k4: a(f"v_xor_b32 v{C_E}, {32*k4}, v{t3}")
        a(f"v_add_u32 v{C_B32+k4}, v{t2}, v{C_E if k4 else t3}")
    a(f"s_lshl_b32 s{S_T2}, s{S_T0}, 11")
    a(f"v_add_u32 v{t0}, s{S_T2}, v{t0}")
    a(f"v_lshrrev_b32 v{t3}, 4, v0")
    a(f"v_xor_b32 v{t3}, v{t3}, v{t1}")
    a(f"v_lshlrev_b32 v{t3}, 4, v{t3}")
    a(f"v_add_u32 v{C_B8}, v{t0}, v{t3}")
    a(f"v_xor_b32 v{t3}, 64, v{t3}")
    a(f"v_add_u32 v{C_B8+1}, v{t0}, v{t3}")
    zero_acc(a)
    group_bases(a)
    inbox_block(a, S_PA)
    a(f"s_mul_i32 s{S_T0}, s{S_XG}, 18432")
    a(f"s_add_u32 s{S_INB}, s{S_PA}, s{S_T0}")
    a(f"s_mul_i32 s{S_T0}, s{S_XG}, 2304")
    a(f"s_add_u32 s{S_PA}, s{S_PA}, s{S_T0}")
    a(f"s_mul_i32 s{S_T0}, s{S_CW}, {2*18432}")
    a(f"s_add_u32 s{S_PS}, s{S_PA}, s{S_T0}")
    a(f"s_add_u32 s{S_PS}, s{S_PS}, 2048")
    a(f"s_lshr_b32 s{S_T0}, s{S_CW}, 1")
    a(f"s_mul_i32 s{S_T0}, s{S_T0}, {4*18432}")
    a(f"s_add_u32 s{S_PA}, s{S_PA}, s{S_T0}")
    a(f"s_and_b32 s{S_T0}, s{S_CW}, 1")
    a(f"s_lshl_b32 s{S_T0}, s{S_T0}, 10")
    a(f"s_add_u32 s{S_PA}, s{S_PA}, s{S_T0}")
    a(f"s_lshr_b32 s{S_T0}, s{S_CW}, 1")
    a(f"s_mul_i32 s{S_T0}, s{S_T0}, {MHS}")
    a(f"s_add_u32 s{S_T0}, s{S_T0}, s{S_HB}")
    a(f"s_mul_i32 s{S_T1}, s{S_J}, {9*1024}")
    a(f"s_add_u32 s{S_T0}, s{S_T0}, s{S_T1}")
    a(f"s_and_b32 s{S_T1}, s{S_CW}, 1")
    a(f"s_lshl_b32 s{S_T2}, s{S_T1}, 12")
    a(f"s_add_u32 s{S_HST}, s{S_T0}, s{S_T2}")
    a(f"s_lshl_b32 s{S_T2}, s{S_T1}, 8")
    a(f"s_add_u32 s{S_HSP}, s{S_T0}, s{S_T2}")
    a(f"s_add_u32 s{S_HSP}, s{S_HSP}, {8*1024}")
    a(f"s_lshl_b32 s{S_FLG}, s{S_GRP}, {6 if FSPLIT() else 5}")
    a(f"s_lshl_b32 s{S_T0}, s{S_J}, {4 if FSPLIT() else 2}")
    a(f"s_add_u32 s{S_T0}, s{S_T0}, s{S_CW}")
    a(f"s_lshl_b32 s{S_T0}, s{S_T0}, 2")
    a(f"s_add_u32 s{S_FLG}, s{S_FLG}, s{S_T0}")
    a(f"s_add_u32 s{S_FLG}, s{S_FLG}, {FLAG_OFF}")
    a(f"s_mov_b32 s{S_K}, 0xbfb8aa3b")
    a(f"s_mov_b32 s{S_K+1}, 0xbfb8aa3b")
    a(f"s_mov_b32 s{S_PH}, 0")
    a("s_waitcnt lgkmcnt(0)")
    srd(a, SRD_WS, S_WS, WS_BYTES)
    srd(a, SRD_DBG, S_DBG, 256)
    a(f"v_lshlrev_b32 v{C_E}, 4, v0")
    if not spread():
        a(f"s_mul_i32 s{S_T1}, s{S_CW}, 4608")
        a(f"s_add_u32 s{S_T0}, s{S_INB}, s{S_T1}")
        for i in range(4): a(f"v_mov_b32 v{C_E+4+i}, -1")
        a(f"v_lshlrev_b32 v{C_E}, 4, v0")
        a(f"v_min_u32 v{C_E+1}, 31, v0")
        a(f"v_lshlrev_b32 v{C_E+1}, 4, v{C_E+1}")
        for i in range(4):
            a(f"buffer_store_dwordx4 v[{C_E+4}:{C_E+7}], v{C_E}, {W}, s{S_T0} offen offset:{1024*i} sc1")
        a(f"s_add_u32 s{S_T0}, s{S_T0}, 4096")
        a(f"buffer_store_dwordx4 v[{C_E+4}:{C_E+7}], v{C_E+1}, {W}, s{S_T0} offen sc1")
    a(f"s_cmp_eq_u32 s2, 0")
    a("s_cbranch_scc0 L_NOCLR")
    a(f"s_lshl_b32 s{S_T0}, s{S_CW}, {12 if FSPLIT() else 11}")
    a(f"s_add_u32 s{S_T0}, s{S_T0}, {FLAG_OFF}")
    a(f"v_pk_mov_b32 v[{SETS[1]}:{SETS[1]+1}], 0, 0\nv_pk_mov_b32 v[{SETS[1]+2}:{SETS[1]+3}], 0, 0")
    for i in range(4 if FSPLIT() else 2):
        a(f"buffer_store_dwordx4 v[{SETS[1]}:{SETS[1]+3}], v{C_E}, {W}, s{S_T0} offen offset:{1024*i} sc1")
    a("s_waitcnt vmcnt(0)")
    a.label("L_NOCLR")
    a("s_barrier")
    if 'clk1' in opt: a("s_memtime s[100:101]")
    stampw(a, 1)
    for ins in reads_step(SETS[0], 0, 0): a(ins)
    a(f"s_lshl_b32 s{S_T1}, s2, 2")
    a(f"s_or_b32 s{S_T1}, s{S_T1}, s{S_CW}")
    a(f"s_cmp_eq_u32 s{S_T1}, 0")
    a("s_cbranch_scc0 L_BODY")
    a(f"v_mov_b32 v{t0}, 1")
    a("s_mov_b64 exec, 1")
    a(f"buffer_store_dword v{t0}, off, {R(SRD_DBG)}, 0 sc1")
    a("s_mov_b64 exec, -1")
    a.label("L_BODY")
    body(a)
    a(f"s_cmp_eq_u32 s{S_PH}, 0")
    a("s_cbranch_scc0 L_EPI2")
    a("s_barrier")
    if 'diag' in opt:
        for n in range(9): a(f"s_mov_b32 s{60+n}, s{70+n}")
    stamp(a, 2)
    if 'clk1' in opt:
        a("s_memtime s[96:97]\ns_waitcnt lgkmcnt(0)\ns_sub_u32 s78, s96, s100\ns_mov_b32 s79, 0")
    a("s_waitcnt vmcnt(0)")
    a(f"buffer_load_dword v{t0}, off, {R(SRD_DBG)}, 0 sc1")
    a(f"v_lshlrev_b32 v{t1}, 4, v0")
    a(f"s_lshr_b32 s{S_T0}, s{S_CW}, 1")
    a(f"s_mul_i32 s{S_T0}, s{S_T0}, {MHB}")
    a(f"s_add_u32 s{S_T0}, s{S_T0}, {LB}")
    a(f"s_and_b32 s{S_T1}, s{S_CW}, 1")
    a(f"s_lshl_b32 s{S_T2}, s{S_T1}, 12")
    a(f"s_add_u32 s{S_T2}, s{S_T2}, s{S_T0}")
    a(f"v_add_u32 v{t2}, s{S_T2}, v{t1}")
    P = SETS[0]
    x = ACC + 32
    silu4(a, x, C_E)
    a(f"v_cvt_pk_bf16_f32 v{P+16}, v{x}, v{x+1}")
    a(f"v_cvt_pk_bf16_f32 v{P+17}, v{x+2}, v{x+3}")
    a(f"v_mov_b32 v{P+18}, v{P+16}")
    a(f"v_mov_b32 v{P+19}, v{P+17}")
    a(f"v_bfe_u32 v{t3}, v0, 4, 1")
    a(f"v_lshlrev_b32 v{t3}, 9, v{t3}")
    a(f"v_and_b32 v{C_E+4}, 15, v0")
    a(f"v_lshl_add_u32 v{t3}, v{C_E+4}, 4, v{t3}")
    a(f"v_permlane32_swap_b32 v{P+16}, v{P+18}")
    a(f"v_permlane32_swap_b32 v{P+17}, v{P+19}")
    a("s_mov_b32 exec_hi, 0")
    a(f"buffer_store_dwordx4 v[{P+16}:{P+19}], v{t3}, {W}, s{S_HSP} offen sc1")
    a("s_mov_b32 exec_hi, -1")
    for c in range(2):
        for hb in range(2):
            x = ACC + 16*c + 8*hb
            d = P + 4*(2*c + hb)
            silu4(a, x, C_E); silu4(a, x+4, C_E+4)
            for i in range(4): a(f"v_cvt_pk_bf16_f32 v{d+i}, v{x+2*i}, v{x+2*i+1}")
            a(f"buffer_store_dwordx4 v[{d}:{d+3}], v{t1}, {W}, s{S_HST} offen offset:{1024*(2*c+hb)} sc1")
            a(f"ds_write_b128 v{t2}, v[{d}:{d+3}] offset:{1024*(2*c+hb)}")
    stamp(a, 8)
    for k4 in range(4):
        if k4 == 0: a(f"v_add_u32 v{C_B32}, s{S_T0}, v{t1}")
        else:       a(f"v_add_u32 v{C_B32+k4}, {1024*k4}, v{C_B32}")
    a(f"v_lshrrev_b32 v{t2}, 4, v0")
    a(f"v_lshlrev_b32 v{t2}, 9, v{t2}")
    a(f"v_and_b32 v{t3}, 15, v0")
    a(f"v_lshl_add_u32 v{t2}, v{t3}, 4, v{t2}")
    a(f"s_lshl_b32 s{S_T1}, s{S_T1}, 8")
    a(f"s_add_u32 s{S_T0}, s{S_T0}, s{S_T1}")
    a(f"v_add_u32 v{C_B8}, s{S_T0}, v{t2}")
    a(f"v_add_u32 v{C_B8+1}, 2048, v{C_B8}")
    for b in (C_A32, C_A8):
        a(f"v_mov_b32 v{t2}, v{b}")
        a(f"v_mov_b32 v{b}, v{b+2}")
        a(f"v_mov_b32 v{b+2}, v{b+1}")
        a(f"v_mov_b32 v{b+1}, v{t2}")
    zero_acc(a)
    a(f"v_mov_b32 v{t3}, 1")
    a(f"s_mov_b32 s{S_PH}, 1")
    a("s_waitcnt lgkmcnt(0)")
    a("s_barrier")
    stampw(a, 3)
    for ins in reads_step(SETS[0], 0, 0): a(ins)
    a("s_branch L_BODY")
    a.label("L_EPI2")
    stamp(a, 5)
    a(f"v_bfe_u32 v{t0}, v0, 3, 2")
    a(f"v_mul_u32_u24 v{t0}, 18432, v{t0}")
    a(f"v_lshrrev_b32 v{t1}, 5, v0")
    a(f"v_lshl_add_u32 v{t0}, v{t1}, 7, v{t0}")
    a(f"v_and_b32 v{t1}, 7, v0")
    a(f"v_lshl_add_u32 v{t0}, v{t1}, 4, v{t0}")
    a(f"v_lshrrev_b32 v{t2}, 4, v0")
    a(f"v_lshl_add_u32 v{t2}, v{t2}, 3, v{t1}")
    a(f"v_bfe_u32 v{t1}, v0, 3, 1")
    a(f"v_mul_u32_u24 v{t1}, 18432, v{t1}")
    a(f"v_lshl_add_u32 v{t1}, v{t2}, 3, v{t1}")
    a(f"s_mov_b32 s{S_K}, 0xfffffffe")
    P = SETS[0]
    for c in range(2):
        for hb in range(2):
            x = ACC + 16*c + 8*hb
            d = P + 4*(2*c + hb)
            for i in range(4): a(f"v_cvt_pk_bf16_f32 v{d+i}, v{x+2*i}, v{x+2*i+1}")
            for i in range(4): a(f"v_min_u32 v{d+i}, s{S_K}, v{d+i}")
            a(f"buffer_store_dwordx4 v[{d}:{d+3}], v{t0}, {W}, s{S_PA} offen offset:{256*(2*c+hb)} sc1")
    x = ACC + 32
    a(f"v_cvt_pk_bf16_f32 v{P+16}, v{x}, v{x+1}")
    a(f"v_cvt_pk_bf16_f32 v{P+17}, v{x+2}, v{x+3}")
    for d in range(2): a(f"v_min_u32 v{P+16+d}, s{S_K}, v{P+16+d}")
    a(f"buffer_store_dwordx2 v[{P+16}:{P+17}], v{t1}, {W}, s{S_PS} offen sc1")
    a("s_barrier")
    stamp(a, 6)
    a(f"s_cmp_eq_u32 s{S_CW}, 0")
    a("s_cbranch_scc0 L_CDONE")
    reducer(a, "C", single=True)
    reducer_run(a, "C", single=True)
    a.label("L_CDONE")
    if 'ts' in opt or amp_on(): a("s_waitcnt vmcnt(0)")
    stamp(a, 7)
    amp_spin(a)
    if 'clk' in opt:
        a("s_memtime s[96:97]")
        a("s_waitcnt lgkmcnt(0)")
        a("s_sub_u32 s78, s96, s100")
        a("s_mov_b32 s79, 0")
    dump_stamps(a, 0, 10 if ('clk' in opt or 'clk1' in opt or 'diag' in opt) else 9, "C", 0)

def kernel_main(a):
    name = KNAME
    a(f".globl {name}\n.p2align 8\n.type {name},@function\n{name}:")
    a(f"s_cmp_ge_u32 s2, 256")
    a(f"s_cbranch_scc1 L_END")
    stamp(a, 0)
    if 'clk' in opt: a("s_memtime s[100:101]")
    a("s_load_dwordx8 s[4:11], s[0:1], 0")
    a("s_load_dwordx4 s[12:15], s[0:1], 32")
    a("v_lshrrev_b32 v1, 6, v0")
    a("v_and_b32 v0, 63, v0")
    a(f"v_readfirstlane_b32 s{S_WV}, v1")
    if 'xmap' in opt:
        a(f"s_and_b32 s{S_J}, s2, 3")
        a(f"s_lshr_b32 s{S_XG}, s2, 2")
        a(f"s_and_b32 s{S_XG}, s{S_XG}, 7")
    else:
        a(f"s_and_b32 s{S_XG}, s2, 7")
        a(f"s_lshr_b32 s{S_J}, s2, 3")
        a(f"s_and_b32 s{S_J}, s{S_J}, 3")
    a(f"s_lshr_b32 s{S_MT}, s2, 5")
    a("s_nop 0")
    a(f"s_and_b32 s{S_CW}, s{S_WV}, 3")
    a(f"s_cmp_lt_u32 s{S_WV}, 4")
    a("s_cbranch_scc1 L_COMPUTE")
    loader(a)
    a.label("L_COMPUTE")
    compute(a)
    a.label("L_END")
    a("s_endpgm")
    a.label("L_CODE_END")
    a(kd(name, vgpr=128, sgpr=102))

def check_barriers(lines):
    iL = lines.index("L_LOADER:"); iC = lines.index("L_COMPUTE:")
    iB = lines.index("L_BODY:"); iE2 = lines.index("L_EPI2:")
    cnt = lambda seg: sum(1 for ln in seg if ln.strip() == "s_barrier")
    seg = lines[iL:iC]
    i1 = seg.index("L_LD1:"); i2 = seg.index("s_cbranch_scc1 L_LD1")
    nl = cnt(seg) + 5*cnt(seg[i1:i2])
    iT = [i for i in range(iB, iE2) if lines[i].strip() == "s_cbranch_scc0 L_EPI2"][0]
    nb = cnt(lines[iB:iT])
    nc = cnt(lines[iC:iB]) + 2*nb + cnt(lines[iT:iE2]) + cnt(lines[iE2:])
    assert nl == nc, f"barrier mismatch loader {nl} compute {nc}"
    return nl

def main():
    for o in sys.argv[2:]: opt.add(o)
    a = Asm()
    a(HEADER.rstrip())
    a(f"; @launch grid=(256,1,1) block=(512,1,1) lds={LDS_BYTES}")
    a('.amdgcn_target "amdgcn-amd-amdhsa--gfx950"')
    a(".text")
    kernel_main(a)
    check_barriers(a.lines)
    open(sys.argv[1], "w").write(a.text())

main()
```

```python
import sys
from common import *

X_BYTES = 512*576*2
W_BYTES = 576*4608*2
OUT_BYTES = 512*576*2
WS_BYTES = 268435456
PAGE = 2*1024*1024
H_OFF = 4096
GRP_BYTES = 73728
FLAG_OFF = 4*PAGE + 4096
def FSPLIT(): return 'fsplit' in opt
def FILLM(): return 'fillm' in opt
def FILL8(): return 'fill8' in opt
FLAG2_D = 16384
INBOX_OFF = 5*PAGE + 4096
INBOX_B = 8*8*2304
WST = 18432
NSL = 6
LB = NSL*WST
NBP = 5
MHB = NBP*4096
MHS = 36864
LDS_BYTES = LB + 2*MHB
TS_OFF = 128 << 20
SPIN = 1 << 17
KNAME = "standalone__dense_activation_silu__sampling_kernel"
opt = set()

S_X, S_W1, S_W2, S_OUT, S_DBG, S_WS = 4, 6, 8, 10, 12, 14
SRD_X, SRD_W1, SRD_WS, SRD_W2, SRD_DBG = 16, 20, 24, 40, 44
S_WV, S_XG, S_J, S_MT, S_CW = 28, 29, 30, 31, 32
S_N, S_WOFF, S_DSLOT = 33, 34, 35
S_T0, S_T1, S_T2, S_T3 = 36, 37, 38, 39
S_HB, S_GRP, S_INB = 53, 54, 58
S_TS = 60
S_K = 84
S_P, S_XROW, S_BDST, S_WCOL, S_WLDS = 48, 49, 50, 51, 52
S_W2B, S_KAP, S_HOFF, S_CK, S_KH, S_HDST = 55, 56, 57, 59, 92, 94
S_TST, S_TREAL, S_TOFF, S_TN = 93, 95, 96, 97
S_BBEG, S_BEND = 86, 87
S_PH, S_HST, S_HSP, S_FLG, S_PA, S_PS = 48, 49, 50, 51, 52, 55

def amp_on(): return any(o.startswith('amp') for o in opt)
def amp_spin(a):
    for o in opt:
        if o.startswith('amp'):
            ia, ib = int(o[3]), int(o[4])
            a("s_waitcnt lgkmcnt(0) vmcnt(0)")
            a(f"s_sub_u32 s95, s{S_TS+2*ib}, s{S_TS+2*ia}")
            a("s_mul_i32 s95, s95, 3")
            a("s_memrealtime s[96:97]\ns_waitcnt lgkmcnt(0)\ns_mov_b32 s94, s96")
            a.label("L_AMP")
            a("s_memrealtime s[96:97]\ns_waitcnt lgkmcnt(0)\ns_sub_u32 s96, s96, s94\ns_cmp_lt_u32 s96, s95\ns_cbranch_scc1 L_AMP")
DIAGC = [False]
def stamp(a, i):
    if 'diag' in opt and DIAGC[0]: return
    if 'ts' in opt or amp_on():
        a(f"s_memrealtime s[{S_TS+2*i}:{S_TS+2*i+1}]")
def stampw(a, i):
    if 'diag' in opt and DIAGC[0]: return
    if 'ts' in opt or amp_on():
        a(f"s_memrealtime s[{S_TS+2*i}:{S_TS+2*i+1}]")
        a("s_waitcnt lgkmcnt(0)")

def dump_stamps(a, kidx, n, tag, wave):
    if 'ts' not in opt: return
    a("s_waitcnt lgkmcnt(0) vmcnt(0)")
    a(f"s_cmp_eq_u32 s{S_WV}, {wave}")
    a(f"s_cbranch_scc0 L_NOTS{tag}")
    a(f"s_lshl_b32 s80, s2, 7")
    a(f"s_add_u32 s80, s80, {TS_OFF + kidx*512*128}")
    a(f"s_mov_b32 s88, s14\ns_mov_b32 s89, s15\ns_mov_b32 s90, {WS_BYTES}\ns_mov_b32 s91, 0x20000")
    a("v_mov_b32 v2, 0")
    for i in range(n):
        a(f"v_mov_b32 v4, s{S_TS+2*i}\nv_mov_b32 v5, s{S_TS+2*i+1}")
        a(f"buffer_store_dwordx2 v[4:5], v2, s[88:91], s80 offen offset:{8*i}")
        a("s_nop 1")
    a.label(f"L_NOTS{tag}")

def srd(a, base, ptr, nbytes):
    a(f"s_mov_b32 s{base}, s{ptr}")
    a(f"s_mov_b32 s{base+1}, s{ptr+1}")
    a(f"s_mov_b32 s{base+2}, {nbytes}")
    a(f"s_mov_b32 s{base+3}, 0x20000")
def R(base): return f"s[{base}:{base+3}]"

def wrap(a, reg, inc, mod):
    a(f"s_add_u32 s{reg}, s{reg}, {inc}")
    a(f"s_sub_u32 s{S_T3}, s{reg}, {mod}")
    a(f"s_cmp_ge_u32 s{reg}, {mod}")
    a(f"s_cselect_b32 s{reg}, s{S_T3}, s{reg}")

def group_bases(a):
    a(f"s_lshl_b32 s{S_GRP}, s{S_XG}, 3")
    a(f"s_add_u32 s{S_GRP}, s{S_GRP}, s{S_MT}")
    a(f"s_lshr_b32 s{S_HB}, s{S_GRP}, 4")
    a(f"s_lshl_b32 s{S_HB}, s{S_HB}, 21")
    a(f"s_and_b32 s{S_T0}, s{S_GRP}, 15")
    a(f"s_mul_i32 s{S_T0}, s{S_T0}, {GRP_BYTES}")
    a(f"s_add_u32 s{S_HB}, s{S_HB}, s{S_T0}")
    a(f"s_add_u32 s{S_HB}, s{S_HB}, {H_OFF}")
    a(f"s_lshl_b32 s{S_GRP}, s{S_GRP}, 2")

def inbox_block(a, dst):
    a(f"s_lshl_b32 s{dst}, s{S_MT}, 2")
    a(f"s_add_u32 s{dst}, s{dst}, s{S_J}")
    a(f"s_mul_i32 s{dst}, s{dst}, {INBOX_B}")
    a(f"s_add_u32 s{dst}, s{dst}, {INBOX_OFF}")

def poll_pub(a, tag, vtmp, preloaded=False):
    if preloaded:
        a("s_waitcnt vmcnt(0)")
        a(f"v_cmp_ne_u32 vcc, 1, v{vtmp}")
        a(f"s_cbranch_vccz L_PGX{tag}")
    a(f"s_mov_b32 s{S_T3}, 0")
    a.label(f"L_PG{tag}")
    a(f"s_add_u32 s{S_T3}, s{S_T3}, 1")
    a(f"s_cmp_gt_u32 s{S_T3}, {SPIN}")
    a(f"s_cbranch_scc1 L_PGX{tag}")
    a(f"buffer_load_dword v{vtmp}, off, {R(SRD_DBG)}, 0 sc1")
    a("s_waitcnt vmcnt(0)")
    a(f"v_cmp_ne_u32 vcc, 1, v{vtmp}")
    a(f"s_cbranch_vccnz L_PG{tag}")
    a.label(f"L_PGX{tag}")

def poll_ones(a, tag, vdst, vaddr, soff):
    a(f"s_mov_b32 s{S_T3}, 0")
    a.label(f"L_PO{tag}")
    a(f"s_add_u32 s{S_T3}, s{S_T3}, 1")
    a(f"s_cmp_gt_u32 s{S_T3}, {SPIN}")
    a(f"s_cbranch_scc1 L_POX{tag}")
    a(f"buffer_load_dword v{vdst}, v{vaddr}, {R(SRD_WS)}, s{soff} offen sc1")
    a("s_waitcnt vmcnt(0)")
    a(f"v_cmp_ne_u32 vcc, 1, v{vdst}")
    a(f"s_cbranch_vccnz L_PO{tag}")
    a.label(f"L_POX{tag}")

R_D, R_ACC, R_T, R_A = 80, 96, 100, 104
def reducer(a, tag, single):
    W = R(SRD_WS)
    if single:
        a(f"v_min_u32 v{R_T}, 31, v0")
        a(f"v_lshlrev_b32 v{R_A}, 3, v{R_T}")
        a(f"s_add_u32 s{S_T0}, s{S_INB}, 2048")
        a(f"v_and_b32 v{R_T+1}, 7, v{R_T}")
        a(f"v_mul_u32_u24 v{R_T+1}, 1152, v{R_T+1}")
        a(f"v_lshrrev_b32 v{R_T}, 3, v{R_T}")
        a(f"v_lshl_add_u32 v{R_A+1}, v{R_T}, 3, v{R_T+1}")
        a(f"s_mov_b32 s{S_T2}, 256")
    else:
        a(f"v_lshlrev_b32 v{R_A}, 3, v0")
        a(f"s_lshl_b32 s{S_T0}, s{S_CW}, 9")
        a(f"s_add_u32 s{S_T0}, s{S_T0}, s{S_INB}")
        a(f"v_bfe_u32 v{R_T}, v0, 1, 3")
        a(f"v_mul_u32_u24 v{R_T}, 1152, v{R_T}")
        a(f"v_lshrrev_b32 v{R_T+1}, 5, v0")
        a(f"v_lshl_add_u32 v{R_T}, v{R_T+1}, 5, v{R_T}")
        a(f"v_and_b32 v{R_T+1}, 1, v0")
        a(f"v_lshl_add_u32 v{R_T}, v{R_T+1}, 4, v{R_T}")
        a(f"v_bfe_u32 v{R_T+1}, v0, 4, 1")
        a(f"v_lshl_add_u32 v{R_A+1}, v{R_T+1}, 3, v{R_T}")
        a(f"s_lshl_b32 s{S_T2}, s{S_CW}, 6")
    a(f"s_lshl_b32 s{S_T1}, s{S_MT}, 3")
    a(f"s_add_u32 s{S_T1}, s{S_T1}, s{S_XG}")
    a(f"s_mul_i32 s{S_T1}, s{S_T1}, {8*1152}")
    a(f"s_add_u32 s{S_T2}, s{S_T2}, s{S_T1}")
    a(f"s_mul_i32 s{S_T1}, s{S_J}, 288")
    a(f"s_add_u32 s{S_T2}, s{S_T2}, s{S_T1}")
    srd(a, SRD_X, S_OUT, OUT_BYTES)
    return
def reducer_run(a, tag, single):
    W = R(SRD_WS)
    a(f"s_mov_b32 s{S_T3}, 0")
    a.label(f"L_RP{tag}")
    a(f"s_mov_b32 s{S_T1}, s{S_T0}")
    for xg in range(8):
        a(f"buffer_load_dwordx2 v[{R_D+2*xg}:{R_D+2*xg+1}], v{R_A}, {W}, s{S_T1} offen sc1")
        if xg < 7: a(f"s_add_u32 s{S_T1}, s{S_T1}, 2304")
    a(f"s_add_u32 s{S_T3}, s{S_T3}, 1")
    a(f"s_cmp_gt_u32 s{S_T3}, {SPIN}")
    a(f"s_cbranch_scc1 L_RPX{tag}")
    a("s_waitcnt vmcnt(0)")
    a(f"v_max3_u32 v{R_T}, v{R_D}, v{R_D+1}, v{R_D+2}")
    for i in range(3, 15, 2):
        a(f"v_max3_u32 v{R_T}, v{R_T}, v{R_D+i}, v{R_D+i+1}")
    a(f"v_max_u32 v{R_T}, v{R_T}, v{R_D+15}")
    a(f"v_cmp_eq_u32 vcc, -1, v{R_T}")
    a(f"s_cbranch_vccnz L_RP{tag}")
    a.label(f"L_RPX{tag}")
    a("s_waitcnt vmcnt(0)")
    for xg in range(8):
        for d in range(2):
            src = R_D + 2*xg + d
            dst = R_ACC if xg == 0 else R_T
            a(f"v_lshlrev_b32 v{dst+2*d}, 16, v{src}")
            a(f"v_and_b32 v{dst+2*d+1}, 0xffff0000, v{src}")
        if xg:
            for d in range(4): a(f"v_add_f32 v{R_ACC+d}, v{R_ACC+d}, v{R_T+d}")
    a(f"v_cvt_pk_bf16_f32 v{R_D}, v{R_ACC}, v{R_ACC+1}")
    a(f"v_cvt_pk_bf16_f32 v{R_D+1}, v{R_ACC+2}, v{R_ACC+3}")
    if single: a("s_mov_b32 exec_hi, 0")
    osc = " sc1" if 'osc1' in opt else (" nt" if 'ont' in opt else "")
    a(f"buffer_store_dwordx2 v[{R_D}:{R_D+1}], v{R_A+1}, {R(SRD_X)}, s{S_T2} offen{osc}")
    if single: a("s_mov_b32 exec_hi, -1")

L_W1, L_W2, L_X, L_H, L_T = 1, 6, 11, 13, 14
L_RHO, L_C16 = 20, 25
L_TV, L_PF, L_CK = 30, 32, 34

def issue_x(a):
    a(f"s_lshl_b32 s{S_T0}, s{S_P}, 7")
    a(f"s_mov_b32 m0, s{S_BDST}")
    a(f"s_add_u32 s{S_T0}, s{S_T0}, s{S_XROW}")
    a(f"buffer_load_dwordx4 v{L_X}, {R(SRD_X)}, s{S_T0} offen lds")
    a(f"s_add_u32 m0, m0, 1024")
    a(f"s_add_u32 s{S_BDST}, s{S_BDST}, 4096")
    a(f"buffer_load_dwordx4 v{L_X+1}, {R(SRD_X)}, s{S_T0} offen lds")
    a(f"s_cmp_eq_u32 s{S_BDST}, s{S_BEND}")
    a(f"s_cselect_b32 s{S_BDST}, s{S_BBEG}, s{S_BDST}")

def issue_w_one(a, i, vbase, srdreg):
    if i == 0: a(f"s_add_u32 m0, s{S_DSLOT}, s{S_WLDS}")
    else:      a(f"s_add_u32 m0, m0, 1024")
    a("s_mov_b32 exec_hi, 0" if i == 4 else "s_nop 0")
    a(f"buffer_load_dwordx4 v{vbase+i}, {R(srdreg)}, s{S_WOFF} offen lds")
    if i == 4: a("s_mov_b32 exec_hi, -1")
def slot_next(a):
    a(f"s_add_u32 s{S_DSLOT}, s{S_DSLOT}, {WST}")
    a(f"s_cmp_eq_u32 s{S_DSLOT}, {NSL*WST}")
    a(f"s_cselect_b32 s{S_DSLOT}, 0, s{S_DSLOT}")
def w1_off(a):
    a(f"s_mul_i32 s{S_WOFF}, s{S_P}, {64*9216}")
    a(f"s_add_u32 s{S_WOFF}, s{S_WOFF}, s{S_WCOL}")
def issue_touch(a):
    a(f"s_cmp_eq_u32 s{S_TN}, s{S_TST}")
    a(f"s_cselect_b32 s{S_TOFF}, s{S_TREAL}, 0x70000000")
    a(f"s_add_u32 s{S_TN}, s{S_TN}, 1")
    a(f"buffer_load_dword v{L_TV+1}, v{L_TV}, {R(SRD_W2)}, s{S_TOFF} offen")
L_FS = 36
S_FU, S_FB = 98, 99
def spread(): return 'spread' in opt
def issue_fill(a):
    a(f"s_cmp_lt_u32 s{S_FU}, {18*1024}")
    a(f"s_cselect_b32 s{S_T0}, s{S_FU}, 0x60000000")
    a(f"s_add_u32 s{S_T0}, s{S_T0}, s{S_FB}")
    a(f"s_add_u32 s{S_FU}, s{S_FU}, 4096")
    a(f"buffer_store_dwordx4 v[{L_FS}:{L_FS+3}], v{L_H}, {R(SRD_WS)}, s{S_T0} offen sc1")
def issue_stage1(a):
    issue_x(a)
    w1_off(a)
    for i in range(5): issue_w_one(a, i, L_W1, SRD_W1)
    slot_next(a)
    wrap(a, S_P, 1, 9)
    issue_touch(a)
    if spread(): issue_fill(a)
def issue_w2(a):
    a(f"s_mul_i32 s{S_WOFF}, s{S_KAP}, {16*1152}")
    a(f"s_add_u32 s{S_WOFF}, s{S_WOFF}, s{S_W2B}")
    for i in range(5): issue_w_one(a, i, L_W2, SRD_W2)
    slot_next(a)
    wrap(a, S_KAP, 4, 36)
def issue_h(a):
    a(f"s_lshl_b32 s{S_HOFF}, s{S_KH}, 10")
    a(f"s_mov_b32 m0, s{S_HDST}")
    a(f"s_add_u32 s{S_HOFF}, s{S_HOFF}, s{S_HB}")
    a(f"buffer_load_dwordx4 v{L_H}, {R(SRD_WS)}, s{S_HOFF} offen sc1 lds")
    a(f"s_add_u32 m0, m0, {MHB}")
    a(f"s_add_u32 s{S_HOFF}, s{S_HOFF}, {MHS}")
    a(f"buffer_load_dwordx4 v{L_H}, {R(SRD_WS)}, s{S_HOFF} offen sc1 lds")
    a(f"s_add_u32 s{S_HDST}, s{S_HDST}, 4096")
    a(f"s_cmp_eq_u32 s{S_HDST}, s{S_BEND}")
    a(f"s_cselect_b32 s{S_HDST}, s{S_BBEG}, s{S_HDST}")
    wrap(a, S_KH, 4, 36)

def w_voff(a, i):
    t0, t1 = L_T, L_T+1
    a(f"v_add_u32 v{t0}, {64*i}, v0")
    a(f"v_mul_u32_u24 v{t1}, 3641, v{t0}")
    a(f"v_lshrrev_b32 v{L_RHO+i}, 16, v{t1}")
    a(f"v_lshlrev_b32 v{t0}, 4, v{t0}")
    a(f"v_mad_i32_i24 v{L_C16+i}, v{L_RHO+i}, s{S_T1}, v{t0}")
    a(f"v_and_b32 v{t1}, 0xfc, v{L_RHO+i}")
    a(f"v_add_u32 v{t1}, v{t1}, v{L_RHO+i}")
    a(f"v_mad_u32_u24 v{L_W1+i}, v{t1}, s{S_T2}, v{L_C16+i}")
def w2_voffs(a):
    t0, t1 = L_T, L_T+1
    a(f"s_movk_i32 s{S_T2}, 1152")
    for i in range(5):
        a(f"v_and_b32 v{t0}, 1, v{L_RHO+i}")
        a(f"v_lshrrev_b32 v{t1}, 3, v{L_RHO+i}")
        a(f"v_lshlrev_b32 v{t1}, 2, v{t1}")
        a(f"v_lshl_add_u32 v{t1}, v{t0}, 3, v{t1}")
        a(f"v_bfe_u32 v{t0}, v{L_RHO+i}, 1, 2")
        a(f"v_add_u32 v{t1}, v{t1}, v{t0}")
        a(f"v_mad_u32_u24 v{L_W2+i}, v{t1}, s{S_T2}, v{L_C16+i}")

def loader_fill(a):
    W = R(SRD_WS)
    a(f"s_mul_i32 s{S_T1}, s{S_CW}, 4608")
    a(f"s_add_u32 s{S_T0}, s{S_INB}, s{S_T1}")
    for i in range(4):
        a(f"buffer_store_dwordx4 v[{L_FS}:{L_FS+3}], v{L_H}, {W}, s{S_T0} offen offset:{1024*i} sc1")
    a(f"s_add_u32 s{S_T0}, s{S_T0}, 4096")
    a(f"buffer_store_dwordx4 v[{L_FS}:{L_FS+3}], v{L_FS+4}, {W}, s{S_T0} offen sc1")

def loader(a):
    a.label("L_LOADER")
    if 'lprio' in opt: a("s_setprio 3")
    t0, t1, t2 = L_T, L_T+1, L_T+2
    a(f"v_lshrrev_b32 v{t0}, 3, v0")
    a(f"v_lshrrev_b32 v{t1}, 4, v0")
    a(f"v_and_b32 v{t2}, 7, v0")
    a(f"v_xor_b32 v{t1}, v{t1}, v{t2}")
    a(f"v_lshlrev_b32 v{t1}, 4, v{t1}")
    a(f"v_mul_u32_u24 v{t0}, 1152, v{t0}")
    a(f"v_add_u32 v{L_X}, v{t0}, v{t1}")
    a(f"v_xor_b32 v{t1}, 64, v{t1}")
    a(f"v_add_u32 v{t0}, {8*1152}, v{t0}")
    a(f"v_add_u32 v{L_X+1}, v{t0}, v{t1}")
    a(f"s_lshl_b32 s{S_T0}, s{S_MT}, 2")
    a(f"s_add_u32 s{S_T0}, s{S_T0}, s{S_CW}")
    a(f"s_mul_i32 s{S_XROW}, s{S_T0}, {16*1152}")
    a(f"s_lshr_b32 s{S_T0}, s{S_CW}, 1")
    a(f"s_mul_i32 s{S_BDST}, s{S_T0}, {MHB}")
    a(f"s_and_b32 s{S_T0}, s{S_CW}, 1")
    a(f"s_lshl_b32 s{S_T0}, s{S_T0}, 11")
    a(f"s_add_u32 s{S_BDST}, s{S_BDST}, s{S_T0}")
    a(f"s_add_u32 s{S_BDST}, s{S_BDST}, {LB}")
    a(f"s_mov_b32 s{S_BBEG}, s{S_BDST}")
    a(f"s_add_u32 s{S_BEND}, s{S_BDST}, {NBP*4096}")
    if 'norot' in opt: a(f"s_mov_b32 s{S_P}, 0")
    else:
        a(f"s_lshl_b32 s{S_P}, s{S_J}, 1")
        wrap_reg = S_P
        a(f"s_add_u32 s{S_P}, s{S_P}, s{S_MT}")
        a(f"s_sub_u32 s{S_T0}, s{S_P}, 9")
        a(f"s_cmp_ge_u32 s{S_P}, 9")
        a(f"s_cselect_b32 s{S_P}, s{S_T0}, s{S_P}")
    a(f"s_mul_i32 s{S_WCOL}, s{S_XG}, 1152")
    a(f"s_mul_i32 s{S_T0}, s{S_J}, 288")
    a(f"s_add_u32 s{S_WCOL}, s{S_WCOL}, s{S_T0}")
    a(f"s_lshr_b32 s{S_T0}, s{S_CW}, 1")
    a(f"s_lshl_b32 s{S_T0}, s{S_T0}, 3")
    a(f"s_and_b32 s{S_T1}, s{S_CW}, 1")
    a(f"s_add_u32 s{S_T0}, s{S_T0}, s{S_T1}")
    a(f"s_mul_i32 s{S_T0}, s{S_T0}, {4*9216}")
    a(f"s_add_u32 s{S_WCOL}, s{S_WCOL}, s{S_T0}")
    a(f"s_mul_i32 s{S_WLDS}, s{S_CW}, 4608")
    a(f"s_mov_b32 s{S_DSLOT}, 0")
    a(f"s_movk_i32 s{S_T1}, -288")
    a(f"s_movk_i32 s{S_T2}, 9216")
    w_voff(a, 0)
    a("s_waitcnt lgkmcnt(0)")
    srd(a, SRD_X, S_X, X_BYTES)
    srd(a, SRD_W1, S_W1, W_BYTES)
    stamp(a, 1)
    issue_x(a)
    w1_off(a)
    issue_w_one(a, 0, L_W1, SRD_W1)
    for i in range(1, 5):
        w_voff(a, i)
        issue_w_one(a, i, L_W1, SRD_W1)
    slot_next(a)
    wrap(a, S_P, 1, 9)
    srd(a, SRD_W2, S_W2, W_BYTES)
    a(f"s_lshl_b32 s{S_T0}, s{S_MT}, 2")
    a(f"s_add_u32 s{S_T0}, s{S_T0}, s{S_J}")
    a(f"s_mul_i32 s{S_T0}, s{S_T0}, 162")
    a(f"s_mul_i32 s{S_T1}, s{S_CW}, 41")
    a(f"s_add_u32 s{S_T0}, s{S_T0}, s{S_T1}")
    a(f"s_lshl_b32 s{S_T0}, s{S_T0}, 7")
    a(f"s_mul_i32 s{S_W2B}, s{S_XG}, {576*1152}")
    a(f"s_add_u32 s{S_TREAL}, s{S_T0}, s{S_W2B}")
    a(f"v_min_u32 v{L_TV}, 40, v0")
    a(f"v_lshlrev_b32 v{L_TV}, 7, v{L_TV}")
    a(f"s_mov_b32 s{S_TN}, 1")
    a(f"s_add_u32 s{S_TST}, s{S_MT}, 1")
    if spread():
        srd(a, SRD_WS, S_WS, WS_BYTES)
        a(f"v_lshlrev_b32 v{L_H}, 4, v0")
        for i in range(4): a(f"v_mov_b32 v{L_FS+i}, -1")
        inbox_block(a, S_FB)
        a(f"s_mul_i32 s{S_T1}, s{S_XG}, 18432")
        a(f"s_add_u32 s{S_FB}, s{S_FB}, s{S_T1}")
        fstart = 1
        for o in opt:
            if o.startswith('fs'): fstart = int(o[2])
        a(f"s_lshl_b32 s{S_FU}, s{S_CW}, 10")
        a(f"s_sub_u32 s{S_FU}, s{S_FU}, {4096*fstart}")
    issue_stage1(a)
    stamp(a, 2)
    srd(a, SRD_WS, S_WS, WS_BYTES)
    srd(a, SRD_DBG, S_DBG, 256)
    w2_voffs(a)
    group_bases(a)
    a(f"s_mul_i32 s{S_T0}, s{S_J}, 288")
    a(f"s_add_u32 s{S_W2B}, s{S_W2B}, s{S_T0}")
    a(f"s_mul_i32 s{S_KAP}, s{S_J}, 9")
    a(f"s_add_u32 s{S_KAP}, s{S_KAP}, s{S_CW}")
    a(f"s_add_u32 s{S_KH}, s{S_KAP}, 8")
    a(f"s_sub_u32 s{S_T0}, s{S_KH}, 36")
    a(f"s_cmp_ge_u32 s{S_KH}, 36")
    a(f"s_cselect_b32 s{S_KH}, s{S_T0}, s{S_KH}")
    a(f"s_lshl_b32 s{S_HDST}, s{S_CW}, 10")
    a(f"s_add_u32 s{S_HDST}, s{S_HDST}, {LB + 2*4096}")
    a(f"v_lshlrev_b32 v{L_H}, 4, v0")
    inbox_block(a, S_INB)
    a(f"s_mul_i32 s{S_T1}, s{S_XG}, 18432")
    a(f"s_add_u32 s{S_INB}, s{S_INB}, s{S_T1}")
    if FSPLIT():
        a(f"v_bfe_u32 v{L_PF}, v0, 2, 2")
        a(f"v_lshlrev_b32 v{L_PF}, 6, v{L_PF}")
        a(f"v_and_b32 v{L_PF+1}, 3, v0")
        a(f"v_lshl_add_u32 v{L_PF}, v{L_PF+1}, 2, v{L_PF}")
    else:
        a(f"v_and_b32 v{L_PF}, 15, v0")
        a(f"v_lshlrev_b32 v{L_PF}, 2, v{L_PF}")
    a(f"v_lshrrev_b32 v{L_CK}, 2, v0")
    a(f"v_and_b32 v{L_CK}, 7, v{L_CK}")
    a(f"v_lshlrev_b32 v{L_CK}, {11 if FSPLIT() else 10}, v{L_CK}")
    a(f"v_and_b32 v{L_CK+1}, 3, v0")
    a(f"v_lshl_add_u32 v{L_CK}, v{L_CK+1}, 2, v{L_CK}")
    a(f"s_lshl_b32 s{S_CK}, s{S_MT}, {8 if FSPLIT() else 7}")
    a(f"s_lshl_b32 s{S_T0}, s{S_J}, {6 if FSPLIT() else 4}")
    a(f"s_add_u32 s{S_CK}, s{S_CK}, s{S_T0}")
    a(f"s_add_u32 s{S_CK}, s{S_CK}, {FLAG_OFF + (FLAG2_D if FILLM() else 0)}")
    if FILL8():
        for i in range(4): a(f"v_mov_b32 v{L_FS+i}, -1")
        a(f"v_min_u32 v{L_FS+4}, 31, v0")
        a(f"v_lshlrev_b32 v{L_FS+4}, 4, v{L_FS+4}")
    a("s_waitcnt vmcnt(%d)" % (9 if spread() else 8))
    a("s_barrier")
    stamp(a, 3)
    issue_stage1(a)
    a(f"s_mov_b32 s{S_N}, 0")
    a.label("L_LD1")
    a("s_waitcnt vmcnt(%d)" % (11 if spread() else 9))
    a("s_barrier")
    issue_stage1(a)
    a(f"s_add_u32 s{S_N}, s{S_N}, 1")
    a(f"s_cmp_lt_u32 s{S_N}, 6")
    a("s_cbranch_scc1 L_LD1")
    tail = 2 if spread() else 1
    q = [("st7", 7), ("x7", tail), ("st8", 7), ("x8", tail)]
    def iss(name, cnt, fn):
        fn(); q.append((name, cnt))
    def wait(*names):
        idx = [i for i, (nm, c) in enumerate(q) if nm in names]
        last = max(idx) if idx else -1
        n = sum(c for nm, c in q[last+1:])
        a("s_waitcnt vmcnt(%d)" % n)
    def drained(): q.clear()
    nW = [0]; nH = [2]
    def Wn():
        n = nW[0]; iss(f"W{n}", 5, lambda: issue_w2(a)); nW[0] += 1
    def Hn():
        n = nH[0]; iss(f"h{n}", 2, lambda: issue_h(a)); nH[0] += 1
    sch = (0, 1, 1, 1, 1)
    for o in opt:
        if o.startswith('sch'): sch = tuple(int(c) for c in o[3:8])
    a(f"s_mov_b32 s{S_DSLOT}, {4*WST}")
    a(f"s_lshl_b32 s{S_BBEG}, s{S_CW}, 10")
    a(f"s_add_u32 s{S_BBEG}, s{S_BBEG}, {LB}")
    a(f"s_add_u32 s{S_BEND}, s{S_BBEG}, {NBP*4096}")
    fat = 8
    for o in opt:
        if o.startswith('fat'): fat = int(o[3])
    if FILL8() and fat == 8: iss("fill", 5, lambda: loader_fill(a))
    wait("st7")
    a("s_barrier")
    if FILL8() and fat == 7: iss("fill", 5, lambda: loader_fill(a))
    for _ in range(sch[0]): Wn()
    assert nW[0] <= 2
    wait("st8")
    a("s_barrier")
    for _ in range(sch[1]): Wn()
    assert nW[0] <= 3
    a("s_barrier")
    stamp(a, 4)
    for _ in range(sch[2]): Wn()
    assert nW[0] >= 1
    a(f"buffer_load_dword v{L_T}, off, {R(SRD_DBG)}, 0 sc1"); q.append(("pub", 1))
    a(f"s_lshl_b32 s{S_T2}, s{S_GRP}, {6 if FSPLIT() else 5}")
    a(f"s_add_u32 s{S_T2}, s{S_T2}, {FLAG_OFF}")
    wait("W0", "fill")
    a("s_barrier")
    stamp(a, 5)
    for _ in range(sch[3]): Wn()
    assert nW[0] >= 2
    wait("W1")
    a("s_barrier")
    for _ in range(sch[4]): Wn()
    assert nW[0] <= 6
    poll_pub(a, "L", L_T, preloaded=True); drained()
    poll_ones(a, "F", L_T, L_PF, S_T2)
    stamp(a, 6)
    Hn(); Hn()
    if nW[0] <= 2: Wn()
    wait("h2", "W2")
    a("s_barrier")
    stamp(a, 7)
    for s in range(3, 9):
        k = 0
        while nH[0] <= 8 and (nH[0] <= 4 or nH[0] <= s + 2) and nH[0] <= s + 1:
            Hn()
        while nW[0] <= 8 and (nW[0] <= 5 or nW[0] <= s + 3) and (nW[0] <= s or k < 1):
            Wn(); k += 1
        if s == 6:
            iss("chk", 1, lambda: a(f"buffer_load_dword v{L_CK+1}, v{L_CK}, {R(SRD_WS)}, s{S_CK} offen sc1"))
        if s == 8:
            a("s_waitcnt vmcnt(0)")
            a(f"v_cmp_ne_u32 vcc, 1, v{L_CK+1}")
            a("s_cbranch_vccz L_POXK")
            poll_ones(a, "K", L_CK+1, L_CK, S_CK)
            drained()
        assert nW[0] > s and nH[0] > s, (s, nW, nH)
        wait(f"h{s}", f"W{s}")
        a("s_barrier")
    stamp(a, 8)
    reducer(a, "L", single=False)
    a("s_barrier")
    reducer_run(a, "L", single=False)
    stamp(a, 9)
    dump_stamps(a, 1, 10, "LD", 4)
    a("s_endpgm")

C_A32, C_A8 = 2, 124
C_B32, C_B8 = 6, 10
C_T = 12
SETS = (16, 48)
ACC = 80
C_E = 116
C_P2 = 128

def reads_step(st, n, s0):
    sl = n % NSL
    A32 = C_A32 + (sl >> 1); A8 = C_A8 + (sl >> 1)
    base = (sl & 1)*WST + s0*9216
    bo = (n % NBP)*4096
    def a32(c, kh):
        d = st + (kh*2 + c)*4
        off = base + kh*4608 + 64*c
        return [f"ds_read_b64_tr_b16 v[{d}:{d+1}], v{A32} offset:{off}",
                f"ds_read_b64_tr_b16 v[{d+2}:{d+3}], v{A32} offset:{off+288}"]
    def b32(kh):
        d = st + 20 + 4*kh
        return [f"ds_read_b128 v[{d}:{d+3}], v{C_B32 + 2*s0 + kh} offset:{bo}"]
    ins = b32(0) + a32(0, 0) + a32(1, 0) + b32(1) + a32(0, 1) + a32(1, 1)
    ins.append(f"ds_read_b128 v[{st+28}:{st+31}], v{C_B8 + s0} offset:{bo}")
    ins.append(f"ds_read_b64_tr_b16 v[{st+16}:{st+17}], v{A8} offset:{base}")
    ins.append(f"ds_read_b64_tr_b16 v[{st+18}:{st+19}], v{A8} offset:{base+288}")
    return ins

def mfmas(st):
    out = []
    for kh in range(2):
        for c in range(2):
            acc = ACC + 16*c
            A = st + (kh*2 + c)*4; B = st + 20 + 4*kh
            out.append(f"v_mfma_f32_32x32x16_bf16 v[{acc}:{acc+15}], v[{A}:{A+3}], v[{B}:{B+3}], v[{acc}:{acc+15}]")
    out.append(f"v_mfma_f32_16x16x32_bf16 v[{ACC+32}:{ACC+35}], v[{st+16}:{st+19}], v[{st+28}:{st+31}], v[{ACC+32}:{ACC+35}]")
    return out

def reads_step1(st, n, s0):
    sl = n % NSL
    A = C_A32 + (sl >> 1); A8 = C_A8 + (sl >> 1)
    base = (sl & 1)*WST + s0*9216
    bo = (n % NBP)*4096
    def at(t):
        return [f"ds_read_b64_tr_b16 v[{st+4*t}:{st+4*t+1}], v{A} offset:{base+32*t}",
                f"ds_read_b64_tr_b16 v[{st+4*t+2}:{st+4*t+3}], v{A} offset:{base+4608+32*t}"]
    ins = [f"ds_read_b128 v[{st+20}:{st+23}], v{C_B32+s0} offset:{bo}"] + at(0)
    ins.append(f"ds_read_b128 v[{st+24}:{st+27}], v{C_B32+s0} offset:{bo+2048}")
    ins += at(1) + at(2) + at(3)
    ins.append(f"ds_read_b128 v[{st+28}:{st+31}], v{C_B8+s0} offset:{bo}")
    ins.append(f"ds_read_b64_tr_b16 v[{st+16}:{st+17}], v{A8} offset:{base}")
    ins.append(f"ds_read_b64_tr_b16 v[{st+18}:{st+19}], v{A8} offset:{base+4608}")
    return ins
def mfmas1(st):
    out = []
    def m(acc, A, B): return f"v_mfma_f32_16x16x32_bf16 v[{acc}:{acc+3}], v[{A}:{A+3}], v[{B}:{B+3}], v[{acc}:{acc+3}]"
    for t in range(4):
        out.append(m(ACC + 4*t, st + 4*t, st + 20))
        out.append(m(ACC + 16 + 4*t, st + 4*t, st + 24))
    out.append(m(ACC + 32, st + 16, st + 28))
    return out
NEED1 = {0: 4, 2: 6, 4: 8, 6: 10, 8: 13}
PAT1 = [2, 1, 2, 1, 2, 1, 2, 1, 1]
def block1(a, r, m):
    k = 0
    for u in range(9):
        if u in NEED1: a(f"s_waitcnt lgkmcnt({13 - NEED1[u] + k})")
        a(m[u])
        if r:
            for _ in range(PAT1[u]):
                a(r[k]); k += 1
def body1(a):
    for n in range(9):
        block1(a, reads_step1(SETS[1], n, 1), mfmas1(SETS[0]))
        if n < 8:
            a("s_barrier")
            if 'diag' in opt:
                a("s_memtime s[96:97]\ns_waitcnt lgkmcnt(0)")
                a(f"s_mov_b32 s{60+n}, s96")
            block1(a, reads_step1(SETS[0], n+1, 0), mfmas1(SETS[1]))
        else:
            block1(a, None, mfmas1(SETS[1]))
            if 'diag' in opt:
                a("s_memtime s[96:97]\ns_waitcnt lgkmcnt(0)")
                a(f"s_mov_b32 s68, s96")

NEED = [3, 5, 8, 10, 13]
def block(a, r, m):
    k = 0
    for u in range(5):
        a(f"s_waitcnt lgkmcnt({13 - NEED[u] + k})")
        a(m[u])
        if r:
            for _ in range(3 if u < 4 else 1):
                a(r[k]); k += 1

def body(a):
    for n in range(9):
        block(a, reads_step(SETS[1], n, 1), mfmas(SETS[0]))
        if n == 1:
            poll_pub(a, "C", C_T, preloaded=True)
            a("s_mov_b64 exec, 1")
            a(f"buffer_store_dword v{C_T+3}, off, {R(SRD_WS)}, s{S_FLG} sc1")
            a("s_mov_b64 exec, -1")
            if FILLM(): compute_fill(a)
        fp = 4
        for o in opt:
            if o.startswith('fp'): fp = int(o[2])
        if n == fp and FILLM():
            a("s_waitcnt vmcnt(0)")
            a(f"s_add_u32 s{S_FLG}, s{S_FLG}, {FLAG2_D}")
            a("s_mov_b64 exec, 1")
            a(f"buffer_store_dword v{C_T+3}, off, {R(SRD_WS)}, s{S_FLG} sc1")
            a("s_mov_b64 exec, -1")
        if n < 8:
            a("s_barrier")
            if 'diag' in opt:
                a("s_memtime s[96:97]\ns_waitcnt lgkmcnt(0)")
                a(f"s_mov_b32 s{70+n}, s96")
            block(a, reads_step(SETS[0], n+1, 0), mfmas(SETS[1]))
        else:
            block(a, None, mfmas(SETS[1]))
            if 'diag' in opt:
                a("s_memtime s[96:97]\ns_waitcnt lgkmcnt(0)")
                a(f"s_mov_b32 s78, s96")

def zero_acc(a):
    for i in range(0, 36, 2): a(f"v_pk_mov_b32 v[{ACC+i}:{ACC+i+1}], 0, 0")

def silu4(a, x, e):
    for r in (0, 2): a(f"v_pk_mul_f32 v[{e+r}:{e+r+1}], v[{x+r}:{x+r+1}], s[{S_K}:{S_K+1}]")
    for r in range(4): a(f"v_exp_f32 v{e+r}, v{e+r}")
    for r in (0, 2): a(f"v_pk_add_f32 v[{e+r}:{e+r+1}], v[{e+r}:{e+r+1}], 1.0 op_sel_hi:[1,0]")
    for r in range(4): a(f"v_rcp_f32 v{e+r}, v{e+r}")
    for r in (0, 2): a(f"v_pk_mul_f32 v[{x+r}:{x+r+1}], v[{x+r}:{x+r+1}], v[{e+r}:{e+r+1}]")

def compute_fill(a):
    W = R(SRD_WS)
    a(f"s_mul_i32 s{S_T1}, s{S_CW}, 4608")
    a(f"s_add_u32 s{S_T0}, s{S_INB}, s{S_T1}")
    for i in range(4): a(f"v_mov_b32 v{C_E+4+i}, -1")
    a(f"v_lshlrev_b32 v{C_E}, 4, v0")
    a(f"v_min_u32 v{C_E+1}, 31, v0")
    a(f"v_lshlrev_b32 v{C_E+1}, 4, v{C_E+1}")
    for i in range(4):
        a(f"buffer_store_dwordx4 v[{C_E+4}:{C_E+7}], v{C_E}, {W}, s{S_T0} offen offset:{1024*i} sc1")
    a(f"s_add_u32 s{S_T0}, s{S_T0}, 4096")
    a(f"buffer_store_dwordx4 v[{C_E+4}:{C_E+7}], v{C_E+1}, {W}, s{S_T0} offen sc1")

def compute(a):
    DIAGC[0] = True
    t0, t1, t2, t3 = C_T, C_T+1, C_T+2, C_T+3
    W = R(SRD_WS)
    a(f"s_and_b32 s{S_T0}, s{S_CW}, 1")
    a(f"s_lshr_b32 s{S_T1}, s{S_CW}, 1")
    a(f"v_lshrrev_b32 v{t0}, 2, v0")
    a(f"v_mul_u32_u24 v{t0}, 288, v{t0}")
    a(f"v_and_b32 v{t1}, 3, v0")
    a(f"v_lshl_add_u32 v{t0}, v{t1}, 3, v{t0}")
    a(f"v_add_u32 v{C_A8}, 256, v{t0}")
    a(f"v_add_u32 v{C_A8+1}, {2*WST}, v{C_A8}")
    a(f"v_add_u32 v{C_A8+2}, {4*WST}, v{C_A8}")
    a(f"s_lshl_b32 s{S_T2}, s{S_T0}, 7")
    a(f"v_add_u32 v{C_A32}, s{S_T2}, v{t0}")
    a(f"v_add_u32 v{C_A32+1}, {2*WST}, v{C_A32}")
    a(f"v_add_u32 v{C_A32+2}, {4*WST}, v{C_A32}")
    a(f"v_bfe_u32 v{t0}, v0, 2, 2")
    a(f"v_mul_u32_u24 v{t0}, 576, v{t0}")
    a(f"v_lshl_add_u32 v{t0}, v{t1}, 3, v{t0}")
    a(f"v_lshrrev_b32 v{t1}, 4, v0")
    a(f"v_mul_u32_u24 v{t2}, 2304, v{t1}")
    a(f"v_add_u32 v{t2}, v{t2}, v{t0}")
    a(f"v_add_u32 v{C_P2+1}, 256, v{t2}")
    a(f"v_lshrrev_b32 v{t2}, 5, v0")
    a(f"v_mul_u32_u24 v{t2}, 2304, v{t2}")
    a(f"v_add_u32 v{t0}, v{t0}, v{t2}")
    a(f"v_and_b32 v{t1}, 1, v{t1}")
    a(f"v_lshl_add_u32 v{t0}, v{t1}, 5, v{t0}")
    a(f"s_lshl_b32 s{S_T2}, s{S_T0}, 7")
    a(f"v_add_u32 v{C_P2}, s{S_T2}, v{t0}")
    a(f"s_mul_i32 s{S_T1}, s{S_T1}, {MHB}")
    a(f"s_add_u32 s{S_T1}, s{S_T1}, {LB}")
    a(f"v_and_b32 v{t0}, 15, v0")
    a(f"v_lshrrev_b32 v{t1}, 1, v{t0}")
    a(f"v_lshlrev_b32 v{t0}, 7, v{t0}")
    a(f"v_add_u32 v{t0}, s{S_T1}, v{t0}")
    a(f"v_lshrrev_b32 v{t3}, 4, v0")
    a(f"v_xor_b32 v{t3}, v{t3}, v{t1}")
    a(f"v_lshlrev_b32 v{t3}, 4, v{t3}")
    a(f"v_add_u32 v{C_B32}, v{t0}, v{t3}")
    a(f"v_xor_b32 v{t3}, 64, v{t3}")
    a(f"v_add_u32 v{C_B32+1}, v{t0}, v{t3}")
    a(f"s_lshl_b32 s{S_T2}, s{S_T0}, 11")
    a(f"v_add_u32 v{C_B8}, s{S_T2}, v{C_B32}")
    a(f"v_add_u32 v{C_B8+1}, s{S_T2}, v{C_B32+1}")
    zero_acc(a)
    group_bases(a)
    inbox_block(a, S_PA)
    a(f"s_mul_i32 s{S_T0}, s{S_XG}, 18432")
    a(f"s_add_u32 s{S_INB}, s{S_PA}, s{S_T0}")
    a(f"s_mul_i32 s{S_T0}, s{S_XG}, 2304")
    a(f"s_add_u32 s{S_PA}, s{S_PA}, s{S_T0}")
    a(f"s_mul_i32 s{S_T0}, s{S_CW}, {2*18432}")
    a(f"s_add_u32 s{S_PS}, s{S_PA}, s{S_T0}")
    a(f"s_add_u32 s{S_PS}, s{S_PS}, 2048")
    a(f"s_lshr_b32 s{S_T0}, s{S_CW}, 1")
    a(f"s_mul_i32 s{S_T0}, s{S_T0}, {4*18432}")
    a(f"s_add_u32 s{S_PA}, s{S_PA}, s{S_T0}")
    a(f"s_and_b32 s{S_T0}, s{S_CW}, 1")
    a(f"s_lshl_b32 s{S_T0}, s{S_T0}, 10")
    a(f"s_add_u32 s{S_PA}, s{S_PA}, s{S_T0}")
    a(f"s_lshr_b32 s{S_T0}, s{S_CW}, 1")
    a(f"s_mul_i32 s{S_T0}, s{S_T0}, {MHS}")
    a(f"s_add_u32 s{S_T0}, s{S_T0}, s{S_HB}")
    a(f"s_mul_i32 s{S_T1}, s{S_J}, {9*1024}")
    a(f"s_add_u32 s{S_T0}, s{S_T0}, s{S_T1}")
    a(f"s_and_b32 s{S_T1}, s{S_CW}, 1")
    a(f"s_lshl_b32 s{S_T2}, s{S_T1}, 12")
    a(f"s_add_u32 s{S_HST}, s{S_T0}, s{S_T2}")
    a(f"s_lshl_b32 s{S_T2}, s{S_T1}, 8")
    a(f"s_add_u32 s{S_HSP}, s{S_T0}, s{S_T2}")
    a(f"s_add_u32 s{S_HSP}, s{S_HSP}, {8*1024}")
    a(f"s_lshl_b32 s{S_FLG}, s{S_GRP}, {6 if FSPLIT() else 5}")
    a(f"s_lshl_b32 s{S_T0}, s{S_J}, {4 if FSPLIT() else 2}")
    a(f"s_add_u32 s{S_T0}, s{S_T0}, s{S_CW}")
    a(f"s_lshl_b32 s{S_T0}, s{S_T0}, 2")
    a(f"s_add_u32 s{S_FLG}, s{S_FLG}, s{S_T0}")
    a(f"s_add_u32 s{S_FLG}, s{S_FLG}, {FLAG_OFF}")
    a(f"s_mov_b32 s{S_K}, 0xbfb8aa3b")
    a(f"s_mov_b32 s{S_K+1}, 0xbfb8aa3b")
    a(f"s_mov_b32 s{S_PH}, 0")
    a("s_waitcnt lgkmcnt(0)")
    srd(a, SRD_WS, S_WS, WS_BYTES)
    srd(a, SRD_DBG, S_DBG, 256)
    a(f"v_lshlrev_b32 v{C_E}, 4, v0")
    if not spread() and not FILLM() and not FILL8():
        a(f"s_mul_i32 s{S_T1}, s{S_CW}, 4608")
        a(f"s_add_u32 s{S_T0}, s{S_INB}, s{S_T1}")
        for i in range(4): a(f"v_mov_b32 v{C_E+4+i}, -1")
        a(f"v_lshlrev_b32 v{C_E}, 4, v0")
        a(f"v_min_u32 v{C_E+1}, 31, v0")
        a(f"v_lshlrev_b32 v{C_E+1}, 4, v{C_E+1}")
        for i in range(4):
            a(f"buffer_store_dwordx4 v[{C_E+4}:{C_E+7}], v{C_E}, {W}, s{S_T0} offen offset:{1024*i} sc1")
        a(f"s_add_u32 s{S_T0}, s{S_T0}, 4096")
        a(f"buffer_store_dwordx4 v[{C_E+4}:{C_E+7}], v{C_E+1}, {W}, s{S_T0} offen sc1")
    a(f"s_cmp_eq_u32 s2, 0")
    a("s_cbranch_scc0 L_NOCLR")
    nkb = 8 if FILLM() else (4 if FSPLIT() else 2)
    a(f"s_mul_i32 s{S_T0}, s{S_CW}, {1024*nkb}")
    a(f"s_add_u32 s{S_T0}, s{S_T0}, {FLAG_OFF}")
    a(f"v_pk_mov_b32 v[{SETS[1]}:{SETS[1]+1}], 0, 0\nv_pk_mov_b32 v[{SETS[1]+2}:{SETS[1]+3}], 0, 0")
    for i in range(nkb):
        if i == 4: a(f"s_add_u32 s{S_T0}, s{S_T0}, 4096")
        a(f"buffer_store_dwordx4 v[{SETS[1]}:{SETS[1]+3}], v{C_E}, {W}, s{S_T0} offen offset:{1024*(i%4)} sc1")
    a("s_waitcnt vmcnt(0)")
    a.label("L_NOCLR")
    a("s_barrier")
    if 'clk1' in opt: a("s_memtime s[100:101]")
    stampw(a, 1)
    for ins in reads_step1(SETS[0], 0, 0): a(ins)
    a(f"s_lshl_b32 s{S_T1}, s2, 2")
    a(f"s_or_b32 s{S_T1}, s{S_T1}, s{S_CW}")
    a(f"s_cmp_eq_u32 s{S_T1}, 0")
    a("s_cbranch_scc0 L_BODY")
    a(f"v_mov_b32 v{t0}, 1")
    a("s_mov_b64 exec, 1")
    a(f"buffer_store_dword v{t0}, off, {R(SRD_DBG)}, 0 sc1")
    a("s_mov_b64 exec, -1")
    a.label("L_BODY")
    body1(a)
    a("s_barrier")
    stamp(a, 2)
    if 'clk1' in opt:
        a("s_memtime s[96:97]\ns_waitcnt lgkmcnt(0)\ns_sub_u32 s78, s96, s100\ns_mov_b32 s79, 0")
    a("s_waitcnt vmcnt(0)")
    a(f"buffer_load_dword v{t0}, off, {R(SRD_DBG)}, 0 sc1")
    a(f"v_lshlrev_b32 v{t1}, 4, v0")
    a(f"s_lshr_b32 s{S_T0}, s{S_CW}, 1")
    a(f"s_mul_i32 s{S_T0}, s{S_T0}, {MHB}")
    a(f"s_add_u32 s{S_T0}, s{S_T0}, {LB}")
    a(f"s_and_b32 s{S_T1}, s{S_CW}, 1")
    a(f"s_lshl_b32 s{S_T2}, s{S_T1}, 12")
    a(f"s_add_u32 s{S_T2}, s{S_T2}, s{S_T0}")
    a(f"v_add_u32 v{t2}, s{S_T2}, v{t1}")
    P = SETS[0]
    x = ACC + 32
    silu4(a, x, C_E)
    a(f"v_cvt_pk_bf16_f32 v{P+16}, v{x}, v{x+1}")
    a(f"v_cvt_pk_bf16_f32 v{P+17}, v{x+2}, v{x+3}")
    a(f"v_mov_b32 v{P+18}, v{P+16}")
    a(f"v_mov_b32 v{P+19}, v{P+17}")
    a(f"v_bfe_u32 v{t3}, v0, 4, 1")
    a(f"v_lshlrev_b32 v{t3}, 9, v{t3}")
    a(f"v_and_b32 v{C_E+4}, 15, v0")
    a(f"v_lshl_add_u32 v{t3}, v{C_E+4}, 4, v{t3}")
    a(f"v_permlane32_swap_b32 v{P+16}, v{P+18}")
    a(f"v_permlane32_swap_b32 v{P+17}, v{P+19}")
    a("s_mov_b32 exec_hi, 0")
    a(f"buffer_store_dwordx4 v[{P+16}:{P+19}], v{t3}, {W}, s{S_HSP} offen sc1")
    a("s_mov_b32 exec_hi, -1")
    for t in range(4):
        xe, xo = ACC + 4*t, ACC + 16 + 4*t
        d = P + 4*t
        silu4(a, xe, C_E); silu4(a, xo, C_E+4)
        a(f"v_cvt_pk_bf16_f32 v{d}, v{xe}, v{xe+1}")
        a(f"v_cvt_pk_bf16_f32 v{d+1}, v{xe+2}, v{xe+3}")
        a(f"v_cvt_pk_bf16_f32 v{d+2}, v{xo}, v{xo+1}")
        a(f"v_cvt_pk_bf16_f32 v{d+3}, v{xo+2}, v{xo+3}")
        a("s_nop 1")
        a(f"v_permlane16_swap_b32 v{d}, v{d+2}")
        a(f"v_permlane16_swap_b32 v{d+1}, v{d+3}")
        a("s_nop 1")
        a(f"v_permlane32_swap_b32 v{d}, v{d+2}")
        a(f"v_permlane32_swap_b32 v{d+1}, v{d+3}")
        a(f"buffer_store_dwordx4 v[{d}:{d+3}], v{t1}, {W}, s{S_HST} offen offset:{1024*t} sc1")
        a(f"ds_write_b128 v{t2}, v[{d}:{d+3}] offset:{1024*t}")
    stamp(a, 8)
    for k4 in range(4):
        if k4 == 0: a(f"v_add_u32 v{C_B32}, s{S_T0}, v{t1}")
        else:       a(f"v_add_u32 v{C_B32+k4}, {1024*k4}, v{C_B32}")
    a(f"v_lshrrev_b32 v{t2}, 4, v0")
    a(f"v_lshlrev_b32 v{t2}, 9, v{t2}")
    a(f"v_and_b32 v{t3}, 15, v0")
    a(f"v_lshl_add_u32 v{t2}, v{t3}, 4, v{t2}")
    a(f"s_lshl_b32 s{S_T1}, s{S_T1}, 8")
    a(f"s_add_u32 s{S_T0}, s{S_T0}, s{S_T1}")
    a(f"v_add_u32 v{C_B8}, s{S_T0}, v{t2}")
    a(f"v_add_u32 v{C_B8+1}, 2048, v{C_B8}")
    for b, src in ((C_A32, C_P2), (C_A8, C_P2+1)):
        a(f"v_add_u32 v{b}, {4*WST}, v{src}")
        a(f"v_mov_b32 v{b+1}, v{src}")
        a(f"v_add_u32 v{b+2}, {2*WST}, v{src}")
    zero_acc(a)
    a(f"v_mov_b32 v{t3}, 1")
    a(f"s_mov_b32 s{S_PH}, 1")
    a("s_waitcnt lgkmcnt(0)")
    a("s_barrier")
    stampw(a, 3)
    for ins in reads_step(SETS[0], 0, 0): a(ins)
    body(a)
    a.label("L_EPI2")
    stamp(a, 5)
    a(f"v_bfe_u32 v{t0}, v0, 3, 2")
    a(f"v_mul_u32_u24 v{t0}, 18432, v{t0}")
    a(f"v_lshrrev_b32 v{t1}, 5, v0")
    a(f"v_lshl_add_u32 v{t0}, v{t1}, 7, v{t0}")
    a(f"v_and_b32 v{t1}, 7, v0")
    a(f"v_lshl_add_u32 v{t0}, v{t1}, 4, v{t0}")
    a(f"v_lshrrev_b32 v{t2}, 4, v0")
    a(f"v_lshl_add_u32 v{t2}, v{t2}, 3, v{t1}")
    a(f"v_bfe_u32 v{t1}, v0, 3, 1")
    a(f"v_mul_u32_u24 v{t1}, 18432, v{t1}")
    a(f"v_lshl_add_u32 v{t1}, v{t2}, 3, v{t1}")
    a(f"s_mov_b32 s{S_K}, 0xfffffffe")
    P = SETS[0]
    for c in range(2):
        for hb in range(2):
            x = ACC + 16*c + 8*hb
            d = P + 4*(2*c + hb)
            for i in range(4): a(f"v_cvt_pk_bf16_f32 v{d+i}, v{x+2*i}, v{x+2*i+1}")
            for i in range(4): a(f"v_min_u32 v{d+i}, s{S_K}, v{d+i}")
            a(f"buffer_store_dwordx4 v[{d}:{d+3}], v{t0}, {W}, s{S_PA} offen offset:{256*(2*c+hb)} sc1")
    x = ACC + 32
    a(f"v_cvt_pk_bf16_f32 v{P+16}, v{x}, v{x+1}")
    a(f"v_cvt_pk_bf16_f32 v{P+17}, v{x+2}, v{x+3}")
    for d in range(2): a(f"v_min_u32 v{P+16+d}, s{S_K}, v{P+16+d}")
    a(f"buffer_store_dwordx2 v[{P+16}:{P+17}], v{t1}, {W}, s{S_PS} offen sc1")
    a("s_barrier")
    stamp(a, 6)
    a(f"s_cmp_eq_u32 s{S_CW}, 0")
    a("s_cbranch_scc0 L_CDONE")
    reducer(a, "C", single=True)
    reducer_run(a, "C", single=True)
    a.label("L_CDONE")
    if 'ts' in opt or amp_on(): a("s_waitcnt vmcnt(0)")
    stamp(a, 7)
    amp_spin(a)
    if 'clk' in opt:
        a("s_memtime s[96:97]")
        a("s_waitcnt lgkmcnt(0)")
        a("s_sub_u32 s78, s96, s100")
        a("s_mov_b32 s79, 0")
    dump_stamps(a, 0, 10 if ('clk' in opt or 'clk1' in opt or 'diag' in opt) else 9, "C", 0)

def kernel_main(a):
    name = KNAME
    a(f".globl {name}\n.p2align 8\n.type {name},@function\n{name}:")
    a(f"s_cmp_ge_u32 s2, 256")
    a(f"s_cbranch_scc1 L_END")
    stamp(a, 0)
    if 'clk' in opt: a("s_memtime s[100:101]")
    a("s_load_dwordx8 s[4:11], s[0:1], 0")
    a("s_load_dwordx4 s[12:15], s[0:1], 32")
    a("v_lshrrev_b32 v1, 6, v0")
    a("v_and_b32 v0, 63, v0")
    a(f"v_readfirstlane_b32 s{S_WV}, v1")
    if 'xmap' in opt:
        a(f"s_and_b32 s{S_J}, s2, 3")
        a(f"s_lshr_b32 s{S_XG}, s2, 2")
        a(f"s_and_b32 s{S_XG}, s{S_XG}, 7")
    else:
        a(f"s_and_b32 s{S_XG}, s2, 7")
        a(f"s_lshr_b32 s{S_J}, s2, 3")
        a(f"s_and_b32 s{S_J}, s{S_J}, 3")
    a(f"s_lshr_b32 s{S_MT}, s2, 5")
    a("s_nop 0")
    a(f"s_and_b32 s{S_CW}, s{S_WV}, 3")
    a(f"s_cmp_lt_u32 s{S_WV}, 4")
    a("s_cbranch_scc1 L_COMPUTE")
    loader(a)
    a.label("L_COMPUTE")
    compute(a)
    a.label("L_END")
    a("s_endpgm")
    a.label("L_CODE_END")
    a(kd(name, vgpr=132, sgpr=102))

def check_barriers(lines):
    iL = lines.index("L_LOADER:"); iC = lines.index("L_COMPUTE:")
    cnt = lambda seg: sum(1 for ln in seg if ln.strip() == "s_barrier")
    seg = lines[iL:iC]
    i1 = seg.index("L_LD1:"); i2 = seg.index("s_cbranch_scc1 L_LD1")
    nl = cnt(seg) + 5*cnt(seg[i1:i2])
    nc = cnt(lines[iC:])
    assert nl == nc, f"barrier mismatch loader {nl} compute {nc}"
    return nl

def main():
    for o in sys.argv[2:]: opt.add(o)
    a = Asm()
    a(HEADER.rstrip())
    a(f"; @launch grid=(256,1,1) block=(512,1,1) lds={LDS_BYTES}")
    a('.amdgcn_target "amdgcn-amd-amdhsa--gfx950"')
    a(".text")
    kernel_main(a)
    check_barriers(a.lines)
    open(sys.argv[1], "w").write(a.text())

main()
```

```python
import sys
from common import *

X_BYTES = 512*576*2
W_BYTES = 576*4608*2
OUT_BYTES = 512*576*2
WS_BYTES = 268435456
PAGE = 2*1024*1024
H_OFF = 4096
GRP_BYTES = 73728
FLAG_OFF = 4*PAGE + 4096
def FSPLIT(): return 'fsplit' in opt
def FILLM(): return 'fillm' in opt
def FILL8(): return 'fill8' in opt
FLAG2_D = 16384
INBOX_OFF = 5*PAGE + 4096
INBOX_B = 8*8*2304
WST = 18432
NSL = 6
LB = NSL*WST
NBP = 5
MHB = NBP*4096
MHS = 36864
LDS_BYTES = LB + 2*MHB
TS_OFF = 128 << 20
SPIN = 1 << 17
KNAME = "standalone__dense_activation_silu__sampling_kernel"
opt = set()

S_X, S_W1, S_W2, S_OUT, S_DBG, S_WS = 4, 6, 8, 10, 12, 14
SRD_X, SRD_W1, SRD_WS, SRD_W2, SRD_DBG = 16, 20, 24, 40, 44
S_WV, S_XG, S_J, S_MT, S_CW = 28, 29, 30, 31, 32
S_N, S_WOFF, S_DSLOT = 33, 34, 35
S_T0, S_T1, S_T2, S_T3 = 36, 37, 38, 39
S_HB, S_GRP, S_INB = 53, 54, 58
S_TS = 60
S_K = 84
S_P, S_XROW, S_BDST, S_WCOL, S_WLDS = 48, 49, 50, 51, 52
S_W2B, S_KAP, S_HOFF, S_CK, S_KH, S_HDST = 55, 56, 57, 59, 92, 94
S_TST, S_TREAL, S_TOFF, S_TN = 93, 95, 96, 97
S_BBEG, S_BEND = 86, 87
S_PH, S_HST, S_HSP, S_FLG, S_PA, S_PS = 48, 49, 50, 51, 52, 55

def amp_on(): return any(o.startswith('amp') for o in opt)
def amp_spin(a):
    for o in opt:
        if o.startswith('amp'):
            ia, ib = int(o[3]), int(o[4])
            a("s_waitcnt lgkmcnt(0) vmcnt(0)")
            a(f"s_sub_u32 s95, s{S_TS+2*ib}, s{S_TS+2*ia}")
            a("s_mul_i32 s95, s95, 3")
            a("s_memrealtime s[96:97]\ns_waitcnt lgkmcnt(0)\ns_mov_b32 s94, s96")
            a.label("L_AMP")
            a("s_memrealtime s[96:97]\ns_waitcnt lgkmcnt(0)\ns_sub_u32 s96, s96, s94\ns_cmp_lt_u32 s96, s95\ns_cbranch_scc1 L_AMP")
DIAGC = [False]
def stamp(a, i):
    if 'diag' in opt and DIAGC[0]: return
    if 'ts' in opt or amp_on():
        a(f"s_memrealtime s[{S_TS+2*i}:{S_TS+2*i+1}]")
def stampw(a, i):
    if 'diag' in opt and DIAGC[0]: return
    if 'ts' in opt or amp_on():
        a(f"s_memrealtime s[{S_TS+2*i}:{S_TS+2*i+1}]")
        a("s_waitcnt lgkmcnt(0)")

def dump_stamps(a, kidx, n, tag, wave):
    if 'ts' not in opt: return
    a("s_waitcnt lgkmcnt(0) vmcnt(0)")
    a(f"s_cmp_eq_u32 s{S_WV}, {wave}")
    a(f"s_cbranch_scc0 L_NOTS{tag}")
    a(f"s_lshl_b32 s80, s2, 7")
    a(f"s_add_u32 s80, s80, {TS_OFF + kidx*512*128}")
    a(f"s_mov_b32 s88, s14\ns_mov_b32 s89, s15\ns_mov_b32 s90, {WS_BYTES}\ns_mov_b32 s91, 0x20000")
    a("v_mov_b32 v2, 0")
    for i in range(n):
        a(f"v_mov_b32 v4, s{S_TS+2*i}\nv_mov_b32 v5, s{S_TS+2*i+1}")
        a(f"buffer_store_dwordx2 v[4:5], v2, s[88:91], s80 offen offset:{8*i}")
        a("s_nop 1")
    a.label(f"L_NOTS{tag}")

def srd(a, base, ptr, nbytes):
    a(f"s_mov_b32 s{base}, s{ptr}")
    a(f"s_mov_b32 s{base+1}, s{ptr+1}")
    a(f"s_mov_b32 s{base+2}, {nbytes}")
    a(f"s_mov_b32 s{base+3}, 0x20000")
def R(base): return f"s[{base}:{base+3}]"

def wrap(a, reg, inc, mod):
    a(f"s_add_u32 s{reg}, s{reg}, {inc}")
    a(f"s_sub_u32 s{S_T3}, s{reg}, {mod}")
    a(f"s_cmp_ge_u32 s{reg}, {mod}")
    a(f"s_cselect_b32 s{reg}, s{S_T3}, s{reg}")

def group_bases(a):
    a(f"s_lshl_b32 s{S_GRP}, s{S_XG}, 3")
    a(f"s_add_u32 s{S_GRP}, s{S_GRP}, s{S_MT}")
    a(f"s_lshr_b32 s{S_HB}, s{S_GRP}, 4")
    a(f"s_lshl_b32 s{S_HB}, s{S_HB}, 21")
    a(f"s_and_b32 s{S_T0}, s{S_GRP}, 15")
    a(f"s_mul_i32 s{S_T0}, s{S_T0}, {GRP_BYTES}")
    a(f"s_add_u32 s{S_HB}, s{S_HB}, s{S_T0}")
    a(f"s_add_u32 s{S_HB}, s{S_HB}, {H_OFF}")
    a(f"s_lshl_b32 s{S_GRP}, s{S_GRP}, 2")

def inbox_block(a, dst):
    a(f"s_lshl_b32 s{dst}, s{S_MT}, 2")
    a(f"s_add_u32 s{dst}, s{dst}, s{S_J}")
    a(f"s_mul_i32 s{dst}, s{dst}, {INBOX_B}")
    a(f"s_add_u32 s{dst}, s{dst}, {INBOX_OFF}")

def poll_pub(a, tag, vtmp, preloaded=False):
    if preloaded:
        a("s_waitcnt vmcnt(0)")
        a(f"v_cmp_ne_u32 vcc, 1, v{vtmp}")
        a(f"s_cbranch_vccz L_PGX{tag}")
    a(f"s_mov_b32 s{S_T3}, 0")
    a.label(f"L_PG{tag}")
    a(f"s_add_u32 s{S_T3}, s{S_T3}, 1")
    a(f"s_cmp_gt_u32 s{S_T3}, {SPIN}")
    a(f"s_cbranch_scc1 L_PGX{tag}")
    a(f"buffer_load_dword v{vtmp}, off, {R(SRD_DBG)}, 0 sc1")
    a("s_waitcnt vmcnt(0)")
    a(f"v_cmp_ne_u32 vcc, 1, v{vtmp}")
    a(f"s_cbranch_vccnz L_PG{tag}")
    a.label(f"L_PGX{tag}")

def poll_ones(a, tag, vdst, vaddr, soff):
    a(f"s_mov_b32 s{S_T3}, 0")
    a.label(f"L_PO{tag}")
    a(f"s_add_u32 s{S_T3}, s{S_T3}, 1")
    a(f"s_cmp_gt_u32 s{S_T3}, {SPIN}")
    a(f"s_cbranch_scc1 L_POX{tag}")
    a(f"buffer_load_dword v{vdst}, v{vaddr}, {R(SRD_WS)}, s{soff} offen sc1")
    a("s_waitcnt vmcnt(0)")
    a(f"v_cmp_ne_u32 vcc, 1, v{vdst}")
    a(f"s_cbranch_vccnz L_PO{tag}")
    a.label(f"L_POX{tag}")

R_D, R_ACC, R_T, R_A = 80, 96, 100, 104
def reducer(a, tag, single):
    W = R(SRD_WS)
    if single:
        a(f"v_min_u32 v{R_T}, 31, v0")
        a(f"v_lshlrev_b32 v{R_A}, 3, v{R_T}")
        a(f"s_add_u32 s{S_T0}, s{S_INB}, 2048")
        a(f"v_and_b32 v{R_T+1}, 7, v{R_T}")
        a(f"v_mul_u32_u24 v{R_T+1}, 1152, v{R_T+1}")
        a(f"v_lshrrev_b32 v{R_T}, 3, v{R_T}")
        a(f"v_lshl_add_u32 v{R_A+1}, v{R_T}, 3, v{R_T+1}")
        a(f"s_mov_b32 s{S_T2}, 256")
    else:
        a(f"v_lshlrev_b32 v{R_A}, 3, v0")
        a(f"s_lshl_b32 s{S_T0}, s{S_CW}, 9")
        a(f"s_add_u32 s{S_T0}, s{S_T0}, s{S_INB}")
        a(f"v_bfe_u32 v{R_T}, v0, 1, 3")
        a(f"v_mul_u32_u24 v{R_T}, 1152, v{R_T}")
        a(f"v_lshrrev_b32 v{R_T+1}, 5, v0")
        a(f"v_lshl_add_u32 v{R_T}, v{R_T+1}, 5, v{R_T}")
        a(f"v_and_b32 v{R_T+1}, 1, v0")
        a(f"v_lshl_add_u32 v{R_T}, v{R_T+1}, 4, v{R_T}")
        a(f"v_bfe_u32 v{R_T+1}, v0, 4, 1")
        a(f"v_lshl_add_u32 v{R_A+1}, v{R_T+1}, 3, v{R_T}")
        a(f"s_lshl_b32 s{S_T2}, s{S_CW}, 6")
    a(f"s_lshl_b32 s{S_T1}, s{S_MT}, 3")
    a(f"s_add_u32 s{S_T1}, s{S_T1}, s{S_XG}")
    a(f"s_mul_i32 s{S_T1}, s{S_T1}, {8*1152}")
    a(f"s_add_u32 s{S_T2}, s{S_T2}, s{S_T1}")
    a(f"s_mul_i32 s{S_T1}, s{S_J}, 288")
    a(f"s_add_u32 s{S_T2}, s{S_T2}, s{S_T1}")
    srd(a, SRD_X, S_OUT, OUT_BYTES)
    return
def reducer_run(a, tag, single):
    W = R(SRD_WS)
    a(f"s_mov_b32 s{S_T3}, 0")
    a.label(f"L_RP{tag}")
    a(f"s_mov_b32 s{S_T1}, s{S_T0}")
    for xg in range(8):
        a(f"buffer_load_dwordx2 v[{R_D+2*xg}:{R_D+2*xg+1}], v{R_A}, {W}, s{S_T1} offen sc1")
        if xg < 7: a(f"s_add_u32 s{S_T1}, s{S_T1}, 2304")
    a(f"s_add_u32 s{S_T3}, s{S_T3}, 1")
    a(f"s_cmp_gt_u32 s{S_T3}, {SPIN}")
    a(f"s_cbranch_scc1 L_RPX{tag}")
    a("s_waitcnt vmcnt(0)")
    a(f"v_max3_u32 v{R_T}, v{R_D}, v{R_D+1}, v{R_D+2}")
    for i in range(3, 15, 2):
        a(f"v_max3_u32 v{R_T}, v{R_T}, v{R_D+i}, v{R_D+i+1}")
    a(f"v_max_u32 v{R_T}, v{R_T}, v{R_D+15}")
    a(f"v_cmp_eq_u32 vcc, -1, v{R_T}")
    a(f"s_cbranch_vccnz L_RP{tag}")
    a.label(f"L_RPX{tag}")
    a("s_waitcnt vmcnt(0)")
    for xg in range(8):
        for d in range(2):
            src = R_D + 2*xg + d
            dst = R_ACC if xg == 0 else R_T
            a(f"v_lshlrev_b32 v{dst+2*d}, 16, v{src}")
            a(f"v_and_b32 v{dst+2*d+1}, 0xffff0000, v{src}")
        if xg:
            for d in range(4): a(f"v_add_f32 v{R_ACC+d}, v{R_ACC+d}, v{R_T+d}")
    a(f"v_cvt_pk_bf16_f32 v{R_D}, v{R_ACC}, v{R_ACC+1}")
    a(f"v_cvt_pk_bf16_f32 v{R_D+1}, v{R_ACC+2}, v{R_ACC+3}")
    if single: a("s_mov_b32 exec_hi, 0")
    osc = " sc1" if 'osc1' in opt else (" nt" if 'ont' in opt else "")
    a(f"buffer_store_dwordx2 v[{R_D}:{R_D+1}], v{R_A+1}, {R(SRD_X)}, s{S_T2} offen{osc}")
    if single: a("s_mov_b32 exec_hi, -1")

L_W1, L_W2, L_X, L_H, L_T = 1, 6, 11, 13, 14
L_RHO, L_C16 = 20, 25
L_TV, L_PF, L_CK = 30, 32, 34

def issue_x(a):
    a(f"s_lshl_b32 s{S_T0}, s{S_P}, 7")
    a(f"s_mov_b32 m0, s{S_BDST}")
    a(f"s_add_u32 s{S_T0}, s{S_T0}, s{S_XROW}")
    a(f"buffer_load_dwordx4 v{L_X}, {R(SRD_X)}, s{S_T0} offen lds")
    a(f"s_add_u32 m0, m0, 1024")
    a(f"s_add_u32 s{S_BDST}, s{S_BDST}, 4096")
    a(f"buffer_load_dwordx4 v{L_X+1}, {R(SRD_X)}, s{S_T0} offen lds")
    a(f"s_cmp_eq_u32 s{S_BDST}, s{S_BEND}")
    a(f"s_cselect_b32 s{S_BDST}, s{S_BBEG}, s{S_BDST}")

def issue_w_one(a, i, vbase, srdreg):
    if i == 0: a(f"s_add_u32 m0, s{S_DSLOT}, s{S_WLDS}")
    else:      a(f"s_add_u32 m0, m0, 1024")
    a("s_mov_b32 exec_hi, 0" if i == 4 else "s_nop 0")
    a(f"buffer_load_dwordx4 v{vbase+i}, {R(srdreg)}, s{S_WOFF} offen lds")
    if i == 4: a("s_mov_b32 exec_hi, -1")
def slot_next(a):
    a(f"s_add_u32 s{S_DSLOT}, s{S_DSLOT}, {WST}")
    a(f"s_cmp_eq_u32 s{S_DSLOT}, {NSL*WST}")
    a(f"s_cselect_b32 s{S_DSLOT}, 0, s{S_DSLOT}")
def w1_off(a):
    a(f"s_mul_i32 s{S_WOFF}, s{S_P}, {64*9216}")
    a(f"s_add_u32 s{S_WOFF}, s{S_WOFF}, s{S_WCOL}")
def issue_touch(a):
    a(f"s_cmp_eq_u32 s{S_TN}, s{S_TST}")
    a(f"s_cselect_b32 s{S_TOFF}, s{S_TREAL}, 0x70000000")
    a(f"s_add_u32 s{S_TN}, s{S_TN}, 1")
    a(f"buffer_load_dword v{L_TV+1}, v{L_TV}, {R(SRD_W2)}, s{S_TOFF} offen")
L_FS = 36
S_FU, S_FB = 98, 99
def spread(): return 'spread' in opt
def issue_fill(a):
    a(f"s_cmp_lt_u32 s{S_FU}, {18*1024}")
    a(f"s_cselect_b32 s{S_T0}, s{S_FU}, 0x60000000")
    a(f"s_add_u32 s{S_T0}, s{S_T0}, s{S_FB}")
    a(f"s_add_u32 s{S_FU}, s{S_FU}, 4096")
    a(f"buffer_store_dwordx4 v[{L_FS}:{L_FS+3}], v{L_H}, {R(SRD_WS)}, s{S_T0} offen sc1")
def issue_stage1(a):
    issue_x(a)
    w1_off(a)
    for i in range(5): issue_w_one(a, i, L_W1, SRD_W1)
    slot_next(a)
    wrap(a, S_P, 1, 9)
    issue_touch(a)
    if spread(): issue_fill(a)
def issue_w2(a):
    a(f"s_mul_i32 s{S_WOFF}, s{S_KAP}, {16*1152}")
    a(f"s_add_u32 s{S_WOFF}, s{S_WOFF}, s{S_W2B}")
    for i in range(5): issue_w_one(a, i, L_W2, SRD_W2)
    slot_next(a)
    wrap(a, S_KAP, 4, 36)
def issue_h(a):
    a(f"s_lshl_b32 s{S_HOFF}, s{S_KH}, 10")
    a(f"s_mov_b32 m0, s{S_HDST}")
    a(f"s_add_u32 s{S_HOFF}, s{S_HOFF}, s{S_HB}")
    a(f"buffer_load_dwordx4 v{L_H}, {R(SRD_WS)}, s{S_HOFF} offen sc1 lds")
    a(f"s_add_u32 m0, m0, {MHB}")
    a(f"s_add_u32 s{S_HOFF}, s{S_HOFF}, {MHS}")
    a(f"buffer_load_dwordx4 v{L_H}, {R(SRD_WS)}, s{S_HOFF} offen sc1 lds")
    a(f"s_add_u32 s{S_HDST}, s{S_HDST}, 4096")
    a(f"s_cmp_eq_u32 s{S_HDST}, s{S_BEND}")
    a(f"s_cselect_b32 s{S_HDST}, s{S_BBEG}, s{S_HDST}")
    wrap(a, S_KH, 4, 36)

def w_voff(a, i):
    t0, t1 = L_T, L_T+1
    a(f"v_add_u32 v{t0}, {64*i}, v0")
    a(f"v_mul_u32_u24 v{t1}, 3641, v{t0}")
    a(f"v_lshrrev_b32 v{L_RHO+i}, 16, v{t1}")
    a(f"v_lshlrev_b32 v{t0}, 4, v{t0}")
    a(f"v_mad_i32_i24 v{L_C16+i}, v{L_RHO+i}, s{S_T1}, v{t0}")
    a(f"v_and_b32 v{t1}, 0xfc, v{L_RHO+i}")
    a(f"v_add_u32 v{t1}, v{t1}, v{L_RHO+i}")
    a(f"v_mad_u32_u24 v{L_W1+i}, v{t1}, s{S_T2}, v{L_C16+i}")
def w2_voffs(a):
    t0, t1 = L_T, L_T+1
    a(f"s_movk_i32 s{S_T2}, 1152")
    for i in range(5):
        a(f"v_and_b32 v{t0}, 1, v{L_RHO+i}")
        a(f"v_lshrrev_b32 v{t1}, 3, v{L_RHO+i}")
        a(f"v_lshlrev_b32 v{t1}, 2, v{t1}")
        a(f"v_lshl_add_u32 v{t1}, v{t0}, 3, v{t1}")
        a(f"v_bfe_u32 v{t0}, v{L_RHO+i}, 1, 2")
        a(f"v_add_u32 v{t1}, v{t1}, v{t0}")
        a(f"v_mad_u32_u24 v{L_W2+i}, v{t1}, s{S_T2}, v{L_C16+i}")

def loader_fill(a):
    W = R(SRD_WS)
    a(f"s_mul_i32 s{S_T1}, s{S_CW}, 4608")
    a(f"s_add_u32 s{S_T0}, s{S_INB}, s{S_T1}")
    for i in range(4):
        a(f"buffer_store_dwordx4 v[{L_FS}:{L_FS+3}], v{L_H}, {W}, s{S_T0} offen offset:{1024*i} sc1")
    a(f"s_add_u32 s{S_T0}, s{S_T0}, 4096")
    a(f"buffer_store_dwordx4 v[{L_FS}:{L_FS+3}], v{L_FS+4}, {W}, s{S_T0} offen sc1")

def loader(a):
    a.label("L_LOADER")
    if 'lprio' in opt: a("s_setprio 3")
    t0, t1, t2 = L_T, L_T+1, L_T+2
    a(f"v_lshrrev_b32 v{t0}, 3, v0")
    a(f"v_lshrrev_b32 v{t1}, 4, v0")
    a(f"v_and_b32 v{t2}, 7, v0")
    a(f"v_xor_b32 v{t1}, v{t1}, v{t2}")
    a(f"v_lshlrev_b32 v{t1}, 4, v{t1}")
    a(f"v_mul_u32_u24 v{t0}, 1152, v{t0}")
    a(f"v_add_u32 v{L_X}, v{t0}, v{t1}")
    a(f"v_xor_b32 v{t1}, 64, v{t1}")
    a(f"v_add_u32 v{t0}, {8*1152}, v{t0}")
    a(f"v_add_u32 v{L_X+1}, v{t0}, v{t1}")
    a(f"s_lshl_b32 s{S_T0}, s{S_MT}, 2")
    a(f"s_add_u32 s{S_T0}, s{S_T0}, s{S_CW}")
    a(f"s_mul_i32 s{S_XROW}, s{S_T0}, {16*1152}")
    a(f"s_lshr_b32 s{S_T0}, s{S_CW}, 1")
    a(f"s_mul_i32 s{S_BDST}, s{S_T0}, {MHB}")
    a(f"s_and_b32 s{S_T0}, s{S_CW}, 1")
    a(f"s_lshl_b32 s{S_T0}, s{S_T0}, 11")
    a(f"s_add_u32 s{S_BDST}, s{S_BDST}, s{S_T0}")
    a(f"s_add_u32 s{S_BDST}, s{S_BDST}, {LB}")
    a(f"s_mov_b32 s{S_BBEG}, s{S_BDST}")
    a(f"s_add_u32 s{S_BEND}, s{S_BDST}, {NBP*4096}")
    if 'norot' in opt: a(f"s_mov_b32 s{S_P}, 0")
    else:
        a(f"s_lshl_b32 s{S_P}, s{S_J}, 1")
        wrap_reg = S_P
        a(f"s_add_u32 s{S_P}, s{S_P}, s{S_MT}")
        a(f"s_sub_u32 s{S_T0}, s{S_P}, 9")
        a(f"s_cmp_ge_u32 s{S_P}, 9")
        a(f"s_cselect_b32 s{S_P}, s{S_T0}, s{S_P}")
    a(f"s_mul_i32 s{S_WCOL}, s{S_XG}, 1152")
    a(f"s_mul_i32 s{S_T0}, s{S_J}, 288")
    a(f"s_add_u32 s{S_WCOL}, s{S_WCOL}, s{S_T0}")
    a(f"s_lshr_b32 s{S_T0}, s{S_CW}, 1")
    a(f"s_lshl_b32 s{S_T0}, s{S_T0}, 3")
    a(f"s_and_b32 s{S_T1}, s{S_CW}, 1")
    a(f"s_add_u32 s{S_T0}, s{S_T0}, s{S_T1}")
    a(f"s_mul_i32 s{S_T0}, s{S_T0}, {4*9216}")
    a(f"s_add_u32 s{S_WCOL}, s{S_WCOL}, s{S_T0}")
    a(f"s_mul_i32 s{S_WLDS}, s{S_CW}, 4608")
    a(f"s_mov_b32 s{S_DSLOT}, 0")
    a(f"s_movk_i32 s{S_T1}, -288")
    a(f"s_movk_i32 s{S_T2}, 9216")
    w_voff(a, 0)
    a("s_waitcnt lgkmcnt(0)")
    srd(a, SRD_X, S_X, X_BYTES)
    srd(a, SRD_W1, S_W1, W_BYTES)
    stamp(a, 1)
    issue_x(a)
    w1_off(a)
    issue_w_one(a, 0, L_W1, SRD_W1)
    for i in range(1, 5):
        w_voff(a, i)
        issue_w_one(a, i, L_W1, SRD_W1)
    slot_next(a)
    wrap(a, S_P, 1, 9)
    srd(a, SRD_W2, S_W2, W_BYTES)
    a(f"s_lshl_b32 s{S_T0}, s{S_MT}, 2")
    a(f"s_add_u32 s{S_T0}, s{S_T0}, s{S_J}")
    a(f"s_mul_i32 s{S_T0}, s{S_T0}, 162")
    a(f"s_mul_i32 s{S_T1}, s{S_CW}, 41")
    a(f"s_add_u32 s{S_T0}, s{S_T0}, s{S_T1}")
    a(f"s_lshl_b32 s{S_T0}, s{S_T0}, 7")
    a(f"s_mul_i32 s{S_W2B}, s{S_XG}, {576*1152}")
    a(f"s_add_u32 s{S_TREAL}, s{S_T0}, s{S_W2B}")
    a(f"v_min_u32 v{L_TV}, 40, v0")
    a(f"v_lshlrev_b32 v{L_TV}, 7, v{L_TV}")
    a(f"s_mov_b32 s{S_TN}, 1")
    if 'tst2' in opt:
        a(f"s_add_u32 s{S_TST}, s{S_MT}, 2")
        a(f"s_min_u32 s{S_TST}, s{S_TST}, 8")
    elif 'tst3' in opt:
        a(f"s_add_u32 s{S_TST}, s{S_MT}, 3")
        a(f"s_min_u32 s{S_TST}, s{S_TST}, 8")
    elif 'tsth' in opt:
        a(f"s_lshr_b32 s{S_TST}, s{S_MT}, 1")
        a(f"s_add_u32 s{S_TST}, s{S_TST}, 5")
    else:
        a(f"s_add_u32 s{S_TST}, s{S_MT}, 1")
    if spread():
        srd(a, SRD_WS, S_WS, WS_BYTES)
        a(f"v_lshlrev_b32 v{L_H}, 4, v0")
        for i in range(4): a(f"v_mov_b32 v{L_FS+i}, -1")
        inbox_block(a, S_FB)
        a(f"s_mul_i32 s{S_T1}, s{S_XG}, 18432")
        a(f"s_add_u32 s{S_FB}, s{S_FB}, s{S_T1}")
        fstart = 1
        for o in opt:
            if o.startswith('fs'): fstart = int(o[2])
        a(f"s_lshl_b32 s{S_FU}, s{S_CW}, 10")
        a(f"s_sub_u32 s{S_FU}, s{S_FU}, {4096*fstart}")
    issue_stage1(a)
    stamp(a, 2)
    srd(a, SRD_WS, S_WS, WS_BYTES)
    srd(a, SRD_DBG, S_DBG, 256)
    w2_voffs(a)
    group_bases(a)
    a(f"s_mul_i32 s{S_T0}, s{S_J}, 288")
    a(f"s_add_u32 s{S_W2B}, s{S_W2B}, s{S_T0}")
    a(f"s_mul_i32 s{S_KAP}, s{S_J}, 9")
    a(f"s_add_u32 s{S_KAP}, s{S_KAP}, s{S_CW}")
    a(f"s_add_u32 s{S_KH}, s{S_KAP}, 8")
    a(f"s_sub_u32 s{S_T0}, s{S_KH}, 36")
    a(f"s_cmp_ge_u32 s{S_KH}, 36")
    a(f"s_cselect_b32 s{S_KH}, s{S_T0}, s{S_KH}")
    a(f"s_lshl_b32 s{S_HDST}, s{S_CW}, 10")
    a(f"s_add_u32 s{S_HDST}, s{S_HDST}, {LB + 2*4096}")
    a(f"v_lshlrev_b32 v{L_H}, 4, v0")
    inbox_block(a, S_INB)
    a(f"s_mul_i32 s{S_T1}, s{S_XG}, 18432")
    a(f"s_add_u32 s{S_INB}, s{S_INB}, s{S_T1}")
    if FSPLIT():
        a(f"v_bfe_u32 v{L_PF}, v0, 2, 2")
        a(f"v_lshlrev_b32 v{L_PF}, 6, v{L_PF}")
        a(f"v_and_b32 v{L_PF+1}, 3, v0")
        a(f"v_lshl_add_u32 v{L_PF}, v{L_PF+1}, 2, v{L_PF}")
    else:
        a(f"v_and_b32 v{L_PF}, 15, v0")
        a(f"v_lshlrev_b32 v{L_PF}, 2, v{L_PF}")
    a(f"v_lshrrev_b32 v{L_CK}, 2, v0")
    a(f"v_and_b32 v{L_CK}, 7, v{L_CK}")
    a(f"v_lshlrev_b32 v{L_CK}, {11 if FSPLIT() else 10}, v{L_CK}")
    a(f"v_and_b32 v{L_CK+1}, 3, v0")
    a(f"v_lshl_add_u32 v{L_CK}, v{L_CK+1}, 2, v{L_CK}")
    a(f"s_lshl_b32 s{S_CK}, s{S_MT}, {8 if FSPLIT() else 7}")
    a(f"s_lshl_b32 s{S_T0}, s{S_J}, {6 if FSPLIT() else 4}")
    a(f"s_add_u32 s{S_CK}, s{S_CK}, s{S_T0}")
    a(f"s_add_u32 s{S_CK}, s{S_CK}, {FLAG_OFF + (FLAG2_D if FILLM() else 0)}")
    if FILL8():
        for i in range(4): a(f"v_mov_b32 v{L_FS+i}, -1")
        a(f"v_min_u32 v{L_FS+4}, 31, v0")
        a(f"v_lshlrev_b32 v{L_FS+4}, 4, v{L_FS+4}")
    a("s_waitcnt vmcnt(%d)" % (9 if spread() else 8))
    a("s_barrier")
    stamp(a, 3)
    issue_stage1(a)
    a(f"s_mov_b32 s{S_N}, 0")
    a.label("L_LD1")
    a("s_waitcnt vmcnt(%d)" % (11 if spread() else 9))
    a("s_barrier")
    issue_stage1(a)
    a(f"s_add_u32 s{S_N}, s{S_N}, 1")
    a(f"s_cmp_lt_u32 s{S_N}, 6")
    a("s_cbranch_scc1 L_LD1")
    tail = 2 if spread() else 1
    q = [("st7", 7), ("x7", tail), ("st8", 7), ("x8", tail)]
    def iss(name, cnt, fn):
        fn(); q.append((name, cnt))
    def wait(*names):
        idx = [i for i, (nm, c) in enumerate(q) if nm in names]
        last = max(idx) if idx else -1
        n = sum(c for nm, c in q[last+1:])
        a("s_waitcnt vmcnt(%d)" % n)
    def drained(): q.clear()
    nW = [0]; nH = [2]
    def Wn():
        n = nW[0]; iss(f"W{n}", 5, lambda: issue_w2(a)); nW[0] += 1
    def Hn():
        n = nH[0]; iss(f"h{n}", 2, lambda: issue_h(a)); nH[0] += 1
    sch = (0, 1, 1, 1, 1)
    for o in opt:
        if o.startswith('sch'): sch = tuple(int(c) for c in o[3:8])
    a(f"s_mov_b32 s{S_DSLOT}, {4*WST}")
    a(f"s_lshl_b32 s{S_BBEG}, s{S_CW}, 10")
    a(f"s_add_u32 s{S_BBEG}, s{S_BBEG}, {LB}")
    a(f"s_add_u32 s{S_BEND}, s{S_BBEG}, {NBP*4096}")
    fat = 8
    for o in opt:
        if o.startswith('fat'): fat = int(o[3])
    if FILL8() and fat == 8: iss("fill", 5, lambda: loader_fill(a))
    wait("st7")
    a("s_barrier")
    if FILL8() and fat == 7: iss("fill", 5, lambda: loader_fill(a))
    for _ in range(sch[0]): Wn()
    assert nW[0] <= 2
    wait("st8")
    a("s_barrier")
    for _ in range(sch[1]): Wn()
    assert nW[0] <= 3
    a("s_barrier")
    stamp(a, 4)
    for _ in range(sch[2]): Wn()
    assert nW[0] >= 1
    a(f"buffer_load_dword v{L_T}, off, {R(SRD_DBG)}, 0 sc1"); q.append(("pub", 1))
    a(f"s_lshl_b32 s{S_T2}, s{S_GRP}, {6 if FSPLIT() else 5}")
    a(f"s_add_u32 s{S_T2}, s{S_T2}, {FLAG_OFF}")
    wait("W0", "fill")
    a("s_barrier")
    stamp(a, 5)
    for _ in range(sch[3]): Wn()
    assert nW[0] >= 2
    wait("W1")
    a("s_barrier")
    for _ in range(sch[4]): Wn()
    assert nW[0] <= 6
    poll_pub(a, "L", L_T, preloaded=True); drained()
    poll_ones(a, "F", L_T, L_PF, S_T2)
    stamp(a, 6)
    Hn(); Hn()
    if 'hearly' in opt: Hn()
    if nW[0] <= 2: Wn()
    wait("h2", "W2")
    a("s_barrier")
    stamp(a, 7)
    for s in range(3, 9):
        k = 0
        while nH[0] <= 8 and (nH[0] <= 4 or nH[0] <= s + 2) and nH[0] <= s + (2 if 'hearly' in opt else 1):
            Hn()
        while nW[0] <= 8 and (nW[0] <= 5 or nW[0] <= s + 3) and (nW[0] <= s or k < 1):
            Wn(); k += 1
        if s == 6:
            iss("chk", 1, lambda: a(f"buffer_load_dword v{L_CK+1}, v{L_CK}, {R(SRD_WS)}, s{S_CK} offen sc1"))
        if s == 8:
            a("s_waitcnt vmcnt(0)")
            a(f"v_cmp_ne_u32 vcc, 1, v{L_CK+1}")
            a("s_cbranch_vccz L_POXK")
            poll_ones(a, "K", L_CK+1, L_CK, S_CK)
            drained()
        assert nW[0] > s and nH[0] > s, (s, nW, nH)
        wait(f"h{s}", f"W{s}")
        a("s_barrier")
    stamp(a, 8)
    reducer(a, "L", single=False)
    a("s_barrier")
    reducer_run(a, "L", single=False)
    stamp(a, 9)
    dump_stamps(a, 1, 10, "LD", 4)
    a("s_endpgm")

C_A32, C_A8 = 2, 124
C_B32, C_B8 = 6, 10
C_T = 12
SETS = (16, 48)
ACC = 80
C_E = 116
C_P2 = 128

def reads_step(st, n, s0):
    sl = n % NSL
    A32 = C_A32 + (sl >> 1); A8 = C_A8 + (sl >> 1)
    base = (sl & 1)*WST + s0*9216
    bo = (n % NBP)*4096
    def a32(c, kh):
        d = st + (kh*2 + c)*4
        off = base + kh*4608 + 64*c
        return [f"ds_read_b64_tr_b16 v[{d}:{d+1}], v{A32} offset:{off}",
                f"ds_read_b64_tr_b16 v[{d+2}:{d+3}], v{A32} offset:{off+288}"]
    def b32(kh):
        d = st + 20 + 4*kh
        return [f"ds_read_b128 v[{d}:{d+3}], v{C_B32 + 2*s0 + kh} offset:{bo}"]
    ins = b32(0) + a32(0, 0) + a32(1, 0) + b32(1) + a32(0, 1) + a32(1, 1)
    ins.append(f"ds_read_b128 v[{st+28}:{st+31}], v{C_B8 + s0} offset:{bo}")
    ins.append(f"ds_read_b64_tr_b16 v[{st+16}:{st+17}], v{A8} offset:{base}")
    ins.append(f"ds_read_b64_tr_b16 v[{st+18}:{st+19}], v{A8} offset:{base+288}")
    return ins

def mfmas(st):
    out = []
    for kh in range(2):
        for c in range(2):
            acc = ACC + 16*c
            A = st + (kh*2 + c)*4; B = st + 20 + 4*kh
            out.append(f"v_mfma_f32_32x32x16_bf16 v[{acc}:{acc+15}], v[{A}:{A+3}], v[{B}:{B+3}], v[{acc}:{acc+15}]")
    out.append(f"v_mfma_f32_16x16x32_bf16 v[{ACC+32}:{ACC+35}], v[{st+16}:{st+19}], v[{st+28}:{st+31}], v[{ACC+32}:{ACC+35}]")
    return out

def reads_step1(st, n, s0):
    sl = n % NSL
    A = C_A32 + (sl >> 1); A8 = C_A8 + (sl >> 1)
    base = (sl & 1)*WST + s0*9216
    bo = (n % NBP)*4096
    def at(t):
        return [f"ds_read_b64_tr_b16 v[{st+4*t}:{st+4*t+1}], v{A} offset:{base+32*t}",
                f"ds_read_b64_tr_b16 v[{st+4*t+2}:{st+4*t+3}], v{A} offset:{base+4608+32*t}"]
    ins = [f"ds_read_b128 v[{st+20}:{st+23}], v{C_B32+s0} offset:{bo}"] + at(0)
    ins.append(f"ds_read_b128 v[{st+24}:{st+27}], v{C_B32+s0} offset:{bo+2048}")
    ins += at(1) + at(2) + at(3)
    ins.append(f"ds_read_b128 v[{st+28}:{st+31}], v{C_B8+s0} offset:{bo}")
    ins.append(f"ds_read_b64_tr_b16 v[{st+16}:{st+17}], v{A8} offset:{base}")
    ins.append(f"ds_read_b64_tr_b16 v[{st+18}:{st+19}], v{A8} offset:{base+4608}")
    return ins
def mfmas1(st):
    out = []
    def m(acc, A, B): return f"v_mfma_f32_16x16x32_bf16 v[{acc}:{acc+3}], v[{A}:{A+3}], v[{B}:{B+3}], v[{acc}:{acc+3}]"
    for t in range(4):
        out.append(m(ACC + 4*t, st + 4*t, st + 20))
        out.append(m(ACC + 16 + 4*t, st + 4*t, st + 24))
    out.append(m(ACC + 32, st + 16, st + 28))
    return out
NEED1 = {0: 4, 2: 6, 4: 8, 6: 10, 8: 13}
PAT1 = [2, 1, 2, 1, 2, 1, 2, 1, 1]
def block1(a, r, m):
    k = 0
    for u in range(9):
        if u in NEED1: a(f"s_waitcnt lgkmcnt({13 - NEED1[u] + k})")
        a(m[u])
        if r:
            for _ in range(PAT1[u]):
                a(r[k]); k += 1
def publish(a, lab):
    a(f"s_lshl_b32 s{S_T1}, s2, 2")
    a(f"s_or_b32 s{S_T1}, s{S_T1}, s{S_CW}")
    a(f"s_cmp_eq_u32 s{S_T1}, 0")
    a(f"s_cbranch_scc0 {lab}")
    a(f"v_mov_b32 v{C_T}, 1")
    a("s_mov_b64 exec, 1")
    a(f"buffer_store_dword v{C_T}, off, {R(SRD_DBG)}, 0 sc1")
    a("s_mov_b64 exec, -1")
    a.label(lab)
def body1(a):
    for n in range(9):
        block1(a, reads_step1(SETS[1], n, 1), mfmas1(SETS[0]))
        if n == 1 and 'latepub' in opt:
            a("s_cmp_eq_u32 s2, 0")
            a("s_cbranch_scc0 L_NW0")
            a("s_waitcnt vmcnt(0)")
            a.label("L_NW0")
        if n < 8:
            a("s_barrier")
            if n == 1 and 'latepub' in opt: publish(a, "L_PUB0")
            if 'diag' in opt:
                a("s_memtime s[96:97]\ns_waitcnt lgkmcnt(0)")
                a(f"s_mov_b32 s{60+n}, s96")
            block1(a, reads_step1(SETS[0], n+1, 0), mfmas1(SETS[1]))
        else:
            block1(a, None, mfmas1(SETS[1]))
            if 'diag' in opt:
                a("s_memtime s[96:97]\ns_waitcnt lgkmcnt(0)")
                a(f"s_mov_b32 s68, s96")

NEED = [3, 5, 8, 10, 13]
def block(a, r, m):
    k = 0
    for u in range(5):
        a(f"s_waitcnt lgkmcnt({13 - NEED[u] + k})")
        a(m[u])
        if r:
            for _ in range(3 if u < 4 else 1):
                a(r[k]); k += 1

def body(a):
    for n in range(9):
        block(a, reads_step(SETS[1], n, 1), mfmas(SETS[0]))
        if n == 1:
            poll_pub(a, "C", C_T, preloaded=True)
            a("s_mov_b64 exec, 1")
            a(f"buffer_store_dword v{C_T+3}, off, {R(SRD_WS)}, s{S_FLG} sc1")
            a("s_mov_b64 exec, -1")
            if FILLM(): compute_fill(a)
        fp = 4
        for o in opt:
            if o.startswith('fp'): fp = int(o[2])
        if n == fp and FILLM():
            a("s_waitcnt vmcnt(0)")
            a(f"s_add_u32 s{S_FLG}, s{S_FLG}, {FLAG2_D}")
            a("s_mov_b64 exec, 1")
            a(f"buffer_store_dword v{C_T+3}, off, {R(SRD_WS)}, s{S_FLG} sc1")
            a("s_mov_b64 exec, -1")
        if n < 8:
            a("s_barrier")
            if 'diag' in opt:
                a("s_memtime s[96:97]\ns_waitcnt lgkmcnt(0)")
                a(f"s_mov_b32 s{70+n}, s96")
            block(a, reads_step(SETS[0], n+1, 0), mfmas(SETS[1]))
        else:
            block(a, None, mfmas(SETS[1]))
            if 'diag' in opt:
                a("s_memtime s[96:97]\ns_waitcnt lgkmcnt(0)")
                a(f"s_mov_b32 s78, s96")

def zero_acc(a):
    for i in range(0, 36, 2): a(f"v_pk_mov_b32 v[{ACC+i}:{ACC+i+1}], 0, 0")

def silu4(a, x, e):
    for r in (0, 2): a(f"v_pk_mul_f32 v[{e+r}:{e+r+1}], v[{x+r}:{x+r+1}], s[{S_K}:{S_K+1}]")
    for r in range(4): a(f"v_exp_f32 v{e+r}, v{e+r}")
    for r in (0, 2): a(f"v_pk_add_f32 v[{e+r}:{e+r+1}], v[{e+r}:{e+r+1}], 1.0 op_sel_hi:[1,0]")
    for r in range(4): a(f"v_rcp_f32 v{e+r}, v{e+r}")
    for r in (0, 2): a(f"v_pk_mul_f32 v[{x+r}:{x+r+1}], v[{x+r}:{x+r+1}], v[{e+r}:{e+r+1}]")

def compute_fill(a):
    W = R(SRD_WS)
    a(f"s_mul_i32 s{S_T1}, s{S_CW}, 4608")
    a(f"s_add_u32 s{S_T0}, s{S_INB}, s{S_T1}")
    for i in range(4): a(f"v_mov_b32 v{C_E+4+i}, -1")
    a(f"v_lshlrev_b32 v{C_E}, 4, v0")
    a(f"v_min_u32 v{C_E+1}, 31, v0")
    a(f"v_lshlrev_b32 v{C_E+1}, 4, v{C_E+1}")
    for i in range(4):
        a(f"buffer_store_dwordx4 v[{C_E+4}:{C_E+7}], v{C_E}, {W}, s{S_T0} offen offset:{1024*i} sc1")
    a(f"s_add_u32 s{S_T0}, s{S_T0}, 4096")
    a(f"buffer_store_dwordx4 v[{C_E+4}:{C_E+7}], v{C_E+1}, {W}, s{S_T0} offen sc1")

def compute(a):
    DIAGC[0] = True
    t0, t1, t2, t3 = C_T, C_T+1, C_T+2, C_T+3
    W = R(SRD_WS)
    a(f"s_and_b32 s{S_T0}, s{S_CW}, 1")
    a(f"s_lshr_b32 s{S_T1}, s{S_CW}, 1")
    a(f"v_lshrrev_b32 v{t0}, 2, v0")
    a(f"v_mul_u32_u24 v{t0}, 288, v{t0}")
    a(f"v_and_b32 v{t1}, 3, v0")
    a(f"v_lshl_add_u32 v{t0}, v{t1}, 3, v{t0}")
    a(f"v_add_u32 v{C_A8}, 256, v{t0}")
    a(f"v_add_u32 v{C_A8+1}, {2*WST}, v{C_A8}")
    a(f"v_add_u32 v{C_A8+2}, {4*WST}, v{C_A8}")
    a(f"s_lshl_b32 s{S_T2}, s{S_T0}, 7")
    a(f"v_add_u32 v{C_A32}, s{S_T2}, v{t0}")
    a(f"v_add_u32 v{C_A32+1}, {2*WST}, v{C_A32}")
    a(f"v_add_u32 v{C_A32+2}, {4*WST}, v{C_A32}")
    a(f"v_bfe_u32 v{t0}, v0, 2, 2")
    a(f"v_mul_u32_u24 v{t0}, 576, v{t0}")
    a(f"v_lshl_add_u32 v{t0}, v{t1}, 3, v{t0}")
    a(f"v_lshrrev_b32 v{t1}, 4, v0")
    a(f"v_mul_u32_u24 v{t2}, 2304, v{t1}")
    a(f"v_add_u32 v{t2}, v{t2}, v{t0}")
    a(f"v_add_u32 v{C_P2+1}, 256, v{t2}")
    a(f"v_lshrrev_b32 v{t2}, 5, v0")
    a(f"v_mul_u32_u24 v{t2}, 2304, v{t2}")
    a(f"v_add_u32 v{t0}, v{t0}, v{t2}")
    a(f"v_and_b32 v{t1}, 1, v{t1}")
    a(f"v_lshl_add_u32 v{t0}, v{t1}, 5, v{t0}")
    a(f"s_lshl_b32 s{S_T2}, s{S_T0}, 7")
    a(f"v_add_u32 v{C_P2}, s{S_T2}, v{t0}")
    a(f"s_mul_i32 s{S_T1}, s{S_T1}, {MHB}")
    a(f"s_add_u32 s{S_T1}, s{S_T1}, {LB}")
    a(f"v_and_b32 v{t0}, 15, v0")
    a(f"v_lshrrev_b32 v{t1}, 1, v{t0}")
    a(f"v_lshlrev_b32 v{t0}, 7, v{t0}")
    a(f"v_add_u32 v{t0}, s{S_T1}, v{t0}")
    a(f"v_lshrrev_b32 v{t3}, 4, v0")
    a(f"v_xor_b32 v{t3}, v{t3}, v{t1}")
    a(f"v_lshlrev_b32 v{t3}, 4, v{t3}")
    a(f"v_add_u32 v{C_B32}, v{t0}, v{t3}")
    a(f"v_xor_b32 v{t3}, 64, v{t3}")
    a(f"v_add_u32 v{C_B32+1}, v{t0}, v{t3}")
    a(f"s_lshl_b32 s{S_T2}, s{S_T0}, 11")
    a(f"v_add_u32 v{C_B8}, s{S_T2}, v{C_B32}")
    a(f"v_add_u32 v{C_B8+1}, s{S_T2}, v{C_B32+1}")
    zero_acc(a)
    group_bases(a)
    inbox_block(a, S_PA)
    a(f"s_mul_i32 s{S_T0}, s{S_XG}, 18432")
    a(f"s_add_u32 s{S_INB}, s{S_PA}, s{S_T0}")
    a(f"s_mul_i32 s{S_T0}, s{S_XG}, 2304")
    a(f"s_add_u32 s{S_PA}, s{S_PA}, s{S_T0}")
    a(f"s_mul_i32 s{S_T0}, s{S_CW}, {2*18432}")
    a(f"s_add_u32 s{S_PS}, s{S_PA}, s{S_T0}")
    a(f"s_add_u32 s{S_PS}, s{S_PS}, 2048")
    a(f"s_lshr_b32 s{S_T0}, s{S_CW}, 1")
    a(f"s_mul_i32 s{S_T0}, s{S_T0}, {4*18432}")
    a(f"s_add_u32 s{S_PA}, s{S_PA}, s{S_T0}")
    a(f"s_and_b32 s{S_T0}, s{S_CW}, 1")
    a(f"s_lshl_b32 s{S_T0}, s{S_T0}, 10")
    a(f"s_add_u32 s{S_PA}, s{S_PA}, s{S_T0}")
    a(f"s_lshr_b32 s{S_T0}, s{S_CW}, 1")
    a(f"s_mul_i32 s{S_T0}, s{S_T0}, {MHS}")
    a(f"s_add_u32 s{S_T0}, s{S_T0}, s{S_HB}")
    a(f"s_mul_i32 s{S_T1}, s{S_J}, {9*1024}")
    a(f"s_add_u32 s{S_T0}, s{S_T0}, s{S_T1}")
    a(f"s_and_b32 s{S_T1}, s{S_CW}, 1")
    a(f"s_lshl_b32 s{S_T2}, s{S_T1}, 12")
    a(f"s_add_u32 s{S_HST}, s{S_T0}, s{S_T2}")
    a(f"s_lshl_b32 s{S_T2}, s{S_T1}, 8")
    a(f"s_add_u32 s{S_HSP}, s{S_T0}, s{S_T2}")
    a(f"s_add_u32 s{S_HSP}, s{S_HSP}, {8*1024}")
    a(f"s_lshl_b32 s{S_FLG}, s{S_GRP}, {6 if FSPLIT() else 5}")
    a(f"s_lshl_b32 s{S_T0}, s{S_J}, {4 if FSPLIT() else 2}")
    a(f"s_add_u32 s{S_T0}, s{S_T0}, s{S_CW}")
    a(f"s_lshl_b32 s{S_T0}, s{S_T0}, 2")
    a(f"s_add_u32 s{S_FLG}, s{S_FLG}, s{S_T0}")
    a(f"s_add_u32 s{S_FLG}, s{S_FLG}, {FLAG_OFF}")
    a(f"s_mov_b32 s{S_K}, 0xbfb8aa3b")
    a(f"s_mov_b32 s{S_K+1}, 0xbfb8aa3b")
    a(f"s_mov_b32 s{S_PH}, 0")
    a("s_waitcnt lgkmcnt(0)")
    srd(a, SRD_WS, S_WS, WS_BYTES)
    srd(a, SRD_DBG, S_DBG, 256)
    a(f"v_lshlrev_b32 v{C_E}, 4, v0")
    if not spread() and not FILLM() and not FILL8():
        a(f"s_mul_i32 s{S_T1}, s{S_CW}, 4608")
        a(f"s_add_u32 s{S_T0}, s{S_INB}, s{S_T1}")
        for i in range(4): a(f"v_mov_b32 v{C_E+4+i}, -1")
        a(f"v_lshlrev_b32 v{C_E}, 4, v0")
        a(f"v_min_u32 v{C_E+1}, 31, v0")
        a(f"v_lshlrev_b32 v{C_E+1}, 4, v{C_E+1}")
        for i in range(4):
            a(f"buffer_store_dwordx4 v[{C_E+4}:{C_E+7}], v{C_E}, {W}, s{S_T0} offen offset:{1024*i} sc1")
        a(f"s_add_u32 s{S_T0}, s{S_T0}, 4096")
        a(f"buffer_store_dwordx4 v[{C_E+4}:{C_E+7}], v{C_E+1}, {W}, s{S_T0} offen sc1")
    a(f"s_cmp_eq_u32 s2, 0")
    a("s_cbranch_scc0 L_NOCLR")
    nkb = 8 if FILLM() else (4 if FSPLIT() else 2)
    a(f"s_mul_i32 s{S_T0}, s{S_CW}, {1024*nkb}")
    a(f"s_add_u32 s{S_T0}, s{S_T0}, {FLAG_OFF}")
    a(f"v_pk_mov_b32 v[{SETS[1]}:{SETS[1]+1}], 0, 0\nv_pk_mov_b32 v[{SETS[1]+2}:{SETS[1]+3}], 0, 0")
    for i in range(nkb):
        if i == 4: a(f"s_add_u32 s{S_T0}, s{S_T0}, 4096")
        a(f"buffer_store_dwordx4 v[{SETS[1]}:{SETS[1]+3}], v{C_E}, {W}, s{S_T0} offen offset:{1024*(i%4)} sc1")
    if 'latepub' not in opt:
        a("s_waitcnt vmcnt(0)")
    a.label("L_NOCLR")
    a("s_barrier")
    if 'clk1' in opt: a("s_memtime s[100:101]")
    stampw(a, 1)
    for ins in reads_step1(SETS[0], 0, 0): a(ins)
    if 'latepub' not in opt: publish(a, "L_BODY0")
    a.label("L_BODY")
    body1(a)
    a("s_barrier")
    stamp(a, 2)
    if 'clk1' in opt:
        a("s_memtime s[96:97]\ns_waitcnt lgkmcnt(0)\ns_sub_u32 s78, s96, s100\ns_mov_b32 s79, 0")
    a("s_waitcnt vmcnt(0)")
    a(f"buffer_load_dword v{t0}, off, {R(SRD_DBG)}, 0 sc1")
    a(f"v_lshlrev_b32 v{t1}, 4, v0")
    a(f"s_lshr_b32 s{S_T0}, s{S_CW}, 1")
    a(f"s_mul_i32 s{S_T0}, s{S_T0}, {MHB}")
    a(f"s_add_u32 s{S_T0}, s{S_T0}, {LB}")
    a(f"s_and_b32 s{S_T1}, s{S_CW}, 1")
    a(f"s_lshl_b32 s{S_T2}, s{S_T1}, 12")
    a(f"s_add_u32 s{S_T2}, s{S_T2}, s{S_T0}")
    a(f"v_add_u32 v{t2}, s{S_T2}, v{t1}")
    P = SETS[0]
    x = ACC + 32
    silu4(a, x, C_E)
    a(f"v_cvt_pk_bf16_f32 v{P+16}, v{x}, v{x+1}")
    a(f"v_cvt_pk_bf16_f32 v{P+17}, v{x+2}, v{x+3}")
    a(f"v_mov_b32 v{P+18}, v{P+16}")
    a(f"v_mov_b32 v{P+19}, v{P+17}")
    a(f"v_bfe_u32 v{t3}, v0, 4, 1")
    a(f"v_lshlrev_b32 v{t3}, 9, v{t3}")
    a(f"v_and_b32 v{C_E+4}, 15, v0")
    a(f"v_lshl_add_u32 v{t3}, v{C_E+4}, 4, v{t3}")
    a(f"v_permlane32_swap_b32 v{P+16}, v{P+18}")
    a(f"v_permlane32_swap_b32 v{P+17}, v{P+19}")
    a("s_mov_b32 exec_hi, 0")
    a(f"buffer_store_dwordx4 v[{P+16}:{P+19}], v{t3}, {W}, s{S_HSP} offen sc1")
    a("s_mov_b32 exec_hi, -1")
    for t in range(4):
        xe, xo = ACC + 4*t, ACC + 16 + 4*t
        d = P + 4*t
        silu4(a, xe, C_E); silu4(a, xo, C_E+4)
        a(f"v_cvt_pk_bf16_f32 v{d}, v{xe}, v{xe+1}")
        a(f"v_cvt_pk_bf16_f32 v{d+1}, v{xe+2}, v{xe+3}")
        a(f"v_cvt_pk_bf16_f32 v{d+2}, v{xo}, v{xo+1}")
        a(f"v_cvt_pk_bf16_f32 v{d+3}, v{xo+2}, v{xo+3}")
        a("s_nop 1")
        a(f"v_permlane16_swap_b32 v{d}, v{d+2}")
        a(f"v_permlane16_swap_b32 v{d+1}, v{d+3}")
        a("s_nop 1")
        a(f"v_permlane32_swap_b32 v{d}, v{d+2}")
        a(f"v_permlane32_swap_b32 v{d+1}, v{d+3}")
        a(f"buffer_store_dwordx4 v[{d}:{d+3}], v{t1}, {W}, s{S_HST} offen offset:{1024*t} sc1")
        a(f"ds_write_b128 v{t2}, v[{d}:{d+3}] offset:{1024*t}")
    stamp(a, 8)
    for k4 in range(4):
        if k4 == 0: a(f"v_add_u32 v{C_B32}, s{S_T0}, v{t1}")
        else:       a(f"v_add_u32 v{C_B32+k4}, {1024*k4}, v{C_B32}")
    a(f"v_lshrrev_b32 v{t2}, 4, v0")
    a(f"v_lshlrev_b32 v{t2}, 9, v{t2}")
    a(f"v_and_b32 v{t3}, 15, v0")
    a(f"v_lshl_add_u32 v{t2}, v{t3}, 4, v{t2}")
    a(f"s_lshl_b32 s{S_T1}, s{S_T1}, 8")
    a(f"s_add_u32 s{S_T0}, s{S_T0}, s{S_T1}")
    a(f"v_add_u32 v{C_B8}, s{S_T0}, v{t2}")
    a(f"v_add_u32 v{C_B8+1}, 2048, v{C_B8}")
    for b, src in ((C_A32, C_P2), (C_A8, C_P2+1)):
        a(f"v_add_u32 v{b}, {4*WST}, v{src}")
        a(f"v_mov_b32 v{b+1}, v{src}")
        a(f"v_add_u32 v{b+2}, {2*WST}, v{src}")
    zero_acc(a)
    a(f"v_mov_b32 v{t3}, 1")
    a(f"s_mov_b32 s{S_PH}, 1")
    a("s_waitcnt lgkmcnt(0)")
    a("s_barrier")
    stampw(a, 3)
    for ins in reads_step(SETS[0], 0, 0): a(ins)
    body(a)
    a.label("L_EPI2")
    stamp(a, 5)
    a(f"v_bfe_u32 v{t0}, v0, 3, 2")
    a(f"v_mul_u32_u24 v{t0}, 18432, v{t0}")
    a(f"v_lshrrev_b32 v{t1}, 5, v0")
    a(f"v_lshl_add_u32 v{t0}, v{t1}, 7, v{t0}")
    a(f"v_and_b32 v{t1}, 7, v0")
    a(f"v_lshl_add_u32 v{t0}, v{t1}, 4, v{t0}")
    a(f"v_lshrrev_b32 v{t2}, 4, v0")
    a(f"v_lshl_add_u32 v{t2}, v{t2}, 3, v{t1}")
    a(f"v_bfe_u32 v{t1}, v0, 3, 1")
    a(f"v_mul_u32_u24 v{t1}, 18432, v{t1}")
    a(f"v_lshl_add_u32 v{t1}, v{t2}, 3, v{t1}")
    a(f"s_mov_b32 s{S_K}, 0xfffffffe")
    P = SETS[0]
    for c in range(2):
        for hb in range(2):
            x = ACC + 16*c + 8*hb
            d = P + 4*(2*c + hb)
            for i in range(4): a(f"v_cvt_pk_bf16_f32 v{d+i}, v{x+2*i}, v{x+2*i+1}")
            for i in range(4): a(f"v_min_u32 v{d+i}, s{S_K}, v{d+i}")
            a(f"buffer_store_dwordx4 v[{d}:{d+3}], v{t0}, {W}, s{S_PA} offen offset:{256*(2*c+hb)} sc1")
    x = ACC + 32
    a(f"v_cvt_pk_bf16_f32 v{P+16}, v{x}, v{x+1}")
    a(f"v_cvt_pk_bf16_f32 v{P+17}, v{x+2}, v{x+3}")
    for d in range(2): a(f"v_min_u32 v{P+16+d}, s{S_K}, v{P+16+d}")
    a(f"buffer_store_dwordx2 v[{P+16}:{P+17}], v{t1}, {W}, s{S_PS} offen sc1")
    if 'ackE' in opt: a("s_waitcnt vmcnt(0)")
    a("s_barrier")
    stamp(a, 6)
    a(f"s_cmp_eq_u32 s{S_CW}, 0")
    a("s_cbranch_scc0 L_CDONE")
    reducer(a, "C", single=True)
    reducer_run(a, "C", single=True)
    a.label("L_CDONE")
    if 'ts' in opt or amp_on(): a("s_waitcnt vmcnt(0)")
    stamp(a, 7)
    amp_spin(a)
    if 'clk' in opt:
        a("s_memtime s[96:97]")
        a("s_waitcnt lgkmcnt(0)")
        a("s_sub_u32 s78, s96, s100")
        a("s_mov_b32 s79, 0")
    dump_stamps(a, 0, 10 if ('clk' in opt or 'clk1' in opt or 'diag' in opt) else 9, "C", 0)

def kernel_main(a):
    name = KNAME
    a(f".globl {name}\n.p2align 8\n.type {name},@function\n{name}:")
    a(f"s_cmp_ge_u32 s2, 256")
    a(f"s_cbranch_scc1 L_END")
    stamp(a, 0)
    if 'clk' in opt: a("s_memtime s[100:101]")
    a("s_load_dwordx8 s[4:11], s[0:1], 0")
    a("s_load_dwordx4 s[12:15], s[0:1], 32")
    a("v_lshrrev_b32 v1, 6, v0")
    a("v_and_b32 v0, 63, v0")
    a(f"v_readfirstlane_b32 s{S_WV}, v1")
    if 'xmap' in opt:
        a(f"s_and_b32 s{S_J}, s2, 3")
        a(f"s_lshr_b32 s{S_XG}, s2, 2")
        a(f"s_and_b32 s{S_XG}, s{S_XG}, 7")
    else:
        a(f"s_and_b32 s{S_XG}, s2, 7")
        a(f"s_lshr_b32 s{S_J}, s2, 3")
        a(f"s_and_b32 s{S_J}, s{S_J}, 3")
    a(f"s_lshr_b32 s{S_MT}, s2, 5")
    a("s_nop 0")
    a(f"s_and_b32 s{S_CW}, s{S_WV}, 3")
    a(f"s_cmp_lt_u32 s{S_WV}, 4")
    a("s_cbranch_scc1 L_COMPUTE")
    loader(a)
    a.label("L_COMPUTE")
    compute(a)
    a.label("L_END")
    a("s_endpgm")
    a.label("L_CODE_END")
    a(kd(name, vgpr=132, sgpr=102))

def check_barriers(lines):
    iL = lines.index("L_LOADER:"); iC = lines.index("L_COMPUTE:")
    cnt = lambda seg: sum(1 for ln in seg if ln.strip() == "s_barrier")
    seg = lines[iL:iC]
    i1 = seg.index("L_LD1:"); i2 = seg.index("s_cbranch_scc1 L_LD1")
    nl = cnt(seg) + 5*cnt(seg[i1:i2])
    nc = cnt(lines[iC:])
    assert nl == nc, f"barrier mismatch loader {nl} compute {nc}"
    return nl

def main():
    for o in sys.argv[2:]: opt.add(o)
    a = Asm()
    a(HEADER.rstrip())
    a(f"; @launch grid=(256,1,1) block=(512,1,1) lds={LDS_BYTES}")
    a('.amdgcn_target "amdgcn-amd-amdhsa--gfx950"')
    a(".text")
    kernel_main(a)
    check_barriers(a.lines)
    open(sys.argv[1], "w").write(a.text())

main()
```

```python
import sys
from common import *

X_BYTES = 512*576*2
W_BYTES = 576*4608*2
OUT_BYTES = 512*576*2
WS_BYTES = 268435456
PAGE = 2*1024*1024
H_OFF = 4096
GRP_BYTES = 73728
FLAG_OFF = 4*PAGE + 4096
def FSPLIT(): return 'fsplit' in opt
def FILLM(): return 'fillm' in opt
def FILL8(): return 'fill8' in opt
FLAG2_D = 16384
INBOX_OFF = 5*PAGE + 4096
INBOX_B = 8*8*2304
WST = 18432
NSL = 6
LB = NSL*WST
NBP = 5
MHB = NBP*4096
MHS = 36864
LDS_BYTES = LB + 2*MHB
TS_OFF = 128 << 20
SPIN = 1 << 17
KNAME = "standalone__dense_activation_silu__sampling_kernel"
opt = set()

S_X, S_W1, S_W2, S_OUT, S_DBG, S_WS = 4, 6, 8, 10, 12, 14
SRD_X, SRD_W1, SRD_WS, SRD_W2, SRD_DBG = 16, 20, 24, 40, 44
S_WV, S_XG, S_J, S_MT, S_CW = 28, 29, 30, 31, 32
S_N, S_WOFF, S_DSLOT = 33, 34, 35
S_T0, S_T1, S_T2, S_T3 = 36, 37, 38, 39
S_HB, S_GRP, S_INB = 53, 54, 58
S_TS = 60
S_K = 84
S_P, S_XROW, S_BDST, S_WCOL, S_WLDS = 48, 49, 50, 51, 52
S_W2B, S_KAP, S_HOFF, S_CK, S_KH, S_HDST = 55, 56, 57, 59, 92, 94
S_TST, S_TREAL, S_TOFF, S_TN = 93, 95, 96, 97
S_BBEG, S_BEND = 86, 87
S_PH, S_HST, S_HSP, S_FLG, S_PA, S_PS = 48, 49, 50, 51, 52, 55

def amp_on(): return any(o.startswith('amp') for o in opt)
def amp_spin(a):
    for o in opt:
        if o.startswith('amp'):
            ia, ib = int(o[3]), int(o[4])
            a("s_waitcnt lgkmcnt(0) vmcnt(0)")
            a(f"s_sub_u32 s95, s{S_TS+2*ib}, s{S_TS+2*ia}")
            a("s_mul_i32 s95, s95, 3")
            a("s_memrealtime s[96:97]\ns_waitcnt lgkmcnt(0)\ns_mov_b32 s94, s96")
            a.label("L_AMP")
            a("s_memrealtime s[96:97]\ns_waitcnt lgkmcnt(0)\ns_sub_u32 s96, s96, s94\ns_cmp_lt_u32 s96, s95\ns_cbranch_scc1 L_AMP")
DIAGC = [False]
def stamp(a, i):
    if 'diag' in opt and DIAGC[0]: return
    if 'ts' in opt or amp_on():
        a(f"s_memrealtime s[{S_TS+2*i}:{S_TS+2*i+1}]")
def stampw(a, i):
    if 'diag' in opt and DIAGC[0]: return
    if 'ts' in opt or amp_on():
        a(f"s_memrealtime s[{S_TS+2*i}:{S_TS+2*i+1}]")
        a("s_waitcnt lgkmcnt(0)")

def dump_stamps(a, kidx, n, tag, wave):
    if 'ts' not in opt: return
    a("s_waitcnt lgkmcnt(0) vmcnt(0)")
    a(f"s_cmp_eq_u32 s{S_WV}, {wave}")
    a(f"s_cbranch_scc0 L_NOTS{tag}")
    a(f"s_lshl_b32 s80, s2, 7")
    a(f"s_add_u32 s80, s80, {TS_OFF + kidx*512*128}")
    a(f"s_mov_b32 s88, s14\ns_mov_b32 s89, s15\ns_mov_b32 s90, {WS_BYTES}\ns_mov_b32 s91, 0x20000")
    a("v_mov_b32 v2, 0")
    for i in range(n):
        a(f"v_mov_b32 v4, s{S_TS+2*i}\nv_mov_b32 v5, s{S_TS+2*i+1}")
        a(f"buffer_store_dwordx2 v[4:5], v2, s[88:91], s80 offen offset:{8*i}")
        a("s_nop 1")
    a.label(f"L_NOTS{tag}")

def srd(a, base, ptr, nbytes):
    a(f"s_mov_b32 s{base}, s{ptr}")
    a(f"s_mov_b32 s{base+1}, s{ptr+1}")
    a(f"s_mov_b32 s{base+2}, {nbytes}")
    a(f"s_mov_b32 s{base+3}, 0x20000")
def R(base): return f"s[{base}:{base+3}]"

def wrap(a, reg, inc, mod):
    a(f"s_add_u32 s{reg}, s{reg}, {inc}")
    a(f"s_sub_u32 s{S_T3}, s{reg}, {mod}")
    a(f"s_cmp_ge_u32 s{reg}, {mod}")
    a(f"s_cselect_b32 s{reg}, s{S_T3}, s{reg}")

def group_bases(a):
    a(f"s_lshl_b32 s{S_GRP}, s{S_XG}, 3")
    a(f"s_add_u32 s{S_GRP}, s{S_GRP}, s{S_MT}")
    a(f"s_lshr_b32 s{S_HB}, s{S_GRP}, 4")
    a(f"s_lshl_b32 s{S_HB}, s{S_HB}, 21")
    a(f"s_and_b32 s{S_T0}, s{S_GRP}, 15")
    a(f"s_mul_i32 s{S_T0}, s{S_T0}, {GRP_BYTES}")
    a(f"s_add_u32 s{S_HB}, s{S_HB}, s{S_T0}")
    a(f"s_add_u32 s{S_HB}, s{S_HB}, {H_OFF}")
    a(f"s_lshl_b32 s{S_GRP}, s{S_GRP}, 2")

def inbox_block(a, dst):
    a(f"s_lshl_b32 s{dst}, s{S_MT}, 2")
    a(f"s_add_u32 s{dst}, s{dst}, s{S_J}")
    a(f"s_mul_i32 s{dst}, s{dst}, {INBOX_B}")
    a(f"s_add_u32 s{dst}, s{dst}, {INBOX_OFF}")

def poll_pub(a, tag, vtmp, preloaded=False):
    if preloaded:
        a("s_waitcnt vmcnt(0)")
        a(f"v_cmp_ne_u32 vcc, 1, v{vtmp}")
        a(f"s_cbranch_vccz L_PGX{tag}")
    a(f"s_mov_b32 s{S_T3}, 0")
    a.label(f"L_PG{tag}")
    a(f"s_add_u32 s{S_T3}, s{S_T3}, 1")
    a(f"s_cmp_gt_u32 s{S_T3}, {SPIN}")
    a(f"s_cbranch_scc1 L_PGX{tag}")
    a(f"buffer_load_dword v{vtmp}, off, {R(SRD_DBG)}, 0 sc1")
    a("s_waitcnt vmcnt(0)")
    a(f"v_cmp_ne_u32 vcc, 1, v{vtmp}")
    a(f"s_cbranch_vccnz L_PG{tag}")
    a.label(f"L_PGX{tag}")

def poll_ones(a, tag, vdst, vaddr, soff):
    a(f"s_mov_b32 s{S_T3}, 0")
    a.label(f"L_PO{tag}")
    a(f"s_add_u32 s{S_T3}, s{S_T3}, 1")
    a(f"s_cmp_gt_u32 s{S_T3}, {SPIN}")
    a(f"s_cbranch_scc1 L_POX{tag}")
    a(f"buffer_load_dword v{vdst}, v{vaddr}, {R(SRD_WS)}, s{soff} offen sc1")
    a("s_waitcnt vmcnt(0)")
    a(f"v_cmp_ne_u32 vcc, 1, v{vdst}")
    a(f"s_cbranch_vccnz L_PO{tag}")
    a.label(f"L_POX{tag}")

R_D, R_ACC, R_T, R_A = 80, 96, 100, 104
def reducer(a, tag, single):
    W = R(SRD_WS)
    if single:
        a(f"v_min_u32 v{R_T}, 31, v0")
        a(f"v_lshlrev_b32 v{R_A}, 3, v{R_T}")
        a(f"s_add_u32 s{S_T0}, s{S_INB}, 2048")
        a(f"v_and_b32 v{R_T+1}, 7, v{R_T}")
        a(f"v_mul_u32_u24 v{R_T+1}, 1152, v{R_T+1}")
        a(f"v_lshrrev_b32 v{R_T}, 3, v{R_T}")
        a(f"v_lshl_add_u32 v{R_A+1}, v{R_T}, 3, v{R_T+1}")
        a(f"s_mov_b32 s{S_T2}, 256")
    else:
        a(f"v_lshlrev_b32 v{R_A}, 3, v0")
        a(f"s_lshl_b32 s{S_T0}, s{S_CW}, 9")
        a(f"s_add_u32 s{S_T0}, s{S_T0}, s{S_INB}")
        a(f"v_bfe_u32 v{R_T}, v0, 1, 3")
        a(f"v_mul_u32_u24 v{R_T}, 1152, v{R_T}")
        a(f"v_lshrrev_b32 v{R_T+1}, 5, v0")
        a(f"v_lshl_add_u32 v{R_T}, v{R_T+1}, 5, v{R_T}")
        a(f"v_and_b32 v{R_T+1}, 1, v0")
        a(f"v_lshl_add_u32 v{R_T}, v{R_T+1}, 4, v{R_T}")
        a(f"v_bfe_u32 v{R_T+1}, v0, 4, 1")
        a(f"v_lshl_add_u32 v{R_A+1}, v{R_T+1}, 3, v{R_T}")
        a(f"s_lshl_b32 s{S_T2}, s{S_CW}, 6")
    a(f"s_lshl_b32 s{S_T1}, s{S_MT}, 3")
    a(f"s_add_u32 s{S_T1}, s{S_T1}, s{S_XG}")
    a(f"s_mul_i32 s{S_T1}, s{S_T1}, {8*1152}")
    a(f"s_add_u32 s{S_T2}, s{S_T2}, s{S_T1}")
    a(f"s_mul_i32 s{S_T1}, s{S_J}, 288")
    a(f"s_add_u32 s{S_T2}, s{S_T2}, s{S_T1}")
    srd(a, SRD_X, S_OUT, OUT_BYTES)
    return
def reducer_run(a, tag, single):
    W = R(SRD_WS)
    a(f"s_mov_b32 s{S_T3}, 0")
    a.label(f"L_RP{tag}")
    a(f"s_mov_b32 s{S_T1}, s{S_T0}")
    for xg in range(8):
        a(f"buffer_load_dwordx2 v[{R_D+2*xg}:{R_D+2*xg+1}], v{R_A}, {W}, s{S_T1} offen sc1")
        if xg < 7: a(f"s_add_u32 s{S_T1}, s{S_T1}, 2304")
    a(f"s_add_u32 s{S_T3}, s{S_T3}, 1")
    a(f"s_cmp_gt_u32 s{S_T3}, {SPIN}")
    a(f"s_cbranch_scc1 L_RPX{tag}")
    a("s_waitcnt vmcnt(0)")
    a(f"v_max3_u32 v{R_T}, v{R_D}, v{R_D+1}, v{R_D+2}")
    for i in range(3, 15, 2):
        a(f"v_max3_u32 v{R_T}, v{R_T}, v{R_D+i}, v{R_D+i+1}")
    a(f"v_max_u32 v{R_T}, v{R_T}, v{R_D+15}")
    a(f"v_cmp_eq_u32 vcc, -1, v{R_T}")
    if any(o.startswith('slp') for o in opt):
        n = [int(o[3:]) for o in opt if o.startswith('slp')][0]
        a(f"s_cbranch_vccz L_RPX{tag}")
        a(f"s_sleep {n}")
        a(f"s_branch L_RP{tag}")
    else:
        a(f"s_cbranch_vccnz L_RP{tag}")
    a.label(f"L_RPX{tag}")
    a("s_waitcnt vmcnt(0)")
    for xg in range(8):
        for d in range(2):
            src = R_D + 2*xg + d
            dst = R_ACC if xg == 0 else R_T
            a(f"v_lshlrev_b32 v{dst+2*d}, 16, v{src}")
            a(f"v_and_b32 v{dst+2*d+1}, 0xffff0000, v{src}")
        if xg:
            for d in range(4): a(f"v_add_f32 v{R_ACC+d}, v{R_ACC+d}, v{R_T+d}")
    a(f"v_cvt_pk_bf16_f32 v{R_D}, v{R_ACC}, v{R_ACC+1}")
    a(f"v_cvt_pk_bf16_f32 v{R_D+1}, v{R_ACC+2}, v{R_ACC+3}")
    if single: a("s_mov_b32 exec_hi, 0")
    osc = " sc1" if 'osc1' in opt else (" nt" if 'ont' in opt else "")
    a(f"buffer_store_dwordx2 v[{R_D}:{R_D+1}], v{R_A+1}, {R(SRD_X)}, s{S_T2} offen{osc}")
    if single: a("s_mov_b32 exec_hi, -1")

L_W1, L_W2, L_X, L_H, L_T = 1, 6, 11, 13, 14
L_RHO, L_C16 = 20, 25
L_TV, L_PF, L_CK = 30, 32, 34

def issue_x(a):
    a(f"s_lshl_b32 s{S_T0}, s{S_P}, 7")
    a(f"s_mov_b32 m0, s{S_BDST}")
    a(f"s_add_u32 s{S_T0}, s{S_T0}, s{S_XROW}")
    a(f"buffer_load_dwordx4 v{L_X}, {R(SRD_X)}, s{S_T0} offen lds")
    a(f"s_add_u32 m0, m0, 1024")
    a(f"s_add_u32 s{S_BDST}, s{S_BDST}, 4096")
    a(f"buffer_load_dwordx4 v{L_X+1}, {R(SRD_X)}, s{S_T0} offen lds")
    a(f"s_cmp_eq_u32 s{S_BDST}, s{S_BEND}")
    a(f"s_cselect_b32 s{S_BDST}, s{S_BBEG}, s{S_BDST}")

def issue_w_one(a, i, vbase, srdreg):
    if i == 0: a(f"s_add_u32 m0, s{S_DSLOT}, s{S_WLDS}")
    else:      a(f"s_add_u32 m0, m0, 1024")
    a("s_mov_b32 exec_hi, 0" if i == 4 else "s_nop 0")
    a(f"buffer_load_dwordx4 v{vbase+i}, {R(srdreg)}, s{S_WOFF} offen lds")
    if i == 4: a("s_mov_b32 exec_hi, -1")
def slot_next(a):
    a(f"s_add_u32 s{S_DSLOT}, s{S_DSLOT}, {WST}")
    a(f"s_cmp_eq_u32 s{S_DSLOT}, {NSL*WST}")
    a(f"s_cselect_b32 s{S_DSLOT}, 0, s{S_DSLOT}")
def w1_off(a):
    a(f"s_mul_i32 s{S_WOFF}, s{S_P}, {64*9216}")
    a(f"s_add_u32 s{S_WOFF}, s{S_WOFF}, s{S_WCOL}")
def issue_touch(a):
    a(f"s_cmp_eq_u32 s{S_TN}, s{S_TST}")
    a(f"s_cselect_b32 s{S_TOFF}, s{S_TREAL}, 0x70000000")
    a(f"s_add_u32 s{S_TN}, s{S_TN}, 1")
    a(f"buffer_load_dword v{L_TV+1}, v{L_TV}, {R(SRD_W2)}, s{S_TOFF} offen")
L_FS = 36
S_FU, S_FB = 98, 99
def spread(): return 'spread' in opt
def issue_fill(a):
    a(f"s_cmp_lt_u32 s{S_FU}, {18*1024}")
    a(f"s_cselect_b32 s{S_T0}, s{S_FU}, 0x60000000")
    a(f"s_add_u32 s{S_T0}, s{S_T0}, s{S_FB}")
    a(f"s_add_u32 s{S_FU}, s{S_FU}, 4096")
    a(f"buffer_store_dwordx4 v[{L_FS}:{L_FS+3}], v{L_H}, {R(SRD_WS)}, s{S_T0} offen sc1")
def issue_stage1(a):
    issue_x(a)
    w1_off(a)
    for i in range(5): issue_w_one(a, i, L_W1, SRD_W1)
    slot_next(a)
    wrap(a, S_P, 1, 9)
    issue_touch(a)
    if spread(): issue_fill(a)
def issue_w2(a):
    a(f"s_mul_i32 s{S_WOFF}, s{S_KAP}, {16*1152}")
    a(f"s_add_u32 s{S_WOFF}, s{S_WOFF}, s{S_W2B}")
    for i in range(5): issue_w_one(a, i, L_W2, SRD_W2)
    slot_next(a)
    wrap(a, S_KAP, 4, 36)
def issue_h(a):
    a(f"s_lshl_b32 s{S_HOFF}, s{S_KH}, 10")
    a(f"s_mov_b32 m0, s{S_HDST}")
    a(f"s_add_u32 s{S_HOFF}, s{S_HOFF}, s{S_HB}")
    a(f"buffer_load_dwordx4 v{L_H}, {R(SRD_WS)}, s{S_HOFF} offen sc1 lds")
    a(f"s_add_u32 m0, m0, {MHB}")
    a(f"s_add_u32 s{S_HOFF}, s{S_HOFF}, {MHS}")
    a(f"buffer_load_dwordx4 v{L_H}, {R(SRD_WS)}, s{S_HOFF} offen sc1 lds")
    a(f"s_add_u32 s{S_HDST}, s{S_HDST}, 4096")
    a(f"s_cmp_eq_u32 s{S_HDST}, s{S_BEND}")
    a(f"s_cselect_b32 s{S_HDST}, s{S_BBEG}, s{S_HDST}")
    wrap(a, S_KH, 4, 36)

def w_voff(a, i):
    t0, t1 = L_T, L_T+1
    a(f"v_add_u32 v{t0}, {64*i}, v0")
    a(f"v_mul_u32_u24 v{t1}, 3641, v{t0}")
    a(f"v_lshrrev_b32 v{L_RHO+i}, 16, v{t1}")
    a(f"v_lshlrev_b32 v{t0}, 4, v{t0}")
    a(f"v_mad_i32_i24 v{L_C16+i}, v{L_RHO+i}, s{S_T1}, v{t0}")
    a(f"v_and_b32 v{t1}, 0xfc, v{L_RHO+i}")
    a(f"v_add_u32 v{t1}, v{t1}, v{L_RHO+i}")
    a(f"v_mad_u32_u24 v{L_W1+i}, v{t1}, s{S_T2}, v{L_C16+i}")
def w2_voffs(a):
    t0, t1 = L_T, L_T+1
    a(f"s_movk_i32 s{S_T2}, 1152")
    for i in range(5):
        a(f"v_and_b32 v{t0}, 1, v{L_RHO+i}")
        a(f"v_lshrrev_b32 v{t1}, 3, v{L_RHO+i}")
        a(f"v_lshlrev_b32 v{t1}, 2, v{t1}")
        a(f"v_lshl_add_u32 v{t1}, v{t0}, 3, v{t1}")
        a(f"v_bfe_u32 v{t0}, v{L_RHO+i}, 1, 2")
        a(f"v_add_u32 v{t1}, v{t1}, v{t0}")
        a(f"v_mad_u32_u24 v{L_W2+i}, v{t1}, s{S_T2}, v{L_C16+i}")

def loader_fill(a):
    W = R(SRD_WS)
    a(f"s_mul_i32 s{S_T1}, s{S_CW}, 4608")
    a(f"s_add_u32 s{S_T0}, s{S_INB}, s{S_T1}")
    for i in range(4):
        a(f"buffer_store_dwordx4 v[{L_FS}:{L_FS+3}], v{L_H}, {W}, s{S_T0} offen offset:{1024*i} sc1")
    a(f"s_add_u32 s{S_T0}, s{S_T0}, 4096")
    a(f"buffer_store_dwordx4 v[{L_FS}:{L_FS+3}], v{L_FS+4}, {W}, s{S_T0} offen sc1")

def loader(a):
    a.label("L_LOADER")
    if 'lprio' in opt: a("s_setprio 3")
    t0, t1, t2 = L_T, L_T+1, L_T+2
    a(f"v_lshrrev_b32 v{t0}, 3, v0")
    a(f"v_lshrrev_b32 v{t1}, 4, v0")
    a(f"v_and_b32 v{t2}, 7, v0")
    a(f"v_xor_b32 v{t1}, v{t1}, v{t2}")
    a(f"v_lshlrev_b32 v{t1}, 4, v{t1}")
    a(f"v_mul_u32_u24 v{t0}, 1152, v{t0}")
    a(f"v_add_u32 v{L_X}, v{t0}, v{t1}")
    a(f"v_xor_b32 v{t1}, 64, v{t1}")
    a(f"v_add_u32 v{t0}, {8*1152}, v{t0}")
    a(f"v_add_u32 v{L_X+1}, v{t0}, v{t1}")
    a(f"s_lshl_b32 s{S_T0}, s{S_MT}, 2")
    a(f"s_add_u32 s{S_T0}, s{S_T0}, s{S_CW}")
    a(f"s_mul_i32 s{S_XROW}, s{S_T0}, {16*1152}")
    a(f"s_lshr_b32 s{S_T0}, s{S_CW}, 1")
    a(f"s_mul_i32 s{S_BDST}, s{S_T0}, {MHB}")
    a(f"s_and_b32 s{S_T0}, s{S_CW}, 1")
    a(f"s_lshl_b32 s{S_T0}, s{S_T0}, 11")
    a(f"s_add_u32 s{S_BDST}, s{S_BDST}, s{S_T0}")
    a(f"s_add_u32 s{S_BDST}, s{S_BDST}, {LB}")
    a(f"s_mov_b32 s{S_BBEG}, s{S_BDST}")
    a(f"s_add_u32 s{S_BEND}, s{S_BDST}, {NBP*4096}")
    if 'norot' in opt: a(f"s_mov_b32 s{S_P}, 0")
    else:
        a(f"s_lshl_b32 s{S_P}, s{S_J}, 1")
        wrap_reg = S_P
        a(f"s_add_u32 s{S_P}, s{S_P}, s{S_MT}")
        a(f"s_sub_u32 s{S_T0}, s{S_P}, 9")
        a(f"s_cmp_ge_u32 s{S_P}, 9")
        a(f"s_cselect_b32 s{S_P}, s{S_T0}, s{S_P}")
    a(f"s_mul_i32 s{S_WCOL}, s{S_XG}, 1152")
    a(f"s_mul_i32 s{S_T0}, s{S_J}, 288")
    a(f"s_add_u32 s{S_WCOL}, s{S_WCOL}, s{S_T0}")
    a(f"s_lshr_b32 s{S_T0}, s{S_CW}, 1")
    a(f"s_lshl_b32 s{S_T0}, s{S_T0}, 3")
    a(f"s_and_b32 s{S_T1}, s{S_CW}, 1")
    a(f"s_add_u32 s{S_T0}, s{S_T0}, s{S_T1}")
    a(f"s_mul_i32 s{S_T0}, s{S_T0}, {4*9216}")
    a(f"s_add_u32 s{S_WCOL}, s{S_WCOL}, s{S_T0}")
    a(f"s_mul_i32 s{S_WLDS}, s{S_CW}, 4608")
    a(f"s_mov_b32 s{S_DSLOT}, 0")
    a(f"s_movk_i32 s{S_T1}, -288")
    a(f"s_movk_i32 s{S_T2}, 9216")
    w_voff(a, 0)
    a("s_waitcnt lgkmcnt(0)")
    srd(a, SRD_X, S_X, X_BYTES)
    srd(a, SRD_W1, S_W1, W_BYTES)
    stamp(a, 1)
    issue_x(a)
    w1_off(a)
    issue_w_one(a, 0, L_W1, SRD_W1)
    for i in range(1, 5):
        w_voff(a, i)
        issue_w_one(a, i, L_W1, SRD_W1)
    slot_next(a)
    wrap(a, S_P, 1, 9)
    srd(a, SRD_W2, S_W2, W_BYTES)
    a(f"s_lshl_b32 s{S_T0}, s{S_MT}, 2")
    a(f"s_add_u32 s{S_T0}, s{S_T0}, s{S_J}")
    a(f"s_mul_i32 s{S_T0}, s{S_T0}, 162")
    a(f"s_mul_i32 s{S_T1}, s{S_CW}, 41")
    a(f"s_add_u32 s{S_T0}, s{S_T0}, s{S_T1}")
    a(f"s_lshl_b32 s{S_T0}, s{S_T0}, 7")
    a(f"s_mul_i32 s{S_W2B}, s{S_XG}, {576*1152}")
    a(f"s_add_u32 s{S_TREAL}, s{S_T0}, s{S_W2B}")
    a(f"v_min_u32 v{L_TV}, 40, v0")
    a(f"v_lshlrev_b32 v{L_TV}, 7, v{L_TV}")
    a(f"s_mov_b32 s{S_TN}, 1")
    if 'tst2' in opt:
        a(f"s_add_u32 s{S_TST}, s{S_MT}, 2")
        a(f"s_min_u32 s{S_TST}, s{S_TST}, 8")
    elif 'tst3' in opt:
        a(f"s_add_u32 s{S_TST}, s{S_MT}, 3")
        a(f"s_min_u32 s{S_TST}, s{S_TST}, 8")
    elif 'tsth' in opt:
        a(f"s_lshr_b32 s{S_TST}, s{S_MT}, 1")
        a(f"s_add_u32 s{S_TST}, s{S_TST}, 5")
    else:
        a(f"s_add_u32 s{S_TST}, s{S_MT}, 1")
    if spread():
        srd(a, SRD_WS, S_WS, WS_BYTES)
        a(f"v_lshlrev_b32 v{L_H}, 4, v0")
        for i in range(4): a(f"v_mov_b32 v{L_FS+i}, -1")
        inbox_block(a, S_FB)
        a(f"s_mul_i32 s{S_T1}, s{S_XG}, 18432")
        a(f"s_add_u32 s{S_FB}, s{S_FB}, s{S_T1}")
        fstart = 1
        for o in opt:
            if o.startswith('fs'): fstart = int(o[2])
        a(f"s_lshl_b32 s{S_FU}, s{S_CW}, 10")
        a(f"s_sub_u32 s{S_FU}, s{S_FU}, {4096*fstart}")
    issue_stage1(a)
    stamp(a, 2)
    srd(a, SRD_WS, S_WS, WS_BYTES)
    srd(a, SRD_DBG, S_DBG, 256)
    w2_voffs(a)
    group_bases(a)
    a(f"s_mul_i32 s{S_T0}, s{S_J}, 288")
    a(f"s_add_u32 s{S_W2B}, s{S_W2B}, s{S_T0}")
    a(f"s_mul_i32 s{S_KAP}, s{S_J}, 9")
    a(f"s_add_u32 s{S_KAP}, s{S_KAP}, s{S_CW}")
    a(f"s_add_u32 s{S_KH}, s{S_KAP}, 8")
    a(f"s_sub_u32 s{S_T0}, s{S_KH}, 36")
    a(f"s_cmp_ge_u32 s{S_KH}, 36")
    a(f"s_cselect_b32 s{S_KH}, s{S_T0}, s{S_KH}")
    a(f"s_lshl_b32 s{S_HDST}, s{S_CW}, 10")
    a(f"s_add_u32 s{S_HDST}, s{S_HDST}, {LB + 2*4096}")
    a(f"v_lshlrev_b32 v{L_H}, 4, v0")
    inbox_block(a, S_INB)
    a(f"s_mul_i32 s{S_T1}, s{S_XG}, 18432")
    a(f"s_add_u32 s{S_INB}, s{S_INB}, s{S_T1}")
    if FSPLIT():
        a(f"v_bfe_u32 v{L_PF}, v0, 2, 2")
        a(f"v_lshlrev_b32 v{L_PF}, 6, v{L_PF}")
        a(f"v_and_b32 v{L_PF+1}, 3, v0")
        a(f"v_lshl_add_u32 v{L_PF}, v{L_PF+1}, 2, v{L_PF}")
    else:
        a(f"v_and_b32 v{L_PF}, 15, v0")
        a(f"v_lshlrev_b32 v{L_PF}, 2, v{L_PF}")
    a(f"v_lshrrev_b32 v{L_CK}, 2, v0")
    a(f"v_and_b32 v{L_CK}, 7, v{L_CK}")
    a(f"v_lshlrev_b32 v{L_CK}, {11 if FSPLIT() else 10}, v{L_CK}")
    a(f"v_and_b32 v{L_CK+1}, 3, v0")
    a(f"v_lshl_add_u32 v{L_CK}, v{L_CK+1}, 2, v{L_CK}")
    a(f"s_lshl_b32 s{S_CK}, s{S_MT}, {8 if FSPLIT() else 7}")
    a(f"s_lshl_b32 s{S_T0}, s{S_J}, {6 if FSPLIT() else 4}")
    a(f"s_add_u32 s{S_CK}, s{S_CK}, s{S_T0}")
    a(f"s_add_u32 s{S_CK}, s{S_CK}, {FLAG_OFF + (FLAG2_D if FILLM() else 0)}")
    if FILL8():
        for i in range(4): a(f"v_mov_b32 v{L_FS+i}, -1")
        a(f"v_min_u32 v{L_FS+4}, 31, v0")
        a(f"v_lshlrev_b32 v{L_FS+4}, 4, v{L_FS+4}")
    a("s_waitcnt vmcnt(%d)" % (9 if spread() else 8))
    a("s_barrier")
    stamp(a, 3)
    issue_stage1(a)
    a(f"s_mov_b32 s{S_N}, 0")
    a.label("L_LD1")
    a("s_waitcnt vmcnt(%d)" % (11 if spread() else 9))
    a("s_barrier")
    issue_stage1(a)
    a(f"s_add_u32 s{S_N}, s{S_N}, 1")
    a(f"s_cmp_lt_u32 s{S_N}, 6")
    a("s_cbranch_scc1 L_LD1")
    tail = 2 if spread() else 1
    q = [("st7", 7), ("x7", tail), ("st8", 7), ("x8", tail)]
    def iss(name, cnt, fn):
        fn(); q.append((name, cnt))
    def wait(*names):
        idx = [i for i, (nm, c) in enumerate(q) if nm in names]
        last = max(idx) if idx else -1
        n = sum(c for nm, c in q[last+1:])
        a("s_waitcnt vmcnt(%d)" % n)
    def drained(): q.clear()
    nW = [0]; nH = [2]
    def Wn():
        n = nW[0]; iss(f"W{n}", 5, lambda: issue_w2(a)); nW[0] += 1
    def Hn():
        n = nH[0]; iss(f"h{n}", 2, lambda: issue_h(a)); nH[0] += 1
    sch = (0, 1, 1, 1, 1)
    for o in opt:
        if o.startswith('sch'): sch = tuple(int(c) for c in o[3:8])
    a(f"s_mov_b32 s{S_DSLOT}, {4*WST}")
    a(f"s_lshl_b32 s{S_BBEG}, s{S_CW}, 10")
    a(f"s_add_u32 s{S_BBEG}, s{S_BBEG}, {LB}")
    a(f"s_add_u32 s{S_BEND}, s{S_BBEG}, {NBP*4096}")
    fat = 8
    for o in opt:
        if o.startswith('fat'): fat = int(o[3])
    if FILL8() and fat == 8: iss("fill", 5, lambda: loader_fill(a))
    wait("st7")
    a("s_barrier")
    if FILL8() and fat == 7: iss("fill", 5, lambda: loader_fill(a))
    for _ in range(sch[0]): Wn()
    assert nW[0] <= 2
    wait("st8")
    a("s_barrier")
    for _ in range(sch[1]): Wn()
    assert nW[0] <= 3
    a("s_barrier")
    stamp(a, 4)
    for _ in range(sch[2]): Wn()
    assert nW[0] >= 1
    a(f"buffer_load_dword v{L_T}, off, {R(SRD_DBG)}, 0 sc1"); q.append(("pub", 1))
    a(f"s_lshl_b32 s{S_T2}, s{S_GRP}, {6 if FSPLIT() else 5}")
    a(f"s_add_u32 s{S_T2}, s{S_T2}, {FLAG_OFF}")
    wait("W0", "fill")
    a("s_barrier")
    stamp(a, 5)
    for _ in range(sch[3]): Wn()
    assert nW[0] >= 2
    wait("W1")
    a("s_barrier")
    for _ in range(sch[4]): Wn()
    assert nW[0] <= 6
    poll_pub(a, "L", L_T, preloaded=True); drained()
    if 'onepoll' in opt:
        a(f"s_cmp_eq_u32 s{S_CW}, 0")
        a("s_cbranch_scc0 L_POXF")
    poll_ones(a, "F", L_T, L_PF, S_T2)
    if 'onepoll' in opt: a("s_barrier")
    stamp(a, 6)
    Hn(); Hn()
    if 'hearly' in opt: Hn()
    if nW[0] <= 2: Wn()
    wait("h2", "W2")
    a("s_barrier")
    stamp(a, 7)
    for s in range(3, 9):
        k = 0
        while nH[0] <= 8 and (nH[0] <= 4 or nH[0] <= s + 2) and nH[0] <= s + (2 if 'hearly' in opt else 1):
            Hn()
        while nW[0] <= 8 and (nW[0] <= 5 or nW[0] <= s + 3) and (nW[0] <= s or k < 1):
            Wn(); k += 1
        if s == 6:
            iss("chk", 1, lambda: a(f"buffer_load_dword v{L_CK+1}, v{L_CK}, {R(SRD_WS)}, s{S_CK} offen sc1"))
        if s == 8:
            a("s_waitcnt vmcnt(0)")
            a(f"v_cmp_ne_u32 vcc, 1, v{L_CK+1}")
            a("s_cbranch_vccz L_POXK")
            poll_ones(a, "K", L_CK+1, L_CK, S_CK)
            drained()
        assert nW[0] > s and nH[0] > s, (s, nW, nH)
        wait(f"h{s}", f"W{s}")
        a("s_barrier")
    stamp(a, 8)
    reducer(a, "L", single=False)
    a("s_barrier")
    reducer_run(a, "L", single=False)
    stamp(a, 9)
    dump_stamps(a, 1, 10, "LD", 4)
    a("s_endpgm")

C_A32, C_A8 = 2, 124
C_B32, C_B8 = 6, 10
C_T = 12
SETS = (16, 48)
ACC = 80
C_E = 116
C_P2 = 128

def reads_step(st, n, s0):
    sl = n % NSL
    A32 = C_A32 + (sl >> 1); A8 = C_A8 + (sl >> 1)
    base = (sl & 1)*WST + s0*9216
    bo = (n % NBP)*4096
    def a32(c, kh):
        d = st + (kh*2 + c)*4
        off = base + kh*4608 + 64*c
        return [f"ds_read_b64_tr_b16 v[{d}:{d+1}], v{A32} offset:{off}",
                f"ds_read_b64_tr_b16 v[{d+2}:{d+3}], v{A32} offset:{off+288}"]
    def b32(kh):
        d = st + 20 + 4*kh
        return [f"ds_read_b128 v[{d}:{d+3}], v{C_B32 + 2*s0 + kh} offset:{bo}"]
    ins = b32(0) + a32(0, 0) + a32(1, 0) + b32(1) + a32(0, 1) + a32(1, 1)
    ins.append(f"ds_read_b128 v[{st+28}:{st+31}], v{C_B8 + s0} offset:{bo}")
    ins.append(f"ds_read_b64_tr_b16 v[{st+16}:{st+17}], v{A8} offset:{base}")
    ins.append(f"ds_read_b64_tr_b16 v[{st+18}:{st+19}], v{A8} offset:{base+288}")
    return ins

def mfmas(st):
    out = []
    for kh in range(2):
        for c in range(2):
            acc = ACC + 16*c
            A = st + (kh*2 + c)*4; B = st + 20 + 4*kh
            out.append(f"v_mfma_f32_32x32x16_bf16 v[{acc}:{acc+15}], v[{A}:{A+3}], v[{B}:{B+3}], v[{acc}:{acc+15}]")
    out.append(f"v_mfma_f32_16x16x32_bf16 v[{ACC+32}:{ACC+35}], v[{st+16}:{st+19}], v[{st+28}:{st+31}], v[{ACC+32}:{ACC+35}]")
    return out

def reads_step1(st, n, s0):
    sl = n % NSL
    A = C_A32 + (sl >> 1); A8 = C_A8 + (sl >> 1)
    base = (sl & 1)*WST + s0*9216
    bo = (n % NBP)*4096
    def at(t):
        return [f"ds_read_b64_tr_b16 v[{st+4*t}:{st+4*t+1}], v{A} offset:{base+32*t}",
                f"ds_read_b64_tr_b16 v[{st+4*t+2}:{st+4*t+3}], v{A} offset:{base+4608+32*t}"]
    ins = [f"ds_read_b128 v[{st+20}:{st+23}], v{C_B32+s0} offset:{bo}"] + at(0)
    ins.append(f"ds_read_b128 v[{st+24}:{st+27}], v{C_B32+s0} offset:{bo+2048}")
    ins += at(1) + at(2) + at(3)
    ins.append(f"ds_read_b128 v[{st+28}:{st+31}], v{C_B8+s0} offset:{bo}")
    ins.append(f"ds_read_b64_tr_b16 v[{st+16}:{st+17}], v{A8} offset:{base}")
    ins.append(f"ds_read_b64_tr_b16 v[{st+18}:{st+19}], v{A8} offset:{base+4608}")
    return ins
def mfmas1(st):
    out = []
    def m(acc, A, B): return f"v_mfma_f32_16x16x32_bf16 v[{acc}:{acc+3}], v[{A}:{A+3}], v[{B}:{B+3}], v[{acc}:{acc+3}]"
    for t in range(4):
        out.append(m(ACC + 4*t, st + 4*t, st + 20))
        out.append(m(ACC + 16 + 4*t, st + 4*t, st + 24))
    out.append(m(ACC + 32, st + 16, st + 28))
    return out
NEED1 = {0: 4, 2: 6, 4: 8, 6: 10, 8: 13}
PAT1 = [2, 1, 2, 1, 2, 1, 2, 1, 1]
def block1(a, r, m):
    k = 0
    for u in range(9):
        if u in NEED1: a(f"s_waitcnt lgkmcnt({13 - NEED1[u] + k})")
        a(m[u])
        if r:
            for _ in range(PAT1[u]):
                a(r[k]); k += 1
def publish(a, lab):
    a(f"s_lshl_b32 s{S_T1}, s2, 2")
    a(f"s_or_b32 s{S_T1}, s{S_T1}, s{S_CW}")
    a(f"s_cmp_eq_u32 s{S_T1}, 0")
    a(f"s_cbranch_scc0 {lab}")
    a(f"v_mov_b32 v{C_T}, 1")
    a("s_mov_b64 exec, 1")
    a(f"buffer_store_dword v{C_T}, off, {R(SRD_DBG)}, 0 sc1")
    a("s_mov_b64 exec, -1")
    a.label(lab)
def body1(a):
    for n in range(9):
        block1(a, reads_step1(SETS[1], n, 1), mfmas1(SETS[0]))
        if n == 1 and 'latepub' in opt:
            a("s_cmp_eq_u32 s2, 0")
            a("s_cbranch_scc0 L_NW0")
            a("s_waitcnt vmcnt(0)")
            a.label("L_NW0")
        if n < 8:
            a("s_barrier")
            if n == 1 and 'latepub' in opt: publish(a, "L_PUB0")
            if 'diag' in opt:
                a("s_memtime s[96:97]\ns_waitcnt lgkmcnt(0)")
                a(f"s_mov_b32 s{60+n}, s96")
            block1(a, reads_step1(SETS[0], n+1, 0), mfmas1(SETS[1]))
        else:
            block1(a, None, mfmas1(SETS[1]))
            if 'diag' in opt:
                a("s_memtime s[96:97]\ns_waitcnt lgkmcnt(0)")
                a(f"s_mov_b32 s68, s96")

NEED = [3, 5, 8, 10, 13]
def block(a, r, m):
    k = 0
    for u in range(5):
        a(f"s_waitcnt lgkmcnt({13 - NEED[u] + k})")
        a(m[u])
        if r:
            for _ in range(3 if u < 4 else 1):
                a(r[k]); k += 1

def body(a):
    for n in range(9):
        block(a, reads_step(SETS[1], n, 1), mfmas(SETS[0]))
        if n == 1:
            poll_pub(a, "C", C_T, preloaded=True)
            a("s_mov_b64 exec, 1")
            a(f"buffer_store_dword v{C_T+3}, off, {R(SRD_WS)}, s{S_FLG} sc1")
            a("s_mov_b64 exec, -1")
            if FILLM(): compute_fill(a)
            if 'onepoll' in opt: a("s_barrier")
        fp = 4
        for o in opt:
            if o.startswith('fp'): fp = int(o[2])
        if n == fp and FILLM():
            a("s_waitcnt vmcnt(0)")
            a(f"s_add_u32 s{S_FLG}, s{S_FLG}, {FLAG2_D}")
            a("s_mov_b64 exec, 1")
            a(f"buffer_store_dword v{C_T+3}, off, {R(SRD_WS)}, s{S_FLG} sc1")
            a("s_mov_b64 exec, -1")
        if n < 8:
            a("s_barrier")
            if 'diag' in opt:
                a("s_memtime s[96:97]\ns_waitcnt lgkmcnt(0)")
                a(f"s_mov_b32 s{70+n}, s96")
            block(a, reads_step(SETS[0], n+1, 0), mfmas(SETS[1]))
        else:
            block(a, None, mfmas(SETS[1]))
            if 'diag' in opt:
                a("s_memtime s[96:97]\ns_waitcnt lgkmcnt(0)")
                a(f"s_mov_b32 s78, s96")

def zero_acc(a):
    for i in range(0, 36, 2): a(f"v_pk_mov_b32 v[{ACC+i}:{ACC+i+1}], 0, 0")

def silu4(a, x, e):
    for r in (0, 2): a(f"v_pk_mul_f32 v[{e+r}:{e+r+1}], v[{x+r}:{x+r+1}], s[{S_K}:{S_K+1}]")
    for r in range(4): a(f"v_exp_f32 v{e+r}, v{e+r}")
    for r in (0, 2): a(f"v_pk_add_f32 v[{e+r}:{e+r+1}], v[{e+r}:{e+r+1}], 1.0 op_sel_hi:[1,0]")
    for r in range(4): a(f"v_rcp_f32 v{e+r}, v{e+r}")
    for r in (0, 2): a(f"v_pk_mul_f32 v[{x+r}:{x+r+1}], v[{x+r}:{x+r+1}], v[{e+r}:{e+r+1}]")

def compute_fill(a):
    W = R(SRD_WS)
    a(f"s_mul_i32 s{S_T1}, s{S_CW}, 4608")
    a(f"s_add_u32 s{S_T0}, s{S_INB}, s{S_T1}")
    for i in range(4): a(f"v_mov_b32 v{C_E+4+i}, -1")
    a(f"v_lshlrev_b32 v{C_E}, 4, v0")
    a(f"v_min_u32 v{C_E+1}, 31, v0")
    a(f"v_lshlrev_b32 v{C_E+1}, 4, v{C_E+1}")
    for i in range(4):
        a(f"buffer_store_dwordx4 v[{C_E+4}:{C_E+7}], v{C_E}, {W}, s{S_T0} offen offset:{1024*i} sc1")
    a(f"s_add_u32 s{S_T0}, s{S_T0}, 4096")
    a(f"buffer_store_dwordx4 v[{C_E+4}:{C_E+7}], v{C_E+1}, {W}, s{S_T0} offen sc1")

def compute(a):
    DIAGC[0] = True
    t0, t1, t2, t3 = C_T, C_T+1, C_T+2, C_T+3
    W = R(SRD_WS)
    a(f"s_and_b32 s{S_T0}, s{S_CW}, 1")
    a(f"s_lshr_b32 s{S_T1}, s{S_CW}, 1")
    a(f"v_lshrrev_b32 v{t0}, 2, v0")
    a(f"v_mul_u32_u24 v{t0}, 288, v{t0}")
    a(f"v_and_b32 v{t1}, 3, v0")
    a(f"v_lshl_add_u32 v{t0}, v{t1}, 3, v{t0}")
    a(f"v_add_u32 v{C_A8}, 256, v{t0}")
    a(f"v_add_u32 v{C_A8+1}, {2*WST}, v{C_A8}")
    a(f"v_add_u32 v{C_A8+2}, {4*WST}, v{C_A8}")
    a(f"s_lshl_b32 s{S_T2}, s{S_T0}, 7")
    a(f"v_add_u32 v{C_A32}, s{S_T2}, v{t0}")
    a(f"v_add_u32 v{C_A32+1}, {2*WST}, v{C_A32}")
    a(f"v_add_u32 v{C_A32+2}, {4*WST}, v{C_A32}")
    a(f"v_bfe_u32 v{t0}, v0, 2, 2")
    a(f"v_mul_u32_u24 v{t0}, 576, v{t0}")
    a(f"v_lshl_add_u32 v{t0}, v{t1}, 3, v{t0}")
    a(f"v_lshrrev_b32 v{t1}, 4, v0")
    a(f"v_mul_u32_u24 v{t2}, 2304, v{t1}")
    a(f"v_add_u32 v{t2}, v{t2}, v{t0}")
    a(f"v_add_u32 v{C_P2+1}, 256, v{t2}")
    a(f"v_lshrrev_b32 v{t2}, 5, v0")
    a(f"v_mul_u32_u24 v{t2}, 2304, v{t2}")
    a(f"v_add_u32 v{t0}, v{t0}, v{t2}")
    a(f"v_and_b32 v{t1}, 1, v{t1}")
    a(f"v_lshl_add_u32 v{t0}, v{t1}, 5, v{t0}")
    a(f"s_lshl_b32 s{S_T2}, s{S_T0}, 7")
    a(f"v_add_u32 v{C_P2}, s{S_T2}, v{t0}")
    a(f"s_mul_i32 s{S_T1}, s{S_T1}, {MHB}")
    a(f"s_add_u32 s{S_T1}, s{S_T1}, {LB}")
    a(f"v_and_b32 v{t0}, 15, v0")
    a(f"v_lshrrev_b32 v{t1}, 1, v{t0}")
    a(f"v_lshlrev_b32 v{t0}, 7, v{t0}")
    a(f"v_add_u32 v{t0}, s{S_T1}, v{t0}")
    a(f"v_lshrrev_b32 v{t3}, 4, v0")
    a(f"v_xor_b32 v{t3}, v{t3}, v{t1}")
    a(f"v_lshlrev_b32 v{t3}, 4, v{t3}")
    a(f"v_add_u32 v{C_B32}, v{t0}, v{t3}")
    a(f"v_xor_b32 v{t3}, 64, v{t3}")
    a(f"v_add_u32 v{C_B32+1}, v{t0}, v{t3}")
    a(f"s_lshl_b32 s{S_T2}, s{S_T0}, 11")
    a(f"v_add_u32 v{C_B8}, s{S_T2}, v{C_B32}")
    a(f"v_add_u32 v{C_B8+1}, s{S_T2}, v{C_B32+1}")
    zero_acc(a)
    group_bases(a)
    inbox_block(a, S_PA)
    a(f"s_mul_i32 s{S_T0}, s{S_XG}, 18432")
    a(f"s_add_u32 s{S_INB}, s{S_PA}, s{S_T0}")
    a(f"s_mul_i32 s{S_T0}, s{S_XG}, 2304")
    a(f"s_add_u32 s{S_PA}, s{S_PA}, s{S_T0}")
    a(f"s_mul_i32 s{S_T0}, s{S_CW}, {2*18432}")
    a(f"s_add_u32 s{S_PS}, s{S_PA}, s{S_T0}")
    a(f"s_add_u32 s{S_PS}, s{S_PS}, 2048")
    a(f"s_lshr_b32 s{S_T0}, s{S_CW}, 1")
    a(f"s_mul_i32 s{S_T0}, s{S_T0}, {4*18432}")
    a(f"s_add_u32 s{S_PA}, s{S_PA}, s{S_T0}")
    a(f"s_and_b32 s{S_T0}, s{S_CW}, 1")
    a(f"s_lshl_b32 s{S_T0}, s{S_T0}, 10")
    a(f"s_add_u32 s{S_PA}, s{S_PA}, s{S_T0}")
    a(f"s_lshr_b32 s{S_T0}, s{S_CW}, 1")
    a(f"s_mul_i32 s{S_T0}, s{S_T0}, {MHS}")
    a(f"s_add_u32 s{S_T0}, s{S_T0}, s{S_HB}")
    a(f"s_mul_i32 s{S_T1}, s{S_J}, {9*1024}")
    a(f"s_add_u32 s{S_T0}, s{S_T0}, s{S_T1}")
    a(f"s_and_b32 s{S_T1}, s{S_CW}, 1")
    a(f"s_lshl_b32 s{S_T2}, s{S_T1}, 12")
    a(f"s_add_u32 s{S_HST}, s{S_T0}, s{S_T2}")
    a(f"s_lshl_b32 s{S_T2}, s{S_T1}, 8")
    a(f"s_add_u32 s{S_HSP}, s{S_T0}, s{S_T2}")
    a(f"s_add_u32 s{S_HSP}, s{S_HSP}, {8*1024}")
    a(f"s_lshl_b32 s{S_FLG}, s{S_GRP}, {6 if FSPLIT() else 5}")
    a(f"s_lshl_b32 s{S_T0}, s{S_J}, {4 if FSPLIT() else 2}")
    a(f"s_add_u32 s{S_T0}, s{S_T0}, s{S_CW}")
    a(f"s_lshl_b32 s{S_T0}, s{S_T0}, 2")
    a(f"s_add_u32 s{S_FLG}, s{S_FLG}, s{S_T0}")
    a(f"s_add_u32 s{S_FLG}, s{S_FLG}, {FLAG_OFF}")
    a(f"s_mov_b32 s{S_K}, 0xbfb8aa3b")
    a(f"s_mov_b32 s{S_K+1}, 0xbfb8aa3b")
    a(f"s_mov_b32 s{S_PH}, 0")
    a("s_waitcnt lgkmcnt(0)")
    srd(a, SRD_WS, S_WS, WS_BYTES)
    srd(a, SRD_DBG, S_DBG, 256)
    a(f"v_lshlrev_b32 v{C_E}, 4, v0")
    if not spread() and not FILLM() and not FILL8():
        a(f"s_mul_i32 s{S_T1}, s{S_CW}, 4608")
        a(f"s_add_u32 s{S_T0}, s{S_INB}, s{S_T1}")
        for i in range(4): a(f"v_mov_b32 v{C_E+4+i}, -1")
        a(f"v_lshlrev_b32 v{C_E}, 4, v0")
        a(f"v_min_u32 v{C_E+1}, 31, v0")
        a(f"v_lshlrev_b32 v{C_E+1}, 4, v{C_E+1}")
        for i in range(4):
            a(f"buffer_store_dwordx4 v[{C_E+4}:{C_E+7}], v{C_E}, {W}, s{S_T0} offen offset:{1024*i} sc1")
        a(f"s_add_u32 s{S_T0}, s{S_T0}, 4096")
        a(f"buffer_store_dwordx4 v[{C_E+4}:{C_E+7}], v{C_E+1}, {W}, s{S_T0} offen sc1")
    a(f"s_cmp_eq_u32 s2, 0")
    a("s_cbranch_scc0 L_NOCLR")
    nkb = 8 if FILLM() else (4 if FSPLIT() else 2)
    a(f"s_mul_i32 s{S_T0}, s{S_CW}, {1024*nkb}")
    a(f"s_add_u32 s{S_T0}, s{S_T0}, {FLAG_OFF}")
    a(f"v_pk_mov_b32 v[{SETS[1]}:{SETS[1]+1}], 0, 0\nv_pk_mov_b32 v[{SETS[1]+2}:{SETS[1]+3}], 0, 0")
    for i in range(nkb):
        if i == 4: a(f"s_add_u32 s{S_T0}, s{S_T0}, 4096")
        a(f"buffer_store_dwordx4 v[{SETS[1]}:{SETS[1]+3}], v{C_E}, {W}, s{S_T0} offen offset:{1024*(i%4)} sc1")
    if 'latepub' not in opt:
        a("s_waitcnt vmcnt(0)")
    a.label("L_NOCLR")
    a("s_barrier")
    if 'clk1' in opt: a("s_memtime s[100:101]")
    stampw(a, 1)
    for ins in reads_step1(SETS[0], 0, 0): a(ins)
    if 'latepub' not in opt: publish(a, "L_BODY0")
    a.label("L_BODY")
    body1(a)
    a("s_barrier")
    stamp(a, 2)
    if 'clk1' in opt:
        a("s_memtime s[96:97]\ns_waitcnt lgkmcnt(0)\ns_sub_u32 s78, s96, s100\ns_mov_b32 s79, 0")
    a("s_waitcnt vmcnt(0)")
    a(f"buffer_load_dword v{t0}, off, {R(SRD_DBG)}, 0 sc1")
    a(f"v_lshlrev_b32 v{t1}, 4, v0")
    a(f"s_lshr_b32 s{S_T0}, s{S_CW}, 1")
    a(f"s_mul_i32 s{S_T0}, s{S_T0}, {MHB}")
    a(f"s_add_u32 s{S_T0}, s{S_T0}, {LB}")
    a(f"s_and_b32 s{S_T1}, s{S_CW}, 1")
    a(f"s_lshl_b32 s{S_T2}, s{S_T1}, 12")
    a(f"s_add_u32 s{S_T2}, s{S_T2}, s{S_T0}")
    a(f"v_add_u32 v{t2}, s{S_T2}, v{t1}")
    P = SETS[0]
    x = ACC + 32
    silu4(a, x, C_E)
    a(f"v_cvt_pk_bf16_f32 v{P+16}, v{x}, v{x+1}")
    a(f"v_cvt_pk_bf16_f32 v{P+17}, v{x+2}, v{x+3}")
    a(f"v_mov_b32 v{P+18}, v{P+16}")
    a(f"v_mov_b32 v{P+19}, v{P+17}")
    a(f"v_bfe_u32 v{t3}, v0, 4, 1")
    a(f"v_lshlrev_b32 v{t3}, 9, v{t3}")
    a(f"v_and_b32 v{C_E+4}, 15, v0")
    a(f"v_lshl_add_u32 v{t3}, v{C_E+4}, 4, v{t3}")
    a(f"v_permlane32_swap_b32 v{P+16}, v{P+18}")
    a(f"v_permlane32_swap_b32 v{P+17}, v{P+19}")
    a("s_mov_b32 exec_hi, 0")
    a(f"buffer_store_dwordx4 v[{P+16}:{P+19}], v{t3}, {W}, s{S_HSP} offen sc1")
    a("s_mov_b32 exec_hi, -1")
    for t in range(4):
        xe, xo = ACC + 4*t, ACC + 16 + 4*t
        d = P + 4*t
        silu4(a, xe, C_E); silu4(a, xo, C_E+4)
        a(f"v_cvt_pk_bf16_f32 v{d}, v{xe}, v{xe+1}")
        a(f"v_cvt_pk_bf16_f32 v{d+1}, v{xe+2}, v{xe+3}")
        a(f"v_cvt_pk_bf16_f32 v{d+2}, v{xo}, v{xo+1}")
        a(f"v_cvt_pk_bf16_f32 v{d+3}, v{xo+2}, v{xo+3}")
        a("s_nop 1")
        a(f"v_permlane16_swap_b32 v{d}, v{d+2}")
        a(f"v_permlane16_swap_b32 v{d+1}, v{d+3}")
        a("s_nop 1")
        a(f"v_permlane32_swap_b32 v{d}, v{d+2}")
        a(f"v_permlane32_swap_b32 v{d+1}, v{d+3}")
        a(f"buffer_store_dwordx4 v[{d}:{d+3}], v{t1}, {W}, s{S_HST} offen offset:{1024*t} sc1")
        a(f"ds_write_b128 v{t2}, v[{d}:{d+3}] offset:{1024*t}")
    stamp(a, 8)
    for k4 in range(4):
        if k4 == 0: a(f"v_add_u32 v{C_B32}, s{S_T0}, v{t1}")
        else:       a(f"v_add_u32 v{C_B32+k4}, {1024*k4}, v{C_B32}")
    a(f"v_lshrrev_b32 v{t2}, 4, v0")
    a(f"v_lshlrev_b32 v{t2}, 9, v{t2}")
    a(f"v_and_b32 v{t3}, 15, v0")
    a(f"v_lshl_add_u32 v{t2}, v{t3}, 4, v{t2}")
    a(f"s_lshl_b32 s{S_T1}, s{S_T1}, 8")
    a(f"s_add_u32 s{S_T0}, s{S_T0}, s{S_T1}")
    a(f"v_add_u32 v{C_B8}, s{S_T0}, v{t2}")
    a(f"v_add_u32 v{C_B8+1}, 2048, v{C_B8}")
    for b, src in ((C_A32, C_P2), (C_A8, C_P2+1)):
        a(f"v_add_u32 v{b}, {4*WST}, v{src}")
        a(f"v_mov_b32 v{b+1}, v{src}")
        a(f"v_add_u32 v{b+2}, {2*WST}, v{src}")
    zero_acc(a)
    a(f"v_mov_b32 v{t3}, 1")
    a(f"s_mov_b32 s{S_PH}, 1")
    a("s_waitcnt lgkmcnt(0)")
    a("s_barrier")
    stampw(a, 3)
    for ins in reads_step(SETS[0], 0, 0): a(ins)
    body(a)
    a.label("L_EPI2")
    stamp(a, 5)
    a(f"v_bfe_u32 v{t0}, v0, 3, 2")
    a(f"v_mul_u32_u24 v{t0}, 18432, v{t0}")
    a(f"v_lshrrev_b32 v{t1}, 5, v0")
    a(f"v_lshl_add_u32 v{t0}, v{t1}, 7, v{t0}")
    a(f"v_and_b32 v{t1}, 7, v0")
    a(f"v_lshl_add_u32 v{t0}, v{t1}, 4, v{t0}")
    a(f"v_lshrrev_b32 v{t2}, 4, v0")
    a(f"v_lshl_add_u32 v{t2}, v{t2}, 3, v{t1}")
    a(f"v_bfe_u32 v{t1}, v0, 3, 1")
    a(f"v_mul_u32_u24 v{t1}, 18432, v{t1}")
    a(f"v_lshl_add_u32 v{t1}, v{t2}, 3, v{t1}")
    a(f"s_mov_b32 s{S_K}, 0xfffffffe")
    P = SETS[0]
    for c in range(2):
        for hb in range(2):
            x = ACC + 16*c + 8*hb
            d = P + 4*(2*c + hb)
            for i in range(4): a(f"v_cvt_pk_bf16_f32 v{d+i}, v{x+2*i}, v{x+2*i+1}")
            for i in range(4): a(f"v_min_u32 v{d+i}, s{S_K}, v{d+i}")
            a(f"buffer_store_dwordx4 v[{d}:{d+3}], v{t0}, {W}, s{S_PA} offen offset:{256*(2*c+hb)} sc1")
    x = ACC + 32
    a(f"v_cvt_pk_bf16_f32 v{P+16}, v{x}, v{x+1}")
    a(f"v_cvt_pk_bf16_f32 v{P+17}, v{x+2}, v{x+3}")
    for d in range(2): a(f"v_min_u32 v{P+16+d}, s{S_K}, v{P+16+d}")
    a(f"buffer_store_dwordx2 v[{P+16}:{P+17}], v{t1}, {W}, s{S_PS} offen sc1")
    if 'ackE' in opt: a("s_waitcnt vmcnt(0)")
    a("s_barrier")
    stamp(a, 6)
    a(f"s_cmp_eq_u32 s{S_CW}, 0")
    a("s_cbranch_scc0 L_CDONE")
    reducer(a, "C", single=True)
    reducer_run(a, "C", single=True)
    a.label("L_CDONE")
    if 'ts' in opt or amp_on(): a("s_waitcnt vmcnt(0)")
    stamp(a, 7)
    amp_spin(a)
    if 'clk' in opt:
        a("s_memtime s[96:97]")
        a("s_waitcnt lgkmcnt(0)")
        a("s_sub_u32 s78, s96, s100")
        a("s_mov_b32 s79, 0")
    dump_stamps(a, 0, 10 if ('clk' in opt or 'clk1' in opt or 'diag' in opt) else 9, "C", 0)

def kernel_main(a):
    name = KNAME
    a(f".globl {name}\n.p2align 8\n.type {name},@function\n{name}:")
    a(f"s_cmp_ge_u32 s2, 256")
    a(f"s_cbranch_scc1 L_END")
    stamp(a, 0)
    if 'clk' in opt: a("s_memtime s[100:101]")
    a("s_load_dwordx8 s[4:11], s[0:1], 0")
    a("s_load_dwordx4 s[12:15], s[0:1], 32")
    a("v_lshrrev_b32 v1, 6, v0")
    a("v_and_b32 v0, 63, v0")
    a(f"v_readfirstlane_b32 s{S_WV}, v1")
    if 'xmap' in opt:
        a(f"s_and_b32 s{S_J}, s2, 3")
        a(f"s_lshr_b32 s{S_XG}, s2, 2")
        a(f"s_and_b32 s{S_XG}, s{S_XG}, 7")
    else:
        a(f"s_and_b32 s{S_XG}, s2, 7")
        a(f"s_lshr_b32 s{S_J}, s2, 3")
        a(f"s_and_b32 s{S_J}, s{S_J}, 3")
    a(f"s_lshr_b32 s{S_MT}, s2, 5")
    a("s_nop 0")
    a(f"s_and_b32 s{S_CW}, s{S_WV}, 3")
    a(f"s_cmp_lt_u32 s{S_WV}, 4")
    a("s_cbranch_scc1 L_COMPUTE")
    loader(a)
    a.label("L_COMPUTE")
    compute(a)
    a.label("L_END")
    a("s_endpgm")
    a.label("L_CODE_END")
    a(kd(name, vgpr=132, sgpr=102))

def check_barriers(lines):
    iL = lines.index("L_LOADER:"); iC = lines.index("L_COMPUTE:")
    cnt = lambda seg: sum(1 for ln in seg if ln.strip() == "s_barrier")
    seg = lines[iL:iC]
    i1 = seg.index("L_LD1:"); i2 = seg.index("s_cbranch_scc1 L_LD1")
    nl = cnt(seg) + 5*cnt(seg[i1:i2])
    nc = cnt(lines[iC:])
    assert nl == nc, f"barrier mismatch loader {nl} compute {nc}"
    return nl

def main():
    for o in sys.argv[2:]: opt.add(o)
    a = Asm()
    a(HEADER.rstrip())
    a(f"; @launch grid=(256,1,1) block=(512,1,1) lds={LDS_BYTES}")
    a('.amdgcn_target "amdgcn-amd-amdhsa--gfx950"')
    a(".text")
    kernel_main(a)
    check_barriers(a.lines)
    open(sys.argv[1], "w").write(a.text())

main()
```

```python
import sys
from common import *

X_BYTES = 512*576*2
W_BYTES = 576*4608*2
OUT_BYTES = 512*576*2
WS_BYTES = 268435456
PAGE = 2*1024*1024
H_OFF = 4096
GRP_BYTES = 73728
FLAG_OFF = 4*PAGE + 4096
def FSPLIT(): return 'fsplit' in opt
def FILLM(): return 'fillm' in opt
def FILL8(): return 'fill8' in opt
FLAG2_D = 16384
INBOX_OFF = 5*PAGE + 4096
INBOX_B = 8*8*2304
WST = 18432
NSL = 6
LB = NSL*WST
NBP = 5
MHB = NBP*4096
MHS = 36864
LDS_BYTES = LB + 2*MHB
TS_OFF = 128 << 20
SPIN = 1 << 17
KNAME = "standalone__dense_activation_silu__sampling_kernel"
opt = set()

S_X, S_W1, S_W2, S_OUT, S_DBG, S_WS = 4, 6, 8, 10, 12, 14
SRD_X, SRD_W1, SRD_WS, SRD_W2, SRD_DBG = 16, 20, 24, 40, 44
S_WV, S_XG, S_J, S_MT, S_CW = 28, 29, 30, 31, 32
S_N, S_WOFF, S_DSLOT = 33, 34, 35
S_T0, S_T1, S_T2, S_T3 = 36, 37, 38, 39
S_HB, S_GRP, S_INB = 53, 54, 58
S_TS = 60
S_K = 84
S_P, S_XROW, S_BDST, S_WCOL, S_WLDS = 48, 49, 50, 51, 52
S_W2B, S_KAP, S_HOFF, S_CK, S_KH, S_HDST = 55, 56, 57, 59, 92, 94
S_TST, S_TREAL, S_TOFF, S_TN = 93, 95, 96, 97
S_BBEG, S_BEND = 86, 87
S_PH, S_HST, S_HSP, S_FLG, S_PA, S_PS = 48, 49, 50, 51, 52, 55

def amp_on(): return any(o.startswith('amp') for o in opt)
def amp_spin(a):
    for o in opt:
        if o.startswith('amp'):
            ia, ib = int(o[3]), int(o[4])
            a("s_waitcnt lgkmcnt(0) vmcnt(0)")
            a(f"s_sub_u32 s95, s{S_TS+2*ib}, s{S_TS+2*ia}")
            a("s_mul_i32 s95, s95, 3")
            a("s_memrealtime s[96:97]\ns_waitcnt lgkmcnt(0)\ns_mov_b32 s94, s96")
            a.label("L_AMP")
            a("s_memrealtime s[96:97]\ns_waitcnt lgkmcnt(0)\ns_sub_u32 s96, s96, s94\ns_cmp_lt_u32 s96, s95\ns_cbranch_scc1 L_AMP")
DIAGC = [False]
def stamp(a, i):
    if 'diag' in opt and DIAGC[0]: return
    if 'ts' in opt or amp_on():
        a(f"s_memrealtime s[{S_TS+2*i}:{S_TS+2*i+1}]")
def stampw(a, i):
    if 'diag' in opt and DIAGC[0]: return
    if 'ts' in opt or amp_on():
        a(f"s_memrealtime s[{S_TS+2*i}:{S_TS+2*i+1}]")
        a("s_waitcnt lgkmcnt(0)")

def dump_stamps(a, kidx, n, tag, wave):
    if 'ts' not in opt: return
    a("s_waitcnt lgkmcnt(0) vmcnt(0)")
    a(f"s_cmp_eq_u32 s{S_WV}, {wave}")
    a(f"s_cbranch_scc0 L_NOTS{tag}")
    a(f"s_lshl_b32 s80, s2, 7")
    a(f"s_add_u32 s80, s80, {TS_OFF + kidx*512*128}")
    a(f"s_mov_b32 s88, s14\ns_mov_b32 s89, s15\ns_mov_b32 s90, {WS_BYTES}\ns_mov_b32 s91, 0x20000")
    a("v_mov_b32 v2, 0")
    for i in range(n):
        a(f"v_mov_b32 v4, s{S_TS+2*i}\nv_mov_b32 v5, s{S_TS+2*i+1}")
        a(f"buffer_store_dwordx2 v[4:5], v2, s[88:91], s80 offen offset:{8*i}")
        a("s_nop 1")
    a.label(f"L_NOTS{tag}")

def srd(a, base, ptr, nbytes):
    a(f"s_mov_b32 s{base}, s{ptr}")
    a(f"s_mov_b32 s{base+1}, s{ptr+1}")
    a(f"s_mov_b32 s{base+2}, {nbytes}")
    a(f"s_mov_b32 s{base+3}, 0x20000")
def R(base): return f"s[{base}:{base+3}]"

def wrap(a, reg, inc, mod):
    a(f"s_add_u32 s{reg}, s{reg}, {inc}")
    a(f"s_sub_u32 s{S_T3}, s{reg}, {mod}")
    a(f"s_cmp_ge_u32 s{reg}, {mod}")
    a(f"s_cselect_b32 s{reg}, s{S_T3}, s{reg}")

def group_bases(a):
    a(f"s_lshl_b32 s{S_GRP}, s{S_XG}, 3")
    a(f"s_add_u32 s{S_GRP}, s{S_GRP}, s{S_MT}")
    a(f"s_lshr_b32 s{S_HB}, s{S_GRP}, 4")
    a(f"s_lshl_b32 s{S_HB}, s{S_HB}, 21")
    a(f"s_and_b32 s{S_T0}, s{S_GRP}, 15")
    a(f"s_mul_i32 s{S_T0}, s{S_T0}, {GRP_BYTES}")
    a(f"s_add_u32 s{S_HB}, s{S_HB}, s{S_T0}")
    a(f"s_add_u32 s{S_HB}, s{S_HB}, {H_OFF}")
    a(f"s_lshl_b32 s{S_GRP}, s{S_GRP}, 2")

def inbox_block(a, dst):
    a(f"s_lshl_b32 s{dst}, s{S_MT}, 2")
    a(f"s_add_u32 s{dst}, s{dst}, s{S_J}")
    a(f"s_mul_i32 s{dst}, s{dst}, {INBOX_B}")
    a(f"s_add_u32 s{dst}, s{dst}, {INBOX_OFF}")

def poll_pub(a, tag, vtmp, preloaded=False):
    if preloaded:
        a("s_waitcnt vmcnt(0)")
        a(f"v_cmp_ne_u32 vcc, 1, v{vtmp}")
        a(f"s_cbranch_vccz L_PGX{tag}")
    a(f"s_mov_b32 s{S_T3}, 0")
    a.label(f"L_PG{tag}")
    a(f"s_add_u32 s{S_T3}, s{S_T3}, 1")
    a(f"s_cmp_gt_u32 s{S_T3}, {SPIN}")
    a(f"s_cbranch_scc1 L_PGX{tag}")
    a(f"buffer_load_dword v{vtmp}, off, {R(SRD_DBG)}, 0 sc1")
    a("s_waitcnt vmcnt(0)")
    a(f"v_cmp_ne_u32 vcc, 1, v{vtmp}")
    a(f"s_cbranch_vccnz L_PG{tag}")
    a.label(f"L_PGX{tag}")

def poll_ones(a, tag, vdst, vaddr, soff):
    a(f"s_mov_b32 s{S_T3}, 0")
    a.label(f"L_PO{tag}")
    a(f"s_add_u32 s{S_T3}, s{S_T3}, 1")
    a(f"s_cmp_gt_u32 s{S_T3}, {SPIN}")
    a(f"s_cbranch_scc1 L_POX{tag}")
    a(f"buffer_load_dword v{vdst}, v{vaddr}, {R(SRD_WS)}, s{soff} offen sc1")
    a("s_waitcnt vmcnt(0)")
    a(f"v_cmp_ne_u32 vcc, 1, v{vdst}")
    a(f"s_cbranch_vccnz L_PO{tag}")
    a.label(f"L_POX{tag}")

R_D, R_ACC, R_T, R_A = 80, 96, 100, 104
def reducer(a, tag, single):
    W = R(SRD_WS)
    if single:
        a(f"v_min_u32 v{R_T}, 31, v0")
        a(f"v_lshlrev_b32 v{R_A}, 3, v{R_T}")
        a(f"s_add_u32 s{S_T0}, s{S_INB}, 2048")
        a(f"v_and_b32 v{R_T+1}, 7, v{R_T}")
        a(f"v_mul_u32_u24 v{R_T+1}, 1152, v{R_T+1}")
        a(f"v_lshrrev_b32 v{R_T}, 3, v{R_T}")
        a(f"v_lshl_add_u32 v{R_A+1}, v{R_T}, 3, v{R_T+1}")
        a(f"s_mov_b32 s{S_T2}, 256")
    else:
        a(f"v_lshlrev_b32 v{R_A}, 3, v0")
        a(f"s_lshl_b32 s{S_T0}, s{S_CW}, 9")
        a(f"s_add_u32 s{S_T0}, s{S_T0}, s{S_INB}")
        a(f"v_bfe_u32 v{R_T}, v0, 1, 3")
        a(f"v_mul_u32_u24 v{R_T}, 1152, v{R_T}")
        a(f"v_lshrrev_b32 v{R_T+1}, 5, v0")
        a(f"v_lshl_add_u32 v{R_T}, v{R_T+1}, 5, v{R_T}")
        a(f"v_and_b32 v{R_T+1}, 1, v0")
        a(f"v_lshl_add_u32 v{R_T}, v{R_T+1}, 4, v{R_T}")
        a(f"v_bfe_u32 v{R_T+1}, v0, 4, 1")
        a(f"v_lshl_add_u32 v{R_A+1}, v{R_T+1}, 3, v{R_T}")
        a(f"s_lshl_b32 s{S_T2}, s{S_CW}, 6")
    a(f"s_lshl_b32 s{S_T1}, s{S_MT}, 3")
    a(f"s_add_u32 s{S_T1}, s{S_T1}, s{S_XG}")
    a(f"s_mul_i32 s{S_T1}, s{S_T1}, {8*1152}")
    a(f"s_add_u32 s{S_T2}, s{S_T2}, s{S_T1}")
    a(f"s_mul_i32 s{S_T1}, s{S_J}, 288")
    a(f"s_add_u32 s{S_T2}, s{S_T2}, s{S_T1}")
    srd(a, SRD_X, S_OUT, OUT_BYTES)
    return
def reducer_run(a, tag, single):
    W = R(SRD_WS)
    a(f"s_mov_b32 s{S_T3}, 0")
    if 'selr' in opt:
        a(f"s_mov_b32 s{S_T1}, s{S_T0}")
        for xg in range(8):
            a(f"buffer_load_dwordx2 v[{R_D+2*xg}:{R_D+2*xg+1}], v{R_A}, {W}, s{S_T1} offen sc1")
            if xg < 7: a(f"s_add_u32 s{S_T1}, s{S_T1}, 2304")
        a.label(f"L_RP{tag}")
        a(f"s_add_u32 s{S_T3}, s{S_T3}, 1")
        a(f"s_cmp_gt_u32 s{S_T3}, {SPIN}")
        a(f"s_cbranch_scc1 L_RPX{tag}")
        a("s_waitcnt vmcnt(0)")
        a(f"v_max3_u32 v{R_T}, v{R_D}, v{R_D+1}, v{R_D+2}")
        for i in range(3, 15, 2):
            a(f"v_max3_u32 v{R_T}, v{R_T}, v{R_D+i}, v{R_D+i+1}")
        a(f"v_max_u32 v{R_T}, v{R_T}, v{R_D+15}")
        a(f"v_cmp_eq_u32 vcc, -1, v{R_T}")
        a(f"s_cbranch_vccz L_RPX{tag}")
        a(f"s_mov_b32 s{S_T1}, s{S_T0}")
        for xg in range(8):
            a(f"v_max_u32 v{R_T}, v{R_D+2*xg}, v{R_D+2*xg+1}")
            a(f"v_cmp_eq_u32 vcc, -1, v{R_T}")
            a(f"s_cbranch_vccz L_RS{tag}{xg}")
            a(f"buffer_load_dwordx2 v[{R_D+2*xg}:{R_D+2*xg+1}], v{R_A}, {W}, s{S_T1} offen sc1")
            a.label(f"L_RS{tag}{xg}")
            if xg < 7: a(f"s_add_u32 s{S_T1}, s{S_T1}, 2304")
        a(f"s_branch L_RP{tag}")
    else:
        a.label(f"L_RP{tag}")
        a(f"s_mov_b32 s{S_T1}, s{S_T0}")
        for xg in range(8):
            a(f"buffer_load_dwordx2 v[{R_D+2*xg}:{R_D+2*xg+1}], v{R_A}, {W}, s{S_T1} offen sc1")
            if xg < 7: a(f"s_add_u32 s{S_T1}, s{S_T1}, 2304")
        a(f"s_add_u32 s{S_T3}, s{S_T3}, 1")
        a(f"s_cmp_gt_u32 s{S_T3}, {SPIN}")
        a(f"s_cbranch_scc1 L_RPX{tag}")
        a("s_waitcnt vmcnt(0)")
        a(f"v_max3_u32 v{R_T}, v{R_D}, v{R_D+1}, v{R_D+2}")
        for i in range(3, 15, 2):
            a(f"v_max3_u32 v{R_T}, v{R_T}, v{R_D+i}, v{R_D+i+1}")
        a(f"v_max_u32 v{R_T}, v{R_T}, v{R_D+15}")
        a(f"v_cmp_eq_u32 vcc, -1, v{R_T}")
        if any(o.startswith('slp') for o in opt):
            n = [int(o[3:]) for o in opt if o.startswith('slp')][0]
            a(f"s_cbranch_vccz L_RPX{tag}")
            a(f"s_sleep {n}")
            a(f"s_branch L_RP{tag}")
        else:
            a(f"s_cbranch_vccnz L_RP{tag}")
    a.label(f"L_RPX{tag}")
    a("s_waitcnt vmcnt(0)")
    for xg in range(8):
        for d in range(2):
            src = R_D + 2*xg + d
            dst = R_ACC if xg == 0 else R_T
            a(f"v_lshlrev_b32 v{dst+2*d}, 16, v{src}")
            a(f"v_and_b32 v{dst+2*d+1}, 0xffff0000, v{src}")
        if xg:
            for d in range(4): a(f"v_add_f32 v{R_ACC+d}, v{R_ACC+d}, v{R_T+d}")
    a(f"v_cvt_pk_bf16_f32 v{R_D}, v{R_ACC}, v{R_ACC+1}")
    a(f"v_cvt_pk_bf16_f32 v{R_D+1}, v{R_ACC+2}, v{R_ACC+3}")
    if single: a("s_mov_b32 exec_hi, 0")
    osc = " sc1" if 'osc1' in opt else (" nt" if 'ont' in opt else "")
    a(f"buffer_store_dwordx2 v[{R_D}:{R_D+1}], v{R_A+1}, {R(SRD_X)}, s{S_T2} offen{osc}")
    if single: a("s_mov_b32 exec_hi, -1")

L_W1, L_W2, L_X, L_H, L_T = 1, 6, 11, 13, 14
L_RHO, L_C16 = 20, 25
L_TV, L_PF, L_CK = 30, 32, 34

def issue_x(a):
    a(f"s_lshl_b32 s{S_T0}, s{S_P}, 7")
    a(f"s_mov_b32 m0, s{S_BDST}")
    a(f"s_add_u32 s{S_T0}, s{S_T0}, s{S_XROW}")
    a(f"buffer_load_dwordx4 v{L_X}, {R(SRD_X)}, s{S_T0} offen lds")
    a(f"s_add_u32 m0, m0, 1024")
    a(f"s_add_u32 s{S_BDST}, s{S_BDST}, 4096")
    a(f"buffer_load_dwordx4 v{L_X+1}, {R(SRD_X)}, s{S_T0} offen lds")
    a(f"s_cmp_eq_u32 s{S_BDST}, s{S_BEND}")
    a(f"s_cselect_b32 s{S_BDST}, s{S_BBEG}, s{S_BDST}")

def issue_w_one(a, i, vbase, srdreg):
    if i == 0: a(f"s_add_u32 m0, s{S_DSLOT}, s{S_WLDS}")
    else:      a(f"s_add_u32 m0, m0, 1024")
    a("s_mov_b32 exec_hi, 0" if i == 4 else "s_nop 0")
    a(f"buffer_load_dwordx4 v{vbase+i}, {R(srdreg)}, s{S_WOFF} offen lds")
    if i == 4: a("s_mov_b32 exec_hi, -1")
def slot_next(a):
    a(f"s_add_u32 s{S_DSLOT}, s{S_DSLOT}, {WST}")
    a(f"s_cmp_eq_u32 s{S_DSLOT}, {NSL*WST}")
    a(f"s_cselect_b32 s{S_DSLOT}, 0, s{S_DSLOT}")
def w1_off(a):
    a(f"s_mul_i32 s{S_WOFF}, s{S_P}, {64*9216}")
    a(f"s_add_u32 s{S_WOFF}, s{S_WOFF}, s{S_WCOL}")
def issue_touch(a):
    a(f"s_cmp_eq_u32 s{S_TN}, s{S_TST}")
    a(f"s_cselect_b32 s{S_TOFF}, s{S_TREAL}, 0x70000000")
    a(f"s_add_u32 s{S_TN}, s{S_TN}, 1")
    a(f"buffer_load_dword v{L_TV+1}, v{L_TV}, {R(SRD_W2)}, s{S_TOFF} offen" + (" nt" if 'tnt' in opt else (" sc1" if 'tsc1' in opt else "")))
L_FS = 36
S_FU, S_FB = 98, 99
def spread(): return 'spread' in opt
def issue_fill(a):
    a(f"s_cmp_lt_u32 s{S_FU}, {18*1024}")
    a(f"s_cselect_b32 s{S_T0}, s{S_FU}, 0x60000000")
    a(f"s_add_u32 s{S_T0}, s{S_T0}, s{S_FB}")
    a(f"s_add_u32 s{S_FU}, s{S_FU}, 4096")
    a(f"buffer_store_dwordx4 v[{L_FS}:{L_FS+3}], v{L_H}, {R(SRD_WS)}, s{S_T0} offen sc1")
def issue_stage1(a):
    issue_x(a)
    w1_off(a)
    for i in range(5): issue_w_one(a, i, L_W1, SRD_W1)
    slot_next(a)
    wrap(a, S_P, 1, 9)
    issue_touch(a)
    if spread(): issue_fill(a)
def issue_w2(a):
    a(f"s_mul_i32 s{S_WOFF}, s{S_KAP}, {16*1152}")
    a(f"s_add_u32 s{S_WOFF}, s{S_WOFF}, s{S_W2B}")
    for i in range(5): issue_w_one(a, i, L_W2, SRD_W2)
    slot_next(a)
    wrap(a, S_KAP, 4, 36)
def issue_h(a):
    a(f"s_lshl_b32 s{S_HOFF}, s{S_KH}, 10")
    a(f"s_mov_b32 m0, s{S_HDST}")
    a(f"s_add_u32 s{S_HOFF}, s{S_HOFF}, s{S_HB}")
    a(f"buffer_load_dwordx4 v{L_H}, {R(SRD_WS)}, s{S_HOFF} offen sc1 lds")
    a(f"s_add_u32 m0, m0, {MHB}")
    a(f"s_add_u32 s{S_HOFF}, s{S_HOFF}, {MHS}")
    a(f"buffer_load_dwordx4 v{L_H}, {R(SRD_WS)}, s{S_HOFF} offen sc1 lds")
    a(f"s_add_u32 s{S_HDST}, s{S_HDST}, 4096")
    a(f"s_cmp_eq_u32 s{S_HDST}, s{S_BEND}")
    a(f"s_cselect_b32 s{S_HDST}, s{S_BBEG}, s{S_HDST}")
    wrap(a, S_KH, 4, 36)

def w_voff(a, i):
    t0, t1 = L_T, L_T+1
    a(f"v_add_u32 v{t0}, {64*i}, v0")
    a(f"v_mul_u32_u24 v{t1}, 3641, v{t0}")
    a(f"v_lshrrev_b32 v{L_RHO+i}, 16, v{t1}")
    a(f"v_lshlrev_b32 v{t0}, 4, v{t0}")
    a(f"v_mad_i32_i24 v{L_C16+i}, v{L_RHO+i}, s{S_T1}, v{t0}")
    a(f"v_and_b32 v{t1}, 0xfc, v{L_RHO+i}")
    a(f"v_add_u32 v{t1}, v{t1}, v{L_RHO+i}")
    a(f"v_mad_u32_u24 v{L_W1+i}, v{t1}, s{S_T2}, v{L_C16+i}")
def w2_voffs(a):
    t0, t1 = L_T, L_T+1
    a(f"s_movk_i32 s{S_T2}, 1152")
    for i in range(5):
        a(f"v_and_b32 v{t0}, 1, v{L_RHO+i}")
        a(f"v_lshrrev_b32 v{t1}, 3, v{L_RHO+i}")
        a(f"v_lshlrev_b32 v{t1}, 2, v{t1}")
        a(f"v_lshl_add_u32 v{t1}, v{t0}, 3, v{t1}")
        a(f"v_bfe_u32 v{t0}, v{L_RHO+i}, 1, 2")
        a(f"v_add_u32 v{t1}, v{t1}, v{t0}")
        a(f"v_mad_u32_u24 v{L_W2+i}, v{t1}, s{S_T2}, v{L_C16+i}")

def loader_fill(a):
    W = R(SRD_WS)
    a(f"s_mul_i32 s{S_T1}, s{S_CW}, 4608")
    a(f"s_add_u32 s{S_T0}, s{S_INB}, s{S_T1}")
    for i in range(4):
        a(f"buffer_store_dwordx4 v[{L_FS}:{L_FS+3}], v{L_H}, {W}, s{S_T0} offen offset:{1024*i} sc1")
    a(f"s_add_u32 s{S_T0}, s{S_T0}, 4096")
    a(f"buffer_store_dwordx4 v[{L_FS}:{L_FS+3}], v{L_FS+4}, {W}, s{S_T0} offen sc1")

def loader(a):
    a.label("L_LOADER")
    if 'lprio' in opt: a("s_setprio 3")
    t0, t1, t2 = L_T, L_T+1, L_T+2
    a(f"v_lshrrev_b32 v{t0}, 3, v0")
    a(f"v_lshrrev_b32 v{t1}, 4, v0")
    a(f"v_and_b32 v{t2}, 7, v0")
    a(f"v_xor_b32 v{t1}, v{t1}, v{t2}")
    a(f"v_lshlrev_b32 v{t1}, 4, v{t1}")
    a(f"v_mul_u32_u24 v{t0}, 1152, v{t0}")
    a(f"v_add_u32 v{L_X}, v{t0}, v{t1}")
    a(f"v_xor_b32 v{t1}, 64, v{t1}")
    a(f"v_add_u32 v{t0}, {8*1152}, v{t0}")
    a(f"v_add_u32 v{L_X+1}, v{t0}, v{t1}")
    a(f"s_lshl_b32 s{S_T0}, s{S_MT}, 2")
    a(f"s_add_u32 s{S_T0}, s{S_T0}, s{S_CW}")
    a(f"s_mul_i32 s{S_XROW}, s{S_T0}, {16*1152}")
    a(f"s_lshr_b32 s{S_T0}, s{S_CW}, 1")
    a(f"s_mul_i32 s{S_BDST}, s{S_T0}, {MHB}")
    a(f"s_and_b32 s{S_T0}, s{S_CW}, 1")
    a(f"s_lshl_b32 s{S_T0}, s{S_T0}, 11")
    a(f"s_add_u32 s{S_BDST}, s{S_BDST}, s{S_T0}")
    a(f"s_add_u32 s{S_BDST}, s{S_BDST}, {LB}")
    a(f"s_mov_b32 s{S_BBEG}, s{S_BDST}")
    a(f"s_add_u32 s{S_BEND}, s{S_BDST}, {NBP*4096}")
    if 'norot' in opt: a(f"s_mov_b32 s{S_P}, 0")
    else:
        a(f"s_lshl_b32 s{S_P}, s{S_J}, 1")
        wrap_reg = S_P
        a(f"s_add_u32 s{S_P}, s{S_P}, s{S_MT}")
        a(f"s_sub_u32 s{S_T0}, s{S_P}, 9")
        a(f"s_cmp_ge_u32 s{S_P}, 9")
        a(f"s_cselect_b32 s{S_P}, s{S_T0}, s{S_P}")
    a(f"s_mul_i32 s{S_WCOL}, s{S_XG}, 1152")
    a(f"s_mul_i32 s{S_T0}, s{S_J}, 288")
    a(f"s_add_u32 s{S_WCOL}, s{S_WCOL}, s{S_T0}")
    a(f"s_lshr_b32 s{S_T0}, s{S_CW}, 1")
    a(f"s_lshl_b32 s{S_T0}, s{S_T0}, 3")
    a(f"s_and_b32 s{S_T1}, s{S_CW}, 1")
    a(f"s_add_u32 s{S_T0}, s{S_T0}, s{S_T1}")
    a(f"s_mul_i32 s{S_T0}, s{S_T0}, {4*9216}")
    a(f"s_add_u32 s{S_WCOL}, s{S_WCOL}, s{S_T0}")
    a(f"s_mul_i32 s{S_WLDS}, s{S_CW}, 4608")
    a(f"s_mov_b32 s{S_DSLOT}, 0")
    a(f"s_movk_i32 s{S_T1}, -288")
    a(f"s_movk_i32 s{S_T2}, 9216")
    w_voff(a, 0)
    a("s_waitcnt lgkmcnt(0)")
    srd(a, SRD_X, S_X, X_BYTES)
    srd(a, SRD_W1, S_W1, W_BYTES)
    stamp(a, 1)
    issue_x(a)
    w1_off(a)
    issue_w_one(a, 0, L_W1, SRD_W1)
    for i in range(1, 5):
        w_voff(a, i)
        issue_w_one(a, i, L_W1, SRD_W1)
    slot_next(a)
    wrap(a, S_P, 1, 9)
    srd(a, SRD_W2, S_W2, W_BYTES)
    a(f"s_lshl_b32 s{S_T0}, s{S_MT}, 2")
    a(f"s_add_u32 s{S_T0}, s{S_T0}, s{S_J}")
    a(f"s_mul_i32 s{S_T0}, s{S_T0}, 162")
    a(f"s_mul_i32 s{S_T1}, s{S_CW}, 41")
    a(f"s_add_u32 s{S_T0}, s{S_T0}, s{S_T1}")
    a(f"s_lshl_b32 s{S_T0}, s{S_T0}, 7")
    a(f"s_mul_i32 s{S_W2B}, s{S_XG}, {576*1152}")
    a(f"s_add_u32 s{S_TREAL}, s{S_T0}, s{S_W2B}")
    a(f"v_min_u32 v{L_TV}, 40, v0")
    a(f"v_lshlrev_b32 v{L_TV}, 7, v{L_TV}")
    a(f"s_mov_b32 s{S_TN}, 1")
    if 'tst2' in opt:
        a(f"s_add_u32 s{S_TST}, s{S_MT}, 2")
        a(f"s_min_u32 s{S_TST}, s{S_TST}, 8")
    elif 'tst3' in opt:
        a(f"s_add_u32 s{S_TST}, s{S_MT}, 3")
        a(f"s_min_u32 s{S_TST}, s{S_TST}, 8")
    elif 'tsth' in opt:
        a(f"s_lshr_b32 s{S_TST}, s{S_MT}, 1")
        a(f"s_add_u32 s{S_TST}, s{S_TST}, 5")
    else:
        a(f"s_add_u32 s{S_TST}, s{S_MT}, 1")
    if spread():
        srd(a, SRD_WS, S_WS, WS_BYTES)
        a(f"v_lshlrev_b32 v{L_H}, 4, v0")
        for i in range(4): a(f"v_mov_b32 v{L_FS+i}, -1")
        inbox_block(a, S_FB)
        a(f"s_mul_i32 s{S_T1}, s{S_XG}, 18432")
        a(f"s_add_u32 s{S_FB}, s{S_FB}, s{S_T1}")
        fstart = 1
        for o in opt:
            if o.startswith('fs'): fstart = int(o[2])
        a(f"s_lshl_b32 s{S_FU}, s{S_CW}, 10")
        a(f"s_sub_u32 s{S_FU}, s{S_FU}, {4096*fstart}")
    issue_stage1(a)
    stamp(a, 2)
    srd(a, SRD_WS, S_WS, WS_BYTES)
    srd(a, SRD_DBG, S_DBG, 256)
    w2_voffs(a)
    group_bases(a)
    a(f"s_mul_i32 s{S_T0}, s{S_J}, 288")
    a(f"s_add_u32 s{S_W2B}, s{S_W2B}, s{S_T0}")
    a(f"s_mul_i32 s{S_KAP}, s{S_J}, 9")
    a(f"s_add_u32 s{S_KAP}, s{S_KAP}, s{S_CW}")
    a(f"s_add_u32 s{S_KH}, s{S_KAP}, 8")
    a(f"s_sub_u32 s{S_T0}, s{S_KH}, 36")
    a(f"s_cmp_ge_u32 s{S_KH}, 36")
    a(f"s_cselect_b32 s{S_KH}, s{S_T0}, s{S_KH}")
    a(f"s_lshl_b32 s{S_HDST}, s{S_CW}, 10")
    a(f"s_add_u32 s{S_HDST}, s{S_HDST}, {LB + 2*4096}")
    a(f"v_lshlrev_b32 v{L_H}, 4, v0")
    inbox_block(a, S_INB)
    a(f"s_mul_i32 s{S_T1}, s{S_XG}, 18432")
    a(f"s_add_u32 s{S_INB}, s{S_INB}, s{S_T1}")
    if FSPLIT():
        a(f"v_bfe_u32 v{L_PF}, v0, 2, 2")
        a(f"v_lshlrev_b32 v{L_PF}, 6, v{L_PF}")
        a(f"v_and_b32 v{L_PF+1}, 3, v0")
        a(f"v_lshl_add_u32 v{L_PF}, v{L_PF+1}, 2, v{L_PF}")
    else:
        a(f"v_and_b32 v{L_PF}, 15, v0")
        a(f"v_lshlrev_b32 v{L_PF}, 2, v{L_PF}")
    a(f"v_lshrrev_b32 v{L_CK}, 2, v0")
    a(f"v_and_b32 v{L_CK}, 7, v{L_CK}")
    a(f"v_lshlrev_b32 v{L_CK}, {11 if FSPLIT() else 10}, v{L_CK}")
    a(f"v_and_b32 v{L_CK+1}, 3, v0")
    a(f"v_lshl_add_u32 v{L_CK}, v{L_CK+1}, 2, v{L_CK}")
    a(f"s_lshl_b32 s{S_CK}, s{S_MT}, {8 if FSPLIT() else 7}")
    a(f"s_lshl_b32 s{S_T0}, s{S_J}, {6 if FSPLIT() else 4}")
    a(f"s_add_u32 s{S_CK}, s{S_CK}, s{S_T0}")
    a(f"s_add_u32 s{S_CK}, s{S_CK}, {FLAG_OFF + (FLAG2_D if FILLM() else 0)}")
    if FILL8():
        for i in range(4): a(f"v_mov_b32 v{L_FS+i}, -1")
        a(f"v_min_u32 v{L_FS+4}, 31, v0")
        a(f"v_lshlrev_b32 v{L_FS+4}, 4, v{L_FS+4}")
    a("s_waitcnt vmcnt(%d)" % (9 if spread() else 8))
    a("s_barrier")
    stamp(a, 3)
    issue_stage1(a)
    a(f"s_mov_b32 s{S_N}, 0")
    a.label("L_LD1")
    a("s_waitcnt vmcnt(%d)" % (11 if spread() else 9))
    a("s_barrier")
    issue_stage1(a)
    a(f"s_add_u32 s{S_N}, s{S_N}, 1")
    a(f"s_cmp_lt_u32 s{S_N}, 6")
    a("s_cbranch_scc1 L_LD1")
    tail = 2 if spread() else 1
    q = [("st7", 7), ("x7", tail), ("st8", 7), ("x8", tail)]
    def iss(name, cnt, fn):
        fn(); q.append((name, cnt))
    def wait(*names):
        idx = [i for i, (nm, c) in enumerate(q) if nm in names]
        last = max(idx) if idx else -1
        n = sum(c for nm, c in q[last+1:])
        a("s_waitcnt vmcnt(%d)" % n)
    def drained(): q.clear()
    nW = [0]; nH = [2]
    def Wn():
        n = nW[0]; iss(f"W{n}", 5, lambda: issue_w2(a)); nW[0] += 1
    def Hn():
        n = nH[0]; iss(f"h{n}", 2, lambda: issue_h(a)); nH[0] += 1
    sch = (0, 1, 1, 1, 1)
    for o in opt:
        if o.startswith('sch'): sch = tuple(int(c) for c in o[3:8])
    a(f"s_mov_b32 s{S_DSLOT}, {4*WST}")
    a(f"s_lshl_b32 s{S_BBEG}, s{S_CW}, 10")
    a(f"s_add_u32 s{S_BBEG}, s{S_BBEG}, {LB}")
    a(f"s_add_u32 s{S_BEND}, s{S_BBEG}, {NBP*4096}")
    fat = 8
    for o in opt:
        if o.startswith('fat'): fat = int(o[3])
    if FILL8() and fat == 8: iss("fill", 5, lambda: loader_fill(a))
    wait("st7")
    a("s_barrier")
    if FILL8() and fat == 7: iss("fill", 5, lambda: loader_fill(a))
    for _ in range(sch[0]): Wn()
    assert nW[0] <= 2
    wait("st8")
    a("s_barrier")
    for _ in range(sch[1]): Wn()
    assert nW[0] <= 3
    a("s_barrier")
    stamp(a, 4)
    for _ in range(sch[2]): Wn()
    assert nW[0] >= 1
    a(f"buffer_load_dword v{L_T}, off, {R(SRD_DBG)}, 0 sc1"); q.append(("pub", 1))
    a(f"s_lshl_b32 s{S_T2}, s{S_GRP}, {6 if FSPLIT() else 5}")
    a(f"s_add_u32 s{S_T2}, s{S_T2}, {FLAG_OFF}")
    wait("W0", "fill")
    a("s_barrier")
    stamp(a, 5)
    for _ in range(sch[3]): Wn()
    assert nW[0] >= 2
    wait("W1")
    a("s_barrier")
    if 'flagbar' in opt: a("s_barrier")
    for _ in range(sch[4]): Wn()
    assert nW[0] <= 6
    poll_pub(a, "L", L_T, preloaded=True); drained()
    if 'onepoll' in opt:
        a(f"s_cmp_eq_u32 s{S_CW}, 0")
        a("s_cbranch_scc0 L_POXF")
    poll_ones(a, "F", L_T, L_PF, S_T2)
    if 'onepoll' in opt: a("s_barrier")
    stamp(a, 6)
    Hn(); Hn()
    if 'hearly' in opt: Hn()
    if nW[0] <= 2: Wn()
    wait("h2", "W2")
    a("s_barrier")
    stamp(a, 7)
    for s in range(3, 9):
        k = 0
        while nH[0] <= 8 and (nH[0] <= 4 or nH[0] <= s + 2) and nH[0] <= s + (2 if 'hearly' in opt else 1):
            Hn()
        while nW[0] <= 8 and (nW[0] <= 5 or nW[0] <= s + 3) and (nW[0] <= s or k < 1):
            Wn(); k += 1
        if s == 6:
            iss("chk", 1, lambda: a(f"buffer_load_dword v{L_CK+1}, v{L_CK}, {R(SRD_WS)}, s{S_CK} offen sc1"))
        if s == 8:
            a("s_waitcnt vmcnt(0)")
            a(f"v_cmp_ne_u32 vcc, 1, v{L_CK+1}")
            a("s_cbranch_vccz L_POXK")
            poll_ones(a, "K", L_CK+1, L_CK, S_CK)
            drained()
        assert nW[0] > s and nH[0] > s, (s, nW, nH)
        wait(f"h{s}", f"W{s}")
        a("s_barrier")
    stamp(a, 8)
    reducer(a, "L", single=False)
    a("s_barrier")
    reducer_run(a, "L", single=False)
    stamp(a, 9)
    dump_stamps(a, 1, 10, "LD", 4)
    a("s_endpgm")

C_A32, C_A8 = 2, 124
C_B32, C_B8 = 6, 10
C_T = 12
SETS = (16, 48)
ACC = 80
C_E = 116
C_P2 = 128

def reads_step(st, n, s0):
    sl = n % NSL
    A32 = C_A32 + (sl >> 1); A8 = C_A8 + (sl >> 1)
    base = (sl & 1)*WST + s0*9216
    bo = (n % NBP)*4096
    def a32(c, kh):
        d = st + (kh*2 + c)*4
        off = base + kh*4608 + 64*c
        return [f"ds_read_b64_tr_b16 v[{d}:{d+1}], v{A32} offset:{off}",
                f"ds_read_b64_tr_b16 v[{d+2}:{d+3}], v{A32} offset:{off+288}"]
    def b32(kh):
        d = st + 20 + 4*kh
        return [f"ds_read_b128 v[{d}:{d+3}], v{C_B32 + 2*s0 + kh} offset:{bo}"]
    ins = b32(0) + a32(0, 0) + a32(1, 0) + b32(1) + a32(0, 1) + a32(1, 1)
    ins.append(f"ds_read_b128 v[{st+28}:{st+31}], v{C_B8 + s0} offset:{bo}")
    ins.append(f"ds_read_b64_tr_b16 v[{st+16}:{st+17}], v{A8} offset:{base}")
    ins.append(f"ds_read_b64_tr_b16 v[{st+18}:{st+19}], v{A8} offset:{base+288}")
    return ins

def mfmas(st):
    out = []
    for kh in range(2):
        for c in range(2):
            acc = ACC + 16*c
            A = st + (kh*2 + c)*4; B = st + 20 + 4*kh
            out.append(f"v_mfma_f32_32x32x16_bf16 v[{acc}:{acc+15}], v[{A}:{A+3}], v[{B}:{B+3}], v[{acc}:{acc+15}]")
    out.append(f"v_mfma_f32_16x16x32_bf16 v[{ACC+32}:{ACC+35}], v[{st+16}:{st+19}], v[{st+28}:{st+31}], v[{ACC+32}:{ACC+35}]")
    return out

def reads_step1(st, n, s0):
    sl = n % NSL
    A = C_A32 + (sl >> 1); A8 = C_A8 + (sl >> 1)
    base = (sl & 1)*WST + s0*9216
    bo = (n % NBP)*4096
    def at(t):
        return [f"ds_read_b64_tr_b16 v[{st+4*t}:{st+4*t+1}], v{A} offset:{base+32*t}",
                f"ds_read_b64_tr_b16 v[{st+4*t+2}:{st+4*t+3}], v{A} offset:{base+4608+32*t}"]
    ins = [f"ds_read_b128 v[{st+20}:{st+23}], v{C_B32+s0} offset:{bo}"] + at(0)
    ins.append(f"ds_read_b128 v[{st+24}:{st+27}], v{C_B32+s0} offset:{bo+2048}")
    ins += at(1) + at(2) + at(3)
    ins.append(f"ds_read_b128 v[{st+28}:{st+31}], v{C_B8+s0} offset:{bo}")
    ins.append(f"ds_read_b64_tr_b16 v[{st+16}:{st+17}], v{A8} offset:{base}")
    ins.append(f"ds_read_b64_tr_b16 v[{st+18}:{st+19}], v{A8} offset:{base+4608}")
    return ins
def mfmas1(st):
    out = []
    def m(acc, A, B): return f"v_mfma_f32_16x16x32_bf16 v[{acc}:{acc+3}], v[{A}:{A+3}], v[{B}:{B+3}], v[{acc}:{acc+3}]"
    for t in range(4):
        out.append(m(ACC + 4*t, st + 4*t, st + 20))
        out.append(m(ACC + 16 + 4*t, st + 4*t, st + 24))
    out.append(m(ACC + 32, st + 16, st + 28))
    return out
NEED1 = {0: 4, 2: 6, 4: 8, 6: 10, 8: 13}
PAT1 = [2, 1, 2, 1, 2, 1, 2, 1, 1]
def block1(a, r, m):
    k = 0
    for u in range(9):
        if u in NEED1: a(f"s_waitcnt lgkmcnt({13 - NEED1[u] + k})")
        a(m[u])
        if r:
            for _ in range(PAT1[u]):
                a(r[k]); k += 1
def publish(a, lab):
    a(f"s_lshl_b32 s{S_T1}, s2, 2")
    a(f"s_or_b32 s{S_T1}, s{S_T1}, s{S_CW}")
    a(f"s_cmp_eq_u32 s{S_T1}, 0")
    a(f"s_cbranch_scc0 {lab}")
    a(f"v_mov_b32 v{C_T}, 1")
    a("s_mov_b64 exec, 1")
    a(f"buffer_store_dword v{C_T}, off, {R(SRD_DBG)}, 0 sc1")
    a("s_mov_b64 exec, -1")
    a.label(lab)
def body1(a):
    for n in range(9):
        block1(a, reads_step1(SETS[1], n, 1), mfmas1(SETS[0]))
        if n == 1 and 'latepub' in opt:
            a("s_cmp_eq_u32 s2, 0")
            a("s_cbranch_scc0 L_NW0")
            a("s_waitcnt vmcnt(0)")
            a.label("L_NW0")
        if n < 8:
            a("s_barrier")
            if n == 1 and 'latepub' in opt: publish(a, "L_PUB0")
            if 'diag' in opt:
                a("s_memtime s[96:97]\ns_waitcnt lgkmcnt(0)")
                a(f"s_mov_b32 s{60+n}, s96")
            block1(a, reads_step1(SETS[0], n+1, 0), mfmas1(SETS[1]))
        else:
            block1(a, None, mfmas1(SETS[1]))
            if 'diag' in opt:
                a("s_memtime s[96:97]\ns_waitcnt lgkmcnt(0)")
                a(f"s_mov_b32 s68, s96")

NEED = [3, 5, 8, 10, 13]
def block(a, r, m):
    k = 0
    for u in range(5):
        a(f"s_waitcnt lgkmcnt({13 - NEED[u] + k})")
        a(m[u])
        if r:
            for _ in range(3 if u < 4 else 1):
                a(r[k]); k += 1

def body(a):
    for n in range(9):
        block(a, reads_step(SETS[1], n, 1), mfmas(SETS[0]))
        if n == 1:
            poll_pub(a, "C", C_T, preloaded=True)
            a("s_mov_b64 exec, 1")
            a(f"buffer_store_dword v{C_T+3}, off, {R(SRD_WS)}, s{S_FLG} sc1")
            a("s_mov_b64 exec, -1")
            if FILLM(): compute_fill(a)
            if 'flagbar' in opt: a("s_barrier")
            if 'onepoll' in opt: a("s_barrier")
        fp = 4
        for o in opt:
            if o.startswith('fp'): fp = int(o[2])
        if n == fp and FILLM():
            a("s_waitcnt vmcnt(0)")
            a(f"s_add_u32 s{S_FLG}, s{S_FLG}, {FLAG2_D}")
            a("s_mov_b64 exec, 1")
            a(f"buffer_store_dword v{C_T+3}, off, {R(SRD_WS)}, s{S_FLG} sc1")
            a("s_mov_b64 exec, -1")
        if n < 8:
            a("s_barrier")
            if 'diag' in opt:
                a("s_memtime s[96:97]\ns_waitcnt lgkmcnt(0)")
                a(f"s_mov_b32 s{70+n}, s96")
            block(a, reads_step(SETS[0], n+1, 0), mfmas(SETS[1]))
        else:
            block(a, None, mfmas(SETS[1]))
            if 'diag' in opt:
                a("s_memtime s[96:97]\ns_waitcnt lgkmcnt(0)")
                a(f"s_mov_b32 s78, s96")

def zero_acc(a):
    for i in range(0, 36, 2): a(f"v_pk_mov_b32 v[{ACC+i}:{ACC+i+1}], 0, 0")

def silu4(a, x, e):
    for r in (0, 2): a(f"v_pk_mul_f32 v[{e+r}:{e+r+1}], v[{x+r}:{x+r+1}], s[{S_K}:{S_K+1}]")
    for r in range(4): a(f"v_exp_f32 v{e+r}, v{e+r}")
    for r in (0, 2): a(f"v_pk_add_f32 v[{e+r}:{e+r+1}], v[{e+r}:{e+r+1}], 1.0 op_sel_hi:[1,0]")
    for r in range(4): a(f"v_rcp_f32 v{e+r}, v{e+r}")
    for r in (0, 2): a(f"v_pk_mul_f32 v[{x+r}:{x+r+1}], v[{x+r}:{x+r+1}], v[{e+r}:{e+r+1}]")

def compute_fill(a):
    W = R(SRD_WS)
    a(f"s_mul_i32 s{S_T1}, s{S_CW}, 4608")
    a(f"s_add_u32 s{S_T0}, s{S_INB}, s{S_T1}")
    for i in range(4): a(f"v_mov_b32 v{C_E+4+i}, -1")
    a(f"v_lshlrev_b32 v{C_E}, 4, v0")
    a(f"v_min_u32 v{C_E+1}, 31, v0")
    a(f"v_lshlrev_b32 v{C_E+1}, 4, v{C_E+1}")
    for i in range(4):
        a(f"buffer_store_dwordx4 v[{C_E+4}:{C_E+7}], v{C_E}, {W}, s{S_T0} offen offset:{1024*i} sc1")
    a(f"s_add_u32 s{S_T0}, s{S_T0}, 4096")
    a(f"buffer_store_dwordx4 v[{C_E+4}:{C_E+7}], v{C_E+1}, {W}, s{S_T0} offen sc1")

def compute(a):
    DIAGC[0] = True
    t0, t1, t2, t3 = C_T, C_T+1, C_T+2, C_T+3
    W = R(SRD_WS)
    a(f"s_and_b32 s{S_T0}, s{S_CW}, 1")
    a(f"s_lshr_b32 s{S_T1}, s{S_CW}, 1")
    a(f"v_lshrrev_b32 v{t0}, 2, v0")
    a(f"v_mul_u32_u24 v{t0}, 288, v{t0}")
    a(f"v_and_b32 v{t1}, 3, v0")
    a(f"v_lshl_add_u32 v{t0}, v{t1}, 3, v{t0}")
    a(f"v_add_u32 v{C_A8}, 256, v{t0}")
    a(f"v_add_u32 v{C_A8+1}, {2*WST}, v{C_A8}")
    a(f"v_add_u32 v{C_A8+2}, {4*WST}, v{C_A8}")
    a(f"s_lshl_b32 s{S_T2}, s{S_T0}, 7")
    a(f"v_add_u32 v{C_A32}, s{S_T2}, v{t0}")
    a(f"v_add_u32 v{C_A32+1}, {2*WST}, v{C_A32}")
    a(f"v_add_u32 v{C_A32+2}, {4*WST}, v{C_A32}")
    a(f"v_bfe_u32 v{t0}, v0, 2, 2")
    a(f"v_mul_u32_u24 v{t0}, 576, v{t0}")
    a(f"v_lshl_add_u32 v{t0}, v{t1}, 3, v{t0}")
    a(f"v_lshrrev_b32 v{t1}, 4, v0")
    a(f"v_mul_u32_u24 v{t2}, 2304, v{t1}")
    a(f"v_add_u32 v{t2}, v{t2}, v{t0}")
    a(f"v_add_u32 v{C_P2+1}, 256, v{t2}")
    a(f"v_lshrrev_b32 v{t2}, 5, v0")
    a(f"v_mul_u32_u24 v{t2}, 2304, v{t2}")
    a(f"v_add_u32 v{t0}, v{t0}, v{t2}")
    a(f"v_and_b32 v{t1}, 1, v{t1}")
    a(f"v_lshl_add_u32 v{t0}, v{t1}, 5, v{t0}")
    a(f"s_lshl_b32 s{S_T2}, s{S_T0}, 7")
    a(f"v_add_u32 v{C_P2}, s{S_T2}, v{t0}")
    a(f"s_mul_i32 s{S_T1}, s{S_T1}, {MHB}")
    a(f"s_add_u32 s{S_T1}, s{S_T1}, {LB}")
    a(f"v_and_b32 v{t0}, 15, v0")
    a(f"v_lshrrev_b32 v{t1}, 1, v{t0}")
    a(f"v_lshlrev_b32 v{t0}, 7, v{t0}")
    a(f"v_add_u32 v{t0}, s{S_T1}, v{t0}")
    a(f"v_lshrrev_b32 v{t3}, 4, v0")
    a(f"v_xor_b32 v{t3}, v{t3}, v{t1}")
    a(f"v_lshlrev_b32 v{t3}, 4, v{t3}")
    a(f"v_add_u32 v{C_B32}, v{t0}, v{t3}")
    a(f"v_xor_b32 v{t3}, 64, v{t3}")
    a(f"v_add_u32 v{C_B32+1}, v{t0}, v{t3}")
    a(f"s_lshl_b32 s{S_T2}, s{S_T0}, 11")
    a(f"v_add_u32 v{C_B8}, s{S_T2}, v{C_B32}")
    a(f"v_add_u32 v{C_B8+1}, s{S_T2}, v{C_B32+1}")
    zero_acc(a)
    group_bases(a)
    inbox_block(a, S_PA)
    a(f"s_mul_i32 s{S_T0}, s{S_XG}, 18432")
    a(f"s_add_u32 s{S_INB}, s{S_PA}, s{S_T0}")
    a(f"s_mul_i32 s{S_T0}, s{S_XG}, 2304")
    a(f"s_add_u32 s{S_PA}, s{S_PA}, s{S_T0}")
    a(f"s_mul_i32 s{S_T0}, s{S_CW}, {2*18432}")
    a(f"s_add_u32 s{S_PS}, s{S_PA}, s{S_T0}")
    a(f"s_add_u32 s{S_PS}, s{S_PS}, 2048")
    a(f"s_lshr_b32 s{S_T0}, s{S_CW}, 1")
    a(f"s_mul_i32 s{S_T0}, s{S_T0}, {4*18432}")
    a(f"s_add_u32 s{S_PA}, s{S_PA}, s{S_T0}")
    a(f"s_and_b32 s{S_T0}, s{S_CW}, 1")
    a(f"s_lshl_b32 s{S_T0}, s{S_T0}, 10")
    a(f"s_add_u32 s{S_PA}, s{S_PA}, s{S_T0}")
    a(f"s_lshr_b32 s{S_T0}, s{S_CW}, 1")
    a(f"s_mul_i32 s{S_T0}, s{S_T0}, {MHS}")
    a(f"s_add_u32 s{S_T0}, s{S_T0}, s{S_HB}")
    a(f"s_mul_i32 s{S_T1}, s{S_J}, {9*1024}")
    a(f"s_add_u32 s{S_T0}, s{S_T0}, s{S_T1}")
    a(f"s_and_b32 s{S_T1}, s{S_CW}, 1")
    a(f"s_lshl_b32 s{S_T2}, s{S_T1}, 12")
    a(f"s_add_u32 s{S_HST}, s{S_T0}, s{S_T2}")
    a(f"s_lshl_b32 s{S_T2}, s{S_T1}, 8")
    a(f"s_add_u32 s{S_HSP}, s{S_T0}, s{S_T2}")
    a(f"s_add_u32 s{S_HSP}, s{S_HSP}, {8*1024}")
    a(f"s_lshl_b32 s{S_FLG}, s{S_GRP}, {6 if FSPLIT() else 5}")
    a(f"s_lshl_b32 s{S_T0}, s{S_J}, {4 if FSPLIT() else 2}")
    a(f"s_add_u32 s{S_T0}, s{S_T0}, s{S_CW}")
    a(f"s_lshl_b32 s{S_T0}, s{S_T0}, 2")
    a(f"s_add_u32 s{S_FLG}, s{S_FLG}, s{S_T0}")
    a(f"s_add_u32 s{S_FLG}, s{S_FLG}, {FLAG_OFF}")
    a(f"s_mov_b32 s{S_K}, 0xbfb8aa3b")
    a(f"s_mov_b32 s{S_K+1}, 0xbfb8aa3b")
    a(f"s_mov_b32 s{S_PH}, 0")
    a("s_waitcnt lgkmcnt(0)")
    srd(a, SRD_WS, S_WS, WS_BYTES)
    srd(a, SRD_DBG, S_DBG, 256)
    a(f"v_lshlrev_b32 v{C_E}, 4, v0")
    if not spread() and not FILLM() and not FILL8():
        a(f"s_mul_i32 s{S_T1}, s{S_CW}, 4608")
        a(f"s_add_u32 s{S_T0}, s{S_INB}, s{S_T1}")
        for i in range(4): a(f"v_mov_b32 v{C_E+4+i}, -1")
        a(f"v_lshlrev_b32 v{C_E}, 4, v0")
        a(f"v_min_u32 v{C_E+1}, 31, v0")
        a(f"v_lshlrev_b32 v{C_E+1}, 4, v{C_E+1}")
        for i in range(4):
            a(f"buffer_store_dwordx4 v[{C_E+4}:{C_E+7}], v{C_E}, {W}, s{S_T0} offen offset:{1024*i} sc1")
        a(f"s_add_u32 s{S_T0}, s{S_T0}, 4096")
        a(f"buffer_store_dwordx4 v[{C_E+4}:{C_E+7}], v{C_E+1}, {W}, s{S_T0} offen sc1")
    a(f"s_cmp_eq_u32 s2, 0")
    a("s_cbranch_scc0 L_NOCLR")
    nkb = 8 if FILLM() else (4 if FSPLIT() else 2)
    a(f"s_mul_i32 s{S_T0}, s{S_CW}, {1024*nkb}")
    a(f"s_add_u32 s{S_T0}, s{S_T0}, {FLAG_OFF}")
    a(f"v_pk_mov_b32 v[{SETS[1]}:{SETS[1]+1}], 0, 0\nv_pk_mov_b32 v[{SETS[1]+2}:{SETS[1]+3}], 0, 0")
    for i in range(nkb):
        if i == 4: a(f"s_add_u32 s{S_T0}, s{S_T0}, 4096")
        a(f"buffer_store_dwordx4 v[{SETS[1]}:{SETS[1]+3}], v{C_E}, {W}, s{S_T0} offen offset:{1024*(i%4)} sc1")
    if 'latepub' not in opt:
        a("s_waitcnt vmcnt(0)")
    a.label("L_NOCLR")
    a("s_barrier")
    if 'clk1' in opt: a("s_memtime s[100:101]")
    stampw(a, 1)
    for ins in reads_step1(SETS[0], 0, 0): a(ins)
    if 'latepub' not in opt: publish(a, "L_BODY0")
    a.label("L_BODY")
    body1(a)
    a("s_barrier")
    stamp(a, 2)
    if 'clk1' in opt:
        a("s_memtime s[96:97]\ns_waitcnt lgkmcnt(0)\ns_sub_u32 s78, s96, s100\ns_mov_b32 s79, 0")
    a("s_waitcnt vmcnt(0)")
    a(f"buffer_load_dword v{t0}, off, {R(SRD_DBG)}, 0 sc1")
    a(f"v_lshlrev_b32 v{t1}, 4, v0")
    a(f"s_lshr_b32 s{S_T0}, s{S_CW}, 1")
    a(f"s_mul_i32 s{S_T0}, s{S_T0}, {MHB}")
    a(f"s_add_u32 s{S_T0}, s{S_T0}, {LB}")
    a(f"s_and_b32 s{S_T1}, s{S_CW}, 1")
    a(f"s_lshl_b32 s{S_T2}, s{S_T1}, 12")
    a(f"s_add_u32 s{S_T2}, s{S_T2}, s{S_T0}")
    a(f"v_add_u32 v{t2}, s{S_T2}, v{t1}")
    P = SETS[0]
    x = ACC + 32
    silu4(a, x, C_E)
    a(f"v_cvt_pk_bf16_f32 v{P+16}, v{x}, v{x+1}")
    a(f"v_cvt_pk_bf16_f32 v{P+17}, v{x+2}, v{x+3}")
    a(f"v_mov_b32 v{P+18}, v{P+16}")
    a(f"v_mov_b32 v{P+19}, v{P+17}")
    a(f"v_bfe_u32 v{t3}, v0, 4, 1")
    a(f"v_lshlrev_b32 v{t3}, 9, v{t3}")
    a(f"v_and_b32 v{C_E+4}, 15, v0")
    a(f"v_lshl_add_u32 v{t3}, v{C_E+4}, 4, v{t3}")
    a(f"v_permlane32_swap_b32 v{P+16}, v{P+18}")
    a(f"v_permlane32_swap_b32 v{P+17}, v{P+19}")
    a("s_mov_b32 exec_hi, 0")
    a(f"buffer_store_dwordx4 v[{P+16}:{P+19}], v{t3}, {W}, s{S_HSP} offen sc1")
    a("s_mov_b32 exec_hi, -1")
    for t in range(4):
        xe, xo = ACC + 4*t, ACC + 16 + 4*t
        d = P + 4*t
        silu4(a, xe, C_E); silu4(a, xo, C_E+4)
        a(f"v_cvt_pk_bf16_f32 v{d}, v{xe}, v{xe+1}")
        a(f"v_cvt_pk_bf16_f32 v{d+1}, v{xe+2}, v{xe+3}")
        a(f"v_cvt_pk_bf16_f32 v{d+2}, v{xo}, v{xo+1}")
        a(f"v_cvt_pk_bf16_f32 v{d+3}, v{xo+2}, v{xo+3}")
        a("s_nop 1")
        a(f"v_permlane16_swap_b32 v{d}, v{d+2}")
        a(f"v_permlane16_swap_b32 v{d+1}, v{d+3}")
        a("s_nop 1")
        a(f"v_permlane32_swap_b32 v{d}, v{d+2}")
        a(f"v_permlane32_swap_b32 v{d+1}, v{d+3}")
        a(f"buffer_store_dwordx4 v[{d}:{d+3}], v{t1}, {W}, s{S_HST} offen offset:{1024*t} sc1")
        a(f"ds_write_b128 v{t2}, v[{d}:{d+3}] offset:{1024*t}")
    stamp(a, 8)
    for k4 in range(4):
        if k4 == 0: a(f"v_add_u32 v{C_B32}, s{S_T0}, v{t1}")
        else:       a(f"v_add_u32 v{C_B32+k4}, {1024*k4}, v{C_B32}")
    a(f"v_lshrrev_b32 v{t2}, 4, v0")
    a(f"v_lshlrev_b32 v{t2}, 9, v{t2}")
    a(f"v_and_b32 v{t3}, 15, v0")
    a(f"v_lshl_add_u32 v{t2}, v{t3}, 4, v{t2}")
    a(f"s_lshl_b32 s{S_T1}, s{S_T1}, 8")
    a(f"s_add_u32 s{S_T0}, s{S_T0}, s{S_T1}")
    a(f"v_add_u32 v{C_B8}, s{S_T0}, v{t2}")
    a(f"v_add_u32 v{C_B8+1}, 2048, v{C_B8}")
    for b, src in ((C_A32, C_P2), (C_A8, C_P2+1)):
        a(f"v_add_u32 v{b}, {4*WST}, v{src}")
        a(f"v_mov_b32 v{b+1}, v{src}")
        a(f"v_add_u32 v{b+2}, {2*WST}, v{src}")
    zero_acc(a)
    a(f"v_mov_b32 v{t3}, 1")
    a(f"s_mov_b32 s{S_PH}, 1")
    a("s_waitcnt lgkmcnt(0)")
    a("s_barrier")
    stampw(a, 3)
    for ins in reads_step(SETS[0], 0, 0): a(ins)
    body(a)
    a.label("L_EPI2")
    stamp(a, 5)
    a(f"v_bfe_u32 v{t0}, v0, 3, 2")
    a(f"v_mul_u32_u24 v{t0}, 18432, v{t0}")
    a(f"v_lshrrev_b32 v{t1}, 5, v0")
    a(f"v_lshl_add_u32 v{t0}, v{t1}, 7, v{t0}")
    a(f"v_and_b32 v{t1}, 7, v0")
    a(f"v_lshl_add_u32 v{t0}, v{t1}, 4, v{t0}")
    a(f"v_lshrrev_b32 v{t2}, 4, v0")
    a(f"v_lshl_add_u32 v{t2}, v{t2}, 3, v{t1}")
    a(f"v_bfe_u32 v{t1}, v0, 3, 1")
    a(f"v_mul_u32_u24 v{t1}, 18432, v{t1}")
    a(f"v_lshl_add_u32 v{t1}, v{t2}, 3, v{t1}")
    a(f"s_mov_b32 s{S_K}, 0xfffffffe")
    P = SETS[0]
    for c in range(2):
        for hb in range(2):
            x = ACC + 16*c + 8*hb
            d = P + 4*(2*c + hb)
            for i in range(4): a(f"v_cvt_pk_bf16_f32 v{d+i}, v{x+2*i}, v{x+2*i+1}")
            for i in range(4): a(f"v_min_u32 v{d+i}, s{S_K}, v{d+i}")
            a(f"buffer_store_dwordx4 v[{d}:{d+3}], v{t0}, {W}, s{S_PA} offen offset:{256*(2*c+hb)} sc1")
    x = ACC + 32
    a(f"v_cvt_pk_bf16_f32 v{P+16}, v{x}, v{x+1}")
    a(f"v_cvt_pk_bf16_f32 v{P+17}, v{x+2}, v{x+3}")
    for d in range(2): a(f"v_min_u32 v{P+16+d}, s{S_K}, v{P+16+d}")
    a(f"buffer_store_dwordx2 v[{P+16}:{P+17}], v{t1}, {W}, s{S_PS} offen sc1")
    if 'ackE' in opt: a("s_waitcnt vmcnt(0)")
    a("s_barrier")
    stamp(a, 6)
    a(f"s_cmp_eq_u32 s{S_CW}, 0")
    a("s_cbranch_scc0 L_CDONE")
    reducer(a, "C", single=True)
    reducer_run(a, "C", single=True)
    a.label("L_CDONE")
    if 'ts' in opt or amp_on(): a("s_waitcnt vmcnt(0)")
    stamp(a, 7)
    amp_spin(a)
    if 'clk' in opt:
        a("s_memtime s[96:97]")
        a("s_waitcnt lgkmcnt(0)")
        a("s_sub_u32 s78, s96, s100")
        a("s_mov_b32 s79, 0")
    dump_stamps(a, 0, 10 if ('clk' in opt or 'clk1' in opt or 'diag' in opt) else 9, "C", 0)

def kernel_main(a):
    name = KNAME
    a(f".globl {name}\n.p2align 8\n.type {name},@function\n{name}:")
    a(f"s_cmp_ge_u32 s2, 256")
    a(f"s_cbranch_scc1 L_END")
    stamp(a, 0)
    if 'clk' in opt: a("s_memtime s[100:101]")
    a("s_load_dwordx8 s[4:11], s[0:1], 0")
    a("s_load_dwordx4 s[12:15], s[0:1], 32")
    a("v_lshrrev_b32 v1, 6, v0")
    a("v_and_b32 v0, 63, v0")
    a(f"v_readfirstlane_b32 s{S_WV}, v1")
    if 'xmap' in opt:
        a(f"s_and_b32 s{S_J}, s2, 3")
        a(f"s_lshr_b32 s{S_XG}, s2, 2")
        a(f"s_and_b32 s{S_XG}, s{S_XG}, 7")
    else:
        a(f"s_and_b32 s{S_XG}, s2, 7")
        a(f"s_lshr_b32 s{S_J}, s2, 3")
        a(f"s_and_b32 s{S_J}, s{S_J}, 3")
    a(f"s_lshr_b32 s{S_MT}, s2, 5")
    a("s_nop 0")
    a(f"s_and_b32 s{S_CW}, s{S_WV}, 3")
    a(f"s_cmp_lt_u32 s{S_WV}, 4")
    a("s_cbranch_scc1 L_COMPUTE")
    loader(a)
    a.label("L_COMPUTE")
    compute(a)
    a.label("L_END")
    a("s_endpgm")
    a.label("L_CODE_END")
    a(kd(name, vgpr=132, sgpr=102))

def check_barriers(lines):
    iL = lines.index("L_LOADER:"); iC = lines.index("L_COMPUTE:")
    cnt = lambda seg: sum(1 for ln in seg if ln.strip() == "s_barrier")
    seg = lines[iL:iC]
    i1 = seg.index("L_LD1:"); i2 = seg.index("s_cbranch_scc1 L_LD1")
    nl = cnt(seg) + 5*cnt(seg[i1:i2])
    nc = cnt(lines[iC:])
    assert nl == nc, f"barrier mismatch loader {nl} compute {nc}"
    return nl

def main():
    for o in sys.argv[2:]: opt.add(o)
    a = Asm()
    a(HEADER.rstrip())
    a(f"; @launch grid=(256,1,1) block=(512,1,1) lds={LDS_BYTES}")
    a('.amdgcn_target "amdgcn-amd-amdhsa--gfx950"')
    a(".text")
    kernel_main(a)
    check_barriers(a.lines)
    open(sys.argv[1], "w").write(a.text())

main()
```

```python
import sys
from common import *

X_BYTES = 512*576*2
W_BYTES = 576*4608*2
OUT_BYTES = 512*576*2
WS_BYTES = 268435456
PAGE = 2*1024*1024
H_OFF = 4096
GRP_BYTES = 73728
FLAG_OFF = 4*PAGE + 4096
def FSPLIT(): return 'fsplit' in opt
def FILLM(): return 'fillm' in opt
def FILL8(): return 'fill8' in opt
FLAG2_D = 16384
INBOX_OFF = 5*PAGE + 4096
INBOX_B = 8*8*2304
WST = 18432
NSL = 6
LB = NSL*WST
NBP = 5
MHB = NBP*4096
MHS = 36864
LDS_BYTES = LB + 2*MHB
TS_OFF = 128 << 20
SPIN = 1 << 17
KNAME = "standalone__dense_activation_silu__sampling_kernel"
opt = set()

S_X, S_W1, S_W2, S_OUT, S_DBG, S_WS = 4, 6, 8, 10, 12, 14
SRD_X, SRD_W1, SRD_WS, SRD_W2, SRD_DBG = 16, 20, 24, 40, 44
S_WV, S_XG, S_J, S_MT, S_CW = 28, 29, 30, 31, 32
S_N, S_WOFF, S_DSLOT = 33, 34, 35
S_T0, S_T1, S_T2, S_T3 = 36, 37, 38, 39
S_HB, S_GRP, S_INB = 53, 54, 58
S_TS = 60
S_K = 84
S_P, S_XROW, S_BDST, S_WCOL, S_WLDS = 48, 49, 50, 51, 52
S_W2B, S_KAP, S_HOFF, S_CK, S_KH, S_HDST = 55, 56, 57, 59, 92, 94
S_TST, S_TREAL, S_TOFF, S_TN = 93, 95, 96, 97
S_BBEG, S_BEND = 86, 87
S_PH, S_HST, S_HSP, S_FLG, S_PA, S_PS = 48, 49, 50, 51, 52, 55

def amp_on(): return any(o.startswith('amp') for o in opt)
def amp_spin(a):
    for o in opt:
        if o.startswith('amp'):
            ia, ib = int(o[3]), int(o[4])
            a("s_waitcnt lgkmcnt(0) vmcnt(0)")
            a(f"s_sub_u32 s95, s{S_TS+2*ib}, s{S_TS+2*ia}")
            a("s_mul_i32 s95, s95, 3")
            a("s_memrealtime s[96:97]\ns_waitcnt lgkmcnt(0)\ns_mov_b32 s94, s96")
            a.label("L_AMP")
            a("s_memrealtime s[96:97]\ns_waitcnt lgkmcnt(0)\ns_sub_u32 s96, s96, s94\ns_cmp_lt_u32 s96, s95\ns_cbranch_scc1 L_AMP")
DIAGC = [False]
def stamp(a, i):
    if 'diag' in opt and DIAGC[0]: return
    if 'ts' in opt or amp_on():
        a(f"s_memrealtime s[{S_TS+2*i}:{S_TS+2*i+1}]")
def stampw(a, i):
    if 'diag' in opt and DIAGC[0]: return
    if 'ts' in opt or amp_on():
        a(f"s_memrealtime s[{S_TS+2*i}:{S_TS+2*i+1}]")
        a("s_waitcnt lgkmcnt(0)")

def dump_stamps(a, kidx, n, tag, wave):
    if 'ts' not in opt: return
    a("s_waitcnt lgkmcnt(0) vmcnt(0)")
    a(f"s_cmp_eq_u32 s{S_WV}, {wave}")
    a(f"s_cbranch_scc0 L_NOTS{tag}")
    a(f"s_lshl_b32 s80, s2, 7")
    a(f"s_add_u32 s80, s80, {TS_OFF + kidx*512*128}")
    a(f"s_mov_b32 s88, s14\ns_mov_b32 s89, s15\ns_mov_b32 s90, {WS_BYTES}\ns_mov_b32 s91, 0x20000")
    a("v_mov_b32 v2, 0")
    for i in range(n):
        a(f"v_mov_b32 v4, s{S_TS+2*i}\nv_mov_b32 v5, s{S_TS+2*i+1}")
        a(f"buffer_store_dwordx2 v[4:5], v2, s[88:91], s80 offen offset:{8*i}")
        a("s_nop 1")
    a.label(f"L_NOTS{tag}")

def srd(a, base, ptr, nbytes):
    a(f"s_mov_b32 s{base}, s{ptr}")
    a(f"s_mov_b32 s{base+1}, s{ptr+1}")
    a(f"s_mov_b32 s{base+2}, {nbytes}")
    a(f"s_mov_b32 s{base+3}, 0x20000")
def R(base): return f"s[{base}:{base+3}]"

def wrap(a, reg, inc, mod):
    a(f"s_add_u32 s{reg}, s{reg}, {inc}")
    a(f"s_sub_u32 s{S_T3}, s{reg}, {mod}")
    a(f"s_cmp_ge_u32 s{reg}, {mod}")
    a(f"s_cselect_b32 s{reg}, s{S_T3}, s{reg}")

def group_bases(a):
    a(f"s_lshl_b32 s{S_GRP}, s{S_XG}, 3")
    a(f"s_add_u32 s{S_GRP}, s{S_GRP}, s{S_MT}")
    a(f"s_lshr_b32 s{S_HB}, s{S_GRP}, 4")
    a(f"s_lshl_b32 s{S_HB}, s{S_HB}, 21")
    a(f"s_and_b32 s{S_T0}, s{S_GRP}, 15")
    a(f"s_mul_i32 s{S_T0}, s{S_T0}, {GRP_BYTES}")
    a(f"s_add_u32 s{S_HB}, s{S_HB}, s{S_T0}")
    a(f"s_add_u32 s{S_HB}, s{S_HB}, {H_OFF}")
    a(f"s_lshl_b32 s{S_GRP}, s{S_GRP}, 2")

def inbox_block(a, dst):
    a(f"s_lshl_b32 s{dst}, s{S_MT}, 2")
    a(f"s_add_u32 s{dst}, s{dst}, s{S_J}")
    a(f"s_mul_i32 s{dst}, s{dst}, {INBOX_B}")
    a(f"s_add_u32 s{dst}, s{dst}, {INBOX_OFF}")

def poll_pub(a, tag, vtmp, preloaded=False):
    if preloaded:
        a("s_waitcnt vmcnt(0)")
        a(f"v_cmp_ne_u32 vcc, 1, v{vtmp}")
        a(f"s_cbranch_vccz L_PGX{tag}")
    a(f"s_mov_b32 s{S_T3}, 0")
    a.label(f"L_PG{tag}")
    a(f"s_add_u32 s{S_T3}, s{S_T3}, 1")
    a(f"s_cmp_gt_u32 s{S_T3}, {SPIN}")
    a(f"s_cbranch_scc1 L_PGX{tag}")
    a(f"buffer_load_dword v{vtmp}, off, {R(SRD_DBG)}, 0 sc1")
    a("s_waitcnt vmcnt(0)")
    a(f"v_cmp_ne_u32 vcc, 1, v{vtmp}")
    a(f"s_cbranch_vccnz L_PG{tag}")
    a.label(f"L_PGX{tag}")

def poll_ones(a, tag, vdst, vaddr, soff):
    a(f"s_mov_b32 s{S_T3}, 0")
    a.label(f"L_PO{tag}")
    a(f"s_add_u32 s{S_T3}, s{S_T3}, 1")
    a(f"s_cmp_gt_u32 s{S_T3}, {SPIN}")
    a(f"s_cbranch_scc1 L_POX{tag}")
    a(f"buffer_load_dword v{vdst}, v{vaddr}, {R(SRD_WS)}, s{soff} offen sc1")
    a("s_waitcnt vmcnt(0)")
    a(f"v_cmp_ne_u32 vcc, 1, v{vdst}")
    a(f"s_cbranch_vccnz L_PO{tag}")
    a.label(f"L_POX{tag}")

R_D, R_ACC, R_T, R_A = 80, 96, 100, 104
def reducer(a, tag, single):
    W = R(SRD_WS)
    if single:
        a(f"v_min_u32 v{R_T}, 31, v0")
        a(f"v_lshlrev_b32 v{R_A}, 3, v{R_T}")
        a(f"s_add_u32 s{S_T0}, s{S_INB}, 2048")
        a(f"v_and_b32 v{R_T+1}, 7, v{R_T}")
        a(f"v_mul_u32_u24 v{R_T+1}, 1152, v{R_T+1}")
        a(f"v_lshrrev_b32 v{R_T}, 3, v{R_T}")
        a(f"v_lshl_add_u32 v{R_A+1}, v{R_T}, 3, v{R_T+1}")
        a(f"s_mov_b32 s{S_T2}, 256")
    else:
        a(f"v_lshlrev_b32 v{R_A}, 3, v0")
        a(f"s_lshl_b32 s{S_T0}, s{S_CW}, 9")
        a(f"s_add_u32 s{S_T0}, s{S_T0}, s{S_INB}")
        a(f"v_bfe_u32 v{R_T}, v0, 1, 3")
        a(f"v_mul_u32_u24 v{R_T}, 1152, v{R_T}")
        a(f"v_lshrrev_b32 v{R_T+1}, 5, v0")
        a(f"v_lshl_add_u32 v{R_T}, v{R_T+1}, 5, v{R_T}")
        a(f"v_and_b32 v{R_T+1}, 1, v0")
        a(f"v_lshl_add_u32 v{R_T}, v{R_T+1}, 4, v{R_T}")
        a(f"v_bfe_u32 v{R_T+1}, v0, 4, 1")
        a(f"v_lshl_add_u32 v{R_A+1}, v{R_T+1}, 3, v{R_T}")
        a(f"s_lshl_b32 s{S_T2}, s{S_CW}, 6")
    a(f"s_lshl_b32 s{S_T1}, s{S_MT}, 3")
    a(f"s_add_u32 s{S_T1}, s{S_T1}, s{S_XG}")
    a(f"s_mul_i32 s{S_T1}, s{S_T1}, {8*1152}")
    a(f"s_add_u32 s{S_T2}, s{S_T2}, s{S_T1}")
    a(f"s_mul_i32 s{S_T1}, s{S_J}, 288")
    a(f"s_add_u32 s{S_T2}, s{S_T2}, s{S_T1}")
    srd(a, SRD_X, S_OUT, OUT_BYTES)
    return
def reducer_run(a, tag, single):
    W = R(SRD_WS)
    a(f"s_mov_b32 s{S_T3}, 0")
    if 'selr' in opt:
        a(f"s_mov_b32 s{S_T1}, s{S_T0}")
        for xg in range(8):
            a(f"buffer_load_dwordx2 v[{R_D+2*xg}:{R_D+2*xg+1}], v{R_A}, {W}, s{S_T1} offen sc1")
            if xg < 7: a(f"s_add_u32 s{S_T1}, s{S_T1}, 2304")
        a.label(f"L_RP{tag}")
        a(f"s_add_u32 s{S_T3}, s{S_T3}, 1")
        a(f"s_cmp_gt_u32 s{S_T3}, {SPIN}")
        a(f"s_cbranch_scc1 L_RPX{tag}")
        a("s_waitcnt vmcnt(0)")
        a(f"v_max3_u32 v{R_T}, v{R_D}, v{R_D+1}, v{R_D+2}")
        for i in range(3, 15, 2):
            a(f"v_max3_u32 v{R_T}, v{R_T}, v{R_D+i}, v{R_D+i+1}")
        a(f"v_max_u32 v{R_T}, v{R_T}, v{R_D+15}")
        a(f"v_cmp_eq_u32 vcc, -1, v{R_T}")
        a(f"s_cbranch_vccz L_RPX{tag}")
        a(f"s_mov_b32 s{S_T1}, s{S_T0}")
        for xg in range(8):
            a(f"v_max_u32 v{R_T}, v{R_D+2*xg}, v{R_D+2*xg+1}")
            a(f"v_cmp_eq_u32 vcc, -1, v{R_T}")
            a(f"s_cbranch_vccz L_RS{tag}{xg}")
            a(f"buffer_load_dwordx2 v[{R_D+2*xg}:{R_D+2*xg+1}], v{R_A}, {W}, s{S_T1} offen sc1")
            a.label(f"L_RS{tag}{xg}")
            if xg < 7: a(f"s_add_u32 s{S_T1}, s{S_T1}, 2304")
        a(f"s_branch L_RP{tag}")
    else:
        a.label(f"L_RP{tag}")
        a(f"s_mov_b32 s{S_T1}, s{S_T0}")
        for xg in range(8):
            a(f"buffer_load_dwordx2 v[{R_D+2*xg}:{R_D+2*xg+1}], v{R_A}, {W}, s{S_T1} offen sc1")
            if xg < 7: a(f"s_add_u32 s{S_T1}, s{S_T1}, 2304")
        a(f"s_add_u32 s{S_T3}, s{S_T3}, 1")
        a(f"s_cmp_gt_u32 s{S_T3}, {SPIN}")
        a(f"s_cbranch_scc1 L_RPX{tag}")
        a("s_waitcnt vmcnt(0)")
        a(f"v_max3_u32 v{R_T}, v{R_D}, v{R_D+1}, v{R_D+2}")
        for i in range(3, 15, 2):
            a(f"v_max3_u32 v{R_T}, v{R_T}, v{R_D+i}, v{R_D+i+1}")
        a(f"v_max_u32 v{R_T}, v{R_T}, v{R_D+15}")
        a(f"v_cmp_eq_u32 vcc, -1, v{R_T}")
        if any(o.startswith('slp') for o in opt):
            n = [int(o[3:]) for o in opt if o.startswith('slp')][0]
            a(f"s_cbranch_vccz L_RPX{tag}")
            a(f"s_sleep {n}")
            a(f"s_branch L_RP{tag}")
        else:
            a(f"s_cbranch_vccnz L_RP{tag}")
    a.label(f"L_RPX{tag}")
    a("s_waitcnt vmcnt(0)")
    for xg in range(8):
        for d in range(2):
            src = R_D + 2*xg + d
            dst = R_ACC if xg == 0 else R_T
            a(f"v_lshlrev_b32 v{dst+2*d}, 16, v{src}")
            a(f"v_and_b32 v{dst+2*d+1}, 0xffff0000, v{src}")
        if xg:
            for d in range(4): a(f"v_add_f32 v{R_ACC+d}, v{R_ACC+d}, v{R_T+d}")
    a(f"v_cvt_pk_bf16_f32 v{R_D}, v{R_ACC}, v{R_ACC+1}")
    a(f"v_cvt_pk_bf16_f32 v{R_D+1}, v{R_ACC+2}, v{R_ACC+3}")
    if single: a("s_mov_b32 exec_hi, 0")
    osc = " sc1" if 'osc1' in opt else (" nt" if 'ont' in opt else "")
    a(f"buffer_store_dwordx2 v[{R_D}:{R_D+1}], v{R_A+1}, {R(SRD_X)}, s{S_T2} offen{osc}")
    if single: a("s_mov_b32 exec_hi, -1")

L_W1, L_W2, L_X, L_H, L_T = 1, 6, 11, 13, 14
L_RHO, L_C16 = 20, 25
L_TV, L_PF, L_CK = 30, 32, 34

def issue_x(a):
    a(f"s_lshl_b32 s{S_T0}, s{S_P}, 7")
    a(f"s_mov_b32 m0, s{S_BDST}")
    a(f"s_add_u32 s{S_T0}, s{S_T0}, s{S_XROW}")
    a(f"buffer_load_dwordx4 v{L_X}, {R(SRD_X)}, s{S_T0} offen lds")
    a(f"s_add_u32 m0, m0, 1024")
    a(f"s_add_u32 s{S_BDST}, s{S_BDST}, 4096")
    a(f"buffer_load_dwordx4 v{L_X+1}, {R(SRD_X)}, s{S_T0} offen lds")
    a(f"s_cmp_eq_u32 s{S_BDST}, s{S_BEND}")
    a(f"s_cselect_b32 s{S_BDST}, s{S_BBEG}, s{S_BDST}")

def issue_w_one(a, i, vbase, srdreg):
    if i == 0: a(f"s_add_u32 m0, s{S_DSLOT}, s{S_WLDS}")
    else:      a(f"s_add_u32 m0, m0, 1024")
    a("s_mov_b32 exec_hi, 0" if i == 4 else "s_nop 0")
    a(f"buffer_load_dwordx4 v{vbase+i}, {R(srdreg)}, s{S_WOFF} offen lds")
    if i == 4: a("s_mov_b32 exec_hi, -1")
def slot_next(a):
    a(f"s_add_u32 s{S_DSLOT}, s{S_DSLOT}, {WST}")
    a(f"s_cmp_eq_u32 s{S_DSLOT}, {NSL*WST}")
    a(f"s_cselect_b32 s{S_DSLOT}, 0, s{S_DSLOT}")
def w1_off(a):
    a(f"s_mul_i32 s{S_WOFF}, s{S_P}, {64*9216}")
    a(f"s_add_u32 s{S_WOFF}, s{S_WOFF}, s{S_WCOL}")
def issue_touch(a):
    a(f"s_cmp_eq_u32 s{S_TN}, s{S_TST}")
    a(f"s_cselect_b32 s{S_TOFF}, s{S_TREAL}, 0x70000000")
    a(f"s_add_u32 s{S_TN}, s{S_TN}, 1")
    a(f"buffer_load_dword v{L_TV+1}, v{L_TV}, {R(SRD_W2)}, s{S_TOFF} offen" + (" nt" if 'tnt' in opt else (" sc1" if 'tsc1' in opt else "")))
L_FS = 36
S_FU, S_FB = 98, 99
def spread(): return 'spread' in opt
def issue_fill(a):
    a(f"s_cmp_lt_u32 s{S_FU}, {18*1024}")
    a(f"s_cselect_b32 s{S_T0}, s{S_FU}, 0x60000000")
    a(f"s_add_u32 s{S_T0}, s{S_T0}, s{S_FB}")
    a(f"s_add_u32 s{S_FU}, s{S_FU}, 4096")
    a(f"buffer_store_dwordx4 v[{L_FS}:{L_FS+3}], v{L_H}, {R(SRD_WS)}, s{S_T0} offen sc1")
def issue_stage1(a):
    issue_x(a)
    w1_off(a)
    for i in range(5): issue_w_one(a, i, L_W1, SRD_W1)
    slot_next(a)
    wrap(a, S_P, 1, 9)
    issue_touch(a)
    if spread(): issue_fill(a)
def issue_w2(a):
    a(f"s_mul_i32 s{S_WOFF}, s{S_KAP}, {16*1152}")
    a(f"s_add_u32 s{S_WOFF}, s{S_WOFF}, s{S_W2B}")
    for i in range(5): issue_w_one(a, i, L_W2, SRD_W2)
    slot_next(a)
    wrap(a, S_KAP, 4, 36)
def issue_h(a):
    a(f"s_lshl_b32 s{S_HOFF}, s{S_KH}, 10")
    a(f"s_mov_b32 m0, s{S_HDST}")
    a(f"s_add_u32 s{S_HOFF}, s{S_HOFF}, s{S_HB}")
    a(f"buffer_load_dwordx4 v{L_H}, {R(SRD_WS)}, s{S_HOFF} offen sc1 lds")
    a(f"s_add_u32 m0, m0, {MHB}")
    a(f"s_add_u32 s{S_HOFF}, s{S_HOFF}, {MHS}")
    a(f"buffer_load_dwordx4 v{L_H}, {R(SRD_WS)}, s{S_HOFF} offen sc1 lds")
    a(f"s_add_u32 s{S_HDST}, s{S_HDST}, 4096")
    a(f"s_cmp_eq_u32 s{S_HDST}, s{S_BEND}")
    a(f"s_cselect_b32 s{S_HDST}, s{S_BBEG}, s{S_HDST}")
    wrap(a, S_KH, 4, 36)

def w_voff(a, i):
    t0, t1 = L_T, L_T+1
    a(f"v_add_u32 v{t0}, {64*i}, v0")
    a(f"v_mul_u32_u24 v{t1}, 3641, v{t0}")
    a(f"v_lshrrev_b32 v{L_RHO+i}, 16, v{t1}")
    a(f"v_lshlrev_b32 v{t0}, 4, v{t0}")
    a(f"v_mad_i32_i24 v{L_C16+i}, v{L_RHO+i}, s{S_T1}, v{t0}")
    a(f"v_and_b32 v{t1}, 0xfc, v{L_RHO+i}")
    a(f"v_add_u32 v{t1}, v{t1}, v{L_RHO+i}")
    a(f"v_mad_u32_u24 v{L_W1+i}, v{t1}, s{S_T2}, v{L_C16+i}")
def w2_voffs(a):
    t0, t1 = L_T, L_T+1
    a(f"s_movk_i32 s{S_T2}, 1152")
    for i in range(5):
        a(f"v_and_b32 v{t0}, 1, v{L_RHO+i}")
        a(f"v_lshrrev_b32 v{t1}, 3, v{L_RHO+i}")
        a(f"v_lshlrev_b32 v{t1}, 2, v{t1}")
        a(f"v_lshl_add_u32 v{t1}, v{t0}, 3, v{t1}")
        a(f"v_bfe_u32 v{t0}, v{L_RHO+i}, 1, 2")
        a(f"v_add_u32 v{t1}, v{t1}, v{t0}")
        a(f"v_mad_u32_u24 v{L_W2+i}, v{t1}, s{S_T2}, v{L_C16+i}")

def loader_fill(a):
    W = R(SRD_WS)
    a(f"s_mul_i32 s{S_T1}, s{S_CW}, 4608")
    a(f"s_add_u32 s{S_T0}, s{S_INB}, s{S_T1}")
    for i in range(4):
        a(f"buffer_store_dwordx4 v[{L_FS}:{L_FS+3}], v{L_H}, {W}, s{S_T0} offen offset:{1024*i} sc1")
    a(f"s_add_u32 s{S_T0}, s{S_T0}, 4096")
    a(f"buffer_store_dwordx4 v[{L_FS}:{L_FS+3}], v{L_FS+4}, {W}, s{S_T0} offen sc1")

def loader(a):
    a.label("L_LOADER")
    if 'lprio' in opt: a("s_setprio 3")
    t0, t1, t2 = L_T, L_T+1, L_T+2
    a(f"v_lshrrev_b32 v{t0}, 3, v0")
    a(f"v_lshrrev_b32 v{t1}, 4, v0")
    a(f"v_and_b32 v{t2}, 7, v0")
    a(f"v_xor_b32 v{t1}, v{t1}, v{t2}")
    a(f"v_lshlrev_b32 v{t1}, 4, v{t1}")
    a(f"v_mul_u32_u24 v{t0}, 1152, v{t0}")
    a(f"v_add_u32 v{L_X}, v{t0}, v{t1}")
    a(f"v_xor_b32 v{t1}, 64, v{t1}")
    a(f"v_add_u32 v{t0}, {8*1152}, v{t0}")
    a(f"v_add_u32 v{L_X+1}, v{t0}, v{t1}")
    a(f"s_lshl_b32 s{S_T0}, s{S_MT}, 2")
    a(f"s_add_u32 s{S_T0}, s{S_T0}, s{S_CW}")
    a(f"s_mul_i32 s{S_XROW}, s{S_T0}, {16*1152}")
    a(f"s_lshr_b32 s{S_T0}, s{S_CW}, 1")
    a(f"s_mul_i32 s{S_BDST}, s{S_T0}, {MHB}")
    a(f"s_and_b32 s{S_T0}, s{S_CW}, 1")
    a(f"s_lshl_b32 s{S_T0}, s{S_T0}, 11")
    a(f"s_add_u32 s{S_BDST}, s{S_BDST}, s{S_T0}")
    a(f"s_add_u32 s{S_BDST}, s{S_BDST}, {LB}")
    a(f"s_mov_b32 s{S_BBEG}, s{S_BDST}")
    a(f"s_add_u32 s{S_BEND}, s{S_BDST}, {NBP*4096}")
    if 'norot' in opt: a(f"s_mov_b32 s{S_P}, 0")
    else:
        a(f"s_lshl_b32 s{S_P}, s{S_J}, 1")
        wrap_reg = S_P
        a(f"s_add_u32 s{S_P}, s{S_P}, s{S_MT}")
        a(f"s_sub_u32 s{S_T0}, s{S_P}, 9")
        a(f"s_cmp_ge_u32 s{S_P}, 9")
        a(f"s_cselect_b32 s{S_P}, s{S_T0}, s{S_P}")
    a(f"s_mul_i32 s{S_WCOL}, s{S_XG}, 1152")
    a(f"s_mul_i32 s{S_T0}, s{S_J}, 288")
    a(f"s_add_u32 s{S_WCOL}, s{S_WCOL}, s{S_T0}")
    a(f"s_lshr_b32 s{S_T0}, s{S_CW}, 1")
    a(f"s_lshl_b32 s{S_T0}, s{S_T0}, 3")
    a(f"s_and_b32 s{S_T1}, s{S_CW}, 1")
    a(f"s_add_u32 s{S_T0}, s{S_T0}, s{S_T1}")
    a(f"s_mul_i32 s{S_T0}, s{S_T0}, {4*9216}")
    a(f"s_add_u32 s{S_WCOL}, s{S_WCOL}, s{S_T0}")
    a(f"s_mul_i32 s{S_WLDS}, s{S_CW}, 4608")
    a(f"s_mov_b32 s{S_DSLOT}, 0")
    a(f"s_movk_i32 s{S_T1}, -288")
    a(f"s_movk_i32 s{S_T2}, 9216")
    w_voff(a, 0)
    a("s_waitcnt lgkmcnt(0)")
    srd(a, SRD_X, S_X, X_BYTES)
    srd(a, SRD_W1, S_W1, W_BYTES)
    stamp(a, 1)
    issue_x(a)
    w1_off(a)
    issue_w_one(a, 0, L_W1, SRD_W1)
    for i in range(1, 5):
        w_voff(a, i)
        issue_w_one(a, i, L_W1, SRD_W1)
    slot_next(a)
    wrap(a, S_P, 1, 9)
    srd(a, SRD_W2, S_W2, W_BYTES)
    a(f"s_lshl_b32 s{S_T0}, s{S_MT}, 2")
    a(f"s_add_u32 s{S_T0}, s{S_T0}, s{S_J}")
    a(f"s_mul_i32 s{S_T0}, s{S_T0}, 162")
    a(f"s_mul_i32 s{S_T1}, s{S_CW}, 41")
    a(f"s_add_u32 s{S_T0}, s{S_T0}, s{S_T1}")
    a(f"s_lshl_b32 s{S_T0}, s{S_T0}, 7")
    a(f"s_mul_i32 s{S_W2B}, s{S_XG}, {576*1152}")
    a(f"s_add_u32 s{S_TREAL}, s{S_T0}, s{S_W2B}")
    a(f"v_min_u32 v{L_TV}, 40, v0")
    a(f"v_lshlrev_b32 v{L_TV}, 7, v{L_TV}")
    a(f"s_mov_b32 s{S_TN}, 1")
    if 'notouch' in opt:
        a(f"s_mov_b32 s{S_TST}, 99")
    elif 'tst8' in opt:
        a(f"s_mov_b32 s{S_TST}, 8")
    elif 'tst2' in opt:
        a(f"s_add_u32 s{S_TST}, s{S_MT}, 2")
        a(f"s_min_u32 s{S_TST}, s{S_TST}, 8")
    elif 'tst3' in opt:
        a(f"s_add_u32 s{S_TST}, s{S_MT}, 3")
        a(f"s_min_u32 s{S_TST}, s{S_TST}, 8")
    elif 'tsth' in opt:
        a(f"s_lshr_b32 s{S_TST}, s{S_MT}, 1")
        a(f"s_add_u32 s{S_TST}, s{S_TST}, 5")
    else:
        a(f"s_add_u32 s{S_TST}, s{S_MT}, 1")
    if spread():
        srd(a, SRD_WS, S_WS, WS_BYTES)
        a(f"v_lshlrev_b32 v{L_H}, 4, v0")
        for i in range(4): a(f"v_mov_b32 v{L_FS+i}, -1")
        inbox_block(a, S_FB)
        a(f"s_mul_i32 s{S_T1}, s{S_XG}, 18432")
        a(f"s_add_u32 s{S_FB}, s{S_FB}, s{S_T1}")
        fstart = 1
        for o in opt:
            if o.startswith('fs'): fstart = int(o[2])
        a(f"s_lshl_b32 s{S_FU}, s{S_CW}, 10")
        a(f"s_sub_u32 s{S_FU}, s{S_FU}, {4096*fstart}")
    issue_stage1(a)
    stamp(a, 2)
    srd(a, SRD_WS, S_WS, WS_BYTES)
    srd(a, SRD_DBG, S_DBG, 256)
    w2_voffs(a)
    group_bases(a)
    a(f"s_mul_i32 s{S_T0}, s{S_J}, 288")
    a(f"s_add_u32 s{S_W2B}, s{S_W2B}, s{S_T0}")
    a(f"s_mul_i32 s{S_KAP}, s{S_J}, 9")
    a(f"s_add_u32 s{S_KAP}, s{S_KAP}, s{S_CW}")
    a(f"s_add_u32 s{S_KH}, s{S_KAP}, 8")
    a(f"s_sub_u32 s{S_T0}, s{S_KH}, 36")
    a(f"s_cmp_ge_u32 s{S_KH}, 36")
    a(f"s_cselect_b32 s{S_KH}, s{S_T0}, s{S_KH}")
    a(f"s_lshl_b32 s{S_HDST}, s{S_CW}, 10")
    a(f"s_add_u32 s{S_HDST}, s{S_HDST}, {LB + 2*4096}")
    a(f"v_lshlrev_b32 v{L_H}, 4, v0")
    inbox_block(a, S_INB)
    a(f"s_mul_i32 s{S_T1}, s{S_XG}, 18432")
    a(f"s_add_u32 s{S_INB}, s{S_INB}, s{S_T1}")
    if FSPLIT():
        a(f"v_bfe_u32 v{L_PF}, v0, 2, 2")
        a(f"v_lshlrev_b32 v{L_PF}, 6, v{L_PF}")
        a(f"v_and_b32 v{L_PF+1}, 3, v0")
        a(f"v_lshl_add_u32 v{L_PF}, v{L_PF+1}, 2, v{L_PF}")
    else:
        a(f"v_and_b32 v{L_PF}, 15, v0")
        a(f"v_lshlrev_b32 v{L_PF}, 2, v{L_PF}")
    a(f"v_lshrrev_b32 v{L_CK}, 2, v0")
    a(f"v_and_b32 v{L_CK}, 7, v{L_CK}")
    a(f"v_lshlrev_b32 v{L_CK}, {11 if FSPLIT() else 10}, v{L_CK}")
    a(f"v_and_b32 v{L_CK+1}, 3, v0")
    a(f"v_lshl_add_u32 v{L_CK}, v{L_CK+1}, 2, v{L_CK}")
    a(f"s_lshl_b32 s{S_CK}, s{S_MT}, {8 if FSPLIT() else 7}")
    a(f"s_lshl_b32 s{S_T0}, s{S_J}, {6 if FSPLIT() else 4}")
    a(f"s_add_u32 s{S_CK}, s{S_CK}, s{S_T0}")
    a(f"s_add_u32 s{S_CK}, s{S_CK}, {FLAG_OFF + (FLAG2_D if FILLM() else 0)}")
    if FILL8():
        for i in range(4): a(f"v_mov_b32 v{L_FS+i}, -1")
        a(f"v_min_u32 v{L_FS+4}, 31, v0")
        a(f"v_lshlrev_b32 v{L_FS+4}, 4, v{L_FS+4}")
    a("s_waitcnt vmcnt(%d)" % (9 if spread() else 8))
    a("s_barrier")
    stamp(a, 3)
    issue_stage1(a)
    a(f"s_mov_b32 s{S_N}, 0")
    a.label("L_LD1")
    a("s_waitcnt vmcnt(%d)" % (11 if spread() else 9))
    a("s_barrier")
    issue_stage1(a)
    a(f"s_add_u32 s{S_N}, s{S_N}, 1")
    a(f"s_cmp_lt_u32 s{S_N}, 6")
    a("s_cbranch_scc1 L_LD1")
    tail = 2 if spread() else 1
    q = [("st7", 7), ("x7", tail), ("st8", 7), ("x8", tail)]
    def iss(name, cnt, fn):
        fn(); q.append((name, cnt))
    def wait(*names):
        idx = [i for i, (nm, c) in enumerate(q) if nm in names]
        last = max(idx) if idx else -1
        n = sum(c for nm, c in q[last+1:])
        a("s_waitcnt vmcnt(%d)" % n)
    def drained(): q.clear()
    nW = [0]; nH = [2]
    def Wn():
        n = nW[0]; iss(f"W{n}", 5, lambda: issue_w2(a)); nW[0] += 1
    def Hn():
        n = nH[0]; iss(f"h{n}", 2, lambda: issue_h(a)); nH[0] += 1
    sch = (0, 1, 1, 1, 1)
    for o in opt:
        if o.startswith('sch'): sch = tuple(int(c) for c in o[3:8])
    a(f"s_mov_b32 s{S_DSLOT}, {4*WST}")
    a(f"s_lshl_b32 s{S_BBEG}, s{S_CW}, 10")
    a(f"s_add_u32 s{S_BBEG}, s{S_BBEG}, {LB}")
    a(f"s_add_u32 s{S_BEND}, s{S_BBEG}, {NBP*4096}")
    fat = 8
    for o in opt:
        if o.startswith('fat'): fat = int(o[3])
    if FILL8() and fat == 8: iss("fill", 5, lambda: loader_fill(a))
    wait("st7")
    a("s_barrier")
    if FILL8() and fat == 7: iss("fill", 5, lambda: loader_fill(a))
    for _ in range(sch[0]): Wn()
    assert nW[0] <= 2
    wait("st8")
    a("s_barrier")
    for _ in range(sch[1]): Wn()
    assert nW[0] <= 3
    a("s_barrier")
    stamp(a, 4)
    for _ in range(sch[2]): Wn()
    assert nW[0] >= 1
    a(f"buffer_load_dword v{L_T}, off, {R(SRD_DBG)}, 0 sc1"); q.append(("pub", 1))
    a(f"s_lshl_b32 s{S_T2}, s{S_GRP}, {6 if FSPLIT() else 5}")
    a(f"s_add_u32 s{S_T2}, s{S_T2}, {FLAG_OFF}")
    wait("W0", "fill")
    a("s_barrier")
    stamp(a, 5)
    for _ in range(sch[3]): Wn()
    assert nW[0] >= 2
    wait("W1")
    a("s_barrier")
    if 'flagbar' in opt: a("s_barrier")
    for _ in range(sch[4]): Wn()
    assert nW[0] <= 6
    poll_pub(a, "L", L_T, preloaded=True); drained()
    if 'onepoll' in opt:
        a(f"s_cmp_eq_u32 s{S_CW}, 0")
        a("s_cbranch_scc0 L_POXF")
    poll_ones(a, "F", L_T, L_PF, S_T2)
    if 'onepoll' in opt: a("s_barrier")
    stamp(a, 6)
    Hn(); Hn()
    if 'hearly' in opt: Hn()
    if nW[0] <= 2: Wn()
    wait("h2", "W2")
    a("s_barrier")
    stamp(a, 7)
    for s in range(3, 9):
        k = 0
        while nH[0] <= 8 and (nH[0] <= 4 or nH[0] <= s + 2) and nH[0] <= s + (2 if 'hearly' in opt else 1):
            Hn()
        while nW[0] <= 8 and (nW[0] <= 5 or nW[0] <= s + 3) and (nW[0] <= s or k < 1):
            Wn(); k += 1
        if s == 6:
            iss("chk", 1, lambda: a(f"buffer_load_dword v{L_CK+1}, v{L_CK}, {R(SRD_WS)}, s{S_CK} offen sc1"))
        if s == 8:
            a("s_waitcnt vmcnt(0)")
            a(f"v_cmp_ne_u32 vcc, 1, v{L_CK+1}")
            a("s_cbranch_vccz L_POXK")
            poll_ones(a, "K", L_CK+1, L_CK, S_CK)
            drained()
        assert nW[0] > s and nH[0] > s, (s, nW, nH)
        wait(f"h{s}", f"W{s}")
        a("s_barrier")
    stamp(a, 8)
    reducer(a, "L", single=False)
    a("s_barrier")
    reducer_run(a, "L", single=False)
    stamp(a, 9)
    dump_stamps(a, 1, 10, "LD", 4)
    a("s_endpgm")

C_A32, C_A8 = 2, 124
C_B32, C_B8 = 6, 10
C_T = 12
SETS = (16, 48)
ACC = 80
C_E = 116
C_P2 = 128

def reads_step(st, n, s0):
    sl = n % NSL
    A32 = C_A32 + (sl >> 1); A8 = C_A8 + (sl >> 1)
    base = (sl & 1)*WST + s0*9216
    bo = (n % NBP)*4096
    def a32(c, kh):
        d = st + (kh*2 + c)*4
        off = base + kh*4608 + 64*c
        return [f"ds_read_b64_tr_b16 v[{d}:{d+1}], v{A32} offset:{off}",
                f"ds_read_b64_tr_b16 v[{d+2}:{d+3}], v{A32} offset:{off+288}"]
    def b32(kh):
        d = st + 20 + 4*kh
        return [f"ds_read_b128 v[{d}:{d+3}], v{C_B32 + 2*s0 + kh} offset:{bo}"]
    ins = b32(0) + a32(0, 0) + a32(1, 0) + b32(1) + a32(0, 1) + a32(1, 1)
    ins.append(f"ds_read_b128 v[{st+28}:{st+31}], v{C_B8 + s0} offset:{bo}")
    ins.append(f"ds_read_b64_tr_b16 v[{st+16}:{st+17}], v{A8} offset:{base}")
    ins.append(f"ds_read_b64_tr_b16 v[{st+18}:{st+19}], v{A8} offset:{base+288}")
    return ins

def mfmas(st):
    out = []
    for kh in range(2):
        for c in range(2):
            acc = ACC + 16*c
            A = st + (kh*2 + c)*4; B = st + 20 + 4*kh
            out.append(f"v_mfma_f32_32x32x16_bf16 v[{acc}:{acc+15}], v[{A}:{A+3}], v[{B}:{B+3}], v[{acc}:{acc+15}]")
    out.append(f"v_mfma_f32_16x16x32_bf16 v[{ACC+32}:{ACC+35}], v[{st+16}:{st+19}], v[{st+28}:{st+31}], v[{ACC+32}:{ACC+35}]")
    return out

def reads_step1(st, n, s0):
    sl = n % NSL
    A = C_A32 + (sl >> 1); A8 = C_A8 + (sl >> 1)
    base = (sl & 1)*WST + s0*9216
    bo = (n % NBP)*4096
    def at(t):
        return [f"ds_read_b64_tr_b16 v[{st+4*t}:{st+4*t+1}], v{A} offset:{base+32*t}",
                f"ds_read_b64_tr_b16 v[{st+4*t+2}:{st+4*t+3}], v{A} offset:{base+4608+32*t}"]
    ins = [f"ds_read_b128 v[{st+20}:{st+23}], v{C_B32+s0} offset:{bo}"] + at(0)
    ins.append(f"ds_read_b128 v[{st+24}:{st+27}], v{C_B32+s0} offset:{bo+2048}")
    ins += at(1) + at(2) + at(3)
    ins.append(f"ds_read_b128 v[{st+28}:{st+31}], v{C_B8+s0} offset:{bo}")
    ins.append(f"ds_read_b64_tr_b16 v[{st+16}:{st+17}], v{A8} offset:{base}")
    ins.append(f"ds_read_b64_tr_b16 v[{st+18}:{st+19}], v{A8} offset:{base+4608}")
    return ins
def mfmas1(st):
    out = []
    def m(acc, A, B): return f"v_mfma_f32_16x16x32_bf16 v[{acc}:{acc+3}], v[{A}:{A+3}], v[{B}:{B+3}], v[{acc}:{acc+3}]"
    for t in range(4):
        out.append(m(ACC + 4*t, st + 4*t, st + 20))
        out.append(m(ACC + 16 + 4*t, st + 4*t, st + 24))
    out.append(m(ACC + 32, st + 16, st + 28))
    return out
NEED1 = {0: 4, 2: 6, 4: 8, 6: 10, 8: 13}
PAT1 = [2, 1, 2, 1, 2, 1, 2, 1, 1]
def block1(a, r, m):
    k = 0
    for u in range(9):
        if u in NEED1: a(f"s_waitcnt lgkmcnt({13 - NEED1[u] + k})")
        a(m[u])
        if r:
            for _ in range(PAT1[u]):
                a(r[k]); k += 1
def publish(a, lab):
    a(f"s_lshl_b32 s{S_T1}, s2, 2")
    a(f"s_or_b32 s{S_T1}, s{S_T1}, s{S_CW}")
    a(f"s_cmp_eq_u32 s{S_T1}, 0")
    a(f"s_cbranch_scc0 {lab}")
    a(f"v_mov_b32 v{C_T}, 1")
    a("s_mov_b64 exec, 1")
    a(f"buffer_store_dword v{C_T}, off, {R(SRD_DBG)}, 0 sc1")
    a("s_mov_b64 exec, -1")
    a.label(lab)
def body1(a):
    for n in range(9):
        block1(a, reads_step1(SETS[1], n, 1), mfmas1(SETS[0]))
        if n == 1 and 'latepub' in opt:
            a("s_cmp_eq_u32 s2, 0")
            a("s_cbranch_scc0 L_NW0")
            a("s_waitcnt vmcnt(0)")
            a.label("L_NW0")
        if n < 8:
            a("s_barrier")
            if n == 1 and 'latepub' in opt: publish(a, "L_PUB0")
            if 'diag' in opt:
                a("s_memtime s[96:97]\ns_waitcnt lgkmcnt(0)")
                a(f"s_mov_b32 s{60+n}, s96")
            block1(a, reads_step1(SETS[0], n+1, 0), mfmas1(SETS[1]))
        else:
            block1(a, None, mfmas1(SETS[1]))
            if 'diag' in opt:
                a("s_memtime s[96:97]\ns_waitcnt lgkmcnt(0)")
                a(f"s_mov_b32 s68, s96")

NEED = [3, 5, 8, 10, 13]
def block(a, r, m):
    k = 0
    for u in range(5):
        a(f"s_waitcnt lgkmcnt({13 - NEED[u] + k})")
        a(m[u])
        if r:
            for _ in range(3 if u < 4 else 1):
                a(r[k]); k += 1

def body(a):
    for n in range(9):
        block(a, reads_step(SETS[1], n, 1), mfmas(SETS[0]))
        if n == 1:
            poll_pub(a, "C", C_T, preloaded=True)
            a("s_mov_b64 exec, 1")
            a(f"buffer_store_dword v{C_T+3}, off, {R(SRD_WS)}, s{S_FLG} sc1")
            a("s_mov_b64 exec, -1")
            if FILLM(): compute_fill(a)
            if 'flagbar' in opt: a("s_barrier")
            if 'onepoll' in opt: a("s_barrier")
        fp = 4
        for o in opt:
            if o.startswith('fp'): fp = int(o[2])
        if n == fp and FILLM():
            a("s_waitcnt vmcnt(0)")
            a(f"s_add_u32 s{S_FLG}, s{S_FLG}, {FLAG2_D}")
            a("s_mov_b64 exec, 1")
            a(f"buffer_store_dword v{C_T+3}, off, {R(SRD_WS)}, s{S_FLG} sc1")
            a("s_mov_b64 exec, -1")
        if n < 8:
            a("s_barrier")
            if 'diag' in opt:
                a("s_memtime s[96:97]\ns_waitcnt lgkmcnt(0)")
                a(f"s_mov_b32 s{70+n}, s96")
            block(a, reads_step(SETS[0], n+1, 0), mfmas(SETS[1]))
        else:
            block(a, None, mfmas(SETS[1]))
            if 'diag' in opt:
                a("s_memtime s[96:97]\ns_waitcnt lgkmcnt(0)")
                a(f"s_mov_b32 s78, s96")

def zero_acc(a):
    for i in range(0, 36, 2): a(f"v_pk_mov_b32 v[{ACC+i}:{ACC+i+1}], 0, 0")

def silu4(a, x, e):
    for r in (0, 2): a(f"v_pk_mul_f32 v[{e+r}:{e+r+1}], v[{x+r}:{x+r+1}], s[{S_K}:{S_K+1}]")
    for r in range(4): a(f"v_exp_f32 v{e+r}, v{e+r}")
    for r in (0, 2): a(f"v_pk_add_f32 v[{e+r}:{e+r+1}], v[{e+r}:{e+r+1}], 1.0 op_sel_hi:[1,0]")
    for r in range(4): a(f"v_rcp_f32 v{e+r}, v{e+r}")
    for r in (0, 2): a(f"v_pk_mul_f32 v[{x+r}:{x+r+1}], v[{x+r}:{x+r+1}], v[{e+r}:{e+r+1}]")

def compute_fill(a):
    W = R(SRD_WS)
    a(f"s_mul_i32 s{S_T1}, s{S_CW}, 4608")
    a(f"s_add_u32 s{S_T0}, s{S_INB}, s{S_T1}")
    for i in range(4): a(f"v_mov_b32 v{C_E+4+i}, -1")
    a(f"v_lshlrev_b32 v{C_E}, 4, v0")
    a(f"v_min_u32 v{C_E+1}, 31, v0")
    a(f"v_lshlrev_b32 v{C_E+1}, 4, v{C_E+1}")
    for i in range(4):
        a(f"buffer_store_dwordx4 v[{C_E+4}:{C_E+7}], v{C_E}, {W}, s{S_T0} offen offset:{1024*i} sc1")
    a(f"s_add_u32 s{S_T0}, s{S_T0}, 4096")
    a(f"buffer_store_dwordx4 v[{C_E+4}:{C_E+7}], v{C_E+1}, {W}, s{S_T0} offen sc1")

def compute(a):
    DIAGC[0] = True
    t0, t1, t2, t3 = C_T, C_T+1, C_T+2, C_T+3
    W = R(SRD_WS)
    a(f"s_and_b32 s{S_T0}, s{S_CW}, 1")
    a(f"s_lshr_b32 s{S_T1}, s{S_CW}, 1")
    a(f"v_lshrrev_b32 v{t0}, 2, v0")
    a(f"v_mul_u32_u24 v{t0}, 288, v{t0}")
    a(f"v_and_b32 v{t1}, 3, v0")
    a(f"v_lshl_add_u32 v{t0}, v{t1}, 3, v{t0}")
    a(f"v_add_u32 v{C_A8}, 256, v{t0}")
    a(f"v_add_u32 v{C_A8+1}, {2*WST}, v{C_A8}")
    a(f"v_add_u32 v{C_A8+2}, {4*WST}, v{C_A8}")
    a(f"s_lshl_b32 s{S_T2}, s{S_T0}, 7")
    a(f"v_add_u32 v{C_A32}, s{S_T2}, v{t0}")
    a(f"v_add_u32 v{C_A32+1}, {2*WST}, v{C_A32}")
    a(f"v_add_u32 v{C_A32+2}, {4*WST}, v{C_A32}")
    a(f"v_bfe_u32 v{t0}, v0, 2, 2")
    a(f"v_mul_u32_u24 v{t0}, 576, v{t0}")
    a(f"v_lshl_add_u32 v{t0}, v{t1}, 3, v{t0}")
    a(f"v_lshrrev_b32 v{t1}, 4, v0")
    a(f"v_mul_u32_u24 v{t2}, 2304, v{t1}")
    a(f"v_add_u32 v{t2}, v{t2}, v{t0}")
    a(f"v_add_u32 v{C_P2+1}, 256, v{t2}")
    a(f"v_lshrrev_b32 v{t2}, 5, v0")
    a(f"v_mul_u32_u24 v{t2}, 2304, v{t2}")
    a(f"v_add_u32 v{t0}, v{t0}, v{t2}")
    a(f"v_and_b32 v{t1}, 1, v{t1}")
    a(f"v_lshl_add_u32 v{t0}, v{t1}, 5, v{t0}")
    a(f"s_lshl_b32 s{S_T2}, s{S_T0}, 7")
    a(f"v_add_u32 v{C_P2}, s{S_T2}, v{t0}")
    a(f"s_mul_i32 s{S_T1}, s{S_T1}, {MHB}")
    a(f"s_add_u32 s{S_T1}, s{S_T1}, {LB}")
    a(f"v_and_b32 v{t0}, 15, v0")
    a(f"v_lshrrev_b32 v{t1}, 1, v{t0}")
    a(f"v_lshlrev_b32 v{t0}, 7, v{t0}")
    a(f"v_add_u32 v{t0}, s{S_T1}, v{t0}")
    a(f"v_lshrrev_b32 v{t3}, 4, v0")
    a(f"v_xor_b32 v{t3}, v{t3}, v{t1}")
    a(f"v_lshlrev_b32 v{t3}, 4, v{t3}")
    a(f"v_add_u32 v{C_B32}, v{t0}, v{t3}")
    a(f"v_xor_b32 v{t3}, 64, v{t3}")
    a(f"v_add_u32 v{C_B32+1}, v{t0}, v{t3}")
    a(f"s_lshl_b32 s{S_T2}, s{S_T0}, 11")
    a(f"v_add_u32 v{C_B8}, s{S_T2}, v{C_B32}")
    a(f"v_add_u32 v{C_B8+1}, s{S_T2}, v{C_B32+1}")
    zero_acc(a)
    group_bases(a)
    inbox_block(a, S_PA)
    a(f"s_mul_i32 s{S_T0}, s{S_XG}, 18432")
    a(f"s_add_u32 s{S_INB}, s{S_PA}, s{S_T0}")
    a(f"s_mul_i32 s{S_T0}, s{S_XG}, 2304")
    a(f"s_add_u32 s{S_PA}, s{S_PA}, s{S_T0}")
    a(f"s_mul_i32 s{S_T0}, s{S_CW}, {2*18432}")
    a(f"s_add_u32 s{S_PS}, s{S_PA}, s{S_T0}")
    a(f"s_add_u32 s{S_PS}, s{S_PS}, 2048")
    a(f"s_lshr_b32 s{S_T0}, s{S_CW}, 1")
    a(f"s_mul_i32 s{S_T0}, s{S_T0}, {4*18432}")
    a(f"s_add_u32 s{S_PA}, s{S_PA}, s{S_T0}")
    a(f"s_and_b32 s{S_T0}, s{S_CW}, 1")
    a(f"s_lshl_b32 s{S_T0}, s{S_T0}, 10")
    a(f"s_add_u32 s{S_PA}, s{S_PA}, s{S_T0}")
    a(f"s_lshr_b32 s{S_T0}, s{S_CW}, 1")
    a(f"s_mul_i32 s{S_T0}, s{S_T0}, {MHS}")
    a(f"s_add_u32 s{S_T0}, s{S_T0}, s{S_HB}")
    a(f"s_mul_i32 s{S_T1}, s{S_J}, {9*1024}")
    a(f"s_add_u32 s{S_T0}, s{S_T0}, s{S_T1}")
    a(f"s_and_b32 s{S_T1}, s{S_CW}, 1")
    a(f"s_lshl_b32 s{S_T2}, s{S_T1}, 12")
    a(f"s_add_u32 s{S_HST}, s{S_T0}, s{S_T2}")
    a(f"s_lshl_b32 s{S_T2}, s{S_T1}, 8")
    a(f"s_add_u32 s{S_HSP}, s{S_T0}, s{S_T2}")
    a(f"s_add_u32 s{S_HSP}, s{S_HSP}, {8*1024}")
    a(f"s_lshl_b32 s{S_FLG}, s{S_GRP}, {6 if FSPLIT() else 5}")
    a(f"s_lshl_b32 s{S_T0}, s{S_J}, {4 if FSPLIT() else 2}")
    a(f"s_add_u32 s{S_T0}, s{S_T0}, s{S_CW}")
    a(f"s_lshl_b32 s{S_T0}, s{S_T0}, 2")
    a(f"s_add_u32 s{S_FLG}, s{S_FLG}, s{S_T0}")
    a(f"s_add_u32 s{S_FLG}, s{S_FLG}, {FLAG_OFF}")
    a(f"s_mov_b32 s{S_K}, 0xbfb8aa3b")
    a(f"s_mov_b32 s{S_K+1}, 0xbfb8aa3b")
    a(f"s_mov_b32 s{S_PH}, 0")
    a("s_waitcnt lgkmcnt(0)")
    srd(a, SRD_WS, S_WS, WS_BYTES)
    srd(a, SRD_DBG, S_DBG, 256)
    a(f"v_lshlrev_b32 v{C_E}, 4, v0")
    if not spread() and not FILLM() and not FILL8():
        a(f"s_mul_i32 s{S_T1}, s{S_CW}, 4608")
        a(f"s_add_u32 s{S_T0}, s{S_INB}, s{S_T1}")
        for i in range(4): a(f"v_mov_b32 v{C_E+4+i}, -1")
        a(f"v_lshlrev_b32 v{C_E}, 4, v0")
        a(f"v_min_u32 v{C_E+1}, 31, v0")
        a(f"v_lshlrev_b32 v{C_E+1}, 4, v{C_E+1}")
        for i in range(4):
            a(f"buffer_store_dwordx4 v[{C_E+4}:{C_E+7}], v{C_E}, {W}, s{S_T0} offen offset:{1024*i} sc1")
        a(f"s_add_u32 s{S_T0}, s{S_T0}, 4096")
        a(f"buffer_store_dwordx4 v[{C_E+4}:{C_E+7}], v{C_E+1}, {W}, s{S_T0} offen sc1")
    a(f"s_cmp_eq_u32 s2, 0")
    a("s_cbranch_scc0 L_NOCLR")
    nkb = 8 if FILLM() else (4 if FSPLIT() else 2)
    a(f"s_mul_i32 s{S_T0}, s{S_CW}, {1024*nkb}")
    a(f"s_add_u32 s{S_T0}, s{S_T0}, {FLAG_OFF}")
    a(f"v_pk_mov_b32 v[{SETS[1]}:{SETS[1]+1}], 0, 0\nv_pk_mov_b32 v[{SETS[1]+2}:{SETS[1]+3}], 0, 0")
    for i in range(nkb):
        if i == 4: a(f"s_add_u32 s{S_T0}, s{S_T0}, 4096")
        a(f"buffer_store_dwordx4 v[{SETS[1]}:{SETS[1]+3}], v{C_E}, {W}, s{S_T0} offen offset:{1024*(i%4)} sc1")
    if 'latepub' not in opt:
        a("s_waitcnt vmcnt(0)")
    a.label("L_NOCLR")
    a("s_barrier")
    if 'clk1' in opt: a("s_memtime s[100:101]")
    stampw(a, 1)
    for ins in reads_step1(SETS[0], 0, 0): a(ins)
    if 'latepub' not in opt: publish(a, "L_BODY0")
    a.label("L_BODY")
    body1(a)
    a("s_barrier")
    stamp(a, 2)
    if 'clk1' in opt:
        a("s_memtime s[96:97]\ns_waitcnt lgkmcnt(0)\ns_sub_u32 s78, s96, s100\ns_mov_b32 s79, 0")
    a("s_waitcnt vmcnt(0)")
    a(f"buffer_load_dword v{t0}, off, {R(SRD_DBG)}, 0 sc1")
    a(f"v_lshlrev_b32 v{t1}, 4, v0")
    a(f"s_lshr_b32 s{S_T0}, s{S_CW}, 1")
    a(f"s_mul_i32 s{S_T0}, s{S_T0}, {MHB}")
    a(f"s_add_u32 s{S_T0}, s{S_T0}, {LB}")
    a(f"s_and_b32 s{S_T1}, s{S_CW}, 1")
    a(f"s_lshl_b32 s{S_T2}, s{S_T1}, 12")
    a(f"s_add_u32 s{S_T2}, s{S_T2}, s{S_T0}")
    a(f"v_add_u32 v{t2}, s{S_T2}, v{t1}")
    P = SETS[0]
    x = ACC + 32
    silu4(a, x, C_E)
    a(f"v_cvt_pk_bf16_f32 v{P+16}, v{x}, v{x+1}")
    a(f"v_cvt_pk_bf16_f32 v{P+17}, v{x+2}, v{x+3}")
    a(f"v_mov_b32 v{P+18}, v{P+16}")
    a(f"v_mov_b32 v{P+19}, v{P+17}")
    a(f"v_bfe_u32 v{t3}, v0, 4, 1")
    a(f"v_lshlrev_b32 v{t3}, 9, v{t3}")
    a(f"v_and_b32 v{C_E+4}, 15, v0")
    a(f"v_lshl_add_u32 v{t3}, v{C_E+4}, 4, v{t3}")
    a(f"v_permlane32_swap_b32 v{P+16}, v{P+18}")
    a(f"v_permlane32_swap_b32 v{P+17}, v{P+19}")
    a("s_mov_b32 exec_hi, 0")
    a(f"buffer_store_dwordx4 v[{P+16}:{P+19}], v{t3}, {W}, s{S_HSP} offen sc1")
    a("s_mov_b32 exec_hi, -1")
    for t in range(4):
        xe, xo = ACC + 4*t, ACC + 16 + 4*t
        d = P + 4*t
        silu4(a, xe, C_E); silu4(a, xo, C_E+4)
        a(f"v_cvt_pk_bf16_f32 v{d}, v{xe}, v{xe+1}")
        a(f"v_cvt_pk_bf16_f32 v{d+1}, v{xe+2}, v{xe+3}")
        a(f"v_cvt_pk_bf16_f32 v{d+2}, v{xo}, v{xo+1}")
        a(f"v_cvt_pk_bf16_f32 v{d+3}, v{xo+2}, v{xo+3}")
        a("s_nop 1")
        a(f"v_permlane16_swap_b32 v{d}, v{d+2}")
        a(f"v_permlane16_swap_b32 v{d+1}, v{d+3}")
        a("s_nop 1")
        a(f"v_permlane32_swap_b32 v{d}, v{d+2}")
        a(f"v_permlane32_swap_b32 v{d+1}, v{d+3}")
        a(f"buffer_store_dwordx4 v[{d}:{d+3}], v{t1}, {W}, s{S_HST} offen offset:{1024*t} sc1")
        a(f"ds_write_b128 v{t2}, v[{d}:{d+3}] offset:{1024*t}")
    stamp(a, 8)
    for k4 in range(4):
        if k4 == 0: a(f"v_add_u32 v{C_B32}, s{S_T0}, v{t1}")
        else:       a(f"v_add_u32 v{C_B32+k4}, {1024*k4}, v{C_B32}")
    a(f"v_lshrrev_b32 v{t2}, 4, v0")
    a(f"v_lshlrev_b32 v{t2}, 9, v{t2}")
    a(f"v_and_b32 v{t3}, 15, v0")
    a(f"v_lshl_add_u32 v{t2}, v{t3}, 4, v{t2}")
    a(f"s_lshl_b32 s{S_T1}, s{S_T1}, 8")
    a(f"s_add_u32 s{S_T0}, s{S_T0}, s{S_T1}")
    a(f"v_add_u32 v{C_B8}, s{S_T0}, v{t2}")
    a(f"v_add_u32 v{C_B8+1}, 2048, v{C_B8}")
    for b, src in ((C_A32, C_P2), (C_A8, C_P2+1)):
        a(f"v_add_u32 v{b}, {4*WST}, v{src}")
        a(f"v_mov_b32 v{b+1}, v{src}")
        a(f"v_add_u32 v{b+2}, {2*WST}, v{src}")
    zero_acc(a)
    a(f"v_mov_b32 v{t3}, 1")
    a(f"s_mov_b32 s{S_PH}, 1")
    a("s_waitcnt lgkmcnt(0)")
    a("s_barrier")
    stampw(a, 3)
    for ins in reads_step(SETS[0], 0, 0): a(ins)
    body(a)
    a.label("L_EPI2")
    stamp(a, 5)
    a(f"v_bfe_u32 v{t0}, v0, 3, 2")
    a(f"v_mul_u32_u24 v{t0}, 18432, v{t0}")
    a(f"v_lshrrev_b32 v{t1}, 5, v0")
    a(f"v_lshl_add_u32 v{t0}, v{t1}, 7, v{t0}")
    a(f"v_and_b32 v{t1}, 7, v0")
    a(f"v_lshl_add_u32 v{t0}, v{t1}, 4, v{t0}")
    a(f"v_lshrrev_b32 v{t2}, 4, v0")
    a(f"v_lshl_add_u32 v{t2}, v{t2}, 3, v{t1}")
    a(f"v_bfe_u32 v{t1}, v0, 3, 1")
    a(f"v_mul_u32_u24 v{t1}, 18432, v{t1}")
    a(f"v_lshl_add_u32 v{t1}, v{t2}, 3, v{t1}")
    a(f"s_mov_b32 s{S_K}, 0xfffffffe")
    P = SETS[0]
    for c in range(2):
        for hb in range(2):
            x = ACC + 16*c + 8*hb
            d = P + 4*(2*c + hb)
            for i in range(4): a(f"v_cvt_pk_bf16_f32 v{d+i}, v{x+2*i}, v{x+2*i+1}")
            for i in range(4): a(f"v_min_u32 v{d+i}, s{S_K}, v{d+i}")
            a(f"buffer_store_dwordx4 v[{d}:{d+3}], v{t0}, {W}, s{S_PA} offen offset:{256*(2*c+hb)} sc1")
    x = ACC + 32
    a(f"v_cvt_pk_bf16_f32 v{P+16}, v{x}, v{x+1}")
    a(f"v_cvt_pk_bf16_f32 v{P+17}, v{x+2}, v{x+3}")
    for d in range(2): a(f"v_min_u32 v{P+16+d}, s{S_K}, v{P+16+d}")
    a(f"buffer_store_dwordx2 v[{P+16}:{P+17}], v{t1}, {W}, s{S_PS} offen sc1")
    if 'ackE' in opt: a("s_waitcnt vmcnt(0)")
    a("s_barrier")
    stamp(a, 6)
    a(f"s_cmp_eq_u32 s{S_CW}, 0")
    a("s_cbranch_scc0 L_CDONE")
    reducer(a, "C", single=True)
    reducer_run(a, "C", single=True)
    a.label("L_CDONE")
    if 'ts' in opt or amp_on(): a("s_waitcnt vmcnt(0)")
    stamp(a, 7)
    amp_spin(a)
    if 'clk' in opt:
        a("s_memtime s[96:97]")
        a("s_waitcnt lgkmcnt(0)")
        a("s_sub_u32 s78, s96, s100")
        a("s_mov_b32 s79, 0")
    dump_stamps(a, 0, 10 if ('clk' in opt or 'clk1' in opt or 'diag' in opt) else 9, "C", 0)

def kernel_main(a):
    name = KNAME
    a(f".globl {name}\n.p2align 8\n.type {name},@function\n{name}:")
    a(f"s_cmp_ge_u32 s2, 256")
    a(f"s_cbranch_scc1 L_END")
    stamp(a, 0)
    if 'clk' in opt: a("s_memtime s[100:101]")
    a("s_load_dwordx8 s[4:11], s[0:1], 0")
    a("s_load_dwordx4 s[12:15], s[0:1], 32")
    a("v_lshrrev_b32 v1, 6, v0")
    a("v_and_b32 v0, 63, v0")
    a(f"v_readfirstlane_b32 s{S_WV}, v1")
    if 'xmap' in opt:
        a(f"s_and_b32 s{S_J}, s2, 3")
        a(f"s_lshr_b32 s{S_XG}, s2, 2")
        a(f"s_and_b32 s{S_XG}, s{S_XG}, 7")
    else:
        a(f"s_and_b32 s{S_XG}, s2, 7")
        a(f"s_lshr_b32 s{S_J}, s2, 3")
        a(f"s_and_b32 s{S_J}, s{S_J}, 3")
    a(f"s_lshr_b32 s{S_MT}, s2, 5")
    a("s_nop 0")
    a(f"s_and_b32 s{S_CW}, s{S_WV}, 3")
    a(f"s_cmp_lt_u32 s{S_WV}, 4")
    a("s_cbranch_scc1 L_COMPUTE")
    loader(a)
    a.label("L_COMPUTE")
    compute(a)
    a.label("L_END")
    a("s_endpgm")
    a.label("L_CODE_END")
    a(kd(name, vgpr=132, sgpr=102))

def check_barriers(lines):
    iL = lines.index("L_LOADER:"); iC = lines.index("L_COMPUTE:")
    cnt = lambda seg: sum(1 for ln in seg if ln.strip() == "s_barrier")
    seg = lines[iL:iC]
    i1 = seg.index("L_LD1:"); i2 = seg.index("s_cbranch_scc1 L_LD1")
    nl = cnt(seg) + 5*cnt(seg[i1:i2])
    nc = cnt(lines[iC:])
    assert nl == nc, f"barrier mismatch loader {nl} compute {nc}"
    return nl

def main():
    for o in sys.argv[2:]: opt.add(o)
    a = Asm()
    a(HEADER.rstrip())
    a(f"; @launch grid=(256,1,1) block=(512,1,1) lds={LDS_BYTES}")
    a('.amdgcn_target "amdgcn-amd-amdhsa--gfx950"')
    a(".text")
    kernel_main(a)
    check_barriers(a.lines)
    open(sys.argv[1], "w").write(a.text())

main()
```

```python
import sys
from common import *

X_BYTES = 512*576*2
W_BYTES = 576*4608*2
OUT_BYTES = 512*576*2
WS_BYTES = 268435456
PAGE = 2*1024*1024
H_OFF = 4096
GRP_BYTES = 73728
FLAG_OFF = 4*PAGE + 4096
def FSPLIT(): return 'fsplit' in opt
def FILLM(): return 'fillm' in opt
def FILL8(): return 'fill8' in opt
FLAG2_D = 16384
INBOX_OFF = 5*PAGE + 4096
INBOX_B = 8*8*2304
WST = 18432
NSL = 6
LB = NSL*WST
NBP = 5
MHB = NBP*4096
MHS = 36864
LDS_BYTES = LB + 2*MHB
TS_OFF = 128 << 20
SPIN = 1 << 17
KNAME = "standalone__dense_activation_silu__sampling_kernel"
opt = set()

S_X, S_W1, S_W2, S_OUT, S_DBG, S_WS = 4, 6, 8, 10, 12, 14
SRD_X, SRD_W1, SRD_WS, SRD_W2, SRD_DBG = 16, 20, 24, 40, 44
S_WV, S_XG, S_J, S_MT, S_CW = 28, 29, 30, 31, 32
S_N, S_WOFF, S_DSLOT = 33, 34, 35
S_T0, S_T1, S_T2, S_T3 = 36, 37, 38, 39
S_HB, S_GRP, S_INB = 53, 54, 58
S_TS = 60
S_K = 84
S_P, S_XROW, S_BDST, S_WCOL, S_WLDS = 48, 49, 50, 51, 52
S_W2B, S_KAP, S_HOFF, S_CK, S_KH, S_HDST = 55, 56, 57, 59, 92, 94
S_TST, S_TREAL, S_TOFF, S_TN = 93, 95, 96, 97
S_BBEG, S_BEND = 86, 87
S_PH, S_HST, S_HSP, S_FLG, S_PA, S_PS = 48, 49, 50, 51, 52, 55

def amp_on(): return any(o.startswith('amp') for o in opt)
def amp_spin(a):
    for o in opt:
        if o.startswith('amp'):
            ia, ib = int(o[3]), int(o[4])
            a("s_waitcnt lgkmcnt(0) vmcnt(0)")
            a(f"s_sub_u32 s95, s{S_TS+2*ib}, s{S_TS+2*ia}")
            a("s_mul_i32 s95, s95, 3")
            a("s_memrealtime s[96:97]\ns_waitcnt lgkmcnt(0)\ns_mov_b32 s94, s96")
            a.label("L_AMP")
            a("s_memrealtime s[96:97]\ns_waitcnt lgkmcnt(0)\ns_sub_u32 s96, s96, s94\ns_cmp_lt_u32 s96, s95\ns_cbranch_scc1 L_AMP")
DIAGC = [False]
def stamp(a, i):
    if 'diag' in opt and DIAGC[0]: return
    if 'ts' in opt or amp_on():
        a(f"s_memrealtime s[{S_TS+2*i}:{S_TS+2*i+1}]")
def stampw(a, i):
    if 'diag' in opt and DIAGC[0]: return
    if 'ts' in opt or amp_on():
        a(f"s_memrealtime s[{S_TS+2*i}:{S_TS+2*i+1}]")
        a("s_waitcnt lgkmcnt(0)")

def dump_stamps(a, kidx, n, tag, wave):
    if 'ts' not in opt: return
    a("s_waitcnt lgkmcnt(0) vmcnt(0)")
    a(f"s_cmp_eq_u32 s{S_WV}, {wave}")
    a(f"s_cbranch_scc0 L_NOTS{tag}")
    a(f"s_lshl_b32 s80, s2, 7")
    a(f"s_add_u32 s80, s80, {TS_OFF + kidx*512*128}")
    a(f"s_mov_b32 s88, s14\ns_mov_b32 s89, s15\ns_mov_b32 s90, {WS_BYTES}\ns_mov_b32 s91, 0x20000")
    a("v_mov_b32 v2, 0")
    for i in range(n):
        a(f"v_mov_b32 v4, s{S_TS+2*i}\nv_mov_b32 v5, s{S_TS+2*i+1}")
        a(f"buffer_store_dwordx2 v[4:5], v2, s[88:91], s80 offen offset:{8*i}")
        a("s_nop 1")
    a.label(f"L_NOTS{tag}")

def srd(a, base, ptr, nbytes):
    a(f"s_mov_b32 s{base}, s{ptr}")
    a(f"s_mov_b32 s{base+1}, s{ptr+1}")
    a(f"s_mov_b32 s{base+2}, {nbytes}")
    a(f"s_mov_b32 s{base+3}, 0x20000")
def R(base): return f"s[{base}:{base+3}]"

def wrap(a, reg, inc, mod):
    a(f"s_add_u32 s{reg}, s{reg}, {inc}")
    a(f"s_sub_u32 s{S_T3}, s{reg}, {mod}")
    a(f"s_cmp_ge_u32 s{reg}, {mod}")
    a(f"s_cselect_b32 s{reg}, s{S_T3}, s{reg}")

def group_bases(a):
    a(f"s_lshl_b32 s{S_GRP}, s{S_XG}, 3")
    a(f"s_add_u32 s{S_GRP}, s{S_GRP}, s{S_MT}")
    a(f"s_lshr_b32 s{S_HB}, s{S_GRP}, 4")
    a(f"s_lshl_b32 s{S_HB}, s{S_HB}, 21")
    a(f"s_and_b32 s{S_T0}, s{S_GRP}, 15")
    a(f"s_mul_i32 s{S_T0}, s{S_T0}, {GRP_BYTES}")
    a(f"s_add_u32 s{S_HB}, s{S_HB}, s{S_T0}")
    a(f"s_add_u32 s{S_HB}, s{S_HB}, {H_OFF}")
    a(f"s_lshl_b32 s{S_GRP}, s{S_GRP}, 2")

def inbox_block(a, dst):
    a(f"s_lshl_b32 s{dst}, s{S_MT}, 2")
    a(f"s_add_u32 s{dst}, s{dst}, s{S_J}")
    a(f"s_mul_i32 s{dst}, s{dst}, {INBOX_B}")
    a(f"s_add_u32 s{dst}, s{dst}, {INBOX_OFF}")

def poll_pub(a, tag, vtmp, preloaded=False):
    if preloaded:
        a("s_waitcnt vmcnt(0)")
        a(f"v_cmp_ne_u32 vcc, 1, v{vtmp}")
        a(f"s_cbranch_vccz L_PGX{tag}")
    a(f"s_mov_b32 s{S_T3}, 0")
    a.label(f"L_PG{tag}")
    a(f"s_add_u32 s{S_T3}, s{S_T3}, 1")
    a(f"s_cmp_gt_u32 s{S_T3}, {SPIN}")
    a(f"s_cbranch_scc1 L_PGX{tag}")
    a(f"buffer_load_dword v{vtmp}, off, {R(SRD_DBG)}, 0 sc1")
    a("s_waitcnt vmcnt(0)")
    a(f"v_cmp_ne_u32 vcc, 1, v{vtmp}")
    a(f"s_cbranch_vccnz L_PG{tag}")
    a.label(f"L_PGX{tag}")

def poll_ones(a, tag, vdst, vaddr, soff):
    a(f"s_mov_b32 s{S_T3}, 0")
    a.label(f"L_PO{tag}")
    a(f"s_add_u32 s{S_T3}, s{S_T3}, 1")
    a(f"s_cmp_gt_u32 s{S_T3}, {SPIN}")
    a(f"s_cbranch_scc1 L_POX{tag}")
    a(f"buffer_load_dword v{vdst}, v{vaddr}, {R(SRD_WS)}, s{soff} offen sc1")
    a("s_waitcnt vmcnt(0)")
    a(f"v_cmp_ne_u32 vcc, 1, v{vdst}")
    a(f"s_cbranch_vccnz L_PO{tag}")
    a.label(f"L_POX{tag}")

R_D, R_ACC, R_T, R_A = 80, 96, 100, 104
def reducer(a, tag, single):
    W = R(SRD_WS)
    if single:
        a(f"v_min_u32 v{R_T}, 31, v0")
        a(f"v_lshlrev_b32 v{R_A}, 3, v{R_T}")
        a(f"s_add_u32 s{S_T0}, s{S_INB}, 2048")
        a(f"v_and_b32 v{R_T+1}, 7, v{R_T}")
        a(f"v_mul_u32_u24 v{R_T+1}, 1152, v{R_T+1}")
        a(f"v_lshrrev_b32 v{R_T}, 3, v{R_T}")
        a(f"v_lshl_add_u32 v{R_A+1}, v{R_T}, 3, v{R_T+1}")
        a(f"s_mov_b32 s{S_T2}, 256")
    else:
        a(f"v_lshlrev_b32 v{R_A}, 3, v0")
        a(f"s_lshl_b32 s{S_T0}, s{S_CW}, 9")
        a(f"s_add_u32 s{S_T0}, s{S_T0}, s{S_INB}")
        a(f"v_bfe_u32 v{R_T}, v0, 1, 3")
        a(f"v_mul_u32_u24 v{R_T}, 1152, v{R_T}")
        a(f"v_lshrrev_b32 v{R_T+1}, 5, v0")
        a(f"v_lshl_add_u32 v{R_T}, v{R_T+1}, 5, v{R_T}")
        a(f"v_and_b32 v{R_T+1}, 1, v0")
        a(f"v_lshl_add_u32 v{R_T}, v{R_T+1}, 4, v{R_T}")
        a(f"v_bfe_u32 v{R_T+1}, v0, 4, 1")
        a(f"v_lshl_add_u32 v{R_A+1}, v{R_T+1}, 3, v{R_T}")
        a(f"s_lshl_b32 s{S_T2}, s{S_CW}, 6")
    a(f"s_lshl_b32 s{S_T1}, s{S_MT}, 3")
    a(f"s_add_u32 s{S_T1}, s{S_T1}, s{S_XG}")
    a(f"s_mul_i32 s{S_T1}, s{S_T1}, {8*1152}")
    a(f"s_add_u32 s{S_T2}, s{S_T2}, s{S_T1}")
    a(f"s_mul_i32 s{S_T1}, s{S_J}, 288")
    a(f"s_add_u32 s{S_T2}, s{S_T2}, s{S_T1}")
    srd(a, SRD_X, S_OUT, OUT_BYTES)
    return
def reducer_run(a, tag, single):
    W = R(SRD_WS)
    a(f"s_mov_b32 s{S_T3}, 0")
    if 'selr' in opt:
        a(f"s_mov_b32 s{S_T1}, s{S_T0}")
        for xg in range(8):
            a(f"buffer_load_dwordx2 v[{R_D+2*xg}:{R_D+2*xg+1}], v{R_A}, {W}, s{S_T1} offen sc1")
            if xg < 7: a(f"s_add_u32 s{S_T1}, s{S_T1}, 2304")
        a.label(f"L_RP{tag}")
        a(f"s_add_u32 s{S_T3}, s{S_T3}, 1")
        a(f"s_cmp_gt_u32 s{S_T3}, {SPIN}")
        a(f"s_cbranch_scc1 L_RPX{tag}")
        a("s_waitcnt vmcnt(0)")
        a(f"v_max3_u32 v{R_T}, v{R_D}, v{R_D+1}, v{R_D+2}")
        for i in range(3, 15, 2):
            a(f"v_max3_u32 v{R_T}, v{R_T}, v{R_D+i}, v{R_D+i+1}")
        a(f"v_max_u32 v{R_T}, v{R_T}, v{R_D+15}")
        a(f"v_cmp_eq_u32 vcc, -1, v{R_T}")
        a(f"s_cbranch_vccz L_RPX{tag}")
        a(f"s_mov_b32 s{S_T1}, s{S_T0}")
        for xg in range(8):
            a(f"v_max_u32 v{R_T}, v{R_D+2*xg}, v{R_D+2*xg+1}")
            a(f"v_cmp_eq_u32 vcc, -1, v{R_T}")
            a(f"s_cbranch_vccz L_RS{tag}{xg}")
            a(f"buffer_load_dwordx2 v[{R_D+2*xg}:{R_D+2*xg+1}], v{R_A}, {W}, s{S_T1} offen sc1")
            a.label(f"L_RS{tag}{xg}")
            if xg < 7: a(f"s_add_u32 s{S_T1}, s{S_T1}, 2304")
        a(f"s_branch L_RP{tag}")
    else:
        a.label(f"L_RP{tag}")
        a(f"s_mov_b32 s{S_T1}, s{S_T0}")
        for xg in range(8):
            a(f"buffer_load_dwordx2 v[{R_D+2*xg}:{R_D+2*xg+1}], v{R_A}, {W}, s{S_T1} offen sc1")
            if xg < 7: a(f"s_add_u32 s{S_T1}, s{S_T1}, 2304")
        a(f"s_add_u32 s{S_T3}, s{S_T3}, 1")
        a(f"s_cmp_gt_u32 s{S_T3}, {SPIN}")
        a(f"s_cbranch_scc1 L_RPX{tag}")
        a("s_waitcnt vmcnt(0)")
        a(f"v_max3_u32 v{R_T}, v{R_D}, v{R_D+1}, v{R_D+2}")
        for i in range(3, 15, 2):
            a(f"v_max3_u32 v{R_T}, v{R_T}, v{R_D+i}, v{R_D+i+1}")
        a(f"v_max_u32 v{R_T}, v{R_T}, v{R_D+15}")
        a(f"v_cmp_eq_u32 vcc, -1, v{R_T}")
        if any(o.startswith('slp') for o in opt):
            n = [int(o[3:]) for o in opt if o.startswith('slp')][0]
            a(f"s_cbranch_vccz L_RPX{tag}")
            a(f"s_sleep {n}")
            a(f"s_branch L_RP{tag}")
        else:
            a(f"s_cbranch_vccnz L_RP{tag}")
    a.label(f"L_RPX{tag}")
    a("s_waitcnt vmcnt(0)")
    for xg in range(8):
        for d in range(2):
            src = R_D + 2*xg + d
            dst = R_ACC if xg == 0 else R_T
            a(f"v_lshlrev_b32 v{dst+2*d}, 16, v{src}")
            a(f"v_and_b32 v{dst+2*d+1}, 0xffff0000, v{src}")
        if xg:
            for d in range(4): a(f"v_add_f32 v{R_ACC+d}, v{R_ACC+d}, v{R_T+d}")
    a(f"v_cvt_pk_bf16_f32 v{R_D}, v{R_ACC}, v{R_ACC+1}")
    a(f"v_cvt_pk_bf16_f32 v{R_D+1}, v{R_ACC+2}, v{R_ACC+3}")
    if single: a("s_mov_b32 exec_hi, 0")
    osc = " sc1" if 'osc1' in opt else (" nt" if 'ont' in opt else "")
    a(f"buffer_store_dwordx2 v[{R_D}:{R_D+1}], v{R_A+1}, {R(SRD_X)}, s{S_T2} offen{osc}")
    if single: a("s_mov_b32 exec_hi, -1")

L_W1, L_W2, L_X, L_H, L_T = 1, 6, 11, 13, 14
L_RHO, L_C16 = 20, 25
L_TV, L_PF, L_CK = 30, 32, 34

def issue_x(a):
    a(f"s_lshl_b32 s{S_T0}, s{S_P}, 7")
    a(f"s_mov_b32 m0, s{S_BDST}")
    a(f"s_add_u32 s{S_T0}, s{S_T0}, s{S_XROW}")
    a(f"buffer_load_dwordx4 v{L_X}, {R(SRD_X)}, s{S_T0} offen lds")
    a(f"s_add_u32 m0, m0, 1024")
    a(f"s_add_u32 s{S_BDST}, s{S_BDST}, 4096")
    a(f"buffer_load_dwordx4 v{L_X+1}, {R(SRD_X)}, s{S_T0} offen lds")
    a(f"s_cmp_eq_u32 s{S_BDST}, s{S_BEND}")
    a(f"s_cselect_b32 s{S_BDST}, s{S_BBEG}, s{S_BDST}")

def issue_w_one(a, i, vbase, srdreg):
    if i == 0: a(f"s_add_u32 m0, s{S_DSLOT}, s{S_WLDS}")
    else:      a(f"s_add_u32 m0, m0, 1024")
    a("s_mov_b32 exec_hi, 0" if i == 4 else "s_nop 0")
    a(f"buffer_load_dwordx4 v{vbase+i}, {R(srdreg)}, s{S_WOFF} offen lds")
    if i == 4: a("s_mov_b32 exec_hi, -1")
def slot_next(a):
    a(f"s_add_u32 s{S_DSLOT}, s{S_DSLOT}, {WST}")
    a(f"s_cmp_eq_u32 s{S_DSLOT}, {NSL*WST}")
    a(f"s_cselect_b32 s{S_DSLOT}, 0, s{S_DSLOT}")
def w1_off(a):
    a(f"s_mul_i32 s{S_WOFF}, s{S_P}, {64*9216}")
    a(f"s_add_u32 s{S_WOFF}, s{S_WOFF}, s{S_WCOL}")
def issue_touch(a):
    a(f"s_cmp_eq_u32 s{S_TN}, s{S_TST}")
    a(f"s_cselect_b32 s{S_TOFF}, s{S_TREAL}, 0x70000000")
    a(f"s_add_u32 s{S_TN}, s{S_TN}, 1")
    a(f"buffer_load_dword v{L_TV+1}, v{L_TV}, {R(SRD_W2)}, s{S_TOFF} offen" + (" nt" if 'tnt' in opt else (" sc1" if 'tsc1' in opt else "")))
L_FS = 36
S_FU, S_FB = 98, 99
def spread(): return 'spread' in opt
def issue_fill(a):
    a(f"s_cmp_lt_u32 s{S_FU}, {18*1024}")
    a(f"s_cselect_b32 s{S_T0}, s{S_FU}, 0x60000000")
    a(f"s_add_u32 s{S_T0}, s{S_T0}, s{S_FB}")
    a(f"s_add_u32 s{S_FU}, s{S_FU}, 4096")
    a(f"buffer_store_dwordx4 v[{L_FS}:{L_FS+3}], v{L_H}, {R(SRD_WS)}, s{S_T0} offen sc1")
def issue_stage1(a):
    issue_x(a)
    w1_off(a)
    for i in range(5): issue_w_one(a, i, L_W1, SRD_W1)
    slot_next(a)
    wrap(a, S_P, 1, 9)
    issue_touch(a)
    if spread(): issue_fill(a)
def issue_w2(a):
    a(f"s_mul_i32 s{S_WOFF}, s{S_KAP}, {16*1152}")
    a(f"s_add_u32 s{S_WOFF}, s{S_WOFF}, s{S_W2B}")
    for i in range(5): issue_w_one(a, i, L_W2, SRD_W2)
    slot_next(a)
    wrap(a, S_KAP, 4, 36)
def issue_h(a):
    a(f"s_lshl_b32 s{S_HOFF}, s{S_KH}, 10")
    a(f"s_mov_b32 m0, s{S_HDST}")
    a(f"s_add_u32 s{S_HOFF}, s{S_HOFF}, s{S_HB}")
    a(f"buffer_load_dwordx4 v{L_H}, {R(SRD_WS)}, s{S_HOFF} offen sc1 lds")
    a(f"s_add_u32 m0, m0, {MHB}")
    a(f"s_add_u32 s{S_HOFF}, s{S_HOFF}, {MHS}")
    a(f"buffer_load_dwordx4 v{L_H}, {R(SRD_WS)}, s{S_HOFF} offen sc1 lds")
    a(f"s_add_u32 s{S_HDST}, s{S_HDST}, 4096")
    a(f"s_cmp_eq_u32 s{S_HDST}, s{S_BEND}")
    a(f"s_cselect_b32 s{S_HDST}, s{S_BBEG}, s{S_HDST}")
    wrap(a, S_KH, 4, 36)

def w_voff(a, i):
    t0, t1 = L_T, L_T+1
    a(f"v_add_u32 v{t0}, {64*i}, v0")
    a(f"v_mul_u32_u24 v{t1}, 3641, v{t0}")
    a(f"v_lshrrev_b32 v{L_RHO+i}, 16, v{t1}")
    a(f"v_lshlrev_b32 v{t0}, 4, v{t0}")
    a(f"v_mad_i32_i24 v{L_C16+i}, v{L_RHO+i}, s{S_T1}, v{t0}")
    a(f"v_and_b32 v{t1}, 0xfc, v{L_RHO+i}")
    a(f"v_add_u32 v{t1}, v{t1}, v{L_RHO+i}")
    a(f"v_mad_u32_u24 v{L_W1+i}, v{t1}, s{S_T2}, v{L_C16+i}")
def w2_voffs(a):
    t0, t1 = L_T, L_T+1
    a(f"s_movk_i32 s{S_T2}, 1152")
    for i in range(5):
        a(f"v_and_b32 v{t0}, 1, v{L_RHO+i}")
        a(f"v_lshrrev_b32 v{t1}, 3, v{L_RHO+i}")
        a(f"v_lshlrev_b32 v{t1}, 2, v{t1}")
        a(f"v_lshl_add_u32 v{t1}, v{t0}, 3, v{t1}")
        a(f"v_bfe_u32 v{t0}, v{L_RHO+i}, 1, 2")
        a(f"v_add_u32 v{t1}, v{t1}, v{t0}")
        a(f"v_mad_u32_u24 v{L_W2+i}, v{t1}, s{S_T2}, v{L_C16+i}")

def loader_fill(a):
    W = R(SRD_WS)
    a(f"s_mul_i32 s{S_T1}, s{S_CW}, 4608")
    a(f"s_add_u32 s{S_T0}, s{S_INB}, s{S_T1}")
    for i in range(4):
        a(f"buffer_store_dwordx4 v[{L_FS}:{L_FS+3}], v{L_H}, {W}, s{S_T0} offen offset:{1024*i} sc1")
    a(f"s_add_u32 s{S_T0}, s{S_T0}, 4096")
    a(f"buffer_store_dwordx4 v[{L_FS}:{L_FS+3}], v{L_FS+4}, {W}, s{S_T0} offen sc1")

def loader(a):
    a.label("L_LOADER")
    if 'lprio' in opt: a("s_setprio 3")
    t0, t1, t2 = L_T, L_T+1, L_T+2
    a(f"v_lshrrev_b32 v{t0}, 3, v0")
    a(f"v_lshrrev_b32 v{t1}, 4, v0")
    a(f"v_and_b32 v{t2}, 7, v0")
    a(f"v_xor_b32 v{t1}, v{t1}, v{t2}")
    a(f"v_lshlrev_b32 v{t1}, 4, v{t1}")
    a(f"v_mul_u32_u24 v{t0}, 1152, v{t0}")
    a(f"v_add_u32 v{L_X}, v{t0}, v{t1}")
    a(f"v_xor_b32 v{t1}, 64, v{t1}")
    a(f"v_add_u32 v{t0}, {8*1152}, v{t0}")
    a(f"v_add_u32 v{L_X+1}, v{t0}, v{t1}")
    a(f"s_lshl_b32 s{S_T0}, s{S_MT}, 2")
    a(f"s_add_u32 s{S_T0}, s{S_T0}, s{S_CW}")
    a(f"s_mul_i32 s{S_XROW}, s{S_T0}, {16*1152}")
    a(f"s_lshr_b32 s{S_T0}, s{S_CW}, 1")
    a(f"s_mul_i32 s{S_BDST}, s{S_T0}, {MHB}")
    a(f"s_and_b32 s{S_T0}, s{S_CW}, 1")
    a(f"s_lshl_b32 s{S_T0}, s{S_T0}, 11")
    a(f"s_add_u32 s{S_BDST}, s{S_BDST}, s{S_T0}")
    a(f"s_add_u32 s{S_BDST}, s{S_BDST}, {LB}")
    a(f"s_mov_b32 s{S_BBEG}, s{S_BDST}")
    a(f"s_add_u32 s{S_BEND}, s{S_BDST}, {NBP*4096}")
    if 'norot' in opt: a(f"s_mov_b32 s{S_P}, 0")
    else:
        a(f"s_lshl_b32 s{S_P}, s{S_J}, 1")
        wrap_reg = S_P
        a(f"s_add_u32 s{S_P}, s{S_P}, s{S_MT}")
        a(f"s_sub_u32 s{S_T0}, s{S_P}, 9")
        a(f"s_cmp_ge_u32 s{S_P}, 9")
        a(f"s_cselect_b32 s{S_P}, s{S_T0}, s{S_P}")
    a(f"s_mul_i32 s{S_WCOL}, s{S_XG}, 1152")
    a(f"s_mul_i32 s{S_T0}, s{S_J}, 288")
    a(f"s_add_u32 s{S_WCOL}, s{S_WCOL}, s{S_T0}")
    a(f"s_lshr_b32 s{S_T0}, s{S_CW}, 1")
    a(f"s_lshl_b32 s{S_T0}, s{S_T0}, 3")
    a(f"s_and_b32 s{S_T1}, s{S_CW}, 1")
    a(f"s_add_u32 s{S_T0}, s{S_T0}, s{S_T1}")
    a(f"s_mul_i32 s{S_T0}, s{S_T0}, {4*9216}")
    a(f"s_add_u32 s{S_WCOL}, s{S_WCOL}, s{S_T0}")
    a(f"s_mul_i32 s{S_WLDS}, s{S_CW}, 4608")
    a(f"s_mov_b32 s{S_DSLOT}, 0")
    a(f"s_movk_i32 s{S_T1}, -288")
    a(f"s_movk_i32 s{S_T2}, 9216")
    w_voff(a, 0)
    a("s_waitcnt lgkmcnt(0)")
    srd(a, SRD_X, S_X, X_BYTES)
    srd(a, SRD_W1, S_W1, W_BYTES)
    stamp(a, 1)
    issue_x(a)
    w1_off(a)
    issue_w_one(a, 0, L_W1, SRD_W1)
    for i in range(1, 5):
        w_voff(a, i)
        issue_w_one(a, i, L_W1, SRD_W1)
    slot_next(a)
    wrap(a, S_P, 1, 9)
    srd(a, SRD_W2, S_W2, W_BYTES)
    a(f"s_lshl_b32 s{S_T0}, s{S_MT}, 2")
    a(f"s_add_u32 s{S_T0}, s{S_T0}, s{S_J}")
    a(f"s_mul_i32 s{S_T0}, s{S_T0}, 162")
    a(f"s_mul_i32 s{S_T1}, s{S_CW}, 41")
    a(f"s_add_u32 s{S_T0}, s{S_T0}, s{S_T1}")
    a(f"s_lshl_b32 s{S_T0}, s{S_T0}, 7")
    a(f"s_mul_i32 s{S_W2B}, s{S_XG}, {576*1152}")
    a(f"s_add_u32 s{S_TREAL}, s{S_T0}, s{S_W2B}")
    a(f"v_min_u32 v{L_TV}, 40, v0")
    a(f"v_lshlrev_b32 v{L_TV}, 7, v{L_TV}")
    a(f"s_mov_b32 s{S_TN}, 1")
    if 'notouch' in opt:
        a(f"s_mov_b32 s{S_TST}, 99")
    elif 'tstc' in opt:
        a(f"s_mul_i32 s{S_TST}, s{S_MT}, 5")
        a(f"s_lshr_b32 s{S_TST}, s{S_TST}, 3")
        a(f"s_add_u32 s{S_TST}, s{S_TST}, 2")
    elif 'tstd' in opt:
        a(f"s_mul_i32 s{S_TST}, s{S_MT}, 3")
        a(f"s_lshr_b32 s{S_TST}, s{S_TST}, 2")
        a(f"s_add_u32 s{S_TST}, s{S_TST}, 1")
    elif 'tst8' in opt:
        a(f"s_mov_b32 s{S_TST}, 8")
    elif 'tst2' in opt:
        a(f"s_add_u32 s{S_TST}, s{S_MT}, 2")
        a(f"s_min_u32 s{S_TST}, s{S_TST}, 8")
    elif 'tst3' in opt:
        a(f"s_add_u32 s{S_TST}, s{S_MT}, 3")
        a(f"s_min_u32 s{S_TST}, s{S_TST}, 8")
    elif 'tsth' in opt:
        a(f"s_lshr_b32 s{S_TST}, s{S_MT}, 1")
        a(f"s_add_u32 s{S_TST}, s{S_TST}, 5")
    else:
        a(f"s_add_u32 s{S_TST}, s{S_MT}, 1")
    if spread():
        srd(a, SRD_WS, S_WS, WS_BYTES)
        a(f"v_lshlrev_b32 v{L_H}, 4, v0")
        for i in range(4): a(f"v_mov_b32 v{L_FS+i}, -1")
        inbox_block(a, S_FB)
        a(f"s_mul_i32 s{S_T1}, s{S_XG}, 18432")
        a(f"s_add_u32 s{S_FB}, s{S_FB}, s{S_T1}")
        fstart = 1
        for o in opt:
            if o.startswith('fs'): fstart = int(o[2])
        a(f"s_lshl_b32 s{S_FU}, s{S_CW}, 10")
        a(f"s_sub_u32 s{S_FU}, s{S_FU}, {4096*fstart}")
    issue_stage1(a)
    stamp(a, 2)
    srd(a, SRD_WS, S_WS, WS_BYTES)
    srd(a, SRD_DBG, S_DBG, 256)
    w2_voffs(a)
    group_bases(a)
    a(f"s_mul_i32 s{S_T0}, s{S_J}, 288")
    a(f"s_add_u32 s{S_W2B}, s{S_W2B}, s{S_T0}")
    a(f"s_mul_i32 s{S_KAP}, s{S_J}, 9")
    a(f"s_add_u32 s{S_KAP}, s{S_KAP}, s{S_CW}")
    a(f"s_add_u32 s{S_KH}, s{S_KAP}, 8")
    a(f"s_sub_u32 s{S_T0}, s{S_KH}, 36")
    a(f"s_cmp_ge_u32 s{S_KH}, 36")
    a(f"s_cselect_b32 s{S_KH}, s{S_T0}, s{S_KH}")
    a(f"s_lshl_b32 s{S_HDST}, s{S_CW}, 10")
    a(f"s_add_u32 s{S_HDST}, s{S_HDST}, {LB + 2*4096}")
    a(f"v_lshlrev_b32 v{L_H}, 4, v0")
    inbox_block(a, S_INB)
    a(f"s_mul_i32 s{S_T1}, s{S_XG}, 18432")
    a(f"s_add_u32 s{S_INB}, s{S_INB}, s{S_T1}")
    if FSPLIT():
        a(f"v_bfe_u32 v{L_PF}, v0, 2, 2")
        a(f"v_lshlrev_b32 v{L_PF}, 6, v{L_PF}")
        a(f"v_and_b32 v{L_PF+1}, 3, v0")
        a(f"v_lshl_add_u32 v{L_PF}, v{L_PF+1}, 2, v{L_PF}")
    else:
        a(f"v_and_b32 v{L_PF}, 15, v0")
        a(f"v_lshlrev_b32 v{L_PF}, 2, v{L_PF}")
    a(f"v_lshrrev_b32 v{L_CK}, 2, v0")
    a(f"v_and_b32 v{L_CK}, 7, v{L_CK}")
    a(f"v_lshlrev_b32 v{L_CK}, {11 if FSPLIT() else 10}, v{L_CK}")
    a(f"v_and_b32 v{L_CK+1}, 3, v0")
    a(f"v_lshl_add_u32 v{L_CK}, v{L_CK+1}, 2, v{L_CK}")
    a(f"s_lshl_b32 s{S_CK}, s{S_MT}, {8 if FSPLIT() else 7}")
    a(f"s_lshl_b32 s{S_T0}, s{S_J}, {6 if FSPLIT() else 4}")
    a(f"s_add_u32 s{S_CK}, s{S_CK}, s{S_T0}")
    a(f"s_add_u32 s{S_CK}, s{S_CK}, {FLAG_OFF + (FLAG2_D if FILLM() else 0)}")
    if FILL8():
        for i in range(4): a(f"v_mov_b32 v{L_FS+i}, -1")
        a(f"v_min_u32 v{L_FS+4}, 31, v0")
        a(f"v_lshlrev_b32 v{L_FS+4}, 4, v{L_FS+4}")
    a("s_waitcnt vmcnt(%d)" % (9 if spread() else 8))
    a("s_barrier")
    stamp(a, 3)
    issue_stage1(a)
    a(f"s_mov_b32 s{S_N}, 0")
    a.label("L_LD1")
    a("s_waitcnt vmcnt(%d)" % (11 if spread() else 9))
    a("s_barrier")
    issue_stage1(a)
    a(f"s_add_u32 s{S_N}, s{S_N}, 1")
    a(f"s_cmp_lt_u32 s{S_N}, 6")
    a("s_cbranch_scc1 L_LD1")
    tail = 2 if spread() else 1
    q = [("st7", 7), ("x7", tail), ("st8", 7), ("x8", tail)]
    def iss(name, cnt, fn):
        fn(); q.append((name, cnt))
    def wait(*names):
        idx = [i for i, (nm, c) in enumerate(q) if nm in names]
        last = max(idx) if idx else -1
        n = sum(c for nm, c in q[last+1:])
        a("s_waitcnt vmcnt(%d)" % n)
    def drained(): q.clear()
    nW = [0]; nH = [2]
    def Wn():
        n = nW[0]; iss(f"W{n}", 5, lambda: issue_w2(a)); nW[0] += 1
    def Hn():
        n = nH[0]; iss(f"h{n}", 2, lambda: issue_h(a)); nH[0] += 1
    sch = (0, 1, 1, 1, 1)
    for o in opt:
        if o.startswith('sch'): sch = tuple(int(c) for c in o[3:8])
    a(f"s_mov_b32 s{S_DSLOT}, {4*WST}")
    a(f"s_lshl_b32 s{S_BBEG}, s{S_CW}, 10")
    a(f"s_add_u32 s{S_BBEG}, s{S_BBEG}, {LB}")
    a(f"s_add_u32 s{S_BEND}, s{S_BBEG}, {NBP*4096}")
    fat = 8
    for o in opt:
        if o.startswith('fat'): fat = int(o[3])
    if FILL8() and fat == 8: iss("fill", 5, lambda: loader_fill(a))
    wait("st7")
    a("s_barrier")
    if FILL8() and fat == 7: iss("fill", 5, lambda: loader_fill(a))
    for _ in range(sch[0]): Wn()
    assert nW[0] <= 2
    wait("st8")
    a("s_barrier")
    for _ in range(sch[1]): Wn()
    assert nW[0] <= 3
    a("s_barrier")
    stamp(a, 4)
    for _ in range(sch[2]): Wn()
    assert nW[0] >= 1
    a(f"buffer_load_dword v{L_T}, off, {R(SRD_DBG)}, 0 sc1"); q.append(("pub", 1))
    a(f"s_lshl_b32 s{S_T2}, s{S_GRP}, {6 if FSPLIT() else 5}")
    a(f"s_add_u32 s{S_T2}, s{S_T2}, {FLAG_OFF}")
    wait("W0", "fill")
    a("s_barrier")
    stamp(a, 5)
    for _ in range(sch[3]): Wn()
    assert nW[0] >= 2
    wait("W1")
    a("s_barrier")
    if 'flagbar' in opt: a("s_barrier")
    for _ in range(sch[4]): Wn()
    assert nW[0] <= 6
    poll_pub(a, "L", L_T, preloaded=True); drained()
    if 'onepoll' in opt:
        a(f"s_cmp_eq_u32 s{S_CW}, 0")
        a("s_cbranch_scc0 L_POXF")
    poll_ones(a, "F", L_T, L_PF, S_T2)
    if 'onepoll' in opt: a("s_barrier")
    stamp(a, 6)
    Hn(); Hn()
    if 'hearly' in opt: Hn()
    if nW[0] <= 2: Wn()
    wait("h2", "W2")
    a("s_barrier")
    stamp(a, 7)
    for s in range(3, 9):
        k = 0
        while nH[0] <= 8 and (nH[0] <= 4 or nH[0] <= s + 2) and nH[0] <= s + (2 if 'hearly' in opt else 1):
            Hn()
        while nW[0] <= 8 and (nW[0] <= 5 or nW[0] <= s + 3) and (nW[0] <= s or k < 1):
            Wn(); k += 1
        if s == 6:
            iss("chk", 1, lambda: a(f"buffer_load_dword v{L_CK+1}, v{L_CK}, {R(SRD_WS)}, s{S_CK} offen sc1"))
        if s == 8:
            a("s_waitcnt vmcnt(0)")
            a(f"v_cmp_ne_u32 vcc, 1, v{L_CK+1}")
            a("s_cbranch_vccz L_POXK")
            poll_ones(a, "K", L_CK+1, L_CK, S_CK)
            drained()
        assert nW[0] > s and nH[0] > s, (s, nW, nH)
        wait(f"h{s}", f"W{s}")
        a("s_barrier")
    stamp(a, 8)
    reducer(a, "L", single=False)
    a("s_barrier")
    reducer_run(a, "L", single=False)
    stamp(a, 9)
    dump_stamps(a, 1, 10, "LD", 4)
    a("s_endpgm")

C_A32, C_A8 = 2, 124
C_B32, C_B8 = 6, 10
C_T = 12
SETS = (16, 48)
ACC = 80
C_E = 116
C_P2 = 128

def reads_step(st, n, s0):
    sl = n % NSL
    A32 = C_A32 + (sl >> 1); A8 = C_A8 + (sl >> 1)
    base = (sl & 1)*WST + s0*9216
    bo = (n % NBP)*4096
    def a32(c, kh):
        d = st + (kh*2 + c)*4
        off = base + kh*4608 + 64*c
        return [f"ds_read_b64_tr_b16 v[{d}:{d+1}], v{A32} offset:{off}",
                f"ds_read_b64_tr_b16 v[{d+2}:{d+3}], v{A32} offset:{off+288}"]
    def b32(kh):
        d = st + 20 + 4*kh
        return [f"ds_read_b128 v[{d}:{d+3}], v{C_B32 + 2*s0 + kh} offset:{bo}"]
    ins = b32(0) + a32(0, 0) + a32(1, 0) + b32(1) + a32(0, 1) + a32(1, 1)
    ins.append(f"ds_read_b128 v[{st+28}:{st+31}], v{C_B8 + s0} offset:{bo}")
    ins.append(f"ds_read_b64_tr_b16 v[{st+16}:{st+17}], v{A8} offset:{base}")
    ins.append(f"ds_read_b64_tr_b16 v[{st+18}:{st+19}], v{A8} offset:{base+288}")
    return ins

def mfmas(st):
    out = []
    for kh in range(2):
        for c in range(2):
            acc = ACC + 16*c
            A = st + (kh*2 + c)*4; B = st + 20 + 4*kh
            out.append(f"v_mfma_f32_32x32x16_bf16 v[{acc}:{acc+15}], v[{A}:{A+3}], v[{B}:{B+3}], v[{acc}:{acc+15}]")
    out.append(f"v_mfma_f32_16x16x32_bf16 v[{ACC+32}:{ACC+35}], v[{st+16}:{st+19}], v[{st+28}:{st+31}], v[{ACC+32}:{ACC+35}]")
    return out

def reads_step1(st, n, s0):
    sl = n % NSL
    A = C_A32 + (sl >> 1); A8 = C_A8 + (sl >> 1)
    base = (sl & 1)*WST + s0*9216
    bo = (n % NBP)*4096
    def at(t):
        return [f"ds_read_b64_tr_b16 v[{st+4*t}:{st+4*t+1}], v{A} offset:{base+32*t}",
                f"ds_read_b64_tr_b16 v[{st+4*t+2}:{st+4*t+3}], v{A} offset:{base+4608+32*t}"]
    ins = [f"ds_read_b128 v[{st+20}:{st+23}], v{C_B32+s0} offset:{bo}"] + at(0)
    ins.append(f"ds_read_b128 v[{st+24}:{st+27}], v{C_B32+s0} offset:{bo+2048}")
    ins += at(1) + at(2) + at(3)
    ins.append(f"ds_read_b128 v[{st+28}:{st+31}], v{C_B8+s0} offset:{bo}")
    ins.append(f"ds_read_b64_tr_b16 v[{st+16}:{st+17}], v{A8} offset:{base}")
    ins.append(f"ds_read_b64_tr_b16 v[{st+18}:{st+19}], v{A8} offset:{base+4608}")
    return ins
def mfmas1(st):
    out = []
    def m(acc, A, B): return f"v_mfma_f32_16x16x32_bf16 v[{acc}:{acc+3}], v[{A}:{A+3}], v[{B}:{B+3}], v[{acc}:{acc+3}]"
    for t in range(4):
        out.append(m(ACC + 4*t, st + 4*t, st + 20))
        out.append(m(ACC + 16 + 4*t, st + 4*t, st + 24))
    out.append(m(ACC + 32, st + 16, st + 28))
    return out
NEED1 = {0: 4, 2: 6, 4: 8, 6: 10, 8: 13}
PAT1 = [2, 1, 2, 1, 2, 1, 2, 1, 1]
def block1(a, r, m):
    k = 0
    for u in range(9):
        if u in NEED1: a(f"s_waitcnt lgkmcnt({13 - NEED1[u] + k})")
        a(m[u])
        if r:
            for _ in range(PAT1[u]):
                a(r[k]); k += 1
def publish(a, lab):
    a(f"s_lshl_b32 s{S_T1}, s2, 2")
    a(f"s_or_b32 s{S_T1}, s{S_T1}, s{S_CW}")
    a(f"s_cmp_eq_u32 s{S_T1}, 0")
    a(f"s_cbranch_scc0 {lab}")
    a(f"v_mov_b32 v{C_T}, 1")
    a("s_mov_b64 exec, 1")
    a(f"buffer_store_dword v{C_T}, off, {R(SRD_DBG)}, 0 sc1")
    a("s_mov_b64 exec, -1")
    a.label(lab)
def body1(a):
    for n in range(9):
        block1(a, reads_step1(SETS[1], n, 1), mfmas1(SETS[0]))
        if n == 1 and 'latepub' in opt:
            a("s_cmp_eq_u32 s2, 0")
            a("s_cbranch_scc0 L_NW0")
            a("s_waitcnt vmcnt(0)")
            a.label("L_NW0")
        if n < 8:
            a("s_barrier")
            if n == 1 and 'latepub' in opt: publish(a, "L_PUB0")
            if 'diag' in opt:
                a("s_memtime s[96:97]\ns_waitcnt lgkmcnt(0)")
                a(f"s_mov_b32 s{60+n}, s96")
            block1(a, reads_step1(SETS[0], n+1, 0), mfmas1(SETS[1]))
        else:
            block1(a, None, mfmas1(SETS[1]))
            if 'diag' in opt:
                a("s_memtime s[96:97]\ns_waitcnt lgkmcnt(0)")
                a(f"s_mov_b32 s68, s96")

NEED = [3, 5, 8, 10, 13]
def block(a, r, m):
    k = 0
    for u in range(5):
        a(f"s_waitcnt lgkmcnt({13 - NEED[u] + k})")
        a(m[u])
        if r:
            for _ in range(3 if u < 4 else 1):
                a(r[k]); k += 1

def body(a):
    for n in range(9):
        block(a, reads_step(SETS[1], n, 1), mfmas(SETS[0]))
        if n == 1:
            poll_pub(a, "C", C_T, preloaded=True)
            a("s_mov_b64 exec, 1")
            a(f"buffer_store_dword v{C_T+3}, off, {R(SRD_WS)}, s{S_FLG} sc1")
            a("s_mov_b64 exec, -1")
            if FILLM(): compute_fill(a)
            if 'flagbar' in opt: a("s_barrier")
            if 'onepoll' in opt: a("s_barrier")
        fp = 4
        for o in opt:
            if o.startswith('fp'): fp = int(o[2])
        if n == fp and FILLM():
            a("s_waitcnt vmcnt(0)")
            a(f"s_add_u32 s{S_FLG}, s{S_FLG}, {FLAG2_D}")
            a("s_mov_b64 exec, 1")
            a(f"buffer_store_dword v{C_T+3}, off, {R(SRD_WS)}, s{S_FLG} sc1")
            a("s_mov_b64 exec, -1")
        if n < 8:
            a("s_barrier")
            if 'diag' in opt:
                a("s_memtime s[96:97]\ns_waitcnt lgkmcnt(0)")
                a(f"s_mov_b32 s{70+n}, s96")
            block(a, reads_step(SETS[0], n+1, 0), mfmas(SETS[1]))
        else:
            block(a, None, mfmas(SETS[1]))
            if 'diag' in opt:
                a("s_memtime s[96:97]\ns_waitcnt lgkmcnt(0)")
                a(f"s_mov_b32 s78, s96")

def zero_acc(a):
    for i in range(0, 36, 2): a(f"v_pk_mov_b32 v[{ACC+i}:{ACC+i+1}], 0, 0")

def silu4(a, x, e):
    for r in (0, 2): a(f"v_pk_mul_f32 v[{e+r}:{e+r+1}], v[{x+r}:{x+r+1}], s[{S_K}:{S_K+1}]")
    for r in range(4): a(f"v_exp_f32 v{e+r}, v{e+r}")
    for r in (0, 2): a(f"v_pk_add_f32 v[{e+r}:{e+r+1}], v[{e+r}:{e+r+1}], 1.0 op_sel_hi:[1,0]")
    for r in range(4): a(f"v_rcp_f32 v{e+r}, v{e+r}")
    for r in (0, 2): a(f"v_pk_mul_f32 v[{x+r}:{x+r+1}], v[{x+r}:{x+r+1}], v[{e+r}:{e+r+1}]")

def compute_fill(a):
    W = R(SRD_WS)
    a(f"s_mul_i32 s{S_T1}, s{S_CW}, 4608")
    a(f"s_add_u32 s{S_T0}, s{S_INB}, s{S_T1}")
    for i in range(4): a(f"v_mov_b32 v{C_E+4+i}, -1")
    a(f"v_lshlrev_b32 v{C_E}, 4, v0")
    a(f"v_min_u32 v{C_E+1}, 31, v0")
    a(f"v_lshlrev_b32 v{C_E+1}, 4, v{C_E+1}")
    for i in range(4):
        a(f"buffer_store_dwordx4 v[{C_E+4}:{C_E+7}], v{C_E}, {W}, s{S_T0} offen offset:{1024*i} sc1")
    a(f"s_add_u32 s{S_T0}, s{S_T0}, 4096")
    a(f"buffer_store_dwordx4 v[{C_E+4}:{C_E+7}], v{C_E+1}, {W}, s{S_T0} offen sc1")

def compute(a):
    DIAGC[0] = True
    t0, t1, t2, t3 = C_T, C_T+1, C_T+2, C_T+3
    W = R(SRD_WS)
    a(f"s_and_b32 s{S_T0}, s{S_CW}, 1")
    a(f"s_lshr_b32 s{S_T1}, s{S_CW}, 1")
    a(f"v_lshrrev_b32 v{t0}, 2, v0")
    a(f"v_mul_u32_u24 v{t0}, 288, v{t0}")
    a(f"v_and_b32 v{t1}, 3, v0")
    a(f"v_lshl_add_u32 v{t0}, v{t1}, 3, v{t0}")
    a(f"v_add_u32 v{C_A8}, 256, v{t0}")
    a(f"v_add_u32 v{C_A8+1}, {2*WST}, v{C_A8}")
    a(f"v_add_u32 v{C_A8+2}, {4*WST}, v{C_A8}")
    a(f"s_lshl_b32 s{S_T2}, s{S_T0}, 7")
    a(f"v_add_u32 v{C_A32}, s{S_T2}, v{t0}")
    a(f"v_add_u32 v{C_A32+1}, {2*WST}, v{C_A32}")
    a(f"v_add_u32 v{C_A32+2}, {4*WST}, v{C_A32}")
    a(f"v_bfe_u32 v{t0}, v0, 2, 2")
    a(f"v_mul_u32_u24 v{t0}, 576, v{t0}")
    a(f"v_lshl_add_u32 v{t0}, v{t1}, 3, v{t0}")
    a(f"v_lshrrev_b32 v{t1}, 4, v0")
    a(f"v_mul_u32_u24 v{t2}, 2304, v{t1}")
    a(f"v_add_u32 v{t2}, v{t2}, v{t0}")
    a(f"v_add_u32 v{C_P2+1}, 256, v{t2}")
    a(f"v_lshrrev_b32 v{t2}, 5, v0")
    a(f"v_mul_u32_u24 v{t2}, 2304, v{t2}")
    a(f"v_add_u32 v{t0}, v{t0}, v{t2}")
    a(f"v_and_b32 v{t1}, 1, v{t1}")
    a(f"v_lshl_add_u32 v{t0}, v{t1}, 5, v{t0}")
    a(f"s_lshl_b32 s{S_T2}, s{S_T0}, 7")
    a(f"v_add_u32 v{C_P2}, s{S_T2}, v{t0}")
    a(f"s_mul_i32 s{S_T1}, s{S_T1}, {MHB}")
    a(f"s_add_u32 s{S_T1}, s{S_T1}, {LB}")
    a(f"v_and_b32 v{t0}, 15, v0")
    a(f"v_lshrrev_b32 v{t1}, 1, v{t0}")
    a(f"v_lshlrev_b32 v{t0}, 7, v{t0}")
    a(f"v_add_u32 v{t0}, s{S_T1}, v{t0}")
    a(f"v_lshrrev_b32 v{t3}, 4, v0")
    a(f"v_xor_b32 v{t3}, v{t3}, v{t1}")
    a(f"v_lshlrev_b32 v{t3}, 4, v{t3}")
    a(f"v_add_u32 v{C_B32}, v{t0}, v{t3}")
    a(f"v_xor_b32 v{t3}, 64, v{t3}")
    a(f"v_add_u32 v{C_B32+1}, v{t0}, v{t3}")
    a(f"s_lshl_b32 s{S_T2}, s{S_T0}, 11")
    a(f"v_add_u32 v{C_B8}, s{S_T2}, v{C_B32}")
    a(f"v_add_u32 v{C_B8+1}, s{S_T2}, v{C_B32+1}")
    zero_acc(a)
    group_bases(a)
    inbox_block(a, S_PA)
    a(f"s_mul_i32 s{S_T0}, s{S_XG}, 18432")
    a(f"s_add_u32 s{S_INB}, s{S_PA}, s{S_T0}")
    a(f"s_mul_i32 s{S_T0}, s{S_XG}, 2304")
    a(f"s_add_u32 s{S_PA}, s{S_PA}, s{S_T0}")
    a(f"s_mul_i32 s{S_T0}, s{S_CW}, {2*18432}")
    a(f"s_add_u32 s{S_PS}, s{S_PA}, s{S_T0}")
    a(f"s_add_u32 s{S_PS}, s{S_PS}, 2048")
    a(f"s_lshr_b32 s{S_T0}, s{S_CW}, 1")
    a(f"s_mul_i32 s{S_T0}, s{S_T0}, {4*18432}")
    a(f"s_add_u32 s{S_PA}, s{S_PA}, s{S_T0}")
    a(f"s_and_b32 s{S_T0}, s{S_CW}, 1")
    a(f"s_lshl_b32 s{S_T0}, s{S_T0}, 10")
    a(f"s_add_u32 s{S_PA}, s{S_PA}, s{S_T0}")
    a(f"s_lshr_b32 s{S_T0}, s{S_CW}, 1")
    a(f"s_mul_i32 s{S_T0}, s{S_T0}, {MHS}")
    a(f"s_add_u32 s{S_T0}, s{S_T0}, s{S_HB}")
    a(f"s_mul_i32 s{S_T1}, s{S_J}, {9*1024}")
    a(f"s_add_u32 s{S_T0}, s{S_T0}, s{S_T1}")
    a(f"s_and_b32 s{S_T1}, s{S_CW}, 1")
    a(f"s_lshl_b32 s{S_T2}, s{S_T1}, 12")
    a(f"s_add_u32 s{S_HST}, s{S_T0}, s{S_T2}")
    a(f"s_lshl_b32 s{S_T2}, s{S_T1}, 8")
    a(f"s_add_u32 s{S_HSP}, s{S_T0}, s{S_T2}")
    a(f"s_add_u32 s{S_HSP}, s{S_HSP}, {8*1024}")
    a(f"s_lshl_b32 s{S_FLG}, s{S_GRP}, {6 if FSPLIT() else 5}")
    a(f"s_lshl_b32 s{S_T0}, s{S_J}, {4 if FSPLIT() else 2}")
    a(f"s_add_u32 s{S_T0}, s{S_T0}, s{S_CW}")
    a(f"s_lshl_b32 s{S_T0}, s{S_T0}, 2")
    a(f"s_add_u32 s{S_FLG}, s{S_FLG}, s{S_T0}")
    a(f"s_add_u32 s{S_FLG}, s{S_FLG}, {FLAG_OFF}")
    a(f"s_mov_b32 s{S_K}, 0xbfb8aa3b")
    a(f"s_mov_b32 s{S_K+1}, 0xbfb8aa3b")
    a(f"s_mov_b32 s{S_PH}, 0")
    a("s_waitcnt lgkmcnt(0)")
    srd(a, SRD_WS, S_WS, WS_BYTES)
    srd(a, SRD_DBG, S_DBG, 256)
    a(f"v_lshlrev_b32 v{C_E}, 4, v0")
    if not spread() and not FILLM() and not FILL8():
        a(f"s_mul_i32 s{S_T1}, s{S_CW}, 4608")
        a(f"s_add_u32 s{S_T0}, s{S_INB}, s{S_T1}")
        for i in range(4): a(f"v_mov_b32 v{C_E+4+i}, -1")
        a(f"v_lshlrev_b32 v{C_E}, 4, v0")
        a(f"v_min_u32 v{C_E+1}, 31, v0")
        a(f"v_lshlrev_b32 v{C_E+1}, 4, v{C_E+1}")
        for i in range(4):
            a(f"buffer_store_dwordx4 v[{C_E+4}:{C_E+7}], v{C_E}, {W}, s{S_T0} offen offset:{1024*i} sc1")
        a(f"s_add_u32 s{S_T0}, s{S_T0}, 4096")
        a(f"buffer_store_dwordx4 v[{C_E+4}:{C_E+7}], v{C_E+1}, {W}, s{S_T0} offen sc1")
    a(f"s_cmp_eq_u32 s2, 0")
    a("s_cbranch_scc0 L_NOCLR")
    nkb = 8 if FILLM() else (4 if FSPLIT() else 2)
    a(f"s_mul_i32 s{S_T0}, s{S_CW}, {1024*nkb}")
    a(f"s_add_u32 s{S_T0}, s{S_T0}, {FLAG_OFF}")
    a(f"v_pk_mov_b32 v[{SETS[1]}:{SETS[1]+1}], 0, 0\nv_pk_mov_b32 v[{SETS[1]+2}:{SETS[1]+3}], 0, 0")
    for i in range(nkb):
        if i == 4: a(f"s_add_u32 s{S_T0}, s{S_T0}, 4096")
        a(f"buffer_store_dwordx4 v[{SETS[1]}:{SETS[1]+3}], v{C_E}, {W}, s{S_T0} offen offset:{1024*(i%4)} sc1")
    if 'latepub' not in opt:
        a("s_waitcnt vmcnt(0)")
    a.label("L_NOCLR")
    a("s_barrier")
    if 'clk1' in opt: a("s_memtime s[100:101]")
    stampw(a, 1)
    for ins in reads_step1(SETS[0], 0, 0): a(ins)
    if 'latepub' not in opt: publish(a, "L_BODY0")
    a.label("L_BODY")
    body1(a)
    a("s_barrier")
    stamp(a, 2)
    if 'clk1' in opt:
        a("s_memtime s[96:97]\ns_waitcnt lgkmcnt(0)\ns_sub_u32 s78, s96, s100\ns_mov_b32 s79, 0")
    a("s_waitcnt vmcnt(0)")
    a(f"buffer_load_dword v{t0}, off, {R(SRD_DBG)}, 0 sc1")
    a(f"v_lshlrev_b32 v{t1}, 4, v0")
    a(f"s_lshr_b32 s{S_T0}, s{S_CW}, 1")
    a(f"s_mul_i32 s{S_T0}, s{S_T0}, {MHB}")
    a(f"s_add_u32 s{S_T0}, s{S_T0}, {LB}")
    a(f"s_and_b32 s{S_T1}, s{S_CW}, 1")
    a(f"s_lshl_b32 s{S_T2}, s{S_T1}, 12")
    a(f"s_add_u32 s{S_T2}, s{S_T2}, s{S_T0}")
    a(f"v_add_u32 v{t2}, s{S_T2}, v{t1}")
    P = SETS[0]
    x = ACC + 32
    silu4(a, x, C_E)
    a(f"v_cvt_pk_bf16_f32 v{P+16}, v{x}, v{x+1}")
    a(f"v_cvt_pk_bf16_f32 v{P+17}, v{x+2}, v{x+3}")
    a(f"v_mov_b32 v{P+18}, v{P+16}")
    a(f"v_mov_b32 v{P+19}, v{P+17}")
    a(f"v_bfe_u32 v{t3}, v0, 4, 1")
    a(f"v_lshlrev_b32 v{t3}, 9, v{t3}")
    a(f"v_and_b32 v{C_E+4}, 15, v0")
    a(f"v_lshl_add_u32 v{t3}, v{C_E+4}, 4, v{t3}")
    a(f"v_permlane32_swap_b32 v{P+16}, v{P+18}")
    a(f"v_permlane32_swap_b32 v{P+17}, v{P+19}")
    a("s_mov_b32 exec_hi, 0")
    a(f"buffer_store_dwordx4 v[{P+16}:{P+19}], v{t3}, {W}, s{S_HSP} offen sc1")
    a("s_mov_b32 exec_hi, -1")
    for t in range(4):
        xe, xo = ACC + 4*t, ACC + 16 + 4*t
        d = P + 4*t
        silu4(a, xe, C_E); silu4(a, xo, C_E+4)
        a(f"v_cvt_pk_bf16_f32 v{d}, v{xe}, v{xe+1}")
        a(f"v_cvt_pk_bf16_f32 v{d+1}, v{xe+2}, v{xe+3}")
        a(f"v_cvt_pk_bf16_f32 v{d+2}, v{xo}, v{xo+1}")
        a(f"v_cvt_pk_bf16_f32 v{d+3}, v{xo+2}, v{xo+3}")
        a("s_nop 1")
        a(f"v_permlane16_swap_b32 v{d}, v{d+2}")
        a(f"v_permlane16_swap_b32 v{d+1}, v{d+3}")
        a("s_nop 1")
        a(f"v_permlane32_swap_b32 v{d}, v{d+2}")
        a(f"v_permlane32_swap_b32 v{d+1}, v{d+3}")
        a(f"buffer_store_dwordx4 v[{d}:{d+3}], v{t1}, {W}, s{S_HST} offen offset:{1024*t} sc1")
        a(f"ds_write_b128 v{t2}, v[{d}:{d+3}] offset:{1024*t}")
    stamp(a, 8)
    for k4 in range(4):
        if k4 == 0: a(f"v_add_u32 v{C_B32}, s{S_T0}, v{t1}")
        else:       a(f"v_add_u32 v{C_B32+k4}, {1024*k4}, v{C_B32}")
    a(f"v_lshrrev_b32 v{t2}, 4, v0")
    a(f"v_lshlrev_b32 v{t2}, 9, v{t2}")
    a(f"v_and_b32 v{t3}, 15, v0")
    a(f"v_lshl_add_u32 v{t2}, v{t3}, 4, v{t2}")
    a(f"s_lshl_b32 s{S_T1}, s{S_T1}, 8")
    a(f"s_add_u32 s{S_T0}, s{S_T0}, s{S_T1}")
    a(f"v_add_u32 v{C_B8}, s{S_T0}, v{t2}")
    a(f"v_add_u32 v{C_B8+1}, 2048, v{C_B8}")
    for b, src in ((C_A32, C_P2), (C_A8, C_P2+1)):
        a(f"v_add_u32 v{b}, {4*WST}, v{src}")
        a(f"v_mov_b32 v{b+1}, v{src}")
        a(f"v_add_u32 v{b+2}, {2*WST}, v{src}")
    zero_acc(a)
    a(f"v_mov_b32 v{t3}, 1")
    a(f"s_mov_b32 s{S_PH}, 1")
    a("s_waitcnt lgkmcnt(0)")
    a("s_barrier")
    stampw(a, 3)
    for ins in reads_step(SETS[0], 0, 0): a(ins)
    body(a)
    a.label("L_EPI2")
    stamp(a, 5)
    a(f"v_bfe_u32 v{t0}, v0, 3, 2")
    a(f"v_mul_u32_u24 v{t0}, 18432, v{t0}")
    a(f"v_lshrrev_b32 v{t1}, 5, v0")
    a(f"v_lshl_add_u32 v{t0}, v{t1}, 7, v{t0}")
    a(f"v_and_b32 v{t1}, 7, v0")
    a(f"v_lshl_add_u32 v{t0}, v{t1}, 4, v{t0}")
    a(f"v_lshrrev_b32 v{t2}, 4, v0")
    a(f"v_lshl_add_u32 v{t2}, v{t2}, 3, v{t1}")
    a(f"v_bfe_u32 v{t1}, v0, 3, 1")
    a(f"v_mul_u32_u24 v{t1}, 18432, v{t1}")
    a(f"v_lshl_add_u32 v{t1}, v{t2}, 3, v{t1}")
    a(f"s_mov_b32 s{S_K}, 0xfffffffe")
    P = SETS[0]
    for c in range(2):
        for hb in range(2):
            x = ACC + 16*c + 8*hb
            d = P + 4*(2*c + hb)
            for i in range(4): a(f"v_cvt_pk_bf16_f32 v{d+i}, v{x+2*i}, v{x+2*i+1}")
            for i in range(4): a(f"v_min_u32 v{d+i}, s{S_K}, v{d+i}")
            a(f"buffer_store_dwordx4 v[{d}:{d+3}], v{t0}, {W}, s{S_PA} offen offset:{256*(2*c+hb)} sc1")
    x = ACC + 32
    a(f"v_cvt_pk_bf16_f32 v{P+16}, v{x}, v{x+1}")
    a(f"v_cvt_pk_bf16_f32 v{P+17}, v{x+2}, v{x+3}")
    for d in range(2): a(f"v_min_u32 v{P+16+d}, s{S_K}, v{P+16+d}")
    a(f"buffer_store_dwordx2 v[{P+16}:{P+17}], v{t1}, {W}, s{S_PS} offen sc1")
    if 'ackE' in opt: a("s_waitcnt vmcnt(0)")
    a("s_barrier")
    stamp(a, 6)
    a(f"s_cmp_eq_u32 s{S_CW}, 0")
    a("s_cbranch_scc0 L_CDONE")
    reducer(a, "C", single=True)
    reducer_run(a, "C", single=True)
    a.label("L_CDONE")
    if 'ts' in opt or amp_on(): a("s_waitcnt vmcnt(0)")
    stamp(a, 7)
    amp_spin(a)
    if 'clk' in opt:
        a("s_memtime s[96:97]")
        a("s_waitcnt lgkmcnt(0)")
        a("s_sub_u32 s78, s96, s100")
        a("s_mov_b32 s79, 0")
    dump_stamps(a, 0, 10 if ('clk' in opt or 'clk1' in opt or 'diag' in opt) else 9, "C", 0)

def kernel_main(a):
    name = KNAME
    a(f".globl {name}\n.p2align 8\n.type {name},@function\n{name}:")
    a(f"s_cmp_ge_u32 s2, 256")
    a(f"s_cbranch_scc1 L_END")
    stamp(a, 0)
    if 'clk' in opt: a("s_memtime s[100:101]")
    a("s_load_dwordx8 s[4:11], s[0:1], 0")
    a("s_load_dwordx4 s[12:15], s[0:1], 32")
    a("v_lshrrev_b32 v1, 6, v0")
    a("v_and_b32 v0, 63, v0")
    a(f"v_readfirstlane_b32 s{S_WV}, v1")
    if 'xmap' in opt:
        a(f"s_and_b32 s{S_J}, s2, 3")
        a(f"s_lshr_b32 s{S_XG}, s2, 2")
        a(f"s_and_b32 s{S_XG}, s{S_XG}, 7")
    else:
        a(f"s_and_b32 s{S_XG}, s2, 7")
        a(f"s_lshr_b32 s{S_J}, s2, 3")
        a(f"s_and_b32 s{S_J}, s{S_J}, 3")
    a(f"s_lshr_b32 s{S_MT}, s2, 5")
    a("s_nop 0")
    a(f"s_and_b32 s{S_CW}, s{S_WV}, 3")
    a(f"s_cmp_lt_u32 s{S_WV}, 4")
    a("s_cbranch_scc1 L_COMPUTE")
    loader(a)
    a.label("L_COMPUTE")
    compute(a)
    a.label("L_END")
    a("s_endpgm")
    a.label("L_CODE_END")
    a(kd(name, vgpr=132, sgpr=102))

def check_barriers(lines):
    iL = lines.index("L_LOADER:"); iC = lines.index("L_COMPUTE:")
    cnt = lambda seg: sum(1 for ln in seg if ln.strip() == "s_barrier")
    seg = lines[iL:iC]
    i1 = seg.index("L_LD1:"); i2 = seg.index("s_cbranch_scc1 L_LD1")
    nl = cnt(seg) + 5*cnt(seg[i1:i2])
    nc = cnt(lines[iC:])
    assert nl == nc, f"barrier mismatch loader {nl} compute {nc}"
    return nl

def main():
    for o in sys.argv[2:]: opt.add(o)
    a = Asm()
    a(HEADER.rstrip())
    a(f"; @launch grid=(256,1,1) block=(512,1,1) lds={LDS_BYTES}")
    a('.amdgcn_target "amdgcn-amd-amdhsa--gfx950"')
    a(".text")
    kernel_main(a)
    check_barriers(a.lines)
    open(sys.argv[1], "w").write(a.text())

main()
```
